```python
import torch

def _softmax(x, axis=-1):
    return torch.softmax(x, dim=axis)

def _gelu(x):
    return torch.nn.functional.gelu(x, approximate='tanh')

def _silu(x):
    return torch.nn.functional.silu(x)

def _sigmoid(x):
    return torch.sigmoid(x)

def _layernorm(x, axis=-1, eps=1e-05):
    m = x.mean(dim=axis, keepdim=True)
    v = x.var(dim=axis, keepdim=True, unbiased=False)
    return (x - m) / torch.sqrt(v + eps)

def _scatter_add(tgt, idx, src, axis=0):
    return tgt.clone().index_add_(axis, idx, src)

def _segment_sum(src, seg, n):
    out = torch.zeros((n,) + src.shape[1:], dtype=src.dtype)
    return out.index_add_(0, seg, src)

def _pad(x, pw):
    flat = tuple((v for pair in reversed(pw) for v in pair))
    return torch.nn.functional.pad(x, flat)
kernel_name = 'adaLN_cond__gqa_block_cached__glu_gated_geglu__decode'

def setup_inputs():

    _w = lambda a: (lambda t: t.to(torch.bfloat16) if t.is_floating_point() else t)(torch.as_tensor(a))

    def _A_setup():
        B, Sq, D = (8, 1, 576)
        Hq, Hkv, Sk, Dh = (32, 16, 8192, 128)
        assert Hq % Hkv == 0, (Hq, Hkv)
        return {'x': _w((lambda *s: torch.randn(*s, dtype=torch.bfloat16) * 0.1)(B, Sq, D)), 'k_cache': _w((lambda *s: torch.randn(*s, dtype=torch.bfloat16) * 0.8)(B, Hkv, Sk, Dh)), 'v_cache': _w((lambda *s: torch.randn(*s, dtype=torch.bfloat16) * 3.2)(B, Hkv, Sk, Dh)), 'wq': _w((lambda *s: torch.randn(*s, dtype=torch.bfloat16) * 0.8)(D, Hq * Dh) * D ** (-0.5)), 'wo': _w((lambda *s: torch.randn(*s, dtype=torch.bfloat16) * 3.2)(Hq * Dh, D) * (Hq * Dh) ** (-0.5))}
    _A_in = _A_setup()

    def _B_setup():
        B, S, Dm, Df = (8, 1, 576, 4608)
        return {'x': _w((lambda *s: torch.randn(*s, dtype=torch.bfloat16) * 0.1)(B, S, Dm)), 'w_gate': _w((lambda *s: torch.randn(*s, dtype=torch.bfloat16) * 3.2)(Dm, Df) * Dm ** (-0.5)), 'w_up': _w((lambda *s: torch.randn(*s, dtype=torch.bfloat16) * 3.2)(Dm, Df) * Dm ** (-0.5)), 'w_down': _w((lambda *s: torch.randn(*s, dtype=torch.bfloat16) * 3.2)(Df, Dm) * Df ** (-0.5))}
    _B_in = _B_setup()
    return {'A_x': _A_in['x'], 'A_k_cache': _A_in['k_cache'], 'A_v_cache': _A_in['v_cache'], 'A_wq': _A_in['wq'], 'A_wo': _A_in['wo'], 'B_x': _B_in['x'], 'B_w_gate': _B_in['w_gate'], 'B_w_up': _B_in['w_up'], 'B_w_down': _B_in['w_down'], 'c': _w((lambda *s: torch.randn(*s, dtype=torch.bfloat16) * 0.4)(8, 576) * 8.0), 'w_mod': _w((lambda *s: torch.randn(*s, dtype=torch.bfloat16) * 0.4)(576, 6 * 576) * 576 ** (-0.5) * 8.0)}

def reference(A_x, A_k_cache, A_v_cache, A_wq, A_wo, B_x, B_w_gate, B_w_up, B_w_down, c, w_mod):

    def _A_ref(x, k_cache, v_cache, wq, wo):
        B, Sq, D = x.shape
        Hq, Dh = (32, 128)
        Hkv = k_cache.shape[1]
        rep = Hq // Hkv
        q = (lambda x, *d: x.permute(*d))((x @ wq).reshape(B, Sq, Hq, Dh), 0, 2, 1, 3)
        k = (lambda x, n, axis: torch.repeat_interleave(x, n, dim=axis))(k_cache, rep, axis=1)
        v = (lambda x, n, axis: torch.repeat_interleave(x, n, dim=axis))(v_cache, rep, axis=1)
        scores = torch.einsum('bhqd,bhkd->bhqk', q, k) * Dh ** (-0.5)
        p = _softmax(scores, axis=-1)
        o = torch.einsum('bhqk,bhkd->bhqd', p, v)
        return (lambda x, *d: x.permute(*d))(o, 0, 2, 1, 3).reshape(B, Sq, Hq * Dh) @ wo

    def _B_ref(x, w_gate, w_up, w_down):
        g = torch.einsum('bsd,df->bsf', x, w_gate)
        u = torch.einsum('bsd,df->bsf', x, w_up)
        h = _gelu(g) * u
        return torch.einsum('bsf,fd->bsd', h, w_down)
    x = A_x
    mod = (_silu(c) @ w_mod).reshape(c.shape[0], 6, 1, -1)
    sa, ca, ga, sb, cb, gb = (mod[:, 0].clone(), mod[:, 1].clone(), mod[:, 2].clone(), mod[:, 3].clone(), mod[:, 4].clone(), mod[:, 5].clone())
    h = _layernorm(x, axis=-1) * (1 + ca) + sa
    x = x + ga * _A_ref(h, A_k_cache, A_v_cache, A_wq, A_wo)
    h = _layernorm(x, axis=-1) * (1 + cb) + sb
    x = x + gb * _B_ref(h, B_w_gate, B_w_up, B_w_down)
    return x
```

```python
import re

TRANS = ('v_exp_f32', 'v_log_f32', 'v_rcp_f32', 'v_rsq_f32', 'v_sqrt_f32', 'v_sin_f32', 'v_cos_f32')

def regs_of(tok):
    tok = tok.strip()
    tok = tok.lstrip('-')
    m = re.fullmatch(r'abs\((.*)\)', tok) or re.fullmatch(r'\|(.*)\|', tok)
    if m: tok = m.group(1)
    m = re.fullmatch(r'([vs])\[(\d+):(\d+)\]', tok)
    if m: return {f'{m.group(1)}{i}' for i in range(int(m.group(2)), int(m.group(3)) + 1)}
    m = re.fullmatch(r'([vs])(\d+)', tok)
    if m: return {tok}
    if tok in ('vcc', 'vcc_lo', 'vcc_hi'): return {'vcc'}
    if tok in ('exec', 'exec_lo', 'exec_hi'): return {'exec'}
    if tok == 'm0': return {'m0'}
    return set()

class Ins:
    def __init__(self, text):
        self.text = text
        t = text.split(';')[0].strip()
        parts = t.split(None, 1)
        self.op = parts[0]
        rest = parts[1] if len(parts) > 1 else ''
        ops, depth, cur = [], 0, ''
        for ch in rest:
            if ch in '[(': depth += 1
            if ch in '])': depth -= 1
            if ch == ',' and depth == 0:
                ops.append(cur.strip()); cur = ''
            else: cur += ch
        if cur.strip(): ops.append(cur.strip())
        mods = ''
        if ops:
            last = ops[-1].split(None, 1)
            ops[-1] = last[0]
            mods = last[1] if len(last) > 1 else ''
        self.ops, self.mods = ops, mods
        op = self.op
        R = [regs_of(o) for o in ops]
        U = lambda xs: set().union(*xs) if xs else set()
        self.cls = 'other'; self.w = set(); self.r = set()
        self.dpp = op.endswith('_dpp')
        self.A = self.B = self.C = set()
        if op.startswith('v_mfma'):
            self.cls = 'mfma'; self.w = R[0]; self.A, self.B, self.C = R[1], R[2], R[3]; self.r = U(R[1:])
        elif op.startswith('v_permlane') and 'swap' in op:
            self.cls = 'valu'; self.w = U(R[:2]); self.r = U(R[:2])
        elif op.startswith('v_'):
            self.cls = 'valu'; self.w = R[0]; self.r = U(R[1:])
            if op.startswith(('v_fmac', 'v_mac', 'v_dot2c')) or self.dpp: self.r |= R[0]
            if op.startswith(('v_add_co', 'v_sub_co', 'v_addc_co', 'v_subb_co')):
                self.w = R[0] | R[1]; self.r = U(R[2:])
        elif op.startswith(('buffer_', 'global_')):
            self.cls = 'vmem'
            self.lds = bool(re.search(r'\blds\b', mods))
            if op.startswith('buffer_load') and not self.lds:
                self.w = R[0]; self.r = U(R[1:])
            elif op.startswith('global_load'):
                self.w = R[0]; self.r = U(R[1:])
            elif 'atomic' in op and 'sc0' in mods:
                self.w = R[0]; self.r = U(R)
            else:
                self.r = U(R)
            self.wide_data = set()
            if re.search(r'store_dwordx[34]', op):
                self.wide_data = R[0] if op.startswith('buffer') else R[1]
        elif op.startswith('ds_'):
            self.cls = 'ds'
            if op.startswith('ds_read') or '_rtn' in op or 'permute' in op:
                self.w = R[0]; self.r = U(R[1:])
            else: self.r = U(R)
        elif op.startswith('s_'):
            self.cls = 'salu'
            if op.startswith(('s_cmp', 's_cbranch', 's_branch', 's_waitcnt', 's_nop', 's_sleep', 's_barrier', 's_endpgm', 's_setprio', 's_bitcmp')):
                self.r = U(R)
            else:
                self.w = R[0] if R else set(); self.r = U(R[1:])

def need(ev, ins):
    kind, regs, _ = ev
    op = ins.op
    if kind in ('valu', 'trans'):
        vr = {x for x in regs if x[0] == 'v' and x != 'vcc'}
        sr = regs - vr
        n = 0
        if vr & ins.r:
            if ins.cls == 'mfma': n = max(n, 2)
            if ins.cls == 'valu':
                if ins.dpp or op.startswith('v_permlane'): n = max(n, 2)
                if op.startswith(('v_readfirstlane', 'v_readlane')): n = max(n, 1)
                if kind == 'trans': n = max(n, 1)
        if sr & ins.r:
            if ins.cls in ('valu', 'mfma'): n = max(n, 4 if op.startswith(('v_readlane', 'v_writelane')) else 2)
            if ins.cls == 'vmem': n = max(n, 5)
            if ins.cls == 'salu': n = max(n, 1)
        if 'vcc' in sr and op.startswith('s_cbranch_vcc'): n = max(n, 1)
        return n
    if kind == 'mfma':
        if ins.cls == 'mfma':
            if regs & (ins.A | ins.B): return 8
            if regs & ins.C: return 0 if regs == ins.C else 6
            if regs & ins.w: return 0 if regs == ins.w else 6
            return 0
        if ins.cls in ('valu', 'vmem', 'ds') and regs & (ins.r | ins.w): return 8
        return 0
    if kind == 'mfmaC':
        if ins.cls == 'valu' and regs & ins.w: return 3
        return 0
    if kind == 'm0':
        if ins.cls == 'vmem' and ins.lds: return 1
        return 0
    if kind == 'store':
        if regs & ins.w and ins.cls in ('valu', 'ds', 'vmem', 'mfma'): return 2
        return 0
    return 0

def events_of(ins):
    ev = []
    if ins.cls == 'valu' and ins.w:
        ev.append(['trans' if ins.op.replace('_e32', '').replace('_e64', '') in TRANS else 'valu', ins.w, 0])
    if ins.cls == 'mfma':
        ev.append(['mfma', ins.w, 0])
        if ins.C and ins.C != ins.w: ev.append(['mfmaC', ins.C, 0])
    if ins.cls == 'salu' and 'm0' in ins.w: ev.append(['m0', {'m0'}, 0])
    if ins.cls == 'vmem' and ins.wide_data: ev.append(['store', ins.wide_data, 0])
    return ev

def fix_hazards(lines):
    items = []
    for l in lines:
        s = l.strip()
        if not s or s.startswith(';') or s.startswith('.'): items.append(('raw', l))
        elif re.fullmatch(r'[\w.$]+:', s): items.append(('label', s[:-1]))
        else: items.append(('ins', Ins(s)))
    incoming = {}
    for _ in range(3):
        out, st, newin = [], [], {}
        for kind, x in items:
            if kind == 'raw': out.append(x); continue
            if kind == 'label':
                st = st + [list(e) for e in incoming.get(x, [])]
                out.append(x + ':'); continue
            n = max([need(e, x) - e[2] for e in st] + [0])
            if n > 0:
                out.append(f'    s_nop {n-1}')
                for e in st: e[2] += n
            out.append('    ' + x.text)
            adv = 1
            if x.op == 's_nop': adv = int(x.ops[0], 0) + 1
            for e in st: e[2] += adv
            st = [e for e in st if e[2] < 10] + events_of(x)
            if x.op.startswith(('s_cbranch', 's_branch')):
                newin.setdefault(x.ops[0], []).extend([list(e) for e in st])
            if x.op in ('s_branch', 's_endpgm'): st = []
        incoming = newin
    return out

class K:
    def __init__(self): self.L = []; self._n = 0
    def __call__(self, s):
        for l in s.split('\n'):
            if l.strip(): self.L.append(l.strip())
    def lab(self, name): self.L.append(name + ':')
    def new(self, p='L'):
        self._n += 1; return f'{p}_{self._n}'
    def c(self, s): self.L.append('; ' + s)

def vr(a, n=1): return f'v{a}' if n == 1 else f'v[{a}:{a+n-1}]'
def sr(a, n=1): return f's{a}' if n == 1 else f's[{a}:{a+n-1}]'
```

```python
import sys
from asmlib import K, fix_hazards, vr, sr

NAME = 'adaLN_cond__gqa_block_cached__glu_gated_geglu__decode'
WS_H, WS_MOD, WS_Q, WS_OP, WS_AP, WS_YP, WS_PROF = 0x10000, 0x20000, 0x40000, 0x80000, 0x300000, 0x400000, 0xA00000
WS_CTR = 0x1000
WS_SIZE = 0x1000000
L_STG, L_PT, L_Q, L_RED, L_FLG, L_STA, L_GST, L_GU = 0, 110592, 151552, 155648, 159744, 160000, 160064, 160128
L_WPART = 65536
LDS_BYTES = 161280
F_CNT, F_QRDY, F_P1, F_P2, F_WCNT, F_G1, F_G2 = 0, 32, 36, 40, 64, 96, 112
LOG2E = 0x3FB8AA3B
SCALE = 0x3DB504F3
TIMEOUT = 200000

def gen(PROF=False, ROT=25, PRE_TH=4, SLEEP=8, STG_TH=4, DBG=''):
    k = K()
    sWS, sTAG, sEP, sHKV, sS, sX, sIP, sR, sW = 4, 8, 9, 10, 11, 12, 13, 14, 15
    pX, pK, pV, pWQ, pWO, pGA, pUP, pDN, pC, pWM, pOUT, pWSP = 16, 18, 20, 22, 24, 28, 30, 32, 34, 36, 38, 42
    sA, sB_, sC_, sD_ = 44, 48, 52, 56
    sHI, sL2E, sT0, sT1, sT2, sT3, sTO = 60, 61, 62, 63, 64, 65, 66
    sM0, sM1 = 68, 70
    sBAT = 67
    def stamp(i):
        if PROF: k(f's_memrealtime {sr(80 + 2 * i, 2)}')
    def srd(d, p, size):
        k(f's_mov_b32 s{d}, s{p}\ns_mov_b32 s{d+1}, s{p+1}\ns_mov_b32 s{d+2}, {size}\ns_mov_b32 s{d+3}, 0x20000')
    def rnd2(a, b, t):
        k(f'v_cvt_pk_bf16_f32 v{t}, v{a}, v{b}\nv_lshlrev_b32 v{a}, 16, v{t}\nv_and_b32 v{b}, s{sHI}, v{t}')
    def rnd4(a, t):
        k(f'v_cvt_pk_bf16_f32 v{t}, v{a}, v{a+1}\nv_cvt_pk_bf16_f32 v{t+1}, v{a+2}, v{a+3}')
        unp(a, t); unp(a + 2, t + 1)
    def rnd1(a, t):
        k(f'v_cvt_pk_bf16_f32 v{t}, v{a}, v{a}\nv_and_b32 v{a}, s{sHI}, v{t}')
    def unp(d, s_):
        k(f'v_lshlrev_b32 v{d}, 16, v{s_}\nv_and_b32 v{d+1}, s{sHI}, v{s_}')
    def xrow(op, x, t, steps=(16, 32)):
        for st in steps:
            k(f'v_mov_b32 v{t}, v{x}\nv_permlane{st}_swap_b32 v{x}, v{t}\n{op} v{x}, v{x}, v{t}')
    def tagcheck(bases, acc, tmp):
        for i, b in enumerate(bases):
            d = acc if i == 0 else tmp + ((i - 1) & 1)
            k(f'v_bitop3_b32 v{d}, v{b+1}, v{b+3}, s{sTAG} bitop3:0x7e')
            if i > 0 and (i & 1) == 0: k(f'v_or3_b32 v{acc}, v{acc}, v{tmp}, v{tmp+1}')
        if len(bases) > 1 and (len(bases) & 1) == 0: k(f'v_or_b32 v{acc}, v{acc}, v{tmp}')
        k(f'v_cmp_ne_u32 vcc, 0, v{acc}')
    def retry(lab, sleep=0):
        if sleep: k(f's_sleep {sleep}')
        k(f's_sub_u32 s{sTO}, s{sTO}, 1\ns_cmp_lg_u32 s{sTO}, 0\ns_cbranch_scc1 {lab}\ns_branch L_exit')
    def mask64(d, lo16):
        m = lo16 | (lo16 << 16)
        k(f's_mov_b32 s{d}, {m:#x}\ns_mov_b32 s{d+1}, {m:#x}')

    k('s_cmp_ge_u32 s2, 256\ns_cbranch_scc1 L_end')
    k('s_load_dwordx16 s[16:31], s[0:1], 0')
    k('s_load_dwordx8 s[32:39], s[0:1], 64')
    k('s_load_dwordx4 s[40:43], s[0:1], 96')
    stamp(0)
    k('v_lshrrev_b32 v2, 6, v0\nv_and_b32 v1, 63, v0')
    k('v_readfirstlane_b32 s3, v2')
    k(f's_mov_b32 s{sHI}, 0xffff0000\ns_mov_b32 s{sL2E}, {LOG2E:#x}\ns_mov_b32 s{sTO}, {TIMEOUT}')
    k(f's_lshr_b32 s{sHKV}, s2, 4\ns_and_b32 s{sS}, s2, 15\ns_and_b32 s{sW}, s3, 3')
    k('v_lshrrev_b32 v2, 4, v1\nv_and_b32 v3, 15, v1')
    k('s_cmp_ge_u32 s3, 4\ns_cbranch_scc1 L_helper')

    vKO, vVO, vHALF, vM, vL, vQA, S, O, Q, P, T = 4, 5, 6, 7, 60, 61, 8, 12, 16, 32, 48
    vWA, vRA = 62, 63
    sOFF, sSB, sI, sCUR, sRET, sBASE, sROT, sSCL = 72, 74, 76, 77, 78, 79, 68, 69
    SLOT = lambda j: 64 + 32 * j
    k('s_getpc_b64 s[62:63]')
    k('v_lshlrev_b32 v8, 7, v0')
    k('v_min_u32 v8, L_codeend-L_start-256, v8')
    k('global_load_dword v9, v8, s[62:63]')
    k(f'v_lshlrev_b32 v{vKO}, 8, v3\nv_lshl_add_u32 v{vKO}, v2, 4, v{vKO}')
    k(f'v_lshlrev_b32 v{vVO}, 4, v3\nv_lshl_add_u32 v{vVO}, v2, 10, v{vVO}')
    k(f's_lshl_b32 s{sBASE}, s{sHKV}, 21\ns_lshl_b32 s{sT2}, s{sW}, 12\ns_add_u32 s{sBASE}, s{sBASE}, s{sT2}')
    k(f's_mul_i32 s{sROT}, s{sHKV}, {ROT}\ns_add_u32 s{sROT}, s{sROT}, s{sS}')
    k(f's_mov_b32 s{sI}, 0')
    def nextoff(a):
        k(f's_lshr_b32 s{sSB+a}, s{sI}, 3\ns_and_b32 s{sT2}, s{sI}, 7\ns_lshl_b32 s{sT2}, s{sT2}, 4')
        k(f's_add_u32 s{sT2}, s{sT2}, s{sROT}\ns_and_b32 s{sT2}, s{sT2}, 127\ns_lshl_b32 s{sT2}, s{sT2}, 14')
        k(f's_lshl_b32 s{sT3}, s{sSB+a}, 25\ns_add_u32 s{sT2}, s{sT2}, s{sT3}\ns_add_u32 s{sOFF+a}, s{sT2}, s{sBASE}')
        k(f's_add_u32 s{sI}, s{sI}, 1')
    def ldk(j, a):
        for i in range(4):
            k(f'buffer_load_dwordx4 {vr(SLOT(j)+4*i,4)}, v{vKO}, {sr(sA,4)}, s{sOFF+a} offen offset:{64*i} nt')
    def ldv(j, a):
        for i in range(4):
            k(f'buffer_load_dwordx4 {vr(SLOT(j)+16+4*i,4)}, v{vVO}, {sr(sB_,4)}, s{sOFF+a} offen offset:{256*i} nt')
    nextoff(0)
    k('s_waitcnt lgkmcnt(0)')
    srd(sA, pK, 0x10000000); srd(sB_, pV, 0x10000000)
    k(f's_load_dword s{sEP}, {sr(pWSP,2)}, 0')
    ldk(0, 0)
    k('s_barrier')
    ldv(0, 0)
    srd(sWS, pWSP, WS_SIZE)
    k(f'v_mov_b32 v{vHALF}, 0xffff\nv_and_b32 v8, 2, v3\nv_lshlrev_b32 v8, 3, v8\nv_lshlrev_b32 v{vHALF}, v8, v{vHALF}')
    for r in range(P, P + 16): k(f'v_mov_b32 v{r}, 0')
    for r in range(O, O + 4): k(f'v_mov_b32 v{r}, 0')
    k(f'v_mov_b32 v{vM}, 0xff800000\nv_mov_b32 v{vL}, 0')
    k(f'v_and_b32 v8, 1, v3\nv_lshlrev_b32 v{vQA}, 8, v8\nv_lshl_add_u32 v{vQA}, v2, 4, v{vQA}\nv_add_u32 v{vQA}, {L_Q}, v{vQA}')
    k(f'v_lshlrev_b32 v{vWA}, 5, v3\nv_lshl_add_u32 v{vWA}, v2, 3, v{vWA}')
    k(f'v_lshlrev_b32 v{vRA}, 4, v1')
    k(f's_mov_b32 s{sSCL}, {SCALE:#x}\ns_mov_b32 s{sCUR}, 0')
    for j in range(1, 6):
        nextoff(0)
        k(f's_waitcnt vmcnt({PRE_TH})'); ldk(j, 0)
        k(f's_waitcnt vmcnt({PRE_TH})'); ldv(j, 0)
    stamp(1)
    k('s_waitcnt lgkmcnt(0)')
    k(f's_add_u32 s{sEP}, s{sEP}, 0x9e3779b9\ns_and_b32 s{sTAG}, s{sEP}, 0xbfffbfff')
    k(f'v_mov_b32 v8, {L_FLG + F_QRDY}')
    k.lab('L_qwait')
    k('ds_read_b32 v9, v8')
    for i in range(4): k(f'ds_read_b128 {vr(Q+4*i,4)}, v{vQA} offset:{64*i}')
    k(f's_waitcnt lgkmcnt(0)\nv_readfirstlane_b32 s{sT0}, v9\ns_cmp_eq_u32 s{sT0}, 4\ns_cbranch_scc1 L_qok')
    retry('L_qwait', 2)
    k.lab('L_qok')
    stamp(2)
    def consume(j, kw, vw, a):
        Kb, Vb = SLOT(j), SLOT(j) + 16
        t = T
        k(f's_waitcnt vmcnt({kw})')
        for i in range(4):
            k(f'v_mfma_f32_16x16x32_bf16 {vr(S,4)}, {vr(Kb+4*i,4)}, {vr(Q+4*i,4)}, {"0" if i == 0 else vr(S,4)}')
        if a is not None:
            nextoff(a); ldk(j, a)
        k(f'v_cvt_pk_bf16_f32 v{t}, v{S}, v{S+1}\nv_cvt_pk_bf16_f32 v{t+1}, v{S+2}, v{S+3}')
        unp(t + 2, t); unp(t + 4, t + 1)
        for i in range(4): k(f'v_mul_f32 v{t+2+i}, s{sSCL}, v{t+2+i}')
        rnd4(t + 2, t)
        k(f'v_max3_f32 v{t+6}, v{t+2}, v{t+3}, v{t+4}\nv_max3_f32 v{t+6}, v{t+6}, v{t+5}, v{vM}')
        xrow('v_max_f32', t + 6, t + 7)
        k(f'v_sub_f32 v{t+7}, v{vM}, v{t+6}\nv_mul_f32 v{t+8}, s{sL2E}, v{t+6}\nv_mul_f32 v{t+7}, s{sL2E}, v{t+7}\nv_mov_b32 v{vM}, v{t+6}')
        for i in range(4): k(f'v_fma_f32 v{t+2+i}, v{t+2+i}, s{sL2E}, -v{t+8}')
        k(f'v_exp_f32 v{t+7}, v{t+7}')
        for i in range(4): k(f'v_exp_f32 v{t+2+i}, v{t+2+i}')
        k(f'v_mul_f32 v{vL}, v{vL}, v{t+7}')
        for i in range(4):
            qp = '[0,0,2,2]' if i % 2 == 0 else '[1,1,3,3]'
            k(f'v_mul_f32_dpp v{O+i}, v{t+7}, v{O+i} quad_perm:{qp} row_mask:0xf bank_mask:0xf')
        for i in range(4): k(f'v_cvt_pk_bf16_f32 v{t+8+i}, v{t+2+i}, v{t+2+i}')
        k(f'v_add_f32 v{t+2}, v{t+2}, v{t+3}\nv_add_f32 v{t+4}, v{t+4}, v{t+5}\nv_add_f32 v{vL}, v{vL}, v{t+2}\nv_add_f32 v{vL}, v{vL}, v{t+4}')
        for i in range(4):
            for r in range(4):
                k(f'v_and_b32_dpp v{P+4*i+r}, v{t+8+i}, v{vHALF} quad_perm:[0,1,2,3] row_mask:0xf bank_mask:{1<<r:#x}')
        k(f's_waitcnt vmcnt({vw})')
        for i in range(4):
            k(f'v_mfma_f32_16x16x32_bf16 {vr(O,4)}, {vr(P+4*i,4)}, {vr(Vb+4*i,4)}, {vr(O,4)}')
        if a is not None: ldv(j, a)
    consume(0, 44, 44, 0); consume(1, 44, 44, 1)
    consume(2, 44, 40, None); consume(3, 36, 32, None); consume(4, 28, 24, None); consume(5, 20, 16, None)
    stamp(3)
    for a in range(2):
        k.lab(f'L_top{a}')
        k(f's_mov_b32 s{sRET}, {a}\ns_cmp_lg_u32 s{sSB+a}, s{sCUR}\ns_cbranch_scc1 L_bend')
        consume(a, 12, 12, a)
    k('s_branch L_top0')
    k.lab('L_bend')
    stamp(4)
    R_, ML = SLOT(2), SLOT(2) + 16
    t = T
    k(f's_mul_i32 s{sT0}, s{sCUR}, 4160\ns_add_u32 s{sT0}, s{sT0}, {L_PT}')
    k(f's_mul_i32 s{sT1}, s{sW}, 1040\ns_add_u32 s{sT1}, s{sT1}, s{sT0}')
    xrow('v_add_f32', vL, t)
    k(f'v_add_u32 v{t+1}, s{sT1}, v{vWA}')
    k(f'v_and_b32 v{t+2}, 1, v3\nv_lshlrev_b32 v{t+2}, 3, v{t+2}\nv_add_u32 v{t+2}, s{sT1}, v{t+2}')
    k(f'v_add_u32 v{t+3}, s{sT0}, v{vRA}')
    k(f'v_lshrrev_b32 v{t+9}, 5, v1\nv_lshl_add_u32 v{t+4}, v{t+9}, 3, s{sT0}')
    k(f's_lshl_b32 s{sT1}, s{sCUR}, 2\ns_add_u32 s{sT1}, s{sT1}, {L_FLG + F_CNT}\nv_mov_b32 v{t+5}, s{sT1}\nv_mov_b32 v{t+6}, 1')
    k(f'ds_write2_b32 v{t+1}, v{O}, v{O+2} offset0:0 offset1:1')
    k(f'ds_write2_b32 v{t+1}, v{O+1}, v{O+3} offset0:128 offset1:129')
    k(f'v_add_u32 v{t+2}, 1024, v{t+2}')
    k(f'ds_write2_b32 v{t+2}, v{vM}, v{vL} offset0:0 offset1:1')
    k(f's_mov_b64 exec, 1\nds_add_rtn_u32 v{t+6}, v{t+5}, v{t+6}\ns_mov_b64 exec, -1')
    for i in range(4): k(f'ds_read_b64 {vr(ML+2*i,2)}, v{t+4} offset:{1024+1040*i}')
    for i in range(4): k(f'ds_read_b128 {vr(R_+4*i,4)}, v{t+3} offset:{1040*i}')
    k(f's_lshl_b32 s{sT0}, s{sCUR}, 8\ns_add_u32 s{sT0}, s{sT0}, s2\ns_mul_i32 s{sT0}, s{sT0}, 1152\ns_add_u32 s{sT0}, s{sT0}, {WS_OP}')
    k('s_waitcnt lgkmcnt(4)')
    k(f'v_readfirstlane_b32 s{sT1}, v{t+6}\ns_cmp_lg_u32 s{sT1}, {9 if "nopub" in DBG else 3}\ns_cbranch_scc1 L_bskip')
    k(f'v_max3_f32 v{t}, v{ML}, v{ML+2}, v{ML+4}\nv_max_f32 v{t}, v{t}, v{ML+6}')
    k(f'v_mul_f32 v{t}, s{sL2E}, v{t}\nv_max_f32 v{t}, 0xf149f2ca, v{t}\nv_ceil_f32 v{t}, v{t}')
    for i in range(4): k(f'v_fma_f32 v{ML+2*i}, v{ML+2*i}, s{sL2E}, -v{t}')
    for i in range(4): k(f'v_exp_f32 v{ML+2*i}, v{ML+2*i}')
    k(f'v_mov_b32 v{t+1}, s{sTAG}\nv_mov_b32 v{t+3}, s{sTAG}\nv_mov_b32 v{t+5}, s{sTAG}\nv_mov_b32 v{t+7}, s{sTAG}')
    k(f'v_mul_f32 v{t+2}, v{ML}, v{ML+1}')
    for i in range(1, 4): k(f'v_fmac_f32 v{t+2}, v{ML+2*i}, v{ML+2*i+1}')
    k('s_waitcnt lgkmcnt(0)')
    for e in range(4): k(f'v_mul_f32 v{R_+e}, v{ML}, v{R_+e}')
    for i in range(1, 4):
        for e in range(4): k(f'v_fmac_f32 v{R_+e}, v{ML+2*i}, v{R_+4*i+e}')
    k(f'v_cvt_pk_bf16_f32 v{t+4}, v{R_}, v{R_+1}\nv_cvt_pk_bf16_f32 v{t+6}, v{R_+2}, v{R_+3}')
    k(f'buffer_store_dwordx4 {vr(t+4,4)}, v{vRA}, {sr(sWS,4)}, s{sT0} offen sc1')
    k(f'v_lshlrev_b32 v{t+9}, 4, v{t+9}')
    k(f's_mov_b32 exec_lo, 1\ns_mov_b32 exec_hi, 1')
    k(f'buffer_store_dwordx4 {vr(t,4)}, v{t+9}, {sr(sWS,4)}, s{sT0} offen offset:1024 sc1')
    k('s_mov_b64 exec, -1')
    k.lab('L_bskip')
    stamp(5)
    k(f's_add_u32 s{sCUR}, s{sCUR}, 1\ns_cmp_ge_u32 s{sCUR}, 8\ns_cbranch_scc1 L_exit')
    k(f'v_add_u32 v{vQA}, 512, v{vQA}')
    for i in range(4): k(f'ds_read_b128 {vr(Q+4*i,4)}, v{vQA} offset:{64*i}')
    k(f'v_mov_b32 v{vM}, 0xff800000\nv_mov_b32 v{vL}, 0')
    for r in range(O, O + 4): k(f'v_mov_b32 v{r}, 0')
    k(f's_waitcnt lgkmcnt(0)\ns_cmp_eq_u32 s{sRET}, 0\ns_cbranch_scc1 L_top0\ns_branch L_top1')

    k.lab('L_helper')
    k('s_setprio 2')
    sROLE, sTAU, sCOL, sLT = 72, 73, 74, 75
    CB, W1, W2, HG, D, RR, XS, XU, XV = 16, 40, 60, 80, 8, 100, 116, 128, 148
    k(f's_and_b32 s{sX}, s2, 7\ns_lshr_b32 s{sT0}, s2, 3')
    k(f's_lshl_b32 s{sTAU}, s{sX}, 5\ns_add_u32 s{sTAU}, s{sTAU}, s{sT0}')
    k(f's_lshl_b32 s{sIP}, s{sX}, 2\ns_add_u32 s{sIP}, s{sIP}, s{sT0}\ns_and_b32 s{sIP}, s{sIP}, 31')
    k(f's_mov_b32 s{sROLE}, 0\ns_mul_i32 s{sR}, s{sX}, 18\ns_add_u32 s{sR}, s{sR}, s{sIP}')
    k(f's_lshl_b32 s{sCOL}, s{sR}, 5\ns_add_u32 s{sCOL}, s{sCOL}, 2304\ns_mov_b32 s{sT1}, 16')
    k(f's_cmp_lt_u32 s{sIP}, 18\ns_cbranch_scc1 L_roled')
    k(f's_mov_b32 s{sROLE}, 1\ns_mul_i32 s{sR}, s{sX}, 9\ns_add_u32 s{sR}, s{sR}, s{sIP}\ns_sub_u32 s{sR}, s{sR}, 18')
    k(f's_lshl_b32 s{sCOL}, s{sR}, 4\ns_mov_b32 s{sT1}, 1152')
    k(f's_cmp_lt_u32 s{sIP}, 27\ns_cbranch_scc1 L_roled')
    k(f's_mov_b32 s{sROLE}, 2\ns_mul_i32 s{sR}, s{sX}, 5\ns_add_u32 s{sR}, s{sR}, s{sIP}\ns_sub_u32 s{sR}, s{sR}, 27')
    k.lab('L_roled')
    k(f'v_lshlrev_b32 v8, 2, v1\nv_add_u32 v8, {L_FLG}, v8\nv_mov_b32 v9, 0\nds_write_b32 v8, v9')
    k(f'v_and_b32 v4, 7, v3\nv_mul_u32_u24 v4, 1152, v4\nv_lshl_add_u32 v4, v2, 4, v4\nv_lshrrev_b32 v5, 3, v3\nv_lshl_add_u32 v4, v5, 3, v4')
    k(f'v_lshrrev_b32 v5, 1, v1\nv_and_b32 v6, 1, v1')
    k(f'v_mul_u32_u24 v7, 6912, v5\nv_mul_u32_u24 v10, s{sT1}, v6\nv_add_u32 v7, v7, v10')
    k(f'v_lshlrev_b32 v5, 13, v5\nv_lshl_add_u32 v5, v6, 4, v5')
    k(f's_mul_i32 s{sLT}, s{sW}, 10240\ns_add_u32 s{sLT}, s{sLT}, {L_PT}')
    k('s_waitcnt lgkmcnt(0)')
    srd(sA, pC, 9216); srd(sB_, pWM, 576 * 6912); srd(sC_, pWQ, 576 * 8192); srd(sD_, pX, 9216)
    srd(sWS, pWSP, WS_SIZE)
    k(f's_load_dword s{sEP}, {sr(pWSP,2)}, 0')
    k(f's_cmp_eq_u32 s{sROLE}, 2\ns_cbranch_scc1 L_nop1a')
    k(f's_lshl_b32 s{sT0}, s{sW}, 6')
    for i in range(5):
        k(f'buffer_load_dwordx2 {vr(CB+4*i,2)}, v4, {sr(sA,4)}, s{sT0} offen offset:{256*i}')
    k(f's_mul_i32 s{sT0}, s{sW}, {32*6912}\ns_add_u32 s{sT0}, s{sT0}, s{sCOL}')
    for i in range(5):
        k(f's_add_u32 m0, s{sLT}, {1024*i}')
        k(f'buffer_load_dwordx4 v7, {sr(sB_,4)}, s{sT0} offen nt lds')
        if i < 4: k(f's_add_u32 s{sT0}, s{sT0}, {128*6912}')
    k(f'v_lshrrev_b32 v10, 5, v1\nv_lshl_add_u32 v10, s{sW}, 1, v10\nv_mul_u32_u24 v11, 1152, v10\nv_and_b32 v12, 31, v1\nv_mul_u32_u24 v12, 12, v12\nv_add_u32 v11, v11, v12')
    for i in range(3):
        k(f'buffer_load_dwordx3 {vr(XS+4*i,3)}, v11, {sr(sD_,4)}, 0 offen offset:{384*i}')
    k(f'v_and_b32 v12, 7, v1\nv_mul_u32_u24 v12, 1152, v12\nv_bfe_u32 v13, v1, 3, 1\nv_lshl_add_u32 v12, v13, 3, v12')
    k(f'buffer_load_dwordx2 {vr(XV,2)}, v12, {sr(sD_,4)}, s{sCOL} offen')
    k.lab('L_nop1a')
    k(f's_lshl_b32 s{sT0}, s{sW}, 18\ns_lshl_b32 s{sT1}, s{sTAU}, 5\ns_add_u32 s{sT0}, s{sT0}, s{sT1}')
    for i in range(5):
        k(f's_add_u32 m0, s{sLT}, {5120+1024*i}')
        k(f'buffer_load_dwordx4 v5, {sr(sC_,4)}, s{sT0} offen nt lds')
        if i < 4: k(f's_add_u32 s{sT0}, s{sT0}, {128*8192}')
    k('s_waitcnt lgkmcnt(0)')
    k('s_barrier')
    k(f's_add_u32 s{sEP}, s{sEP}, 0x9e3779b9\ns_and_b32 s{sTAG}, s{sEP}, 0xbfffbfff')
    k(f'v_lshlrev_b32 v6, 8, v2\nv_lshl_add_u32 v6, v3, 3, v6\nv_add_u32 v6, s{sLT}, v6')
    k(f'v_lshl_add_u32 v14, v2, 3, v3\nv_lshlrev_b32 v14, 4, v14\ns_lshl_b32 s{sT0}, s{sW}, 9\ns_add_u32 s{sT0}, s{sT0}, {L_RED}\nv_add_u32 v14, s{sT0}, v14')
    k(f'v_and_b32 v15, 31, v1\nv_lshlrev_b32 v15, 4, v15\nv_add_u32 v15, {L_RED}, v15')
    mask64(sM0, 0x00ff)
    def reduce4(phase, flag, skip, extra=None):
        k(f'v_mov_b32 v12, {L_FLG + flag}\nv_mov_b32 v13, 1')
        k(f's_mov_b64 exec, {sr(sM0,2)}\nds_write_b128 v14, {vr(D,4)} offset:{2048*phase}')
        k(f's_mov_b64 exec, 1\nds_add_rtn_u32 v13, v12, v13\ns_mov_b64 exec, -1')
        for i in range(4): k(f'ds_read_b128 {vr(RR+4*i,4)}, v15 offset:{2048*phase+512*i}')
        if extra: k(extra)
        k(f's_waitcnt lgkmcnt(0)\nv_readfirstlane_b32 s{sT0}, v13\ns_cmp_lg_u32 s{sT0}, 3\ns_cbranch_scc1 {skip}')
        for e in range(4): k(f'v_add_f32 v{RR+e}, v{RR+e}, v{RR+4+e}\nv_add_f32 v{RR+8+e}, v{RR+8+e}, v{RR+12+e}')
        for e in range(4): k(f'v_add_f32 v{RR+e}, v{RR+e}, v{RR+8+e}')
    k(f's_cmp_eq_u32 s{sROLE}, 2\ns_cbranch_scc1 L_p1done')
    k('s_waitcnt vmcnt(14)')
    stamp(1)
    k(f's_mov_b32 s{sT0}, 0xbfb8aa3b')
    for i in range(5):
        b = CB + 4 * i
        unp(RR, b); unp(RR + 2, b + 1)
        for e in range(4): k(f'v_mul_f32 v{RR+4+e}, s{sT0}, v{RR+e}')
        for e in range(4): k(f'v_exp_f32 v{RR+4+e}, v{RR+4+e}')
        for e in range(4): k(f'v_add_f32 v{RR+4+e}, 1.0, v{RR+4+e}')
        for e in range(4): k(f'v_min_f32 v{RR+4+e}, 0x7e800000, v{RR+4+e}')
        for e in range(4): k(f'v_rcp_f32 v{RR+8+e}, v{RR+4+e}')
        for e in range(4): k(f'v_mul_f32 v{RR+12+e}, v{RR+e}, v{RR+8+e}')
        for e in range(4): k(f'v_fma_f32 v{RR+e}, -v{RR+12+e}, v{RR+4+e}, v{RR+e}')
        for e in range(4): k(f'v_fmac_f32 v{RR+12+e}, v{RR+e}, v{RR+8+e}')
        k(f'v_cvt_pk_bf16_f32 v{b}, v{RR+12}, v{RR+13}\nv_cvt_pk_bf16_f32 v{b+1}, v{RR+14}, v{RR+15}')
    for i in range(5):
        b = CB + 4 * i
        k(f'v_mov_b32_dpp v{b+2}, v{b} row_ror:8 row_mask:0xf bank_mask:0xf\nv_mov_b32_dpp v{b+3}, v{b+1} row_ror:8 row_mask:0xf bank_mask:0xf')
    k('s_waitcnt vmcnt(9)')
    for i in range(5):
        k(f'ds_read_b64_tr_b16 {vr(W1+4*i,2)}, v6 offset:{1024*i}\nds_read_b64_tr_b16 {vr(W1+4*i+2,2)}, v6 offset:{1024*i+128}')
    k(f's_cmp_eq_u32 s{sROLE}, 0\ns_cbranch_scc1 L_nostat')
    k('s_waitcnt vmcnt(5)')
    xsr = [XS+4*i+j for i in range(3) for j in range(3)]
    for i, r in enumerate(xsr): unp(XU + 2 * i, r)
    def red32(x, t):
        for m in ('quad_perm:[1,0,3,2]', 'quad_perm:[2,3,0,1]', 'row_half_mirror', 'row_mirror'):
            k(f'v_add_f32_dpp v{x}, v{x}, v{x} {m} row_mask:0xf bank_mask:0xf')
        xrow('v_add_f32', x, t, (16,))
    k(f'v_add_f32 v{RR}, v{XU}, v{XU+1}')
    for i in range(2, 18): k(f'v_add_f32 v{RR}, v{RR}, v{XU+i}')
    red32(RR, RR + 1)
    k(f's_mov_b32 s{sT0}, 0x3ae38e39')
    k(f'v_mul_f32 v{RR}, s{sT0}, v{RR}')
    for i in range(18): k(f'v_sub_f32 v{XU+i}, v{XU+i}, v{RR}')
    k(f'v_mul_f32 v{RR+1}, v{XU}, v{XU}')
    for i in range(1, 18): k(f'v_fmac_f32 v{RR+1}, v{XU+i}, v{XU+i}')
    red32(RR + 1, RR + 2)
    k(f'v_mul_f32 v{RR+1}, s{sT0}, v{RR+1}')
    rnd2(RR, RR + 1, RR + 2)
    k(f'v_add_f32 v{RR+1}, 0x3727c5ac, v{RR+1}')
    rnd1(RR + 1, RR + 2)
    k(f'v_sqrt_f32 v{RR+1}, v{RR+1}')
    rnd1(RR + 1, RR + 2)
    k(f'v_rcp_f32 v{RR+1}, v{RR+1}')
    k(f'v_lshlrev_b32 v10, 3, v10\nv_add_u32 v10, {L_STA}, v10\nds_write_b64 v10, {vr(RR,2)}')
    k.lab('L_nostat')
    k('s_waitcnt lgkmcnt(0)')
    for i in range(5):
        k(f'v_mfma_f32_16x16x32_bf16 {vr(D,4)}, {vr(W1+4*i,4)}, {vr(CB+4*i,4)}, {"0" if i == 0 else vr(D,4)}')
    k(f'v_and_b32 v4, 7, v1\nv_lshlrev_b32 v5, 3, v4\nv_add_u32 v5, {L_STA}, v5')
    reduce4(0, F_P1, 'L_p1done', f'ds_read_b64 {vr(XU,2)}, v5')
    k(f'v_mov_b32 v{D+1}, s{sTAG}\nv_mov_b32 v{D+3}, s{sTAG}')
    k(f's_cmp_eq_u32 s{sROLE}, 1\ns_cbranch_scc1 L_p1h')
    k(f'v_cvt_pk_bf16_f32 v{D}, v{RR}, v{RR+1}\nv_cvt_pk_bf16_f32 v{D+2}, v{RR+2}, v{RR+3}')
    k(f'v_mul_u32_u24 v4, 9216, v4\nv_lshrrev_b32 v5, 3, v1\nv_lshl_add_u32 v4, v5, 4, v4')
    k(f's_lshl_b32 s{sT0}, s{sR}, 6\ns_add_u32 s{sT0}, s{sT0}, {WS_MOD}')
    k(f's_mov_b32 exec_hi, 0\nbuffer_store_dwordx4 {vr(D,4)}, v4, {sr(sWS,4)}, s{sT0} offen sc1\ns_mov_b64 exec, -1')
    k('s_branch L_p1done')
    k.lab('L_p1h')
    rnd4(RR, RR + 8)
    for e in range(4): k(f'v_mov_b32 v{RR+4+e}, v{RR+e}')
    for e in range(4): k(f'v_permlane16_swap_b32 v{RR+e}, v{RR+4+e}')
    for e in range(4): k(f'v_add_f32 v{RR+4+e}, 1.0, v{RR+4+e}')
    rnd4(RR + 4, RR + 8)
    unp(RR + 12, XV); unp(RR + 14, XV + 1)
    for e in range(4): k(f'v_sub_f32 v{RR+12+e}, v{RR+12+e}, v{XU}')
    rnd4(RR + 12, RR + 8)
    for e in range(4): k(f'v_mul_f32 v{RR+12+e}, v{RR+12+e}, v{XU+1}')
    rnd4(RR + 12, RR + 8)
    for e in range(4): k(f'v_mul_f32 v{RR+12+e}, v{RR+12+e}, v{RR+4+e}')
    rnd4(RR + 12, RR + 8)
    for e in range(4): k(f'v_add_f32 v{RR+12+e}, v{RR+12+e}, v{RR+e}')
    k(f'v_cvt_pk_bf16_f32 v{D}, v{RR+12}, v{RR+13}\nv_cvt_pk_bf16_f32 v{D+2}, v{RR+14}, v{RR+15}')
    k(f'v_lshlrev_b32 v4, 4, v1\ns_lshl_b32 s{sT0}, s{sR}, 8\ns_add_u32 s{sT0}, s{sT0}, {WS_H}')
    k(f's_mov_b64 exec, 0xffff\nbuffer_store_dwordx4 {vr(D,4)}, v4, {sr(sWS,4)}, s{sT0} offen sc1\ns_mov_b64 exec, -1')
    k.lab('L_p1done')
    stamp(2)
    k(f'v_lshlrev_b32 v4, 4, v1')
    k(f's_lshl_b32 s{sT0}, s{sW}, 10\ns_add_u32 s{sT0}, s{sT0}, {WS_H}')
    k(f's_add_u32 s{sT1}, s{sT0}, 4096\ns_add_u32 s{sT2}, s{sT0}, 8192\ns_add_u32 s{sT3}, s{sT0}, 12288')
    k(f's_cmp_lt_u32 s{sW}, 2\ns_cselect_b32 s{sBAT}, 4096, 0\ns_add_u32 s{sBAT}, s{sBAT}, s{sT3}')
    k.lab('L_hpoll')
    for i, so in enumerate((sT0, sT1, sT2, sT3, sBAT)):
        k(f'buffer_load_dwordx4 {vr(HG+4*i,4)}, v4, {sr(sWS,4)}, s{so} offen sc1')
    k('s_waitcnt vmcnt(5)')
    for i in range(5):
        k(f'ds_read_b64_tr_b16 {vr(W2+4*i,2)}, v6 offset:{5120+1024*i}\nds_read_b64_tr_b16 {vr(W2+4*i+2,2)}, v6 offset:{5120+1024*i+128}')
    k('s_waitcnt vmcnt(0)')
    tagcheck([HG + 4 * i for i in range(5)], 12, 10)
    k('s_cbranch_vccz L_hok')
    retry('L_hpoll', 1)
    k.lab('L_hok')
    stamp(3)
    for i in range(5): k(f'v_mov_b32 v{HG+4*i+1}, v{HG+4*i+2}')
    for i in range(5):
        b = HG + 4 * i
        k(f'v_mov_b32_dpp v{b+2}, v{b} row_ror:8 row_mask:0xf bank_mask:0xf\nv_mov_b32_dpp v{b+3}, v{b+1} row_ror:8 row_mask:0xf bank_mask:0xf')
    k('s_waitcnt lgkmcnt(0)')
    for i in range(5):
        k(f'v_mfma_f32_16x16x32_bf16 {vr(D,4)}, {vr(W2+4*i,4)}, {vr(HG+4*i,4)}, {"0" if i == 0 else vr(D,4)}')
    reduce4(1, F_P2, 'L_p2done')
    k(f'v_mov_b32 v{D+1}, s{sTAG}\nv_mov_b32 v{D+3}, s{sTAG}')
    k(f'v_cvt_pk_bf16_f32 v{D}, v{RR}, v{RR+1}\nv_cvt_pk_bf16_f32 v{D+2}, v{RR+2}, v{RR+3}')
    k(f'v_and_b32 v5, 7, v1\nv_lshlrev_b32 v5, 6, v5\nv_lshrrev_b32 v7, 3, v1\nv_lshl_add_u32 v5, v7, 4, v5')
    k(f's_lshl_b32 s{sT0}, s{sTAU}, 9\ns_add_u32 s{sT0}, s{sT0}, {WS_Q}')
    k(f's_mov_b32 exec_hi, 0\nbuffer_store_dwordx4 {vr(D,4)}, v5, {sr(sWS,4)}, s{sT0} offen sc1\ns_mov_b64 exec, -1')
    k.lab('L_p2done')
    stamp(4)
    k(f's_lshl_b32 s{sT0}, s{sHKV}, 13\ns_lshl_b32 s{sT1}, s{sW}, 11\ns_add_u32 s{sT0}, s{sT0}, s{sT1}\ns_add_u32 s{sT0}, s{sT0}, {WS_Q}')
    k(f'v_bfe_u32 v5, v1, 2, 3\nv_lshlrev_b32 v5, 9, v5\nv_and_b32 v7, 3, v1\nv_lshl_add_u32 v5, v7, 3, v5\nv_lshrrev_b32 v7, 5, v1\nv_lshl_add_u32 v5, v7, 5, v5')
    k(f's_lshl_b32 s{sT1}, s{sW}, 7\ns_add_u32 s{sT1}, s{sT1}, {L_Q}\nv_add_u32 v5, s{sT1}, v5')
    k.lab('L_qpoll')
    for i in range(2):
        k(f'buffer_load_dwordx4 {vr(HG+4*i,4)}, v4, {sr(sWS,4)}, s{sT0} offen offset:{1024*i} sc1')
    k('s_waitcnt vmcnt(0)')
    tagcheck([HG, HG + 4], 12, 10)
    k('s_cbranch_vccz L_qgot')
    retry('L_qpoll', 1)
    k.lab('L_qgot')
    k(f'ds_write2_b32 v5, v{HG}, v{HG+2} offset0:0 offset1:1\nds_write2_b32 v5, v{HG+4}, v{HG+6} offset0:16 offset1:17')
    k(f'v_mov_b32 v12, {L_FLG + F_QRDY}\nv_mov_b32 v13, 1\ns_mov_b64 exec, 1\nds_add_u32 v12, v13\ns_mov_b64 exec, -1')
    stamp(5)
    k(f's_mov_b32 s{sBAT}, 0')
    if 'norole' in DBG: k('s_branch L_exit')
    k(f's_cmp_eq_u32 s{sROLE}, 1\ns_cbranch_scc1 L_wrole\ns_cmp_eq_u32 s{sROLE}, 2\ns_cbranch_scc1 L_frole')

    def dma(voff, srd_, soff_sgpr, lds_expr_sgpr, lds_imm, idx):
        if idx >= STG_TH: k(f's_waitcnt vmcnt({STG_TH-1})')
        k(f's_add_u32 m0, s{lds_expr_sgpr}, {lds_imm}')
        k(f'buffer_load_dwordx4 v{voff}, {sr(srd_,4)}, s{soff_sgpr} offen nt lds')
    def lightpoll(name, voff, soff, dst):
        k.lab(f'L_{name}lp')
        k(f'buffer_load_dwordx4 {vr(dst,4)}, v{voff}, {sr(sWS,4)}, s{soff} offen sc1')
        k(f'v_mov_b32 v8, {L_FLG + F_CNT + 28}\nds_read_b32 v9, v8')
        k('s_waitcnt vmcnt(0) lgkmcnt(0)')
        tagcheck([dst], 10, 11)
        k(f's_cbranch_vccz L_{name}full')
        k(f'v_readfirstlane_b32 s{sT3}, v9\ns_cmp_eq_u32 s{sT3}, 4\ns_cbranch_scc1 L_{name}full')
        retry(f'L_{name}lp', SLEEP)
        k.lab(f'L_{name}full')
    def selmasks(a, b, one):
        k(f'v_and_b32 v8, 1, v3\nv_lshlrev_b32 v8, 4, v8\nv_mov_b32 v9, {one:#x}\nv_lshlrev_b32 v9, v8, v9')
        k(f'v_and_b32 v8, 2, v3\nv_cmp_eq_u32 vcc, 0, v8\nv_cndmask_b32 v{a}, 0, v9, vcc\nv_sub_u32 v{b}, v9, v{a}')

    GW, DW, GA, SEL, RAW, MG, MS, MC, MX, BO, AC = 176, 140, 108, 92, 76, 60, 64, 68, 72, 40, 24
    sST, sU1 = 76, 77
    k(f's_mul_i32 s{sST}, s{sW}, 27648')
    srd(sA, pGA, 576 * 9216); srd(sB_, pUP, 576 * 9216); srd(sC_, pDN, 4608 * 1152)
    k(f'v_lshrrev_b32 v4, 2, v1\nv_mul_u32_u24 v4, 9216, v4\nv_and_b32 v5, 3, v1\nv_lshl_add_u32 v4, v5, 4, v4')
    k(f's_mul_i32 s{sT0}, s{sW}, {144*9216}\ns_lshl_b32 s{sT1}, s{sR}, 6\ns_add_u32 s{sT0}, s{sT0}, s{sT1}')
    n = 0
    for i in range(9):
        dma(4, sA, sT0, sST, 1024 * i, n); n += 1
        dma(4, sB_, sT0, sST, 9216 + 1024 * i, n); n += 1
        k(f's_add_u32 s{sT0}, s{sT0}, {16*9216}')
    k(f's_mul_i32 s{sT0}, s{sR}, 36864\ns_mul_i32 s{sT1}, s{sW}, 288\ns_add_u32 s{sT0}, s{sT0}, s{sT1}')
    for i in range(9):
        k(f'v_add_u32 v5, {64*i}, v1\nv_mul_u32_u24 v6, 3641, v5\nv_lshrrev_b32 v6, 16, v6')
        k(f'v_mul_u32_u24 v7, {1152-288}, v6\nv_lshl_add_u32 v7, v5, 4, v7')
        dma(7, sC_, sT0, sST, 18432 + 1024 * i, n); n += 1
    selmasks(10, 11, 0x3f80)
    for v in range(4):
        for r in range(4): k(f'v_mov_b32 v{SEL+4*v+r}, 0')
    for v in range(4):
        k(f'v_mov_b32_dpp v{SEL+4*v}, v10 quad_perm:[0,1,2,3] row_mask:0xf bank_mask:{1<<v:#x}')
        k(f'v_mov_b32_dpp v{SEL+4*v+2}, v11 quad_perm:[0,1,2,3] row_mask:0xf bank_mask:{1<<v:#x}')
    k(f'v_mov_b32 v{BO+18}, 0\nv_mov_b32 v{BO+19}, 0')
    mask64(sM0, 0x01ff); mask64(sM1, 0x0001)
    k(f'v_lshrrev_b32 v8, 2, v3\nv_and_b32 v9, 3, v3')
    k(f'v_mul_u32_u24 v10, 36, v2\nv_add_u32 v10, v10, v8\nv_lshlrev_b32 v10, 6, v10\nv_lshl_add_u32 v10, v9, 3, v10\nv_add_u32 v10, s{sST}, v10')
    k(f'v_lshl_add_u32 v11, v2, 3, v8\nv_mul_u32_u24 v11, 288, v11\nv_lshl_add_u32 v11, v9, 3, v11\nv_add_u32 v11, s{sST}, v11')
    k('s_waitcnt vmcnt(0)')
    for t_ in range(5):
        for tile in range(4):
            o = (tile >> 1) * 9216 + (tile & 1) * 32 + t_ * 512
            r = GW + (t_ * 4 + tile) * 4
            k(f'ds_read_b64_tr_b16 {vr(r,2)}, v10 offset:{o}')
            if t_ < 4: k(f'ds_read_b64_tr_b16 {vr(r+2,2)}, v10 offset:{o+256}')
            else: k(f'v_mov_b32 v{r+2}, 0\nv_mov_b32 v{r+3}, 0')
        k('s_waitcnt lgkmcnt(0)')
    for u in range(9):
        k(f'ds_read_b64_tr_b16 {vr(DW+4*u,2)}, v11 offset:{18432+32*u}\nds_read_b64_tr_b16 {vr(DW+4*u+2,2)}, v11 offset:{18432+1152+32*u}')
        if u % 4 == 3: k('s_waitcnt lgkmcnt(0)')
    k(f'v_min_u32 v8, 8, v3\ns_mul_i32 s{sT0}, s{sW}, 576')
    k(f'v_mul_u32_u24 v4, 144, v2\nv_lshl_add_u32 v4, v8, 4, v4\nv_add_u32 v4, s{sT0}, v4')
    k(f'v_mul_u32_u24 v5, 2304, v2\nv_lshl_add_u32 v5, v8, 4, v5\nv_add_u32 v5, s{sT0}, v5')
    k(f'v_bfe_u32 v6, v1, 3, 2\nv_mul_u32_u24 v6, 192, v6\nv_min_u32 v6, 560, v6\nv_and_b32 v9, 7, v1\nv_mul_u32_u24 v9, 2304, v9\nv_add3_u32 v6, v6, v9, s{sT0}')
    k(f'v_mul_u32_u24 v7, 18432, v3\nv_lshl_add_u32 v7, v2, 4, v7')
    k(f's_lshl_b32 s{sT0}, s{sW}, 8\ns_add_u32 s{sT0}, s{sT0}, {L_GU}\nv_lshl_add_u32 v20, v2, 4, s{sT0}')
    k(f'v_lshrrev_b32 v8, 3, v3\nv_lshlrev_b32 v8, 5, v8\nv_and_b32 v9, 7, v3\nv_lshl_add_u32 v9, v2, 3, v9\nv_add_u32 v8, v8, v9\nv_lshlrev_b32 v8, 2, v8\nv_add_u32 v21, {L_GU}, v8')
    k(f'v_mov_b32 v22, {L_FLG}\ns_lshl_b32 s{sT0}, s{sW}, 2\nv_add_u32 v23, s{sT0}, v22')
    k('s_waitcnt lgkmcnt(0)')
    if 'noloop' in DBG: k('s_branch L_exit')
    k.lab('L_gloop')
    k(f's_mul_i32 s{sT0}, s{sBAT}, 9216\ns_add_u32 s{sT0}, s{sT0}, {WS_MOD}\ns_add_u32 s{sT1}, s{sT0}, 4608')
    k(f's_mul_i32 s{sT2}, s{sBAT}, 1152\nv_lshrrev_b32 v8, 1, v4')
    k(f'buffer_load_dwordx2 {vr(RAW+12,2)}, v8, {sr(sD_,4)}, s{sT2} offen')
    k.lab('L_gmod')
    k(f'buffer_load_dwordx4 {vr(RAW,4)}, v4, {sr(sWS,4)}, s{sT0} offen sc1')
    k(f'buffer_load_dwordx4 {vr(RAW+4,4)}, v4, {sr(sWS,4)}, s{sT0} offen offset:2304 sc1')
    k(f'buffer_load_dwordx4 {vr(RAW+8,4)}, v4, {sr(sWS,4)}, s{sT1} offen sc1')
    k('s_waitcnt vmcnt(0)')
    tagcheck([RAW, RAW + 4, RAW + 8], 10, 11)
    k('s_cbranch_vccz L_gmodok')
    retry('L_gmod', SLEEP)
    k.lab('L_gmodok')
    for j, d in enumerate((MG, MS, MC)):
        unp(d, RAW + 4 * j); unp(d + 2, RAW + 4 * j + 2)
    unp(MX, RAW + 12); unp(MX + 2, RAW + 13)
    for e in range(4): k(f'v_add_f32 v{MC+e}, 1.0, v{MC+e}')
    rnd4(MC, 8)
    k(f's_mul_i32 s{sT0}, s{sBAT}, 18432\ns_add_u32 s{sT0}, s{sT0}, {WS_AP}\ns_add_u32 s{sT1}, s{sT0}, 9216')
    k(f's_add_u32 s{sU1}, s{sBAT}, 1')
    lightpoll('g', 6, sT0, GA)
    for u in range(2):
        for v in range(4):
            k(f'buffer_load_dwordx4 {vr(GA+(u*4+v)*4,4)}, v5, {sr(sWS,4)}, s{sT0+u} offen offset:{144*v} sc1')
    k('s_waitcnt vmcnt(0)')
    for i in range(8):
        k(f'v_mfma_f32_16x16x32_bf16 {vr(12,4)}, {vr(SEL+4*(i&3),4)}, {vr(GA+4*i,4)}, {"0" if i == 0 else vr(12,4)}')
    tagcheck([GA + 4 * i for i in range(8)], 8, 9)
    k('s_cbranch_vccz L_gok')
    retry('L_gfull')
    k.lab('L_gok')
    stamp(6)
    X2 = 12
    rnd4(X2, 8)
    for e in range(4): k(f'v_mul_f32 v{X2+e}, v{MG+e}, v{X2+e}')
    rnd4(X2, 8)
    for e in range(4): k(f'v_add_f32 v{X2+e}, v{MX+e}, v{X2+e}')
    rnd4(X2, 8)
    k(f'v_readfirstlane_b32 s{sT2}, v{X2}')
    for e in range(4): k(f'v_subrev_f32 v{16+e}, s{sT2}, v{X2+e}')
    k(f'v_add_f32 v8, v16, v17\nv_mul_f32 v9, v16, v16\nv_add_f32 v10, v18, v19\nv_fmac_f32 v9, v17, v17\nv_add_f32 v8, v8, v10\nv_fmac_f32 v9, v18, v18\nv_fmac_f32 v9, v19, v19')
    k(f'v_cndmask_b32 v8, 0, v8, {sr(sM0,2)}\nv_cndmask_b32 v9, 0, v9, {sr(sM0,2)}')
    for m in ('row_shr:1 row_mask:0xf', 'row_shr:2 row_mask:0xf', 'row_shr:4 row_mask:0xf', 'row_shr:8 row_mask:0xf', 'row_bcast:15 row_mask:0xa', 'row_bcast:31 row_mask:0xc'):
        bc = ' bound_ctrl:0' if 'shr' in m else ''
        k(f'v_add_f32_dpp v8, v8, v8 {m} bank_mask:0xf{bc}\nv_add_f32_dpp v9, v9, v9 {m} bank_mask:0xf{bc}')
    k(f's_mov_b32 s{sT3}, 0x3be38e39')
    k(f'v_mul_f32 v10, s{sT3}, v8\nv_fma_f32 v9, -v10, v8, v9\nv_add_f32 v8, s{sT2}, v10')
    k(f'v_mov_b32 v11, s{sU1}\ns_lshl_b32 s{sT2}, s{sW}, 3\ns_add_u32 s{sT2}, s{sT2}, {L_GST}\nv_mov_b32 v10, s{sT2}')
    k(f's_mov_b32 exec_lo, 0\ns_mov_b32 exec_hi, 0x80000000')
    k(f'ds_write_b64 v10, v[8:9]\nds_write_b32 v23, v11 offset:{F_G1}\ns_mov_b64 exec, -1')
    k.lab('L_gs1')
    k(f'ds_read_b128 v[16:19], v22 offset:{F_G1}\nds_read_b128 {vr(AC,4)}, v22 offset:{L_GST-L_FLG}\nds_read_b128 {vr(AC+4,4)}, v22 offset:{L_GST-L_FLG+16}')
    k(f's_waitcnt lgkmcnt(0)\nv_min3_u32 v16, v16, v17, v18\nv_min_u32 v16, v16, v19\nv_cmp_ne_u32 vcc, s{sU1}, v16\ns_cbranch_vccz L_gs1ok')
    retry('L_gs1')
    k.lab('L_gs1ok')
    k(f'v_add_f32 v8, v{AC}, v{AC+2}\nv_add_f32 v9, v{AC+4}, v{AC+6}\nv_add_f32 v10, v{AC+1}, v{AC+3}\nv_add_f32 v11, v{AC+5}, v{AC+7}')
    k(f'v_add_f32 v8, v8, v9\nv_add_f32 v10, v10, v11\nv_mul_f32 v8, 0.25, v8' .replace('0.25', '0x3e800000'))
    for i in range(4): k(f'v_sub_f32 v{AC+2*i}, v{AC+2*i}, v8')
    k(f'v_mul_f32 v9, v{AC}, v{AC}\nv_fmac_f32 v9, v{AC+2}, v{AC+2}\nv_fmac_f32 v9, v{AC+4}, v{AC+4}\nv_fmac_f32 v9, v{AC+6}, v{AC+6}')
    k(f'v_mul_f32 v10, 0x3ae38e39, v10\nv_mul_f32 v9, 0x3e800000, v9\nv_add_f32 v9, v9, v10')
    rnd2(8, 9, 10)
    k('v_add_f32 v9, 0x3727c5ac, v9')
    for e in range(4): k(f'v_sub_f32 v{X2+e}, v{X2+e}, v8')
    rnd1(9, 10)
    k('v_sqrt_f32 v9, v9')
    rnd4(X2, 16)
    rnd1(9, 10)
    k('v_rcp_f32 v9, v9')
    for e in range(4): k(f'v_mul_f32 v{X2+e}, v{X2+e}, v9')
    rnd4(X2, 16)
    for e in range(4): k(f'v_mul_f32 v{X2+e}, v{X2+e}, v{MC+e}')
    rnd4(X2, 16)
    for e in range(4): k(f'v_add_f32 v{X2+e}, v{X2+e}, v{MS+e}')
    k(f'v_cvt_pk_bf16_f32 v8, v{X2}, v{X2+1}\nv_cvt_pk_bf16_f32 v9, v{X2+2}, v{X2+3}')
    def bcast(dst, src, lane): k(f'v_mov_b32_dpp v{dst}, v{src} row_newbcast:{lane} row_mask:0xf bank_mask:0xf')
    def gb(t_):
        bcast(BO + 4 * t_, 8, 2 * t_); bcast(BO + 4 * t_ + 1, 9, 2 * t_)
        if t_ < 4: bcast(BO + 4 * t_ + 2, 8, 2 * t_ + 1); bcast(BO + 4 * t_ + 3, 9, 2 * t_ + 1)
    gb(0); gb(1)
    for t_ in range(5):
        for tile in range(4):
            k(f'v_mfma_f32_16x16x32_bf16 {vr(AC+4*tile,4)}, {vr(GW+(t_*4+tile)*4,4)}, {vr(BO+4*t_,4)}, {"0" if t_ == 0 else vr(AC+4*tile,4)}')
            if tile == 0 and t_ + 2 < 5: gb(t_ + 2)
    k(f'v_mov_b32 v11, s{sU1}')
    k(f's_mov_b64 exec, {sr(sM1,2)}')
    for tile in range(4): k(f'ds_write_b128 v20, {vr(AC+4*tile,4)} offset:{64*tile}')
    k(f'ds_write_b32 v23, v11 offset:{F_G2}\ns_mov_b64 exec, -1')
    k(f's_mul_i32 s{sT0}, s{sBAT}, {36*18432}\ns_mul_i32 s{sT1}, s{sW}, {9*18432}\ns_add_u32 s{sT0}, s{sT0}, s{sT1}')
    k(f's_lshl_b32 s{sT1}, s{sR}, 7\ns_add_u32 s{sT0}, s{sT0}, s{sT1}\ns_add_u32 s{sT0}, s{sT0}, {WS_YP}')
    k.lab('L_gs2')
    k(f'ds_read_b128 v[16:19], v22 offset:{F_G2}\nds_read2_b32 v[12:13], v21 offset0:0 offset1:64\nds_read2_b32 v[14:15], v21 offset0:128 offset1:192')
    k(f's_waitcnt lgkmcnt(0)\nv_min3_u32 v16, v16, v17, v18\nv_min_u32 v16, v16, v19\nv_cmp_ne_u32 vcc, s{sU1}, v16\ns_cbranch_vccz L_gs2ok')
    retry('L_gs2')
    k.lab('L_gs2ok')
    k('v_add_f32 v12, v12, v13\nv_add_f32 v14, v14, v15\nv_add_f32 v12, v12, v14')
    rnd1(12, 8)
    k('v_mul_f32 v8, v12, v12\nv_mov_b32_dpp v13, v12 row_ror:8 row_mask:0xf bank_mask:0xf')
    c1 = -2 * 0.7978845608028654 * 1.4426950408889634
    import struct
    f2u = lambda f: struct.unpack('<I', struct.pack('<f', f))[0]
    k(f'v_mov_b32 v9, {f2u(c1):#x}\nv_fmac_f32 v9, {f2u(c1*0.044715):#x}, v8\nv_mul_f32 v9, v9, v12')
    k('v_exp_f32 v9, v9\nv_add_f32 v9, 1.0, v9\nv_rcp_f32 v9, v9\nv_mul_f32 v9, v9, v12')
    rnd1(9, 8)
    k('v_mul_f32 v9, v9, v13')
    k('v_mov_b32_dpp v8, v9 quad_perm:[1,1,3,3] row_mask:0xf bank_mask:0xf')
    k('v_cvt_pk_bf16_f32 v8, v9, v8')
    for r in range(4): bcast(12 + r, 8, 2 * r)
    YA = [GA + 4 * u for u in range(8)] + [AC]
    for u in range(9):
        k(f'v_mfma_f32_16x16x32_bf16 {vr(YA[u],4)}, {vr(DW+4*u,4)}, v[12:15], 0')
    k(f'v_mov_b32 v17, s{sTAG}\nv_mov_b32 v19, s{sTAG}')
    k(f's_mov_b64 exec, {sr(sM1,2)}')
    for u in range(9):
        k(f'v_cvt_pk_bf16_f32 v16, v{YA[u]}, v{YA[u]+1}\nv_cvt_pk_bf16_f32 v18, v{YA[u]+2}, v{YA[u]+3}')
        if u < 8: k('s_lshl_b64 exec, exec, 1')
    k(f's_mov_b64 exec, {sr(sM0,2)}\nbuffer_store_dwordx4 v[16:19], v7, {sr(sWS,4)}, s{sT0} offen sc1\ns_mov_b64 exec, -1')
    stamp(7)
    k(f's_add_u32 s{sBAT}, s{sBAT}, 1\ns_cmp_lt_u32 s{sBAT}, 8\ns_cbranch_scc1 L_gloop\ns_branch L_exit')

    k.lab('L_wrole')
    WW, OG, MLG, SA, BW, AW = 192, 160, 144, 112, 96, 80
    sKP, sCN = 76, 77
    k(f's_sub_u32 s{sCN}, s{sIP}, 18')
    srd(sA, pWO, 4096 * 1152)
    k(f's_lshl_b32 s{sST}, s{sW}, 14')
    k(f'v_lshrrev_b32 v4, 3, v1\nv_mul_u32_u24 v4, 1152, v4\nv_and_b32 v5, 7, v1\nv_lshl_add_u32 v4, v5, 4, v4')
    k(f's_lshl_b32 s{sT0}, s{sX}, 2\ns_add_u32 s{sT0}, s{sT0}, s{sW}\ns_mul_i32 s{sT0}, s{sT0}, {128*1152}\ns_lshl_b32 s{sT1}, s{sCN}, 7\ns_add_u32 s{sT0}, s{sT0}, s{sT1}')
    for i in range(16):
        dma(4, sA, sT0, sST, 1024 * i, i)
        k(f's_add_u32 s{sT0}, s{sT0}, {8*1152}')
    selmasks(20, 21, 0xffff)
    for r in range(SA, SA + 32): k(f'v_mov_b32 v{r}, 0')
    mask64(sM1, 0x0001)
    k(f'v_lshrrev_b32 v8, 2, v3\nv_and_b32 v9, 3, v3\nv_lshl_add_u32 v10, v2, 5, v8\nv_lshlrev_b32 v10, 7, v10\nv_lshl_add_u32 v10, v9, 3, v10\nv_add_u32 v10, s{sST}, v10')
    k('s_waitcnt vmcnt(0)')
    for t_ in range(4):
        for tile in range(4):
            r = WW + (t_ * 4 + tile) * 4
            o = t_ * 1024 + tile * 32
            k(f'ds_read_b64_tr_b16 {vr(r,2)}, v10 offset:{o}\nds_read_b64_tr_b16 {vr(r+2,2)}, v10 offset:{o+512}')
        k('s_waitcnt lgkmcnt(0)')
    k(f's_and_b32 s{sT0}, s{sW}, 1\ns_lshl_b32 s{sT1}, s{sT0}, 9\ns_lshl_b32 s{sT0}, s{sT0}, 4\ns_add_u32 s{sT0}, s{sT0}, 1024')
    k(f'v_mul_u32_u24 v5, 1152, v2\nv_lshl_add_u32 v4, v3, 4, v5\nv_add_u32 v4, s{sT1}, v4\nv_add_u32 v5, s{sT0}, v5')
    k(f'v_mul_u32_u24 v6, 1152, v3\nv_add_u32 v6, s{sT0}, v6\nv_lshlrev_b32 v7, 4, v3')
    k(f's_lshl_b32 s{sT0}, s{sW}, 8\ns_add_u32 s{sT0}, s{sT0}, {L_WPART}\nv_lshl_add_u32 v22, v2, 4, s{sT0}\nv_add_u32 v23, {L_WPART}, v7')
    sO = 72
    if 'noloop' in DBG: k('s_branch L_exit')
    k.lab('L_wloop')
    k(f's_lshl_b32 s{sT0}, s{sBAT}, 4\ns_lshl_b32 s{sT1}, s{sX}, 1\ns_add_u32 s{sT0}, s{sT0}, s{sT1}\ns_lshr_b32 s{sT1}, s{sW}, 1\ns_add_u32 s{sT0}, s{sT0}, s{sT1}')
    k(f's_mul_i32 s{sT0}, s{sT0}, {16*1152}\ns_add_u32 s{sO}, s{sT0}, {WS_OP}')
    for u in range(1, 4): k(f's_add_u32 s{sO+u}, s{sO}, {4608*u}')
    lightpoll('w', 6, sO, MLG)
    for u in range(4): k(f'buffer_load_dwordx4 {vr(MLG+4*u,4)}, v5, {sr(sWS,4)}, s{sO+u} offen sc1')
    for u in range(4):
        for v in range(2):
            k(f'buffer_load_dwordx4 {vr(OG+(2*u+v)*4,4)}, v4, {sr(sWS,4)}, s{sO+u} offen offset:{256*v} sc1')
    k('s_waitcnt vmcnt(8)')
    k(f'v_max3_f32 v12, v{MLG}, v{MLG+4}, v{MLG+8}\nv_max_f32 v12, v12, v{MLG+12}')
    xrow('v_max_f32', 12, 13)
    for u in range(4): k(f'v_sub_f32 v{16+u}, v{MLG+4*u}, v12')
    for u in range(4): k(f'v_exp_f32 v{16+u}, v{16+u}')
    k(f'v_mul_f32 v14, v16, v{MLG+2}')
    for u in range(1, 4): k(f'v_fmac_f32 v14, v{16+u}, v{MLG+4*u+2}')
    for u in range(4): k(f'v_cvt_pk_bf16_f32 v{16+u}, v{16+u}, v{16+u}')
    xrow('v_add_f32', 14, 13)
    for u in range(4):
        for v in range(2):
            r = SA + (2 * u + v) * 4
            bm = '0x3' if v == 0 else '0xc'
            k(f'v_and_b32_dpp v{r}, v{16+u}, v20 quad_perm:[0,1,2,3] row_mask:0xf bank_mask:{bm}')
            k(f'v_and_b32_dpp v{r+2}, v{16+u}, v21 quad_perm:[0,1,2,3] row_mask:0xf bank_mask:{bm}')
    k('v_rcp_f32 v14, v14')
    k('s_waitcnt vmcnt(0)')
    for i in range(8):
        k(f'v_mfma_f32_16x16x32_bf16 v[16:19], {vr(SA+4*i,4)}, {vr(OG+4*i,4)}, {"0" if i == 0 else "v[16:19]"}')
    tagcheck([MLG + 4 * u for u in range(4)] + [OG + 4 * i for i in range(8)], 8, 9)
    k('s_cbranch_vccz L_wok')
    retry('L_wfull')
    k.lab('L_wok')
    stamp(6)
    for e in range(4): k(f'v_mul_f32 v{16+e}, v{16+e}, v14')
    k('v_cvt_pk_bf16_f32 v8, v16, v17\nv_cvt_pk_bf16_f32 v9, v18, v19')
    k('v_mov_b32_dpp v8, v8 row_shl:8 row_mask:0xa bank_mask:0xf\nv_mov_b32_dpp v9, v9 row_shl:8 row_mask:0xa bank_mask:0xf')
    def wb(t_):
        bcast(BW + 4 * t_, 8, 2 * t_); bcast(BW + 4 * t_ + 1, 9, 2 * t_); bcast(BW + 4 * t_ + 2, 8, 2 * t_ + 1); bcast(BW + 4 * t_ + 3, 9, 2 * t_ + 1)
    wb(0); wb(1)
    for t_ in range(4):
        for tile in range(4):
            k(f'v_mfma_f32_16x16x32_bf16 {vr(AW+4*tile,4)}, {vr(WW+(t_*4+tile)*4,4)}, {vr(BW+4*t_,4)}, {"0" if t_ == 0 else vr(AW+4*tile,4)}')
            if tile == 0 and t_ + 2 < 4: wb(t_ + 2)
    k(f's_lshl_b32 s{sT0}, s{sBAT}, 2\ns_add_u32 s{sT0}, s{sT0}, {L_FLG + F_WCNT}\nv_mov_b32 v12, s{sT0}\nv_mov_b32 v13, 1')
    k(f's_mul_i32 s{sT0}, s{sBAT}, 18432\ns_mul_i32 s{sT1}, s{sX}, 2304\ns_add_u32 s{sT0}, s{sT0}, s{sT1}\ns_lshl_b32 s{sT1}, s{sCN}, 8\ns_add_u32 s{sT0}, s{sT0}, s{sT1}\ns_add_u32 s{sT0}, s{sT0}, {WS_AP}')
    k(f's_mov_b64 exec, {sr(sM1,2)}')
    for tile in range(4): k(f'ds_write_b128 v22, {vr(AW+4*tile,4)} offset:{64*tile}')
    k('s_mov_b64 exec, 1\nds_add_rtn_u32 v13, v12, v13\ns_mov_b64 exec, -1')
    for i in range(4): k(f'ds_read_b128 {vr(BW+4*i,4)}, v23 offset:{256*i}')
    k(f'v_add_u32 v22, 1024, v22\nv_add_u32 v23, 1024, v23\nv_mov_b32 v17, s{sTAG}\nv_mov_b32 v19, s{sTAG}')
    k(f's_waitcnt lgkmcnt(0)\nv_readfirstlane_b32 s{sT1}, v13\ns_cmp_lg_u32 s{sT1}, 3\ns_cbranch_scc1 L_wskip')
    for e in range(4): k(f'v_add_f32 v{BW+e}, v{BW+e}, v{BW+4+e}\nv_add_f32 v{BW+8+e}, v{BW+8+e}, v{BW+12+e}')
    for e in range(4): k(f'v_add_f32 v{BW+e}, v{BW+e}, v{BW+8+e}')
    k(f'v_cvt_pk_bf16_f32 v16, v{BW}, v{BW+1}\nv_cvt_pk_bf16_f32 v18, v{BW+2}, v{BW+3}')
    k(f's_mov_b64 exec, 0xffff\nbuffer_store_dwordx4 v[16:19], v7, {sr(sWS,4)}, s{sT0} offen sc1\ns_mov_b64 exec, -1')
    k.lab('L_wskip')
    stamp(7)
    k(f's_add_u32 s{sBAT}, s{sBAT}, 1\ns_cmp_lt_u32 s{sBAT}, 8\ns_cbranch_scc1 L_wloop\ns_branch L_exit')

    k.lab('L_frole')
    k(f's_cmp_lg_u32 s{sW}, 0\ns_cbranch_scc1 L_exit\ns_cmp_ge_u32 s{sR}, 36\ns_cbranch_scc1 L_exit')
    YG, FS, FR = 64, 60, 40
    srd(sA, pOUT, 9216)
    selmasks(FS, FS + 2, 0x3f80)
    k(f'v_mov_b32 v{FS+1}, 0\nv_mov_b32 v{FS+3}, 0')
    k(f's_lshl_b32 s{sT0}, s{sR}, 6\nv_and_b32 v8, 3, v1\nv_lshl_add_u32 v4, v8, 4, s{sT0}')
    k(f'v_bfe_u32 v5, v1, 2, 1\nv_lshl_add_u32 v5, v5, 2, v2\nv_mul_u32_u24 v5, 2304, v5\nv_add_u32 v5, v5, v4')
    k(f'v_lshrrev_b32 v6, 2, v1\nv_lshlrev_b32 v6, 7, v6\nv_lshl_add_u32 v6, v8, 4, v6\nv_lshrrev_b32 v7, 1, v4')
    if 'noloop' in DBG or 'nof' in DBG: k('s_branch L_exit')
    k.lab('L_floop')
    k(f's_mul_i32 s{sT0}, s{sBAT}, 9216\ns_add_u32 s{sT0}, s{sT0}, {WS_MOD}\ns_add_u32 s{sT1}, s{sT0}, 6912')
    k(f's_mul_i32 s{sT2}, s{sBAT}, 18432\ns_add_u32 s{sT2}, s{sT2}, {WS_AP}\ns_mul_i32 s78, s{sBAT}, 1152')
    k(f'buffer_load_dwordx2 {vr(FR+12,2)}, v7, {sr(sD_,4)}, s78 offen')
    k.lab('L_fa')
    k(f'buffer_load_dwordx4 {vr(FR,4)}, v4, {sr(sWS,4)}, s{sT0} offen sc1')
    k(f'buffer_load_dwordx4 {vr(FR+4,4)}, v4, {sr(sWS,4)}, s{sT1} offen sc1')
    k(f'buffer_load_dwordx4 {vr(FR+8,4)}, v5, {sr(sWS,4)}, s{sT2} offen sc1')
    k('s_waitcnt vmcnt(0)')
    tagcheck([FR, FR + 4, FR + 8], 10, 11)
    k('s_cbranch_vccz L_faok')
    retry('L_fa', 4)
    k.lab('L_faok')
    k(f'v_mfma_f32_16x16x32_bf16 v[12:15], {vr(FS,4)}, {vr(FR+8,4)}, 0')
    k(f's_mul_i32 s72, s{sBAT}, 36\ns_add_u32 s72, s72, s{sR}\ns_mul_i32 s72, s72, 18432\ns_add_u32 s72, s72, {WS_YP}')
    for i in range(1, 5): k(f's_add_u32 s{72+i}, s72, {4096*i}')
    unp(16, FR); unp(18, FR + 2); unp(20, FR + 4); unp(22, FR + 6); unp(24, FR + 12); unp(26, FR + 13)
    for e in range(4): k(f'v_add_f32_dpp v{12+e}, v{12+e}, v{12+e} row_ror:4 row_mask:0xf bank_mask:0xf')
    rnd4(12, 8)
    for e in range(4): k(f'v_mul_f32 v{12+e}, v{16+e}, v{12+e}')
    rnd4(12, 8)
    for e in range(4): k(f'v_add_f32 v{24+e}, v{24+e}, v{12+e}')
    rnd4(24, 8)
    k.lab('L_fy')
    for i in range(9):
        k(f'buffer_load_dwordx4 {vr(YG+4*i,4)}, v6, {sr(sWS,4)}, s{72+i//2} offen offset:{2048*(i&1)} sc1')
    k('s_waitcnt vmcnt(0)')
    for i in range(9):
        k(f'v_mfma_f32_16x16x32_bf16 v[12:15], {vr(FS,4)}, {vr(YG+4*i,4)}, {"0" if i == 0 else "v[12:15]"}')
    tagcheck([YG + 4 * i for i in range(9)], 8, 9)
    k('s_cbranch_vccz L_fyok')
    k(f's_cmp_eq_u32 s{sBAT}, 7\ns_cbranch_scc1 L_fy2\ns_sleep {SLEEP}')
    k.lab('L_fy2')
    retry('L_fy')
    k.lab('L_fyok')
    stamp(6)
    for m in (4, 8):
        for e in range(4): k(f'v_add_f32_dpp v{12+e}, v{12+e}, v{12+e} row_ror:{m} row_mask:0xf bank_mask:0xf')
    rnd4(12, 8)
    for e in range(4): k(f'v_mul_f32 v{12+e}, v{20+e}, v{12+e}')
    rnd4(12, 8)
    for e in range(4): k(f'v_add_f32 v{12+e}, v{24+e}, v{12+e}')
    k('v_cvt_pk_bf16_f32 v8, v12, v13\nv_cvt_pk_bf16_f32 v9, v14, v15')
    k(f's_mov_b64 exec, 15\nbuffer_store_dwordx2 v[8:9], v7, {sr(sA,4)}, s78 offen\ns_mov_b64 exec, -1')
    stamp(7)
    k(f's_add_u32 s{sBAT}, s{sBAT}, 1\ns_cmp_lt_u32 s{sBAT}, 8\ns_cbranch_scc1 L_floop')
    k(f's_cmp_lg_u32 s{sR}, 0\ns_cbranch_scc1 L_exit')
    k(f'v_mov_b32 v8, s{sEP}\nv_mov_b32 v9, 0\ns_mov_b64 exec, 1\nbuffer_store_dword v8, v9, {sr(sWS,4)}, 0 offen\ns_mov_b64 exec, -1')

    k.lab('L_exit')
    if PROF:
        stamp(8)
        k(f's_waitcnt lgkmcnt(0)\ns_lshl_b32 s{sT0}, s2, 3\ns_add_u32 s{sT0}, s{sT0}, s3\ns_lshl_b32 s{sT0}, s{sT0}, 7\ns_add_u32 s{sT0}, s{sT0}, {WS_PROF}')
        k(f'v_mov_b32 v8, 0\ns_mov_b64 exec, 1')
        for i in range(9):
            k(f'v_mov_b32 v10, s{80+2*i}\nv_mov_b32 v11, s{81+2*i}\nbuffer_store_dwordx2 v[10:11], v8, {sr(sWS,4)}, s{sT0} offen offset:{8*i}')
        k(f'v_mov_b32 v10, s{sTO}\nv_mov_b32 v11, 0\nbuffer_store_dwordx2 v[10:11], v8, {sr(sWS,4)}, s{sT0} offen offset:72')
    k.lab('L_end')
    k('s_endpgm')
    k.lab('L_codeend')

    body = fix_hazards(k.L)
    hdr = open('cdna_kernels/' + NAME + '.s.ref').read().split('; Override launch')[0]
    out = [hdr.rstrip('\n'),
           f'; @launch grid=(256,1,1) block=(512,1,1) lds={LDS_BYTES}',
           '.amdgcn_target "amdgcn-amd-amdhsa--gfx950"', '.text', f'.globl {NAME}_kernel', '.p2align 8',
           f'.type {NAME}_kernel,@function', f'{NAME}_kernel:', 'L_start:']
    out += body
    out += ['.section .rodata,"a"', '.p2align 6', f'.amdhsa_kernel {NAME}_kernel',
            '  .amdhsa_next_free_vgpr 256', '  .amdhsa_next_free_sgpr 102', '  .amdhsa_accum_offset 256',
            '  .amdhsa_group_segment_fixed_size 0', '  .amdhsa_kernarg_size 112', '  .amdhsa_user_sgpr_count 2',
            '  .amdhsa_user_sgpr_kernarg_segment_ptr 1', '  .amdhsa_system_sgpr_workgroup_id_x 1', '.end_amdhsa_kernel']
    return '\n'.join(out) + '\n'

if __name__ == '__main__':
    kw = eval('dict(' + (sys.argv[2] if len(sys.argv) > 2 else '') + ')')
    open(sys.argv[1], 'w').write(gen(**kw))
```

```python
import sys, struct
from asmlib import K, fix_hazards, vr, sr

NAME = 'adaLN_cond__gqa_block_cached__glu_gated_geglu__decode'
WS_H, WS_MOD, WS_Q, WS_OP, WS_AP, WS_H2, WS_X2, WS_YP, WS_PROF = 0x10000, 0x20000, 0x40000, 0x80000, 0x100000, 0x130000, 0x138000, 0x200000, 0x600000
WS_SIZE = 0x800000
L_STG, L_PT, L_RED, L_SP, L_Q, L_FLG, L_STA = 0, 110592, 131072, 139264, 143424, 143936, 144192
LDS_BYTES = 144384
F_CNT, F_QRDY, F_P, F_LATE, F_JC, F_LIM = 0, 4, 8, 12, 16, 20
WS_BAL = 0x8000
QMIN = 208
LOG2E = 0x3FB8AA3B
SCALE = 0x3DB504F3
TIMEOUT = 200000
f2u = lambda f: struct.unpack('<I', struct.pack('<f', f))[0]

def tables(kind):
    G, W, R, N = 0, 1, 2, 3
    if kind == 0:
        roles = [G] * 16 + [N, G, N, G, W, W, W, W, W, W, N, W, N, W, R, W]
        pro = [(2 if (u < 14 and u & 1) else 3 if (u >= 16 and not u & 1) else 0) for u in range(32)]
    else:
        roles = [G, W] * 9 + [G, N] * 4 + [G, R] + [G, G] * 2
        pro = [0, 2] * 6 + [0, 3] * 8 + [0, 2, 0, 0]
    cnt = {}; tail = []
    for r in roles:
        tail.append((r, cnt.get(r, 0))); cnt[r] = cnt.get(r, 0) + 1
    cnt = {}; pi = []
    for p in pro:
        pi.append(cnt.get(p, 0) if p else 0); cnt[p] = cnt.get(p, 0) + 1
    return tail, pro, pi
TAIL, PRO, PIX = tables(1)

def gen(PROF=False, PRE_TH=48, STG_TH=8, LATE=8, PSL=1, QSL=2, DBG='', PAIR=1, MASKED=True, TH=12, WTH=4, JC=44, GAM=1.2, BAL=True, PG=0, PF=1, PFROW=320, CP='', CODEP='', PFP='nt', TAB=1, PT=0, FULL=True, LREM=None, BIAS=0, SPLIT=0):
    global TAIL, PRO, PIX
    TAIL, PRO, PIX = tables(TAB)
    if LREM is not None: LATE = 200
    k = K()
    sWS, sTAG, sEP, sHKV, sBB, sX, sIP, sR, sW = 4, 8, 9, 10, 11, 12, 13, 14, 15
    pX, pK, pV, pWQ, pWO, pGA, pUP, pDN, pC, pWM, pOUT, pWSP = 16, 18, 20, 22, 24, 28, 30, 32, 34, 36, 38, 42
    sA, sB_, sC_, sD_ = 44, 48, 52, 56
    sHI, sL2E, sT0, sT1, sT2, sT3, sTO, sSP = 60, 61, 62, 63, 64, 65, 66, 67
    sM0, sM1 = 68, 70
    DPPALL = 'row_mask:0xf bank_mask:0xf'
    STR = [80 + 2 * i for i in range(9)] + [26, 40]
    def stamp(i):
        if PROF: k(f's_memrealtime {sr(STR[i], 2)}')
    def srd(d, p, size):
        k(f's_mov_b32 s{d}, s{p}\ns_mov_b32 s{d+1}, s{p+1}\ns_mov_b32 s{d+2}, {size}\ns_mov_b32 s{d+3}, 0x20000')
    def unp(d, s_):
        k(f'v_lshlrev_b32 v{d}, 16, v{s_}\nv_and_b32 v{d+1}, s{sHI}, v{s_}')
    def rnd2(a, b, t):
        k(f'v_cvt_pk_bf16_f32 v{t}, v{a}, v{b}\nv_lshlrev_b32 v{a}, 16, v{t}\nv_and_b32 v{b}, s{sHI}, v{t}')
    def rnd4(a, t):
        k(f'v_cvt_pk_bf16_f32 v{t}, v{a}, v{a+1}\nv_cvt_pk_bf16_f32 v{t+1}, v{a+2}, v{a+3}')
        unp(a, t); unp(a + 2, t + 1)
    def rnd1(a, t):
        k(f'v_cvt_pk_bf16_f32 v{t}, v{a}, v{a}\nv_and_b32 v{a}, s{sHI}, v{t}')
    def xrow(op, x, t, steps=(16, 32)):
        for st in steps:
            k(f'v_mov_b32 v{t}, v{x}\nv_permlane{st}_swap_b32 v{x}, v{t}\n{op} v{x}, v{x}, v{t}')
    def tagcheck(bases, acc, tmp):
        for i, b in enumerate(bases):
            d = acc if i == 0 else tmp + ((i - 1) & 1)
            k(f'v_bitop3_b32 v{d}, v{b+1}, v{b+3}, s{sTAG} bitop3:0x7e')
            if i > 0 and (i & 1) == 0: k(f'v_or3_b32 v{acc}, v{acc}, v{tmp}, v{tmp+1}')
        if len(bases) > 1 and (len(bases) & 1) == 0: k(f'v_or_b32 v{acc}, v{acc}, v{tmp}')
        k(f'v_cmp_ne_u32 vcc, 0, v{acc}')
    def retry(lab, sleep=0):
        if sleep: k(f's_sleep {sleep}')
        k(f's_sub_u32 s{sTO}, s{sTO}, 1\ns_cmp_lg_u32 s{sTO}, 0\ns_cbranch_scc1 {lab}\ns_branch L_exit')
    def poll(name, loads, bases, acc, tmp, sleep=0, masked=False):
        k.lab(f'L_{name}')
        for l in loads: k(l)
        k('s_waitcnt vmcnt(0)')
        tagcheck(bases, acc, tmp)
        k(f's_cbranch_vccz L_{name}ok')
        if masked: k('s_mov_b64 exec, vcc')
        retry(f'L_{name}', sleep)
        k.lab(f'L_{name}ok')
        if masked: k('s_mov_b64 exec, -1')
    def mask64(d, lo16):
        m = lo16 | (lo16 << 16)
        k(f's_mov_b32 s{d}, {m:#x}\ns_mov_b32 s{d+1}, {m:#x}')
    def mfma(d, a, b, first):
        k(f'v_mfma_f32_16x16x32_bf16 {vr(d,4)}, {vr(a,4)}, {vr(b,4)}, {"0" if first else vr(d,4)}')
    def strip(b):
        k(f'v_mov_b32 v{b+1}, v{b+2}')
    def strip2(b):
        k(f'v_mov_b32_dpp v{b+2}, v{b} row_ror:8 {DPPALL}\nv_mov_b32_dpp v{b+3}, v{b+1} row_ror:8 {DPPALL}')

    k('s_cmp_ge_u32 s2, 256\ns_cbranch_scc1 L_end')
    k('s_load_dwordx16 s[16:31], s[0:1], 0')
    k('s_load_dwordx8 s[32:39], s[0:1], 64')
    k('s_load_dwordx4 s[40:43], s[0:1], 96')
    stamp(0)
    k('v_lshrrev_b32 v2, 6, v0\nv_and_b32 v1, 63, v0')
    k('v_readfirstlane_b32 s3, v2')
    k(f's_mov_b32 s{sHI}, 0xffff0000\ns_mov_b32 s{sL2E}, {LOG2E:#x}\ns_mov_b32 s{sTO}, {TIMEOUT}')
    k(f's_and_b32 s{sSP}, s2, 1\ns_mul_i32 s{sT0}, s{sSP}, {PAIR}\ns_xor_b32 s{sT0}, s{sT0}, s2\ns_lshr_b32 s{sT0}, s{sT0}, 1')
    k(f's_and_b32 s{sHKV}, s{sT0}, 15\ns_lshr_b32 s{sBB}, s{sT0}, 4\ns_and_b32 s{sW}, s3, 3')
    k('v_lshrrev_b32 v2, 4, v1\nv_and_b32 v3, 15, v1')
    sROLE, sPRO, sPI, sST = 98, 99, 100, 101
    k(f's_lshl_b32 s79, s{sT0}, 21')
    k(f's_and_b32 s{sX}, s2, 7\ns_lshr_b32 s{sIP}, s2, 3\ns_xor_b32 s{sIP}, s{sIP}, s{sSP}')
    pk = sum(p << (2 * u) for u, p in enumerate(PRO))
    k(f's_mov_b32 s62, {pk & 0xffffffff:#x}\ns_mov_b32 s63, {pk >> 32:#x}\ns_andn2_b32 s65, s{sIP}, 1\ns_lshl_b32 s65, s65, 1\ns_lshr_b64 s[62:63], s[62:63], s65')
    k(f's_lshr_b32 s68, s62, 2\ns_or_b32 s68, s68, s62\ns_and_b32 s68, s68, 3')
    k(f's_and_b32 s64, s{sIP}, 1\ns_lshl_b32 s64, s64, 1\ns_lshr_b32 s{sPRO}, s62, s64\ns_and_b32 s{sPRO}, s{sPRO}, 3')
    xk = sum(max(PIX[2 * m], PIX[2 * m + 1]) << (4 * m) for m in range(16))
    k(f's_mov_b32 s62, {xk & 0xffffffff:#x}\ns_mov_b32 s63, {xk >> 32:#x}\ns_lshr_b64 s[62:63], s[62:63], s65\ns_and_b32 s{sPI}, s62, 7')
    k(f's_lshl_b32 s{sPI}, s{sPI}, 3\ns_add_u32 s{sPI}, s{sPI}, s{sX}')
    k(f's_cmp_lt_u32 s{sPI}, 54\ns_cselect_b32 s64, 3, 1\ns_and_b32 s65, s68, s64\ns_cmp_eq_u32 s65, 0\ns_cselect_b32 s{sPRO}, 0, s{sPRO}\ns_cselect_b32 s68, 0, s68')
    k(f's_mul_i32 s{sST}, s{sW}, 27648')
    k('s_cmp_ge_u32 s3, 4\ns_cbranch_scc1 L_helper')

    vKO, vVO, vHALF, vM, vL, S, O, Q, P, T = 4, 5, 6, 7, 60, 8, 12, 16, 32, 48
    sOFF, sI, sBASE, sSCL = 72, 76, 79, 69
    SLOT = lambda j: 64 + 32 * j
    k('s_getpc_b64 s[62:63]')
    k('v_lshlrev_b32 v8, 7, v0')
    k('v_min_u32 v8, L_codeend-L_start-256, v8')
    if CODEP != 'off': k(f'global_load_dword v9, v8, s[62:63] {CODEP}')
    k(f'v_lshlrev_b32 v{vKO}, 8, v3\nv_lshl_add_u32 v{vKO}, v2, 4, v{vKO}')
    k(f'v_lshlrev_b32 v{vVO}, 4, v3\nv_lshl_add_u32 v{vVO}, v2, 10, v{vVO}')
    if FULL:
        k(f'v_lshrrev_b32 v58, 1, v3\nv_lshlrev_b32 v58, 8, v58\nv_lshl_add_u32 v58, v2, 5, v58\nv_and_b32 v59, 1, v3\nv_lshl_add_u32 v58, v59, 4, v58')
        k(f'v_lshlrev_b32 v59, 4, v3\nv_lshl_add_u32 v59, v2, 9, v59')
    sLIM, sVAL = 77, 70
    k(f's_mov_b32 s{sI}, s{sW}\ns_mov_b32 s{sLIM}, {QMIN if BAL else 256}')
    def nextoff(a):
        k(f's_sub_u32 s{sT2}, 511, s{sI}\ns_xor_b32 s{sT3}, s{sSP}, 1\ns_cmp_lt_u32 s{sI}, 256')
        k(f's_cselect_b32 s{sT2}, s{sI}, s{sT2}\ns_cselect_b32 s{sT3}, s{sSP}, s{sT3}')
        k(f's_lshl_b32 s{sT3}, s{sT3}, 2\ns_andn2_b32 s{sOFF+a}, s{sT2}, 3\ns_add_u32 s{sT2}, s{sT2}, s{sOFF+a}\ns_add_u32 s{sT2}, s{sT2}, s{sT3}')
        k(f's_lshl_b32 s{sT2}, s{sT2}, 12\ns_add_u32 s{sOFF+a}, s{sT2}, s{sBASE}')
        k(f's_cmp_lt_u32 s{sI}, s{sLIM}\ns_cselect_b32 s{sOFF+a}, s{sOFF+a}, 0x20000000\ns_cselect_b32 s{sVAL+a}, 1, 0\ns_add_u32 s{sI}, s{sI}, 4')
    def ldk(j, a, full=False):
        for i in range(4):
            if full: k(f'buffer_load_dwordx4 {vr(SLOT(j)+4*i,4)}, v58, {sr(sA,4)}, s{sOFF+a} offen offset:{2048*(i>>1)+128*(i&1)} nt')
            else: k(f'buffer_load_dwordx4 {vr(SLOT(j)+4*i,4)}, v{vKO}, {sr(sA,4)}, s{sOFF+a} offen offset:{64*i} nt')
    def ldv(j, a, full=False):
        for i in range(4):
            if full: k(f'buffer_load_dwordx4 {vr(SLOT(j)+16+4*i,4)}, v59, {sr(sB_,4)}, s{sOFF+a} offen offset:{2048*(i>>1)+256*(i&1)} nt')
            else: k(f'buffer_load_dwordx4 {vr(SLOT(j)+16+4*i,4)}, v{vVO}, {sr(sB_,4)}, s{sOFF+a} offen offset:{256*i} nt')
    nextoff(0)
    k(f's_movk_i32 s74, 6912\ns_cmp_eq_u32 s68, 3\ns_cselect_b32 s74, 8192, s74')
    k(f'v_lshrrev_b32 v10, 3, v1\nv_and_b32 v11, 2, v10\nv_mul_lo_u32 v10, v10, s74\nv_xor_b32 v11, v11, v1\nv_and_b32 v11, 7, v11\nv_lshl_add_u32 v10, v11, 4, v10\nv_xor_b32 v12, 64, v10')
    k(f'v_add_u32 v11, {PFROW}, v0\nv_mul_lo_u32 v11, v11, s74')
    k(f's_mul_i32 s75, s74, s{sW}\ns_lshl_b32 s75, s75, 5\ns_lshl_b32 s69, s{sPI}, 7\ns_add_u32 s75, s75, s69')
    k(f's_mul_i32 s{sC_+2}, s74, 576\ns_mov_b32 s{sC_+3}, 0x20000\ns_mul_i32 s78, s74, 104\ns_lshl_b32 s74, s74, 3')
    k('s_waitcnt lgkmcnt(0)')
    k(f's_cmp_eq_u32 s68, 3\ns_cselect_b32 s{sC_}, s{pWQ}, s{pWM}\ns_cselect_b32 s{sC_+1}, s{pWQ+1}, s{pWM+1}')
    srd(sA, pK, 0x10000000); srd(sB_, pV, 0x10000000)
    k(f's_cmp_eq_u32 s{sPRO}, 0\ns_cbranch_scc1 L_notile')
    for i in range(5):
        for j in range(4):
            k(f's_add_u32 m0, s{sST}, {4096*i+1024*j}')
            k(f'buffer_load_dwordx4 v{10 + 2 * (j & 1)}, {sr(sC_,4)}, s75 offen nt lds')
            if (i, j) != (4, 3): k(f's_add_u32 s75, s75, s{74 if j < 3 else 78}')
    k(f's_waitcnt vmcnt(0)\ns_barrier')
    if PG: ldk(0, 0, FULL); ldv(0, 0, FULL)
    k(f's_barrier\ns_barrier')
    if not PG: ldk(0, 0, FULL); ldv(0, 0, FULL)
    k('s_branch L_first')
    k.lab('L_notile')
    if PF:
        k(f's_cmp_eq_u32 s68, 0\ns_cbranch_scc1 L_nopf')
        k(f'buffer_load_dword v9, v11, {sr(sC_,4)}, s69 offen {PFP}')
        if PFROW < 320: k(f's_mul_i32 s75, s74, 32\ns_add_u32 s69, s69, s75\nbuffer_load_dword v10, v11, {sr(sC_,4)}, s69 offen {PFP}')
        k.lab('L_nopf')
        if PF == 2: k('s_waitcnt vmcnt(0)')
    ldk(0, 0, FULL); ldv(0, 0, FULL)
    k('s_barrier')
    k.lab('L_first')
    k(f's_load_dword s{sEP}, {sr(pWSP,2)}, 0')
    srd(sWS, pWSP, WS_SIZE)
    k(f'v_mov_b32 v{vHALF}, 0xffff\nv_and_b32 v8, 2, v3\nv_lshlrev_b32 v8, 3, v8\nv_lshlrev_b32 v{vHALF}, v8, v{vHALF}')
    for r in range(P, P + 16): k(f'v_mov_b32 v{r}, 0')
    for r in range(O, O + 4): k(f'v_mov_b32 v{r}, 0')
    k(f'v_mov_b32 v{vM}, 0xff800000\nv_mov_b32 v{vL}, 0')
    k(f'v_and_b32 v61, 1, v3\nv_lshlrev_b32 v61, 8, v61\nv_lshl_add_u32 v61, v2, 4, v61\nv_add_u32 v61, {L_Q}, v61')
    k(f's_mov_b32 s{sSCL}, {SCALE:#x}')
    for j in range(1, 6):
        nextoff(0)
        if PRE_TH < 40: k(f's_waitcnt vmcnt({PRE_TH})')
        ldk(j, 0, FULL)
        if PRE_TH < 40: k(f's_waitcnt vmcnt({PRE_TH})')
        ldv(j, 0, FULL)
    stamp(1)
    k('s_waitcnt vmcnt(48) lgkmcnt(0)')
    k(f's_add_u32 s{sEP}, s{sEP}, 0x9e3779b9\ns_and_b32 s{sTAG}, s{sEP}, 0xbfffbfff')
    k(f'v_mov_b32 v62, {L_FLG}\nv_mov_b32 v63, 1')
    if FULL: k(f'v_and_b32 v8, 2, v3\nv_lshlrev_b32 v8, 3, v8\nv_lshl_add_u32 v8, v2, 4, v8\nv_add_u32 v8, v61, v8')
    k.lab('L_qwait')
    k(f'ds_read_b32 v9, v62 offset:{F_QRDY}')
    if FULL:
        for i in range(2): k(f'ds_read_b128 {vr(Q+4*i,4)}, v8 offset:{128*i}')
    else:
        for i in range(4): k(f'ds_read_b128 {vr(Q+4*i,4)}, v61 offset:{64*i}')
    k(f's_waitcnt lgkmcnt(0)\nv_readfirstlane_b32 s{sT0}, v9\ns_cmp_eq_u32 s{sT0}, 1\ns_cbranch_scc1 L_qok')
    retry('L_qwait', 2)
    k.lab('L_qok')
    stamp(2)
    def consume(j, kw, vw, a, full=False):
        Kb, Vb = SLOT(j), SLOT(j) + 16
        t = T
        k(f's_waitcnt vmcnt({kw})')
        S2 = Q + 8
        if full:
            mfma(S2, Kb, Q, True); mfma(S2 + 4, Kb + 8, Q, True); mfma(S2, Kb + 4, Q + 4, False); mfma(S2 + 4, Kb + 12, Q + 4, False)
        else:
            for i in range(4): mfma(S, Kb + 4 * i, Q + 4 * i, i == 0)
        if a is not None:
            nextoff(a)
            if TH < 12 and kw == 12: k(f's_waitcnt vmcnt({TH})')
            ldk(j, a)
        if full:
            for i in range(4): k(f'v_mov_b32_dpp v{S+i}, v{S2+2*i} quad_perm:[0,1,0,1] {DPPALL}')
            for i in range(4): k(f'v_add_f32_dpp v{S+i}, v{S2+2*i+1}, v{S+i} quad_perm:[2,3,2,3] {DPPALL}')
        k(f'v_cvt_pk_bf16_f32 v{t}, v{S}, v{S+1}\nv_cvt_pk_bf16_f32 v{t+1}, v{S+2}, v{S+3}')
        unp(t + 2, t); unp(t + 4, t + 1)
        for i in range(4): k(f'v_mul_f32 v{t+2+i}, s{sSCL}, v{t+2+i}')
        rnd4(t + 2, t)
        k(f'v_max3_f32 v{t+6}, v{t+2}, v{t+3}, v{t+4}\nv_max3_f32 v{t+6}, v{t+6}, v{t+5}, v{vM}')
        xrow('v_max_f32', t + 6, t + 7)
        k(f'v_sub_f32 v{t+7}, v{vM}, v{t+6}\nv_mul_f32 v{t+8}, s{sL2E}, v{t+6}\nv_mul_f32 v{t+7}, s{sL2E}, v{t+7}\nv_mov_b32 v{vM}, v{t+6}')
        for i in range(4): k(f'v_fma_f32 v{t+2+i}, v{t+2+i}, s{sL2E}, -v{t+8}')
        k(f'v_exp_f32 v{t+7}, v{t+7}')
        for i in range(4): k(f'v_exp_f32 v{t+2+i}, v{t+2+i}')
        k(f'v_mul_f32 v{vL}, v{vL}, v{t+7}')
        for i in range(4):
            qp = '[0,0,2,2]' if i % 2 == 0 else '[1,1,3,3]'
            k(f'v_mul_f32_dpp v{O+i}, v{t+7}, v{O+i} quad_perm:{qp} {DPPALL}')
        for i in range(4): k(f'v_cvt_pk_bf16_f32 v{t+8+i}, v{t+2+i}, v{t+2+i}')
        k(f'v_add_f32 v{t+2}, v{t+2}, v{t+3}\nv_add_f32 v{t+4}, v{t+4}, v{t+5}\nv_add_f32 v{vL}, v{vL}, v{t+2}\nv_add_f32 v{vL}, v{vL}, v{t+4}')
        for i in range(4):
            for r in range(4):
                k(f'v_and_b32_dpp v{P+4*i+r}, v{t+8+i}, v{vHALF} quad_perm:[0,1,2,3] row_mask:0xf bank_mask:{1<<r:#x}')
        k(f's_waitcnt vmcnt({vw})')
        for i in range(4): mfma(O, P + 4 * i, Vb + 4 * i, False)
        if a is not None:
            if TH < 12 and kw == 12: k(f's_waitcnt vmcnt({TH})')
            ldv(j, a)
    consume(0, 44, 44, 0, FULL); consume(1, 44, 44, 1, FULL)
    consume(2, 44, 40, None, FULL); consume(3, 36, 32, None, FULL); consume(4, 28, 24, None, FULL); consume(5, 20, 16, None, FULL)
    if FULL:
        for i in range(4): k(f'ds_read_b128 {vr(Q+4*i,4)}, v61 offset:{64*i}')
    stamp(3)
    R_, ML, E = SLOT(2), SLOT(2) + 16, SLOT(3)
    k(f's_mul_i32 s{sT1}, s{sW}, 1040\ns_add_u32 s{sT1}, s{sT1}, {L_SP}')
    k(f'v_lshlrev_b32 v{E}, 5, v3\nv_lshl_add_u32 v{E}, v2, 3, v{E}\nv_add_u32 v{E}, s{sT1}, v{E}')
    k(f'v_and_b32 v{E+1}, 1, v3\nv_lshlrev_b32 v{E+1}, 3, v{E+1}\ns_add_u32 s{sT1}, s{sT1}, 1024\nv_add_u32 v{E+1}, s{sT1}, v{E+1}')
    k(f'v_lshlrev_b32 v{E+2}, 4, v1\nv_add_u32 v{E+3}, {L_SP}, v{E+2}')
    k(f'v_lshrrev_b32 v{E+5}, 5, v1\nv_lshlrev_b32 v{E+4}, 3, v{E+5}\nv_add_u32 v{E+4}, {L_SP}, v{E+4}\nv_lshlrev_b32 v{E+5}, 4, v{E+5}')
    for r in (9, 11, 13, 15): k(f'v_mov_b32 v{E+r}, s{sTAG}')
    k(f's_lshl_b32 s74, s{sHKV}, 3\ns_add_u32 s74, s74, s{sBB}\ns_lshl_b32 s74, s74, 1\ns_add_u32 s74, s74, s{sSP}\ns_mul_i32 s74, s74, 1152\ns_add_u32 s74, s74, {WS_OP}')
    k('s_waitcnt lgkmcnt(0)')
    k.lab('L_top')
    k(f's_lshr_b32 s{sT0}, s{sI}, 2')
    k(f's_cmp_lg_u32 s{sT0}, {LATE}\ns_cbranch_scc1 L_nolate\nds_write_b32 v62, v63 offset:{F_LATE}')
    k.lab('L_nolate')
    if PROF:
        for n_, stp in enumerate((16, 28, 40, 52)):
            k(f's_cmp_lg_u32 s{sT0}, {stp}\ns_cbranch_scc1 L_ns{n_}')
            stamp(6 + n_)
            k.lab(f'L_ns{n_}')
    if BAL:
        k(f's_cmp_lg_u32 s{sT0}, {JC}\ns_cbranch_scc1 L_nojc\ns_mov_b64 exec, 1\nds_add_u32 v62, v63 offset:{F_JC}\ns_mov_b64 exec, -1')
        k.lab('L_nojc')
        k(f's_cmp_lg_u32 s{sT0}, {QMIN//4}\ns_cbranch_scc1 L_nolim')
        k.lab('L_lim')
        k(f'ds_read_b32 v61, v62 offset:{F_LIM}\ns_waitcnt lgkmcnt(0)\nv_readfirstlane_b32 s{sLIM}, v61\ns_cmp_lg_u32 s{sLIM}, 0\ns_cbranch_scc1 L_nolim')
        retry('L_lim', 2)
        k.lab('L_nolim')
    if LREM is not None:
        k(f's_cmp_lt_u32 s{sT0}, {QMIN//4}\ns_cbranch_scc1 L_nolr\ns_add_u32 s{sT0}, s{sI}, {4*LREM}\ns_cmp_lt_u32 s{sT0}, s{sLIM}\ns_cbranch_scc1 L_nolr')
        k(f'ds_write_b32 v62, v63 offset:{F_LATE}')
        k.lab('L_nolr')
    for a in range(2):
        k(f's_cmp_eq_u32 s{sVAL+a}, 0\ns_cbranch_scc1 L_send')
        consume(a, 12, 12, a)
    k('s_branch L_top')
    k.lab('L_send')
    stamp(4)
    t = T
    xrow('v_add_f32', vL, t)
    k(f'ds_write2_b32 v{E+1}, v{vM}, v{vL} offset0:0 offset1:1')
    k(f'ds_write2_b32 v{E}, v{O}, v{O+2} offset0:0 offset1:1')
    k(f'ds_write2_b32 v{E}, v{O+1}, v{O+3} offset0:128 offset1:129')
    k(f's_mov_b64 exec, 1\nds_add_rtn_u32 v63, v62, v63 offset:{F_CNT}\ns_mov_b64 exec, -1')
    for i in range(4): k(f'ds_read_b64 {vr(ML+2*i,2)}, v{E+4} offset:{1024+1040*i}')
    for i in range(4): k(f'ds_read_b128 {vr(R_+4*i,4)}, v{E+3} offset:{1040*i}')
    k('s_waitcnt lgkmcnt(4)')
    k(f'v_readfirstlane_b32 s{sT1}, v63\ns_cmp_lg_u32 s{sT1}, 3\ns_cbranch_scc1 L_exit')
    k(f'v_max3_f32 v{t}, v{ML}, v{ML+2}, v{ML+4}\nv_max_f32 v{t}, v{t}, v{ML+6}')
    k(f'v_mul_f32 v{t}, s{sL2E}, v{t}\nv_max_f32 v{E+8}, 0xf149f2ca, v{t}')
    for i in range(4): k(f'v_fma_f32 v{ML+2*i}, v{ML+2*i}, s{sL2E}, -v{E+8}')
    for i in range(4): k(f'v_exp_f32 v{ML+2*i}, v{ML+2*i}')
    k(f'v_mul_f32 v{E+10}, v{ML}, v{ML+1}')
    for i in range(1, 4): k(f'v_fmac_f32 v{E+10}, v{ML+2*i}, v{ML+2*i+1}')
    k(f's_mov_b32 exec_lo, 1\ns_mov_b32 exec_hi, 1')
    k(f'buffer_store_dwordx4 {vr(E+8,4)}, v{E+5}, {sr(sWS,4)}, s74 offen offset:1024 sc1')
    k('s_mov_b64 exec, -1\ns_waitcnt lgkmcnt(0)')
    for e in range(4): k(f'v_mul_f32 v{R_+e}, v{ML}, v{R_+e}')
    for i in range(1, 4):
        for e in range(4): k(f'v_fmac_f32 v{R_+e}, v{ML+2*i}, v{R_+4*i+e}')
    k(f'v_cvt_pk_bf16_f32 v{E+12}, v{R_}, v{R_+1}\nv_cvt_pk_bf16_f32 v{E+14}, v{R_+2}, v{R_+3}')
    k(f'buffer_store_dwordx4 {vr(E+12,4)}, v{E+2}, {sr(sWS,4)}, s74 offen sc1')
    stamp(5)
    k('s_branch L_exit')

    k.lab('L_helper')
    k('s_setprio 2')
    CB, WT, AC, RR = 16, 176, 40, 100
    k(f'v_lshlrev_b32 v8, 2, v1\nv_add_u32 v8, {L_FLG}, v8\nv_mov_b32 v9, 0\nds_write_b32 v8, v9')
    k(f'v_and_b32 v7, 7, v3\nv_lshrrev_b32 v9, 3, v3\nv_mul_u32_u24 v8, 1152, v7')
    k(f'v_lshl_add_u32 v4, v2, 4, v8\nv_lshl_add_u32 v4, v9, 3, v4')
    k(f's_lshl_b32 s{sT0}, s{sW}, 6')
    k('s_waitcnt lgkmcnt(0)')
    srd(sA, pC, 9216); srd(sD_, pX, 9216)
    def epoch():
        srd(sWS, pWSP, WS_SIZE)
        k(f's_load_dword s{sEP}, {sr(pWSP,2)}, 0')
        rk = sum(r << (2 * u) for u, (r, _) in enumerate(TAIL))
        k(f's_mov_b32 s62, {rk & 0xffffffff:#x}\ns_mov_b32 s63, {rk >> 32:#x}\ns_lshl_b32 s64, s{sIP}, 1\ns_lshr_b64 s[62:63], s[62:63], s64\ns_and_b32 s{sROLE}, s62, 3')
        gm = sum(1 << u for u, (r, _) in enumerate(TAIL) if r == 0); wm = sum(1 << u for u, (r, _) in enumerate(TAIL) if r == 1)
        k(f's_bfm_b32 s62, s{sIP}, 0\ns_and_b32 s63, s62, {wm:#x}\ns_bcnt1_i32_b32 s77, s63\ns_and_b32 s63, s62, {gm:#x}\ns_bcnt1_i32_b32 s62, s63')
        k(f's_mul_i32 s{sR}, s{sX}, 18\ns_add_u32 s{sR}, s{sR}, s62')
        k(f's_waitcnt lgkmcnt(0)\ns_add_u32 s{sEP}, s{sEP}, 0x9e3779b9\ns_and_b32 s{sTAG}, s{sEP}, 0xbfffbfff')
    def silu():
        k(f's_mov_b32 s{sT0}, 0xbfb8aa3b')
        for i in range(5):
            b = CB + 4 * i
            unp(RR, b); unp(RR + 2, b + 1)
            for e in range(4): k(f'v_mul_f32 v{RR+4+e}, s{sT0}, v{RR+e}')
            for e in range(4): k(f'v_exp_f32 v{RR+4+e}, v{RR+4+e}')
            for e in range(4): k(f'v_add_f32 v{RR+4+e}, 1.0, v{RR+4+e}')
            for e in range(4): k(f'v_min_f32 v{RR+4+e}, 0x7e800000, v{RR+4+e}')
            for e in range(4): k(f'v_rcp_f32 v{RR+8+e}, v{RR+4+e}')
            for e in range(4): k(f'v_mul_f32 v{RR+12+e}, v{RR+e}, v{RR+8+e}')
            for e in range(4): k(f'v_fma_f32 v{RR+e}, -v{RR+12+e}, v{RR+4+e}, v{RR+e}')
            for e in range(4): k(f'v_fmac_f32 v{RR+12+e}, v{RR+e}, v{RR+8+e}')
            k(f'v_cvt_pk_bf16_f32 v{b}, v{RR+12}, v{RR+13}\nv_cvt_pk_bf16_f32 v{b+1}, v{RR+14}, v{RR+15}')
        for i in range(5): strip2(CB + 4 * i)
    TA = 168
    def traddr():
        k(f'v_lshrrev_b32 v5, 2, v3\nv_lshl_add_u32 v6, v2, 3, v5\nv_lshlrev_b32 v6, 7, v6\nv_and_b32 v5, 3, v3\nv_lshl_add_u32 v6, v5, 3, v6')
        k(f'v_bfe_u32 v5, v1, 3, 2\nv_lshl_add_u32 v6, v5, 5, v6')
        for tile in range(4): k(f'v_xor_b32 v{TA+tile}, {32*tile}, v6\nv_add_u32 v{TA+tile}, s{sST}, v{TA+tile}')
    def trread(i):
        for tile in range(4):
            r = WT + (i * 4 + tile) * 4; o = 4096 * i
            k(f'ds_read_b64_tr_b16 {vr(r,2)}, v{TA+tile} offset:{o}\nds_read_b64_tr_b16 {vr(r+2,2)}, v{TA+tile} offset:{o+512}')
    def redaddr(rowstride):
        k(f'v_and_b32 v14, 7, v3\nv_mul_u32_u24 v14, 272, v14\nv_lshl_add_u32 v14, v2, 4, v14\ns_mul_i32 s{sT0}, s{sW}, 2176\ns_add_u32 s{sT0}, s{sT0}, {L_PT}\nv_add_u32 v14, s{sT0}, v14')
        k(f'v_and_b32 v5, 1, v2\nv_lshl_add_u32 v5, s{sW}, 1, v5\nv_mul_u32_u24 v15, 272, v5\nv_lshl_add_u32 v15, v3, 4, v15\nv_add_u32 v15, {L_PT}, v15')
        k(f'v_mul_u32_u24 v5, {rowstride}, v5\nv_lshl_add_u32 v5, v3, 4, v5\nv_mov_b32 v37, s{sTAG}\nv_mov_b32 v39, s{sTAG}')
        mask64(sM0, 0x00ff)
    k(f's_cmp_eq_u32 s{sPRO}, 2\ns_cbranch_scc1 L_p1\ns_cmp_eq_u32 s{sPRO}, 3\ns_cbranch_scc1 L_p2')
    k('s_barrier')
    epoch()
    if PT:
        k(f's_cmp_lg_u32 s{sIP}, 30\ns_cbranch_scc1 L_pdone')
        k(f'v_and_b32 v5, 255, v0\nv_and_b32 v6, 7, v5\nv_mul_u32_u24 v6, 13824, v6\nv_lshrrev_b32 v5, 3, v5\nv_lshl_add_u32 v6, v5, 7, v6\ns_mov_b32 s{sT0}, {WS_MOD}')
        k(f'buffer_load_dword v10, v6, {sr(sWS,4)}, s{sT0} offen sc1\nbuffer_load_dword v11, v6, {sr(sWS,4)}, s{sT0} offen offset:512 sc1\ns_waitcnt vmcnt(0)')
    k('s_branch L_pdone')

    k.lab('L_p1')
    for i in range(5):
        k(f'buffer_load_dwordx2 {vr(CB+4*i,2)}, v4, {sr(sA,4)}, s{sT0} offen offset:{256*i} {CP}')
    if 'st' in DBG: stamp(5)
    epoch()
    if 'st' in DBG: stamp(6)
    traddr(); redaddr(13824)
    k(f's_lshl_b32 s78, s{sPI}, 8\ns_add_u32 s78, s78, {WS_MOD}')
    k('s_waitcnt vmcnt(0)')
    stamp(1)
    if 'clk' in DBG: k('s_memtime s[94:95]')
    silu()
    if 'clk' in DBG: k('s_memtime s[96:97]\ns_memrealtime s[92:93]')
    k('s_barrier')
    stamp(2)
    trread(0)
    for i in range(5):
        if i < 4:
            k('s_waitcnt lgkmcnt(4)'); trread(i + 1); k('s_waitcnt lgkmcnt(8)')
        else: k('s_waitcnt lgkmcnt(0)')
        for tile in range(4): mfma(AC + 4 * tile, WT + (i * 4 + tile) * 4, CB + 4 * i, i == 0)
    k('s_branch L_wide')

    k.lab('L_p2')
    LN, SG, CG = 132, 56, 76
    k(f'v_mul_u32_u24 v8, 1152, v7')
    k(f'buffer_load_ushort v36, v8, {sr(sD_,4)}, 0 offen {CP}')
    for i in range(5):
        k(f'buffer_load_dwordx2 {vr(CB+4*i,2)}, v4, {sr(sD_,4)}, s{sT0} offen offset:{256*i} {CP}')
    k(f'v_mul_u32_u24 v4, 13824, v7\nv_lshl_add_u32 v4, v2, 5, v4\nv_lshl_add_u32 v4, v9, 4, v4')
    k(f'v_lshlrev_b32 v7, 5, v7\nv_add_u32 v7, {L_RED}, v7\nv_lshl_add_u32 v9, s{sW}, 3, v7')
    epoch()
    k(f's_lshl_b32 s78, s{sPI}, 11\ns_add_u32 s78, s78, {WS_Q}')
    traddr(); redaddr(256)
    k(f's_cmp_lt_u32 s{sW}, 2\ns_cselect_b32 s72, 1.0, 0')
    k('s_waitcnt vmcnt(0)')
    k('v_lshlrev_b32 v8, 16, v36')
    for i in range(5):
        unp(LN + 4 * i, CB + 4 * i); unp(LN + 4 * i + 2, CB + 4 * i + 1)
    for e in range(4): k(f'v_sub_f32 v{RR+e}, v{LN+16+e}, v8')
    k(f'v_add_f32 v10, v{RR}, v{RR+1}\nv_mul_f32 v11, v{RR}, v{RR}\nv_add_f32 v10, v10, v{RR+2}\nv_fmac_f32 v11, v{RR+1}, v{RR+1}')
    k(f'v_add_f32 v10, v10, v{RR+3}\nv_fmac_f32 v11, v{RR+2}, v{RR+2}\nv_mul_f32 v10, s72, v10\nv_fmac_f32 v11, v{RR+3}, v{RR+3}\nv_mul_f32 v11, s72, v11')
    for r in range(16): k(f'v_sub_f32 v{RR+r}, v{LN+r}, v8')
    for r in range(16): k(f'v_add_f32 v10, v10, v{RR+r}\nv_fmac_f32 v11, v{RR+r}, v{RR+r}')
    k(f'v_add_f32_dpp v10, v10, v10 row_ror:8 {DPPALL}\nv_add_f32_dpp v11, v11, v11 row_ror:8 {DPPALL}')
    xrow('v_add_f32', 10, 12); xrow('v_add_f32', 11, 12)
    k('ds_write_b64 v9, v[10:11]')
    k(f's_lshl_b32 s{sT0}, s{sW}, 7\ns_add_u32 s{sT0}, s{sT0}, {WS_MOD}\ns_add_u32 s{sT1}, s{sT0}, 2304')
    k(f's_cmp_lt_u32 s{sW}, 2\ns_cselect_b32 s{sT2}, 512, 0\ns_add_u32 s{sT2}, s{sT2}, s{sT0}\ns_add_u32 s{sT3}, s{sT2}, 2304')
    k('s_waitcnt lgkmcnt(0)\ns_barrier')
    stamp(1)
    k(f'ds_read_b128 {vr(RR,4)}, v7\nds_read_b128 {vr(RR+4,4)}, v7 offset:16')
    trread(0)
    k('s_waitcnt lgkmcnt(8)')
    k(f'v_add_f32 v10, v{RR}, v{RR+2}\nv_add_f32 v11, v{RR+1}, v{RR+3}\nv_add_f32 v12, v{RR+4}, v{RR+6}\nv_add_f32 v13, v{RR+5}, v{RR+7}')
    k(f'v_add_f32 v10, v10, v12\nv_add_f32 v11, v11, v13\nv_mul_f32 v10, 0x3ae38e39, v10\nv_mul_f32 v11, 0x3ae38e39, v11')
    k('v_fma_f32 v11, -v10, v10, v11\nv_add_f32 v10, v10, v8\nv_max_f32 v11, 0, v11')
    rnd2(10, 11, 12)
    k('v_add_f32 v11, 0x3727c5ac, v11')
    rnd1(11, 12)
    k('v_sqrt_f32 v11, v11')
    rnd1(11, 12)
    k('v_rcp_f32 v11, v11')
    for i in range(5):
        d = LN + 4 * i
        if i < 4:
            k('s_waitcnt lgkmcnt(0)'); trread(i + 1)
        for e in range(4): k(f'v_sub_f32 v{d+e}, v{d+e}, v10')
        rnd4(d, 12)
        for e in range(4): k(f'v_mul_f32 v{d+e}, v{d+e}, v11')
        rnd4(d, 12)
    k('s_waitcnt lgkmcnt(0)')
    if 'st' in DBG: stamp(5)
    poll('hpoll', [f'buffer_load_dwordx4 {vr(CG+4*i,4)}, v4, {sr(sWS,4)}, s{sT1 if i < 4 else sT3} offen offset:{512*min(i,3)} sc1' for i in range(5)] +
                  [f'buffer_load_dwordx4 {vr(SG+4*i,4)}, v4, {sr(sWS,4)}, s{sT0 if i < 4 else sT2} offen offset:{512*min(i,3)} sc1' for i in range(5)],
         [SG + 4 * i for i in range(10)], 12, 10, PSL, MASKED)
    stamp(2)
    for i in range(5):
        d, c_, s_ = LN + 4 * i, CG + 4 * i, SG + 4 * i
        unp(RR, c_); unp(RR + 2, c_ + 2); unp(RR + 4, s_); unp(RR + 6, s_ + 2)
        for e in range(4): k(f'v_add_f32 v{RR+e}, 1.0, v{RR+e}')
        rnd4(RR, 12)
        for e in range(4): k(f'v_mul_f32 v{d+e}, v{d+e}, v{RR+e}')
        rnd4(d, 12)
        for e in range(4): k(f'v_add_f32 v{d+e}, v{d+e}, v{RR+4+e}')
        k(f'v_cvt_pk_bf16_f32 v{CB+4*i}, v{d}, v{d+1}\nv_cvt_pk_bf16_f32 v{CB+4*i+1}, v{d+2}, v{d+3}')
        if i > 0:
            strip2(CB + 4 * (i - 1))
        if i > 1:
            for tile in range(4): mfma(AC + 4 * tile, WT + ((i - 2) * 4 + tile) * 4, CB + 4 * (i - 2), i == 2)
    strip2(CB + 16)
    for i in (3, 4):
        for tile in range(4): mfma(AC + 4 * tile, WT + (i * 4 + tile) * 4, CB + 4 * i, False)
    k.lab('L_wide')
    k(f's_mov_b64 exec, {sr(sM0,2)}')
    for tile in range(4): k(f'ds_write_b128 v14, {vr(AC+4*tile,4)} offset:{64*tile}')
    k('s_mov_b64 exec, -1\ns_waitcnt lgkmcnt(0)\ns_barrier')
    for i in range(4): k(f'ds_read_b128 {vr(RR+4*i,4)}, v15 offset:{2176*i}')
    k('s_waitcnt lgkmcnt(0)')
    for e in range(4): k(f'v_add_f32 v{RR+e}, v{RR+e}, v{RR+4+e}\nv_add_f32 v{RR+8+e}, v{RR+8+e}, v{RR+12+e}')
    for e in range(4): k(f'v_add_f32 v{RR+e}, v{RR+e}, v{RR+8+e}')
    k(f'v_cvt_pk_bf16_f32 v36, v{RR}, v{RR+1}\nv_cvt_pk_bf16_f32 v38, v{RR+2}, v{RR+3}')
    k(f's_mov_b32 exec_hi, 0\nbuffer_store_dwordx4 v[36:39], v5, {sr(sWS,4)}, s78 offen sc1\ns_mov_b64 exec, -1')
    k('s_barrier')
    k.lab('L_pdone')
    stamp(3)
    k(f's_cmp_lg_u32 s{sW}, 0\ns_cbranch_scc1 L_qdone')
    k(f's_lshl_b32 s{sT0}, s{sHKV}, 13\ns_lshl_b32 s{sT1}, s{sBB}, 8\ns_add_u32 s{sT0}, s{sT0}, s{sT1}\ns_add_u32 s{sT0}, s{sT0}, {WS_Q}')
    k(f'v_lshlrev_b32 v4, 11, v2\nv_lshl_add_u32 v4, v3, 4, v4\nv_lshlrev_b32 v5, 3, v1\nv_add_u32 v5, {L_Q}, v5\nv_mov_b32 v12, {L_FLG}\nv_mov_b32 v13, 1')
    poll('qpoll', [f'buffer_load_dwordx4 v[24:27], v4, {sr(sWS,4)}, s{sT0} offen sc1'], [24], 10, 11, QSL)
    k(f'ds_write2_b32 v5, v24, v26 offset0:0 offset1:1\nds_write_b32 v12, v13 offset:{F_QRDY}')
    k.lab('L_qdone')
    stamp(4)
    if 'norole' in DBG: k('s_branch L_nrole')
    k(f's_cmp_eq_u32 s{sROLE}, 1\ns_cbranch_scc1 L_wrole\ns_cmp_eq_u32 s{sROLE}, 2\ns_cbranch_scc1 L_rrole\ns_cmp_eq_u32 s{sROLE}, 3\ns_cbranch_scc1 L_nrole')

    def balance(name):
        if not BAL: return
        k(f's_cmp_lg_u32 s{sW}, 1\ns_cbranch_scc1 L_{name}bd')
        k(f'v_mov_b32 v32, {L_FLG}')
        k.lab(f'L_{name}bw')
        k(f'ds_read_b32 v33, v32 offset:{F_JC}\ns_waitcnt lgkmcnt(0)\nv_readfirstlane_b32 s18, v33\ns_cmp_eq_u32 s18, 4\ns_cbranch_scc1 L_{name}bt')
        retry(f'L_{name}bw', 6)
        k.lab(f'L_{name}bt')
        k(f's_memrealtime s[18:19]\ns_lshl_b32 s20, s2, 7\ns_add_u32 s20, s20, {WS_BAL}\ns_xor_b32 s21, s20, {PAIR << 7}')
        k(f'v_mov_b32 v33, 0\nv_mov_b32 v35, s{sTAG}\nv_mov_b32 v37, s{sTAG}\ns_waitcnt lgkmcnt(0)\ns_add_u32 s18, s18, {BIAS if name == "g" else 0}\nv_mov_b32 v34, s18\nv_mov_b32 v36, s18')
        k(f's_mov_b64 exec, 1\nbuffer_store_dwordx4 v[34:37], v33, {sr(sWS,4)}, s20 offen sc1')
        poll(f'{name}balp', [f'buffer_load_dwordx4 v[56:59], v33, {sr(sWS,4)}, s21 offen sc1'], [56], 38, 39, 16)
        k(f'v_readfirstlane_b32 s19, v56\ns_sub_i32 s19, s19, s18\ns_sub_i32 s18, 0, s19\ns_cmp_eq_u32 s{sSP}, 0\ns_cselect_b32 s18, s19, s18')
        k(f's_max_i32 s18, s18, -8000\ns_min_i32 s18, s18, 8000\ns_mul_i32 s18, s18, {round(GAM * 2 / 112 * 65536)}\ns_add_i32 s18, s18, 32768\ns_ashr_i32 s18, s18, 16')
        k(f's_max_i32 s18, s18, {QMIN-256}\ns_min_i32 s18, s18, {256-QMIN}\ns_sub_i32 s19, 0, s18\ns_cmp_eq_u32 s{sSP}, 0\ns_cselect_b32 s18, s18, s19')
        k(f's_add_i32 s18, s18, 256\nv_mov_b32 v33, s18\nds_write_b32 v32, v33 offset:{F_LIM}\ns_mov_b64 exec, -1')
        k.lab(f'L_{name}bd')
    def dma(voff, srd_, soff, lds_imm, idx, th):
        if idx >= th: k(f's_waitcnt vmcnt({th-1})')
        k(f's_add_u32 m0, s{sST}, {lds_imm}')
        k(f'buffer_load_dwordx4 v{voff}, {sr(srd_,4)}, s{soff} offen nt lds')
    def selmasks(a, b):
        k(f'v_and_b32 v8, 1, v3\nv_lshlrev_b32 v8, 4, v8\nv_mov_b32 v9, 0x3f80\nv_lshlrev_b32 v9, v8, v9')
        k(f'v_and_b32 v8, 2, v3\nv_cmp_eq_u32 vcc, 0, v8\nv_cndmask_b32 v{a}, 0, v9, vcc\nv_sub_u32 v{b}, v9, v{a}')

    GW, DW, YA, BO, FS, FS5, XG, GB = 176, 140, 104, 84, 76, 80, 72, 68
    srd(sA, pGA, 576 * 9216); srd(sB_, pUP, 576 * 9216); srd(sC_, pDN, 4608 * 1152); srd(sD_, pOUT, 9216)
    k(f's_lshr_b32 s77, s{sR}, 2\ns_and_b32 s78, s{sR}, 3')
    k(f'v_bfe_u32 v8, v3, 2, 1\nv_lshl_add_u32 v8, s78, 1, v8\nv_and_b32 v9, 3, v3\nv_lshl_add_u32 v9, s77, 2, v9')
    k(f'v_mul_u32_u24 v20, 13824, v8\nv_lshl_add_u32 v20, v9, 4, v20')
    k(f'v_mul_u32_u24 v21, 1152, v8\nv_lshl_add_u32 v21, v9, 3, v21')
    k(f'v_mul_u32_u24 v10, 1821, v9\nv_lshrrev_b32 v10, 16, v10\nv_lshlrev_b32 v10, 6, v10')
    k(f'v_mul_u32_u24 v22, 2560, v8\nv_lshl_add_u32 v22, v9, 4, v22\nv_add_u32 v22, v22, v10')
    k(f'v_mov_b32 v12, {L_FLG}')
    if LATE > JC: balance('g')
    if LATE == 0: k('s_branch L_glok')
    k.lab('L_glate')
    k(f'ds_read_b32 v13, v12 offset:{F_LATE}\ns_waitcnt lgkmcnt(0)\nv_readfirstlane_b32 s{sT0}, v13\ns_cmp_eq_u32 s{sT0}, 1\ns_cbranch_scc1 L_glok')
    retry('L_glate', 8)
    k.lab('L_glok')
    stamp(5)
    k(f'v_lshrrev_b32 v30, 2, v1\nv_mul_u32_u24 v30, 9216, v30\nv_and_b32 v5, 3, v1\nv_lshl_add_u32 v30, v5, 4, v30\nv_lshlrev_b32 v6, 4, v1')
    def stage(parts, th):
        n = 0
        for part in parts:
            if part < 2:
                k(f's_mul_i32 s{sT2}, s{sW}, {144*9216}\ns_lshl_b32 s{sT3}, s{sR}, 6\ns_add_u32 s{sT2}, s{sT2}, s{sT3}')
            else:
                k(f's_mul_i32 s{sT2}, s{sR}, 36864\ns_mul_i32 s{sT3}, s{sW}, 9216\ns_add_u32 s{sT2}, s{sT2}, s{sT3}')
            for i in range(9):
                dma(30 if part < 2 else 6, (sA, sB_, sC_)[part], sT2, 9216 * part + 1024 * i, n, th); n += 1
                if i < 8: k(f's_add_u32 s{sT2}, s{sT2}, {16*9216 if part < 2 else 1024}')
    def conv(part):
        if part < 2:
            for t_ in range(5):
                for tile in (2 * part, 2 * part + 1):
                    o = part * 9216 + (tile & 1) * 32 + t_ * 2048
                    r = GW + (t_ * 4 + tile) * 4
                    va = 16 if t_ < 4 else 17
                    k(f'ds_read_b64_tr_b16 {vr(r,2)}, v{va} offset:{o}\nds_read_b64_tr_b16 {vr(r+2,2)}, v{va} offset:{o+256}')
                if t_ in (2, 4): k('s_waitcnt lgkmcnt(0)')
        else:
            for u in range(9):
                k(f'ds_read_b64_tr_b16 {vr(DW+4*u,2)}, v31 offset:{32*u}\nds_read_b64_tr_b16 {vr(DW+4*u+2,2)}, v31 offset:{4608+32*u}')
                if u in (4, 8): k('s_waitcnt lgkmcnt(0)')
    early = [0, 1, 2][:3 - SPLIT]; late = [0, 1, 2][3 - SPLIT:]
    stage(early, STG_TH)
    selmasks(FS, FS + 2)
    k(f'v_mov_b32 v{FS+1}, 0\nv_mov_b32 v{FS+3}, 0\nv_mov_b32 v{FS5+1}, 0\nv_mov_b32 v{FS5+3}, 0')
    k(f's_cmp_lt_u32 s{sW}, 2\ns_cselect_b32 s{sT0}, -1, 0\nv_and_b32 v{FS5}, s{sT0}, v{FS}\nv_and_b32 v{FS5+2}, s{sT0}, v{FS+2}')
    mask64(sM0, 0x00ff)
    k(f'v_lshrrev_b32 v8, 2, v3\nv_and_b32 v9, 3, v3\nv_lshlrev_b32 v17, 6, v8\nv_lshl_add_u32 v17, v9, 3, v17\nv_add_u32 v17, s{sST}, v17')
    k(f'v_lshl_add_u32 v16, v2, 9, v17\nv_and_b32 v10, 1, v2\nv_lshl_add_u32 v17, v10, 9, v17')
    k(f'v_mul_u32_u24 v31, 1152, v8\nv_lshl_add_u32 v31, v9, 3, v31\nv_mul_u32_u24 v10, 27648, v2\ns_mul_i32 s{sT0}, s{sW}, 288\ns_add_u32 s{sT0}, s{sT0}, 18432\nv_add3_u32 v31, v31, v10, s{sT0}')
    k(f'v_and_b32 v8, 7, v3\nv_lshrrev_b32 v9, 3, v3')
    k(f'v_mul_u32_u24 v4, 2560, v8\nv_lshl_add_u32 v4, v2, 5, v4\nv_lshl_add_u32 v4, v9, 4, v4')
    k(f'v_lshrrev_b32 v5, 1, v8\nv_mul_u32_u24 v5, 18432, v5\nv_and_b32 v10, 1, v3\nv_lshl_add_u32 v5, v10, 6, v5\nv_lshl_add_u32 v5, v2, 4, v5')
    k(f'v_mul_u32_u24 v14, 272, v8\nv_lshl_add_u32 v15, v2, 5, v14\nv_lshl_add_u32 v15, v9, 4, v15\nv_add_u32 v15, {L_PT}, v15')
    k(f's_mul_i32 s{sT0}, s{sW}, 2176\ns_add_u32 s{sT0}, s{sT0}, {L_PT}\nv_lshl_add_u32 v14, v2, 4, v14\nv_add_u32 v14, s{sT0}, v14')
    k(f'v_lshlrev_b32 v19, 4, v8\nv_add_u32 v19, {L_RED}, v19\ns_lshl_b32 s{sT0}, s{sW}, 7\nv_add_u32 v18, s{sT0}, v19')
    k('s_waitcnt vmcnt(0)')
    for part in early:
        if part < 2: conv(part)
    k(f's_mov_b32 s{sT0}, {WS_MOD + 11520}')
    poll('gbp', [f'buffer_load_dwordx4 v[24:27], v20, {sr(sWS,4)}, s{sT0} offen sc1'], [24], 28, 29, 8)
    unp(GB, 24); unp(GB + 2, 26)
    k(f's_mul_i32 s{sT0}, s{sW}, 640\ns_add_u32 s{sT0}, s{sT0}, {WS_H2}\ns_mov_b32 s{sT1}, {WS_X2}')
    k(f's_mul_i32 s72, s{sW}, {36*18432}\ns_lshl_b32 s73, s{sR}, 7\ns_add_u32 s72, s72, s73\ns_add_u32 s72, s72, {WS_YP}')
    k('s_waitcnt lgkmcnt(0)')
    if LATE <= JC: balance('g')
    k('s_barrier')
    if late:
        stage(late, 27)
        for n_, part in enumerate(late):
            if part < 2:
                k(f's_waitcnt vmcnt({9 * (len(late) - 1 - n_)})'); conv(part)
    else: conv(2)
    stamp(6)
    poll('h2p', [f'buffer_load_dwordx4 {vr(BO+4*i,4)}, v4, {sr(sWS,4)}, s{sT0} offen offset:{128*i} sc1' for i in range(5)] +
         [f'buffer_load_dwordx4 {vr(XG,4)}, v22, {sr(sWS,4)}, s{sT1} offen sc1'], [BO + 4 * i for i in range(5)] + [XG], 12, 10, 0, MASKED)
    stamp(7)
    for i in range(5): strip(BO + 4 * i)
    strip2(BO); strip2(BO + 4)
    for t_ in range(5):
        for tile in range(4):
            mfma(AC + 4 * tile, GW + (t_ * 4 + tile) * 4, BO + 4 * t_, t_ == 0)
            if tile == 0 and t_ + 2 < 5: strip2(BO + 4 * (t_ + 2))
    k(f's_mov_b64 exec, {sr(sM0,2)}')
    for tile in range(4): k(f'ds_write_b128 v14, {vr(AC+4*tile,4)} offset:{64*tile}')
    k('s_mov_b64 exec, -1\ns_waitcnt lgkmcnt(0)\ns_barrier')
    for i in range(4): k(f'ds_read_b128 {vr(YA+4*i,4)}, v15 offset:{2176*i}')
    for i in range(4): k(f'ds_read_b128 {vr(YA+16+4*i,4)}, v15 offset:{2176*i+128}')
    G_, U_ = YA, YA + 16
    DLATE = bool(late)
    c1 = -2 * 0.7978845608028654 * 1.4426950408889634
    k(f's_mov_b32 s{sT2}, {f2u(c1*0.044715):#x}\nv_mov_b32 v13, {f2u(c1):#x}')
    k('s_waitcnt lgkmcnt(4)')
    for e in range(4): k(f'v_add_f32 v{G_+e}, v{G_+e}, v{G_+4+e}\nv_add_f32 v{G_+8+e}, v{G_+8+e}, v{G_+12+e}')
    for e in range(4): k(f'v_add_f32 v{G_+e}, v{G_+e}, v{G_+8+e}')
    rnd4(G_, 8)
    for e in range(4): k(f'v_mul_f32 v{G_+4+e}, v{G_+e}, v{G_+e}')
    for e in range(4): k(f'v_fma_f32 v{G_+4+e}, v{G_+4+e}, s{sT2}, v13')
    for e in range(4): k(f'v_mul_f32 v{G_+4+e}, v{G_+4+e}, v{G_+e}')
    for e in range(4): k(f'v_exp_f32 v{G_+4+e}, v{G_+4+e}')
    k('s_waitcnt lgkmcnt(0)')
    if DLATE:
        for u in range(7): k(f'ds_read_b64_tr_b16 {vr(DW+4*u,2)}, v31 offset:{32*u}\nds_read_b64_tr_b16 {vr(DW+4*u+2,2)}, v31 offset:{4608+32*u}')
    for e in range(4): k(f'v_add_f32 v{U_+e}, v{U_+e}, v{U_+4+e}\nv_add_f32 v{U_+8+e}, v{U_+8+e}, v{U_+12+e}')
    for e in range(4): k(f'v_add_f32 v{G_+4+e}, 1.0, v{G_+4+e}')
    for e in range(4): k(f'v_rcp_f32 v{G_+4+e}, v{G_+4+e}')
    for e in range(4): k(f'v_add_f32 v{U_+e}, v{U_+e}, v{U_+8+e}')
    for e in range(4): k(f'v_mul_f32 v{G_+e}, v{G_+e}, v{G_+4+e}')
    if DLATE:
        k('s_waitcnt lgkmcnt(8)')
        for u in range(7, 9): k(f'ds_read_b64_tr_b16 {vr(DW+4*u,2)}, v31 offset:{32*u}\nds_read_b64_tr_b16 {vr(DW+4*u+2,2)}, v31 offset:{4608+32*u}')
    rnd4(U_, 8); rnd4(G_, 10)
    for e in range(4): k(f'v_mul_f32 v{G_+e}, v{G_+e}, v{U_+e}')
    k(f'v_cvt_pk_bf16_f32 v{BO}, v{G_}, v{G_+1}\nv_cvt_pk_bf16_f32 v{BO+1}, v{G_+2}, v{G_+3}')
    strip2(BO)
    if DLATE: k('s_waitcnt lgkmcnt(0)')
    for u in range(9): mfma(YA + 4 * u, DW + 4 * u, BO, True)
    k(f's_mov_b64 exec, {sr(sM0,2)}')
    for u in range(9):
        r = YA + 4 * u
        k(f'v_cvt_pk_bf16_f32 v{r}, v{r}, v{r+1}\nv_cvt_pk_bf16_f32 v{r+2}, v{r+2}, v{r+3}\nv_mov_b32 v{r+1}, s{sTAG}\nv_mov_b32 v{r+3}, s{sTAG}')
        k(f'buffer_store_dwordx4 {vr(r,4)}, v5, {sr(sWS,4)}, s72 offen sc1')
        if u < 8: k(f's_add_u32 s72, s72, {4*18432}')
    k('s_mov_b64 exec, -1')
    stamp(8)
    unp(24, XG); unp(26, XG + 2)
    k(f's_mul_i32 s72, s{sR}, 18432\ns_lshl_b32 s73, s{sW}, 10\ns_add_u32 s72, s72, s73\ns_add_u32 s72, s72, {WS_YP}')
    k(f's_add_u32 s73, s72, 4096\ns_add_u32 s74, s72, 8192\ns_add_u32 s75, s72, 12288')
    k(f's_cmp_lt_u32 s{sW}, 2\ns_cselect_b32 s76, 4096, 0\ns_add_u32 s76, s76, s75')
    k('s_waitcnt vmcnt(0)')
    if 'nobar' not in DBG: k('s_barrier')
    poll('yp', [f'buffer_load_dwordx4 {vr(BO+4*i,4)}, v6, {sr(sWS,4)}, s{72+i} offen sc1' for i in range(5)], [BO + 4 * i for i in range(5)], 12, 10, 0, MASKED)
    stamp(9)
    for i in range(5): mfma(AC, FS if i < 4 else FS5, BO + 4 * i, i == 0)
    for e in range(4): k(f'v_add_f32_dpp v{AC+e}, v{AC+e}, v{AC+e} row_ror:8 {DPPALL}')
    k(f's_mov_b64 exec, 0xff\nds_write_b128 v18, {vr(AC,4)}\ns_waitcnt lgkmcnt(0)\ns_barrier')
    k(f's_cmp_lg_u32 s{sW}, 0\ns_cbranch_scc1 L_exit')
    for i in range(4): k(f'ds_read_b128 {vr(YA+4*i,4)}, v19 offset:{128*i}')
    k('s_waitcnt lgkmcnt(0)')
    for e in range(4): k(f'v_add_f32 v{YA+e}, v{YA+e}, v{YA+4+e}\nv_add_f32 v{YA+8+e}, v{YA+8+e}, v{YA+12+e}')
    for e in range(4): k(f'v_add_f32 v{YA+e}, v{YA+e}, v{YA+8+e}')
    rnd4(YA, 8)
    for e in range(4): k(f'v_mul_f32 v{YA+e}, v{GB+e}, v{YA+e}')
    rnd4(YA, 8)
    for e in range(4): k(f'v_add_f32 v{YA+e}, v{24+e}, v{YA+e}')
    k(f'v_cvt_pk_bf16_f32 v8, v{YA}, v{YA+1}\nv_cvt_pk_bf16_f32 v9, v{YA+2}, v{YA+3}')
    k(f'buffer_store_dwordx2 v[8:9], v21, {sr(sD_,4)}, 0 offen')
    k(f's_cmp_lg_u32 s{sR}, 0\ns_cbranch_scc1 L_exit')
    k(f'v_mov_b32 v10, s{sEP}\nv_mov_b32 v11, 0\ns_mov_b64 exec, 1\nbuffer_store_dword v10, v11, {sr(sWS,4)}, 0 offen')
    k('s_branch L_exit')

    k.lab('L_wrole')
    WW, OG, MLG, BW = 192, 160, 156, 140
    sCN = 77
    srd(sA, pWO, 4096 * 1152)
    k(f'v_lshrrev_b32 v4, 3, v1\nv_mul_u32_u24 v4, 1152, v4\nv_and_b32 v5, 7, v1\nv_lshl_add_u32 v4, v5, 4, v4')
    k(f's_lshl_b32 s{sT0}, s{sX}, 2\ns_add_u32 s{sT0}, s{sT0}, s{sW}\ns_mul_i32 s{sT0}, s{sT0}, {128*1152}\ns_lshl_b32 s{sT1}, s{sCN}, 7\ns_add_u32 s{sT0}, s{sT0}, s{sT1}')
    for i in range(16):
        dma(4, sA, sT0, 1024 * i, i, WTH)
        k(f's_add_u32 s{sT0}, s{sT0}, {8*1152}')
    mask64(sM0, 0x00ff)
    k(f'v_lshrrev_b32 v8, 2, v3\nv_and_b32 v9, 3, v3\nv_lshl_add_u32 v10, v2, 3, v8\nv_lshlrev_b32 v10, 7, v10\nv_lshl_add_u32 v10, v9, 3, v10\nv_add_u32 v10, s{sST}, v10')
    k('s_waitcnt vmcnt(0)')
    for t_ in range(4):
        for tile in range(4):
            r = WW + (t_ * 4 + tile) * 4
            o = t_ * 4096 + tile * 32
            k(f'ds_read_b64_tr_b16 {vr(r,2)}, v10 offset:{o}\nds_read_b64_tr_b16 {vr(r+2,2)}, v10 offset:{o+512}')
        k('s_waitcnt lgkmcnt(0)')
    k(f's_and_b32 s{sT0}, s{sW}, 1\ns_lshl_b32 s{sT1}, s{sT0}, 9\ns_lshl_b32 s{sT0}, s{sT0}, 4\ns_add_u32 s{sT0}, s{sT0}, 1024')
    k(f'v_and_b32 v8, 7, v3\nv_lshrrev_b32 v9, 3, v3\nv_mul_u32_u24 v5, 2304, v8')
    k(f'v_lshl_add_u32 v4, v2, 5, v5\nv_lshl_add_u32 v4, v9, 4, v4\nv_add_u32 v4, s{sT1}, v4')
    k(f'v_mul_u32_u24 v9, 1152, v9\nv_add3_u32 v5, v5, v9, s{sT0}')
    k(f'v_mul_u32_u24 v14, 272, v8\nv_lshl_add_u32 v14, v2, 4, v14\ns_mul_i32 s{sT0}, s{sW}, 2176\ns_add_u32 s{sT0}, s{sT0}, {L_PT}\nv_add_u32 v14, s{sT0}, v14')
    k(f'v_and_b32 v8, 1, v2\nv_lshl_add_u32 v8, s{sW}, 1, v8\nv_mul_u32_u24 v15, 272, v8\nv_lshl_add_u32 v15, v3, 4, v15\nv_add_u32 v15, {L_PT}, v15')
    k(f'v_mul_u32_u24 v7, 18432, v8\nv_lshl_add_u32 v7, v3, 4, v7\nv_mov_b32 v17, s{sTAG}\nv_mov_b32 v19, s{sTAG}')
    k(f's_lshl_b32 s{sT0}, s{sX}, 1\ns_lshr_b32 s{sT1}, s{sW}, 1\ns_add_u32 s{sT0}, s{sT0}, s{sT1}\ns_mul_i32 s{sT0}, s{sT0}, {16*1152}\ns_add_u32 s{sT0}, s{sT0}, {WS_OP}')
    k(f's_mul_i32 s{sT1}, s{sX}, 2304\ns_lshl_b32 s{sT2}, s{sCN}, 8\ns_add_u32 s{sT1}, s{sT1}, s{sT2}\ns_add_u32 s{sT1}, s{sT1}, {WS_AP}')
    stamp(6)
    balance('w')
    k('s_barrier')
    poll('op', [f'buffer_load_dwordx4 {vr(MLG,4)}, v5, {sr(sWS,4)}, s{sT0} offen sc1'] +
         [f'buffer_load_dwordx4 {vr(OG+(2*t_+sp)*4,4)}, v4, {sr(sWS,4)}, s{sT0} offen offset:{1152*sp+128*t_} sc1' for t_ in range(4) for sp in range(2)],
         [MLG] + [OG + 4 * i for i in range(8)], 12, 10, 0, MASKED)
    stamp(7)
    def wb(t_):
        A_, B_, X = OG + 8 * t_, OG + 8 * t_ + 4, BW + 4 * t_
        k(f'v_mov_b32 v{X}, v{A_}\nv_mov_b32 v{X+1}, v{A_+2}\nv_mov_b32 v{X+2}, v{B_}\nv_mov_b32 v{X+3}, v{B_+2}')
        k(f'v_mov_b32_dpp v{X}, v{B_} row_ror:8 row_mask:0xf bank_mask:0xc\nv_mov_b32_dpp v{X+1}, v{B_+2} row_ror:8 row_mask:0xf bank_mask:0xc')
        k(f'v_mov_b32_dpp v{X+2}, v{A_} row_ror:8 row_mask:0xf bank_mask:0x3\nv_mov_b32_dpp v{X+3}, v{A_+2} row_ror:8 row_mask:0xf bank_mask:0x3')
    wb(0)
    for t_ in range(4):
        for tile in range(4):
            mfma(AC + 4 * tile, WW + (t_ * 4 + tile) * 4, BW + 4 * t_, t_ == 0)
            if tile == 0 and t_ + 1 < 4: wb(t_ + 1)
            if tile == 0 and t_ == 3:
                k(f'v_max_f32_dpp v12, v{MLG}, v{MLG} row_ror:8 {DPPALL}\nv_sub_f32 v12, v{MLG}, v12\nv_exp_f32 v12, v12')
                k(f'v_mul_f32 v13, v12, v{MLG+2}\nv_add_f32_dpp v13, v13, v13 row_ror:8 {DPPALL}\nv_rcp_f32 v13, v13\nv_mul_f32 v12, v12, v13')
    for r in range(16): k(f'v_mul_f32 v{AC+r}, v12, v{AC+r}')
    for r in range(16): k(f'v_add_f32_dpp v{AC+r}, v{AC+r}, v{AC+r} row_ror:8 {DPPALL}')
    k(f's_mov_b64 exec, {sr(sM0,2)}')
    for tile in range(4): k(f'ds_write_b128 v14, {vr(AC+4*tile,4)} offset:{64*tile}')
    k('s_mov_b64 exec, -1\ns_waitcnt lgkmcnt(0)\ns_barrier')
    for i in range(4): k(f'ds_read_b128 {vr(BW+4*i,4)}, v15 offset:{2176*i}')
    k('s_waitcnt lgkmcnt(0)')
    for e in range(4): k(f'v_add_f32 v{BW+e}, v{BW+e}, v{BW+4+e}\nv_add_f32 v{BW+8+e}, v{BW+8+e}, v{BW+12+e}')
    for e in range(4): k(f'v_add_f32 v{BW+e}, v{BW+e}, v{BW+8+e}')
    k(f'v_cvt_pk_bf16_f32 v16, v{BW}, v{BW+1}\nv_cvt_pk_bf16_f32 v18, v{BW+2}, v{BW+3}')
    k(f's_mov_b32 exec_hi, 0\nbuffer_store_dwordx4 v[16:19], v7, {sr(sWS,4)}, s{sT1} offen sc1')
    stamp(8)
    k('s_branch L_exit')

    k.lab('L_rrole')
    GA, SEL, RAW, MG, MS, MC, MX = 108, 92, 76, 60, 64, 68, 72
    selmasks(10, 11)
    for r in range(SEL, SEL + 16): k(f'v_mov_b32 v{r}, 0')
    for v in range(4):
        k(f'v_mov_b32_dpp v{SEL+4*v}, v10 quad_perm:[0,1,2,3] row_mask:0xf bank_mask:{1<<v:#x}')
        k(f'v_mov_b32_dpp v{SEL+4*v+2}, v11 quad_perm:[0,1,2,3] row_mask:0xf bank_mask:{1<<v:#x}')
    mask64(sM0, 0x01ff); mask64(sM1, 0x03ff)
    k(f'v_min_u32 v8, 8, v3\ns_mul_i32 s{sT0}, s{sW}, 576')
    k(f'v_mul_u32_u24 v7, 144, v2\nv_lshl_add_u32 v7, v8, 4, v7\nv_add_u32 v4, s{sT0}, v7')
    k(f'v_mul_u32_u24 v5, 2304, v2\nv_lshl_add_u32 v5, v8, 4, v5\nv_add_u32 v5, s{sT0}, v5')
    k(f'v_lshlrev_b32 v9, 4, v2\nv_add_u32 v9, 576, v9\nv_cndmask_b32 v7, v9, v7, {sr(sM0,2)}')
    k(f's_mul_i32 s{sT0}, s{sX}, 13824\ns_add_u32 s{sT0}, s{sT0}, {WS_MOD + 4608}\ns_add_u32 s{sT1}, s{sT0}, 4608')
    k(f's_mul_i32 s{sT2}, s{sX}, 1152\nv_lshrrev_b32 v8, 1, v4')
    k(f'buffer_load_dwordx2 {vr(RAW+12,2)}, v8, {sr(sD_,4)}, s{sT2} offen nt')
    poll('rmod', [f'buffer_load_dwordx4 {vr(RAW,4)}, v4, {sr(sWS,4)}, s{sT0} offen sc1',
                  f'buffer_load_dwordx4 {vr(RAW+4,4)}, v4, {sr(sWS,4)}, s{sT0} offen offset:2304 sc1',
                  f'buffer_load_dwordx4 {vr(RAW+8,4)}, v4, {sr(sWS,4)}, s{sT1} offen sc1'], [RAW, RAW + 4, RAW + 8], 10, 11, 16)
    for j, d in enumerate((MG, MS, MC)):
        unp(d, RAW + 4 * j); unp(d + 2, RAW + 4 * j + 2)
    unp(MX, RAW + 12); unp(MX + 2, RAW + 13)
    for e in range(4): k(f'v_add_f32 v{MC+e}, 1.0, v{MC+e}')
    rnd4(MC, 8)
    k(f's_mul_i32 s{sT0}, s{sX}, 18432\ns_add_u32 s{sT0}, s{sT0}, {WS_AP}\ns_add_u32 s{sT1}, s{sT0}, 9216')
    k(f's_mul_i32 s72, s{sX}, 2560\ns_mul_i32 s73, s{sW}, 640\ns_add_u32 s72, s72, s73\ns_add_u32 s73, s72, {WS_X2}\ns_add_u32 s72, s72, {WS_H2}')
    k(f's_lshl_b32 s{sT2}, s{sW}, 3\ns_add_u32 s{sT2}, s{sT2}, {L_STA}\nv_mov_b32 v22, s{sT2}\nv_mov_b32 v23, {L_STA}')
    for r in (25, 27, 29, 31): k(f'v_mov_b32 v{r}, s{sTAG}')
    k(f'v_mov_b32 v28, 0\nv_mov_b32 v30, 0\ns_mov_b32 s{sT3}, 0x3be38e39')
    stamp(6)
    balance('r')
    k('s_barrier')
    poll('ap', [f'buffer_load_dwordx4 {vr(GA+(u*4+v)*4,4)}, v5, {sr(sWS,4)}, s{sT0+u} offen offset:{144*v} sc1' for u in range(2) for v in range(4)],
         [GA + 4 * i for i in range(8)], 8, 9, 0, MASKED)
    stamp(7)
    X2 = 12
    for i in range(8): mfma(X2, SEL + 4 * (i & 3), GA + 4 * i, i == 0)
    rnd4(X2, 8)
    for e in range(4): k(f'v_mul_f32 v{X2+e}, v{MG+e}, v{X2+e}')
    rnd4(X2, 8)
    for e in range(4): k(f'v_add_f32 v{X2+e}, v{MX+e}, v{X2+e}')
    k(f'v_cvt_pk_bf16_f32 v24, v{X2}, v{X2+1}\nv_cvt_pk_bf16_f32 v26, v{X2+2}, v{X2+3}')
    unp(X2, 24); unp(X2 + 2, 26)
    k(f'v_readfirstlane_b32 s{sT2}, v{X2}')
    for e in range(4): k(f'v_subrev_f32 v{16+e}, s{sT2}, v{X2+e}')
    k(f'v_add_f32 v8, v16, v17\nv_mul_f32 v9, v16, v16\nv_add_f32 v10, v18, v19\nv_fmac_f32 v9, v17, v17\nv_add_f32 v8, v8, v10\nv_fmac_f32 v9, v18, v18\nv_fmac_f32 v9, v19, v19')
    k(f'v_cndmask_b32 v8, 0, v8, {sr(sM0,2)}\nv_cndmask_b32 v9, 0, v9, {sr(sM0,2)}')
    for m in ('row_shr:1 row_mask:0xf', 'row_shr:2 row_mask:0xf', 'row_shr:4 row_mask:0xf', 'row_shr:8 row_mask:0xf', 'row_bcast:15 row_mask:0xa', 'row_bcast:31 row_mask:0xc'):
        bc = ' bound_ctrl:0' if 'shr' in m else ''
        k(f'v_add_f32_dpp v8, v8, v8 {m} bank_mask:0xf{bc}\nv_add_f32_dpp v9, v9, v9 {m} bank_mask:0xf{bc}')
    k(f'v_mul_f32 v10, s{sT3}, v8\nv_fma_f32 v9, -v10, v8, v9\nv_add_f32 v8, s{sT2}, v10')
    k(f's_mov_b32 exec_lo, 0\ns_mov_b32 exec_hi, 0x80000000\nds_write_b64 v22, v[8:9]')
    k(f's_mov_b64 exec, {sr(sM0,2)}\nbuffer_store_dwordx4 v[24:27], v7, {sr(sWS,4)}, s73 offen sc1')
    k(f's_mov_b64 exec, -1\ns_waitcnt lgkmcnt(0)\ns_barrier')
    k(f'ds_read_b128 {vr(AC,4)}, v23\nds_read_b128 {vr(AC+4,4)}, v23 offset:16\ns_waitcnt lgkmcnt(0)')
    k(f'v_add_f32 v8, v{AC}, v{AC+2}\nv_add_f32 v9, v{AC+4}, v{AC+6}\nv_add_f32 v10, v{AC+1}, v{AC+3}\nv_add_f32 v11, v{AC+5}, v{AC+7}')
    k(f'v_add_f32 v8, v8, v9\nv_add_f32 v10, v10, v11\nv_mul_f32 v8, 0x3e800000, v8')
    for i in range(4): k(f'v_sub_f32 v{AC+2*i}, v{AC+2*i}, v8')
    k(f'v_mul_f32 v9, v{AC}, v{AC}\nv_fmac_f32 v9, v{AC+2}, v{AC+2}\nv_fmac_f32 v9, v{AC+4}, v{AC+4}\nv_fmac_f32 v9, v{AC+6}, v{AC+6}')
    k(f'v_mul_f32 v10, 0x3ae38e39, v10\nv_fmac_f32 v10, 0x3e800000, v9')
    rnd2(8, 10, 9)
    k('v_add_f32 v10, 0x3727c5ac, v10')
    for e in range(4): k(f'v_sub_f32 v{X2+e}, v{X2+e}, v8')
    rnd1(10, 9)
    k('v_sqrt_f32 v10, v10')
    rnd4(X2, 16)
    rnd1(10, 9)
    k('v_rcp_f32 v10, v10')
    for e in range(4): k(f'v_mul_f32 v{X2+e}, v{X2+e}, v10')
    rnd4(X2, 16)
    for e in range(4): k(f'v_mul_f32 v{X2+e}, v{X2+e}, v{MC+e}')
    rnd4(X2, 16)
    for e in range(4): k(f'v_add_f32 v{X2+e}, v{X2+e}, v{MS+e}')
    k(f's_mov_b64 exec, {sr(sM0,2)}')
    k(f'v_cvt_pk_bf16_f32 v28, v{X2}, v{X2+1}\nv_cvt_pk_bf16_f32 v30, v{X2+2}, v{X2+3}')
    k(f's_mov_b64 exec, {sr(sM1,2)}\nbuffer_store_dwordx4 v[28:31], v7, {sr(sWS,4)}, s72 offen sc1')
    stamp(8)
    k('s_branch L_exit')
    k.lab('L_nrole')
    balance('n')

    k.lab('L_exit')
    if PROF:
        stamp(10)
        k(f's_waitcnt lgkmcnt(0)\ns_lshl_b32 s{sT0}, s2, 3\ns_add_u32 s{sT0}, s{sT0}, s3\ns_lshl_b32 s{sT0}, s{sT0}, 7\ns_add_u32 s{sT0}, s{sT0}, {WS_PROF}')
        k(f's_mov_b64 exec, 1\nv_mov_b32 v8, 0')
        for i in range(11):
            k(f'v_mov_b32 v10, s{STR[i]}\nv_mov_b32 v11, s{STR[i]+1}\nbuffer_store_dwordx2 v[10:11], v8, {sr(sWS,4)}, s{sT0} offen offset:{8*i}')
        k(f'v_mov_b32 v10, s{sTO}\nv_mov_b32 v11, s77\nbuffer_store_dwordx2 v[10:11], v8, {sr(sWS,4)}, s{sT0} offen offset:88')
    k.lab('L_end')
    k('s_endpgm')
    k.lab('L_codeend')

    body = fix_hazards(k.L)
    hdr = open('cdna_kernels/' + NAME + '.s.ref').read().split('; Override launch')[0]
    out = [hdr.rstrip('\n'),
           f'; @launch grid=(256,1,1) block=(512,1,1) lds={LDS_BYTES}',
           '.amdgcn_target "amdgcn-amd-amdhsa--gfx950"', '.text', f'.globl {NAME}_kernel', '.p2align 8',
           f'.type {NAME}_kernel,@function', f'{NAME}_kernel:', 'L_start:']
    out += body
    out += ['.section .rodata,"a"', '.p2align 6', f'.amdhsa_kernel {NAME}_kernel',
            '  .amdhsa_next_free_vgpr 256', '  .amdhsa_next_free_sgpr 102', '  .amdhsa_accum_offset 256',
            '  .amdhsa_group_segment_fixed_size 0', '  .amdhsa_kernarg_size 112', '  .amdhsa_user_sgpr_count 2',
            '  .amdhsa_user_sgpr_kernarg_segment_ptr 1', '  .amdhsa_system_sgpr_workgroup_id_x 1', '.end_amdhsa_kernel']
    return '\n'.join(out) + '\n'

if __name__ == '__main__':
    kw = eval('dict(' + (sys.argv[2] if len(sys.argv) > 2 else '') + ')')
    open(sys.argv[1], 'w').write(gen(**kw))
```

```python
import sys, struct
from asmlib import K, fix_hazards, vr, sr

NAME = 'adaLN_cond__gqa_block_cached__glu_gated_geglu__decode'
WS_H, WS_MOD, WS_Q, WS_OP, WS_AP, WS_H2, WS_X2, WS_YP, WS_PROF = 0x10000, 0x20000, 0x40000, 0x80000, 0x100000, 0x130000, 0x138000, 0x200000, 0x600000
WS_SIZE = 0x800000
L_STG, L_PT, L_RED, L_SP, L_Q, L_FLG, L_STA = 0, 110592, 131072, 139264, 143424, 143936, 144192
LDS_BYTES = 144384
F_CNT, F_QRDY, F_P, F_LATE, F_JC, F_LIM = 0, 4, 8, 12, 16, 20
WS_BAL = 0x8000
QMIN = 208
LOG2E = 0x3FB8AA3B
SCALE = 0x3DB504F3
TIMEOUT = 200000
f2u = lambda f: struct.unpack('<I', struct.pack('<f', f))[0]

def tables(kind):
    G, W, R, N = 0, 1, 2, 3
    if kind == 0:
        roles = [G] * 16 + [N, G, N, G, W, W, W, W, W, W, N, W, N, W, R, W]
        pro = [(2 if (u < 14 and u & 1) else 3 if (u >= 16 and not u & 1) else 0) for u in range(32)]
    else:
        roles = [G, W] * 9 + [G, N] * 4 + [G, R] + [G, G] * 2
        pro = [0, 2] * 6 + [0, 3] * 8 + [0, 2, 0, 0]
    cnt = {}; tail = []
    for r in roles:
        tail.append((r, cnt.get(r, 0))); cnt[r] = cnt.get(r, 0) + 1
    cnt = {}; pi = []
    for p in pro:
        pi.append(cnt.get(p, 0) if p else 0); cnt[p] = cnt.get(p, 0) + 1
    return tail, pro, pi
TAIL, PRO, PIX = tables(1)

def gen(PROF=False, PRE_TH=48, STG_TH=8, LATE=8, PSL=1, QSL=2, DBG='', PAIR=1, MASKED=True, TH=12, WTH=4, JC=44, GAM=1.2, BAL=True, PG=0, PF=1, PFROW=320, CP='', CODEP='', PFP='nt', TAB=1, PT=0, FULL=True, LREM=None, BIAS=0, SPLIT=0, DIAG=None, KVP='nt', DG=None):
    global TAIL, PRO, PIX
    TAIL, PRO, PIX = tables(TAB)
    if LREM is not None: LATE = 200
    k = K()
    sWS, sTAG, sEP, sHKV, sBB, sX, sIP, sR, sW = 4, 8, 9, 10, 11, 12, 13, 14, 15
    pX, pK, pV, pWQ, pWO, pGA, pUP, pDN, pC, pWM, pOUT, pWSP = 16, 18, 20, 22, 24, 28, 30, 32, 34, 36, 38, 42
    sA, sB_, sC_, sD_ = 44, 48, 52, 56
    sHI, sL2E, sT0, sT1, sT2, sT3, sTO, sSP = 60, 61, 62, 63, 64, 65, 66, 67
    sM0, sM1 = 68, 70
    DPPALL = 'row_mask:0xf bank_mask:0xf'
    STR = [80 + 2 * i for i in range(9)] + [26, 40]
    def stamp(i):
        if PROF or (DIAG is not None and i in (0, DIAG)): k(f's_memrealtime {sr(STR[i], 2)}')
    def srd(d, p, size):
        k(f's_mov_b32 s{d}, s{p}\ns_mov_b32 s{d+1}, s{p+1}\ns_mov_b32 s{d+2}, {size}\ns_mov_b32 s{d+3}, 0x20000')
    def unp(d, s_):
        k(f'v_lshlrev_b32 v{d}, 16, v{s_}\nv_and_b32 v{d+1}, s{sHI}, v{s_}')
    def rnd2(a, b, t):
        k(f'v_cvt_pk_bf16_f32 v{t}, v{a}, v{b}\nv_lshlrev_b32 v{a}, 16, v{t}\nv_and_b32 v{b}, s{sHI}, v{t}')
    def rnd4(a, t):
        k(f'v_cvt_pk_bf16_f32 v{t}, v{a}, v{a+1}\nv_cvt_pk_bf16_f32 v{t+1}, v{a+2}, v{a+3}')
        unp(a, t); unp(a + 2, t + 1)
    def rnd1(a, t):
        k(f'v_cvt_pk_bf16_f32 v{t}, v{a}, v{a}\nv_and_b32 v{a}, s{sHI}, v{t}')
    def xrow(op, x, t, steps=(16, 32)):
        for st in steps:
            k(f'v_mov_b32 v{t}, v{x}\nv_permlane{st}_swap_b32 v{x}, v{t}\n{op} v{x}, v{x}, v{t}')
    def tagcheck(bases, acc, tmp):
        for i, b in enumerate(bases):
            d = acc if i == 0 else tmp + ((i - 1) & 1)
            k(f'v_bitop3_b32 v{d}, v{b+1}, v{b+3}, s{sTAG} bitop3:0x7e')
            if i > 0 and (i & 1) == 0: k(f'v_or3_b32 v{acc}, v{acc}, v{tmp}, v{tmp+1}')
        if len(bases) > 1 and (len(bases) & 1) == 0: k(f'v_or_b32 v{acc}, v{acc}, v{tmp}')
        k(f'v_cmp_ne_u32 vcc, 0, v{acc}')
    def retry(lab, sleep=0):
        if sleep: k(f's_sleep {sleep}')
        k(f's_sub_u32 s{sTO}, s{sTO}, 1\ns_cmp_lg_u32 s{sTO}, 0\ns_cbranch_scc1 {lab}\ns_branch L_exit')
    def poll(name, loads, bases, acc, tmp, sleep=0, masked=False):
        k.lab(f'L_{name}')
        for l in loads: k(l)
        k('s_waitcnt vmcnt(0)')
        tagcheck(bases, acc, tmp)
        k(f's_cbranch_vccz L_{name}ok')
        if masked: k('s_mov_b64 exec, vcc')
        retry(f'L_{name}', sleep)
        k.lab(f'L_{name}ok')
        if masked: k('s_mov_b64 exec, -1')
    def mask64(d, lo16):
        m = lo16 | (lo16 << 16)
        k(f's_mov_b32 s{d}, {m:#x}\ns_mov_b32 s{d+1}, {m:#x}')
    def mfma(d, a, b, first):
        k(f'v_mfma_f32_16x16x32_bf16 {vr(d,4)}, {vr(a,4)}, {vr(b,4)}, {"0" if first else vr(d,4)}')
    def strip(b):
        k(f'v_mov_b32 v{b+1}, v{b+2}')
    def strip2(b):
        k(f'v_mov_b32_dpp v{b+2}, v{b} row_ror:8 {DPPALL}\nv_mov_b32_dpp v{b+3}, v{b+1} row_ror:8 {DPPALL}')

    k('s_cmp_ge_u32 s2, 256\ns_cbranch_scc1 L_end')
    k('s_load_dwordx16 s[16:31], s[0:1], 0')
    k('s_load_dwordx8 s[32:39], s[0:1], 64')
    k('s_load_dwordx4 s[40:43], s[0:1], 96')
    stamp(0)
    if DIAG: stamp(DIAG)
    k('v_lshrrev_b32 v2, 6, v0\nv_and_b32 v1, 63, v0')
    k('v_readfirstlane_b32 s3, v2')
    k(f's_mov_b32 s{sHI}, 0xffff0000\ns_mov_b32 s{sL2E}, {LOG2E:#x}\ns_mov_b32 s{sTO}, {TIMEOUT}')
    k(f's_and_b32 s{sSP}, s2, 1\ns_mul_i32 s{sT0}, s{sSP}, {PAIR}\ns_xor_b32 s{sT0}, s{sT0}, s2\ns_lshr_b32 s{sT0}, s{sT0}, 1')
    k(f's_and_b32 s{sHKV}, s{sT0}, 15\ns_lshr_b32 s{sBB}, s{sT0}, 4\ns_and_b32 s{sW}, s3, 3')
    k('v_lshrrev_b32 v2, 4, v1\nv_and_b32 v3, 15, v1')
    sROLE, sPRO, sPI, sST = 98, 99, 100, 101
    k(f's_lshl_b32 s79, s{sT0}, 21')
    k(f's_and_b32 s{sX}, s2, 7\ns_lshr_b32 s{sIP}, s2, 3\ns_xor_b32 s{sIP}, s{sIP}, s{sSP}')
    pk = sum(p << (2 * u) for u, p in enumerate(PRO))
    k(f's_mov_b32 s62, {pk & 0xffffffff:#x}\ns_mov_b32 s63, {pk >> 32:#x}\ns_andn2_b32 s65, s{sIP}, 1\ns_lshl_b32 s65, s65, 1\ns_lshr_b64 s[62:63], s[62:63], s65')
    k(f's_lshr_b32 s68, s62, 2\ns_or_b32 s68, s68, s62\ns_and_b32 s68, s68, 3')
    k(f's_and_b32 s64, s{sIP}, 1\ns_lshl_b32 s64, s64, 1\ns_lshr_b32 s{sPRO}, s62, s64\ns_and_b32 s{sPRO}, s{sPRO}, 3')
    xk = sum(max(PIX[2 * m], PIX[2 * m + 1]) << (4 * m) for m in range(16))
    k(f's_mov_b32 s62, {xk & 0xffffffff:#x}\ns_mov_b32 s63, {xk >> 32:#x}\ns_lshr_b64 s[62:63], s[62:63], s65\ns_and_b32 s{sPI}, s62, 7')
    k(f's_lshl_b32 s{sPI}, s{sPI}, 3\ns_add_u32 s{sPI}, s{sPI}, s{sX}')
    k(f's_cmp_lt_u32 s{sPI}, 54\ns_cselect_b32 s64, 3, 1\ns_and_b32 s65, s68, s64\ns_cmp_eq_u32 s65, 0\ns_cselect_b32 s{sPRO}, 0, s{sPRO}\ns_cselect_b32 s68, 0, s68')
    k(f's_mul_i32 s{sST}, s{sW}, 27648')
    k('s_cmp_ge_u32 s3, 4\ns_cbranch_scc1 L_helper')

    vKO, vVO, vHALF, vM, vL, S, O, Q, P, T = 4, 5, 6, 7, 60, 8, 12, 16, 32, 48
    sOFF, sI, sBASE, sSCL = 72, 76, 79, 69
    SLOT = lambda j: 64 + 32 * j
    k('s_getpc_b64 s[62:63]')
    k('v_lshlrev_b32 v8, 7, v0')
    k('v_min_u32 v8, L_codeend-L_start-256, v8')
    if CODEP != 'off': k(f'global_load_dword v9, v8, s[62:63] {CODEP}')
    k(f'v_lshlrev_b32 v{vKO}, 8, v3\nv_lshl_add_u32 v{vKO}, v2, 4, v{vKO}')
    k(f'v_lshlrev_b32 v{vVO}, 4, v3\nv_lshl_add_u32 v{vVO}, v2, 10, v{vVO}')
    if FULL:
        k(f'v_lshrrev_b32 v58, 1, v3\nv_lshlrev_b32 v58, 8, v58\nv_lshl_add_u32 v58, v2, 5, v58\nv_and_b32 v59, 1, v3\nv_lshl_add_u32 v58, v59, 4, v58')
        k(f'v_lshlrev_b32 v59, 4, v3\nv_lshl_add_u32 v59, v2, 9, v59')
    sLIM, sVAL = 77, 70
    k(f's_mov_b32 s{sI}, s{sW}\ns_mov_b32 s{sLIM}, {QMIN if BAL else 256}')
    def nextoff(a):
        k(f's_sub_u32 s{sT2}, 511, s{sI}\ns_xor_b32 s{sT3}, s{sSP}, 1\ns_cmp_lt_u32 s{sI}, 256')
        k(f's_cselect_b32 s{sT2}, s{sI}, s{sT2}\ns_cselect_b32 s{sT3}, s{sSP}, s{sT3}')
        k(f's_lshl_b32 s{sT3}, s{sT3}, 2\ns_andn2_b32 s{sOFF+a}, s{sT2}, 3\ns_add_u32 s{sT2}, s{sT2}, s{sOFF+a}\ns_add_u32 s{sT2}, s{sT2}, s{sT3}')
        k(f's_lshl_b32 s{sT2}, s{sT2}, 12\ns_add_u32 s{sOFF+a}, s{sT2}, s{sBASE}')
        k(f's_cmp_lt_u32 s{sI}, s{sLIM}\ns_cselect_b32 s{sOFF+a}, s{sOFF+a}, 0x20000000\ns_cselect_b32 s{sVAL+a}, 1, 0\ns_add_u32 s{sI}, s{sI}, 4')
    def ldk(j, a, full=False):
        for i in range(4):
            if full: k(f'buffer_load_dwordx4 {vr(SLOT(j)+4*i,4)}, v58, {sr(sA,4)}, s{sOFF+a} offen offset:{2048*(i>>1)+128*(i&1)} {KVP}')
            else: k(f'buffer_load_dwordx4 {vr(SLOT(j)+4*i,4)}, v{vKO}, {sr(sA,4)}, s{sOFF+a} offen offset:{64*i} {KVP}')
    def ldv(j, a, full=False):
        for i in range(4):
            if full: k(f'buffer_load_dwordx4 {vr(SLOT(j)+16+4*i,4)}, v59, {sr(sB_,4)}, s{sOFF+a} offen offset:{2048*(i>>1)+256*(i&1)} {KVP}')
            else: k(f'buffer_load_dwordx4 {vr(SLOT(j)+16+4*i,4)}, v{vVO}, {sr(sB_,4)}, s{sOFF+a} offen offset:{256*i} {KVP}')
    nextoff(0)
    k(f's_movk_i32 s74, 6912\ns_cmp_eq_u32 s68, 3\ns_cselect_b32 s74, 8192, s74')
    k(f'v_lshrrev_b32 v10, 3, v1\nv_and_b32 v11, 2, v10\nv_mul_lo_u32 v10, v10, s74\nv_xor_b32 v11, v11, v1\nv_and_b32 v11, 7, v11\nv_lshl_add_u32 v10, v11, 4, v10\nv_xor_b32 v12, 64, v10')
    k(f'v_add_u32 v11, {PFROW}, v0\nv_mul_lo_u32 v11, v11, s74')
    k(f's_mul_i32 s75, s74, s{sW}\ns_lshl_b32 s75, s75, 5\ns_lshl_b32 s69, s{sPI}, 7\ns_add_u32 s75, s75, s69')
    k(f's_mul_i32 s{sC_+2}, s74, 576\ns_mov_b32 s{sC_+3}, 0x20000\ns_mul_i32 s78, s74, 104\ns_lshl_b32 s74, s74, 3')
    k('s_waitcnt lgkmcnt(0)')
    k(f's_cmp_eq_u32 s68, 3\ns_cselect_b32 s{sC_}, s{pWQ}, s{pWM}\ns_cselect_b32 s{sC_+1}, s{pWQ+1}, s{pWM+1}')
    srd(sA, pK, 0x10000000); srd(sB_, pV, 0x10000000)
    k(f's_cmp_eq_u32 s{sPRO}, 0\ns_cbranch_scc1 L_notile')
    for i in range(5):
        for j in range(4):
            k(f's_add_u32 m0, s{sST}, {4096*i+1024*j}')
            k(f'buffer_load_dwordx4 v{10 + 2 * (j & 1)}, {sr(sC_,4)}, s75 offen nt lds')
            if (i, j) != (4, 3): k(f's_add_u32 s75, s75, s{74 if j < 3 else 78}')
    k(f's_waitcnt vmcnt(0)\ns_barrier')
    if PG: ldk(0, 0, FULL); ldv(0, 0, FULL)
    k(f's_barrier\ns_barrier')
    if not PG: ldk(0, 0, FULL); ldv(0, 0, FULL)
    k('s_branch L_first')
    k.lab('L_notile')
    if PF:
        k(f's_cmp_eq_u32 s68, 0\ns_cbranch_scc1 L_nopf')
        k(f'buffer_load_dword v9, v11, {sr(sC_,4)}, s69 offen {PFP}')
        if PFROW < 320: k(f's_mul_i32 s75, s74, 32\ns_add_u32 s69, s69, s75\nbuffer_load_dword v10, v11, {sr(sC_,4)}, s69 offen {PFP}')
        k.lab('L_nopf')
        if PF == 2: k('s_waitcnt vmcnt(0)')
    ldk(0, 0, FULL); ldv(0, 0, FULL)
    k('s_barrier')
    k.lab('L_first')
    k(f's_load_dword s{sEP}, {sr(pWSP,2)}, 0')
    srd(sWS, pWSP, WS_SIZE)
    k(f'v_mov_b32 v{vHALF}, 0xffff\nv_and_b32 v8, 2, v3\nv_lshlrev_b32 v8, 3, v8\nv_lshlrev_b32 v{vHALF}, v8, v{vHALF}')
    for r in range(P, P + 16): k(f'v_mov_b32 v{r}, 0')
    for r in range(O, O + 4): k(f'v_mov_b32 v{r}, 0')
    k(f'v_mov_b32 v{vM}, 0xff800000\nv_mov_b32 v{vL}, 0')
    k(f'v_and_b32 v61, 1, v3\nv_lshlrev_b32 v61, 8, v61\nv_lshl_add_u32 v61, v2, 4, v61\nv_add_u32 v61, {L_Q}, v61')
    k(f's_mov_b32 s{sSCL}, {SCALE:#x}')
    for j in range(1, 6):
        nextoff(0)
        if PRE_TH < 40: k(f's_waitcnt vmcnt({PRE_TH})')
        ldk(j, 0, FULL)
        if PRE_TH < 40: k(f's_waitcnt vmcnt({PRE_TH})')
        ldv(j, 0, FULL)
    stamp(1)
    k('s_waitcnt vmcnt(48) lgkmcnt(0)')
    k(f's_add_u32 s{sEP}, s{sEP}, 0x9e3779b9\ns_and_b32 s{sTAG}, s{sEP}, 0xbfffbfff')
    k(f'v_mov_b32 v62, {L_FLG}\nv_mov_b32 v63, 1')
    if FULL: k(f'v_and_b32 v8, 2, v3\nv_lshlrev_b32 v8, 3, v8\nv_lshl_add_u32 v8, v2, 4, v8\nv_add_u32 v8, v61, v8')
    k.lab('L_qwait')
    k(f'ds_read_b32 v9, v62 offset:{F_QRDY}')
    if FULL:
        for i in range(2): k(f'ds_read_b128 {vr(Q+4*i,4)}, v8 offset:{128*i}')
    else:
        for i in range(4): k(f'ds_read_b128 {vr(Q+4*i,4)}, v61 offset:{64*i}')
    k(f's_waitcnt lgkmcnt(0)\nv_readfirstlane_b32 s{sT0}, v9\ns_cmp_eq_u32 s{sT0}, 1\ns_cbranch_scc1 L_qok')
    retry('L_qwait', 2)
    k.lab('L_qok')
    stamp(2)
    def consume(j, kw, vw, a, full=False):
        Kb, Vb = SLOT(j), SLOT(j) + 16
        t = T
        k(f's_waitcnt vmcnt({kw})')
        S2 = Q + 8
        if full:
            mfma(S2, Kb, Q, True); mfma(S2 + 4, Kb + 8, Q, True); mfma(S2, Kb + 4, Q + 4, False); mfma(S2 + 4, Kb + 12, Q + 4, False)
        else:
            for i in range(4): mfma(S, Kb + 4 * i, Q + 4 * i, i == 0)
        if a is not None:
            nextoff(a)
            if TH < 12 and kw == 12: k(f's_waitcnt vmcnt({TH})')
            ldk(j, a)
        if full:
            for i in range(4): k(f'v_mov_b32_dpp v{S+i}, v{S2+2*i} quad_perm:[0,1,0,1] {DPPALL}')
            for i in range(4): k(f'v_add_f32_dpp v{S+i}, v{S2+2*i+1}, v{S+i} quad_perm:[2,3,2,3] {DPPALL}')
        k(f'v_cvt_pk_bf16_f32 v{t}, v{S}, v{S+1}\nv_cvt_pk_bf16_f32 v{t+1}, v{S+2}, v{S+3}')
        unp(t + 2, t); unp(t + 4, t + 1)
        for i in range(4): k(f'v_mul_f32 v{t+2+i}, s{sSCL}, v{t+2+i}')
        rnd4(t + 2, t)
        k(f'v_max3_f32 v{t+6}, v{t+2}, v{t+3}, v{t+4}\nv_max3_f32 v{t+6}, v{t+6}, v{t+5}, v{vM}')
        xrow('v_max_f32', t + 6, t + 7)
        k(f'v_sub_f32 v{t+7}, v{vM}, v{t+6}\nv_mul_f32 v{t+8}, s{sL2E}, v{t+6}\nv_mul_f32 v{t+7}, s{sL2E}, v{t+7}\nv_mov_b32 v{vM}, v{t+6}')
        for i in range(4): k(f'v_fma_f32 v{t+2+i}, v{t+2+i}, s{sL2E}, -v{t+8}')
        k(f'v_exp_f32 v{t+7}, v{t+7}')
        for i in range(4): k(f'v_exp_f32 v{t+2+i}, v{t+2+i}')
        k(f'v_mul_f32 v{vL}, v{vL}, v{t+7}')
        for i in range(4):
            qp = '[0,0,2,2]' if i % 2 == 0 else '[1,1,3,3]'
            k(f'v_mul_f32_dpp v{O+i}, v{t+7}, v{O+i} quad_perm:{qp} {DPPALL}')
        for i in range(4): k(f'v_cvt_pk_bf16_f32 v{t+8+i}, v{t+2+i}, v{t+2+i}')
        k(f'v_add_f32 v{t+2}, v{t+2}, v{t+3}\nv_add_f32 v{t+4}, v{t+4}, v{t+5}\nv_add_f32 v{vL}, v{vL}, v{t+2}\nv_add_f32 v{vL}, v{vL}, v{t+4}')
        for i in range(4):
            for r in range(4):
                k(f'v_and_b32_dpp v{P+4*i+r}, v{t+8+i}, v{vHALF} quad_perm:[0,1,2,3] row_mask:0xf bank_mask:{1<<r:#x}')
        k(f's_waitcnt vmcnt({vw})')
        for i in range(4): mfma(O, P + 4 * i, Vb + 4 * i, False)
        if a is not None:
            if TH < 12 and kw == 12: k(f's_waitcnt vmcnt({TH})')
            ldv(j, a)
    consume(0, 44, 44, 0, FULL); consume(1, 44, 44, 1, FULL)
    consume(2, 44, 40, None, FULL); consume(3, 36, 32, None, FULL); consume(4, 28, 24, None, FULL); consume(5, 20, 16, None, FULL)
    if FULL:
        for i in range(4): k(f'ds_read_b128 {vr(Q+4*i,4)}, v61 offset:{64*i}')
    stamp(3)
    R_, ML, E = SLOT(2), SLOT(2) + 16, SLOT(3)
    k(f's_mul_i32 s{sT1}, s{sW}, 1040\ns_add_u32 s{sT1}, s{sT1}, {L_SP}')
    k(f'v_lshlrev_b32 v{E}, 5, v3\nv_lshl_add_u32 v{E}, v2, 3, v{E}\nv_add_u32 v{E}, s{sT1}, v{E}')
    k(f'v_and_b32 v{E+1}, 1, v3\nv_lshlrev_b32 v{E+1}, 3, v{E+1}\ns_add_u32 s{sT1}, s{sT1}, 1024\nv_add_u32 v{E+1}, s{sT1}, v{E+1}')
    k(f'v_lshlrev_b32 v{E+2}, 4, v1\nv_add_u32 v{E+3}, {L_SP}, v{E+2}')
    k(f'v_lshrrev_b32 v{E+5}, 5, v1\nv_lshlrev_b32 v{E+4}, 3, v{E+5}\nv_add_u32 v{E+4}, {L_SP}, v{E+4}\nv_lshlrev_b32 v{E+5}, 4, v{E+5}')
    for r in (9, 11, 13, 15): k(f'v_mov_b32 v{E+r}, s{sTAG}')
    k(f's_lshl_b32 s74, s{sHKV}, 3\ns_add_u32 s74, s74, s{sBB}\ns_lshl_b32 s74, s74, 1\ns_add_u32 s74, s74, s{sSP}\ns_mul_i32 s74, s74, 1152\ns_add_u32 s74, s74, {WS_OP}')
    k('s_waitcnt lgkmcnt(0)')
    k.lab('L_top')
    k(f's_lshr_b32 s{sT0}, s{sI}, 2')
    k(f's_cmp_lg_u32 s{sT0}, {LATE}\ns_cbranch_scc1 L_nolate\nds_write_b32 v62, v63 offset:{F_LATE}')
    k.lab('L_nolate')
    if PROF:
        for n_, stp in enumerate((16, 28, 40, 52)):
            k(f's_cmp_lg_u32 s{sT0}, {stp}\ns_cbranch_scc1 L_ns{n_}')
            stamp(6 + n_)
            k.lab(f'L_ns{n_}')
    if BAL:
        k(f's_cmp_lg_u32 s{sT0}, {JC}\ns_cbranch_scc1 L_nojc\ns_mov_b64 exec, 1\nds_add_u32 v62, v63 offset:{F_JC}\ns_mov_b64 exec, -1')
        k.lab('L_nojc')
        k(f's_cmp_lg_u32 s{sT0}, {QMIN//4}\ns_cbranch_scc1 L_nolim')
        k.lab('L_lim')
        k(f'ds_read_b32 v61, v62 offset:{F_LIM}\ns_waitcnt lgkmcnt(0)\nv_readfirstlane_b32 s{sLIM}, v61\ns_cmp_lg_u32 s{sLIM}, 0\ns_cbranch_scc1 L_nolim')
        retry('L_lim', 2)
        k.lab('L_nolim')
    if LREM is not None:
        k(f's_cmp_lt_u32 s{sT0}, {QMIN//4}\ns_cbranch_scc1 L_nolr\ns_add_u32 s{sT0}, s{sI}, {4*LREM}\ns_cmp_lt_u32 s{sT0}, s{sLIM}\ns_cbranch_scc1 L_nolr')
        k(f'ds_write_b32 v62, v63 offset:{F_LATE}')
        k.lab('L_nolr')
    for a in range(2):
        k(f's_cmp_eq_u32 s{sVAL+a}, 0\ns_cbranch_scc1 L_send')
        consume(a, 12, 12, a)
    k('s_branch L_top')
    k.lab('L_send')
    stamp(4)
    t = T
    xrow('v_add_f32', vL, t)
    k(f'ds_write2_b32 v{E+1}, v{vM}, v{vL} offset0:0 offset1:1')
    k(f'ds_write2_b32 v{E}, v{O}, v{O+2} offset0:0 offset1:1')
    k(f'ds_write2_b32 v{E}, v{O+1}, v{O+3} offset0:128 offset1:129')
    k(f's_mov_b64 exec, 1\nds_add_rtn_u32 v63, v62, v63 offset:{F_CNT}\ns_mov_b64 exec, -1')
    for i in range(4): k(f'ds_read_b64 {vr(ML+2*i,2)}, v{E+4} offset:{1024+1040*i}')
    for i in range(4): k(f'ds_read_b128 {vr(R_+4*i,4)}, v{E+3} offset:{1040*i}')
    k('s_waitcnt lgkmcnt(4)')
    k(f'v_readfirstlane_b32 s{sT1}, v63\ns_cmp_lg_u32 s{sT1}, 3\ns_cbranch_scc1 L_exit')
    k(f'v_max3_f32 v{t}, v{ML}, v{ML+2}, v{ML+4}\nv_max_f32 v{t}, v{t}, v{ML+6}')
    k(f'v_mul_f32 v{t}, s{sL2E}, v{t}\nv_max_f32 v{E+8}, 0xf149f2ca, v{t}')
    for i in range(4): k(f'v_fma_f32 v{ML+2*i}, v{ML+2*i}, s{sL2E}, -v{E+8}')
    for i in range(4): k(f'v_exp_f32 v{ML+2*i}, v{ML+2*i}')
    k(f'v_mul_f32 v{E+10}, v{ML}, v{ML+1}')
    for i in range(1, 4): k(f'v_fmac_f32 v{E+10}, v{ML+2*i}, v{ML+2*i+1}')
    k(f's_mov_b32 exec_lo, 1\ns_mov_b32 exec_hi, 1')
    k(f'buffer_store_dwordx4 {vr(E+8,4)}, v{E+5}, {sr(sWS,4)}, s74 offen offset:1024 sc1')
    k('s_mov_b64 exec, -1\ns_waitcnt lgkmcnt(0)')
    for e in range(4): k(f'v_mul_f32 v{R_+e}, v{ML}, v{R_+e}')
    for i in range(1, 4):
        for e in range(4): k(f'v_fmac_f32 v{R_+e}, v{ML+2*i}, v{R_+4*i+e}')
    k(f'v_cvt_pk_bf16_f32 v{E+12}, v{R_}, v{R_+1}\nv_cvt_pk_bf16_f32 v{E+14}, v{R_+2}, v{R_+3}')
    k(f'buffer_store_dwordx4 {vr(E+12,4)}, v{E+2}, {sr(sWS,4)}, s74 offen sc1')
    stamp(5)
    k('s_branch L_exit')

    k.lab('L_helper')
    k('s_setprio 2')
    CB, WT, AC, RR = 16, 176, 40, 100
    k(f'v_lshlrev_b32 v8, 2, v1\nv_add_u32 v8, {L_FLG}, v8\nv_mov_b32 v9, 0\nds_write_b32 v8, v9')
    k(f'v_and_b32 v7, 7, v3\nv_lshrrev_b32 v9, 3, v3\nv_mul_u32_u24 v8, 1152, v7')
    k(f'v_lshl_add_u32 v4, v2, 4, v8\nv_lshl_add_u32 v4, v9, 3, v4')
    k(f's_lshl_b32 s{sT0}, s{sW}, 6')
    k('s_waitcnt lgkmcnt(0)')
    srd(sA, pC, 9216); srd(sD_, pX, 9216)
    def epoch():
        srd(sWS, pWSP, WS_SIZE)
        k(f's_load_dword s{sEP}, {sr(pWSP,2)}, 0')
        rk = sum(r << (2 * u) for u, (r, _) in enumerate(TAIL))
        k(f's_mov_b32 s62, {rk & 0xffffffff:#x}\ns_mov_b32 s63, {rk >> 32:#x}\ns_lshl_b32 s64, s{sIP}, 1\ns_lshr_b64 s[62:63], s[62:63], s64\ns_and_b32 s{sROLE}, s62, 3')
        gm = sum(1 << u for u, (r, _) in enumerate(TAIL) if r == 0); wm = sum(1 << u for u, (r, _) in enumerate(TAIL) if r == 1)
        k(f's_bfm_b32 s62, s{sIP}, 0\ns_and_b32 s63, s62, {wm:#x}\ns_bcnt1_i32_b32 s77, s63\ns_and_b32 s63, s62, {gm:#x}\ns_bcnt1_i32_b32 s62, s63')
        k(f's_mul_i32 s{sR}, s{sX}, 18\ns_add_u32 s{sR}, s{sR}, s62')
        k(f's_waitcnt lgkmcnt(0)\ns_add_u32 s{sEP}, s{sEP}, 0x9e3779b9\ns_and_b32 s{sTAG}, s{sEP}, 0xbfffbfff')
    def silu():
        k(f's_mov_b32 s{sT0}, 0xbfb8aa3b')
        for i in range(5):
            b = CB + 4 * i
            unp(RR, b); unp(RR + 2, b + 1)
            for e in range(4): k(f'v_mul_f32 v{RR+4+e}, s{sT0}, v{RR+e}')
            for e in range(4): k(f'v_exp_f32 v{RR+4+e}, v{RR+4+e}')
            for e in range(4): k(f'v_add_f32 v{RR+4+e}, 1.0, v{RR+4+e}')
            for e in range(4): k(f'v_min_f32 v{RR+4+e}, 0x7e800000, v{RR+4+e}')
            for e in range(4): k(f'v_rcp_f32 v{RR+8+e}, v{RR+4+e}')
            for e in range(4): k(f'v_mul_f32 v{RR+12+e}, v{RR+e}, v{RR+8+e}')
            for e in range(4): k(f'v_fma_f32 v{RR+e}, -v{RR+12+e}, v{RR+4+e}, v{RR+e}')
            for e in range(4): k(f'v_fmac_f32 v{RR+12+e}, v{RR+e}, v{RR+8+e}')
            k(f'v_cvt_pk_bf16_f32 v{b}, v{RR+12}, v{RR+13}\nv_cvt_pk_bf16_f32 v{b+1}, v{RR+14}, v{RR+15}')
        for i in range(5): strip2(CB + 4 * i)
    TA = 168
    def traddr():
        k(f'v_lshrrev_b32 v5, 2, v3\nv_lshl_add_u32 v6, v2, 3, v5\nv_lshlrev_b32 v6, 7, v6\nv_and_b32 v5, 3, v3\nv_lshl_add_u32 v6, v5, 3, v6')
        k(f'v_bfe_u32 v5, v1, 3, 2\nv_lshl_add_u32 v6, v5, 5, v6')
        for tile in range(4): k(f'v_xor_b32 v{TA+tile}, {32*tile}, v6\nv_add_u32 v{TA+tile}, s{sST}, v{TA+tile}')
    def trread(i):
        for tile in range(4):
            r = WT + (i * 4 + tile) * 4; o = 4096 * i
            k(f'ds_read_b64_tr_b16 {vr(r,2)}, v{TA+tile} offset:{o}\nds_read_b64_tr_b16 {vr(r+2,2)}, v{TA+tile} offset:{o+512}')
    def redaddr(rowstride):
        k(f'v_and_b32 v14, 7, v3\nv_mul_u32_u24 v14, 272, v14\nv_lshl_add_u32 v14, v2, 4, v14\ns_mul_i32 s{sT0}, s{sW}, 2176\ns_add_u32 s{sT0}, s{sT0}, {L_PT}\nv_add_u32 v14, s{sT0}, v14')
        k(f'v_and_b32 v5, 1, v2\nv_lshl_add_u32 v5, s{sW}, 1, v5\nv_mul_u32_u24 v15, 272, v5\nv_lshl_add_u32 v15, v3, 4, v15\nv_add_u32 v15, {L_PT}, v15')
        k(f'v_mul_u32_u24 v5, {rowstride}, v5\nv_lshl_add_u32 v5, v3, 4, v5\nv_mov_b32 v37, s{sTAG}\nv_mov_b32 v39, s{sTAG}')
        mask64(sM0, 0x00ff)
    k(f's_cmp_eq_u32 s{sPRO}, 2\ns_cbranch_scc1 L_p1\ns_cmp_eq_u32 s{sPRO}, 3\ns_cbranch_scc1 L_p2')
    k('s_barrier')
    epoch()
    if PT:
        k(f's_cmp_lg_u32 s{sIP}, 30\ns_cbranch_scc1 L_pdone')
        k(f'v_and_b32 v5, 255, v0\nv_and_b32 v6, 7, v5\nv_mul_u32_u24 v6, 13824, v6\nv_lshrrev_b32 v5, 3, v5\nv_lshl_add_u32 v6, v5, 7, v6\ns_mov_b32 s{sT0}, {WS_MOD}')
        k(f'buffer_load_dword v10, v6, {sr(sWS,4)}, s{sT0} offen sc1\nbuffer_load_dword v11, v6, {sr(sWS,4)}, s{sT0} offen offset:512 sc1\ns_waitcnt vmcnt(0)')
    k('s_branch L_pdone')

    k.lab('L_p1')
    for i in range(5):
        k(f'buffer_load_dwordx2 {vr(CB+4*i,2)}, v4, {sr(sA,4)}, s{sT0} offen offset:{256*i} {CP}')
    if 'st' in DBG: stamp(5)
    epoch()
    if 'st' in DBG: stamp(6)
    traddr(); redaddr(13824)
    k(f's_lshl_b32 s78, s{sPI}, 8\ns_add_u32 s78, s78, {WS_MOD}')
    k('s_waitcnt vmcnt(0)')
    stamp(1)
    if 'clk' in DBG: k('s_memtime s[94:95]')
    silu()
    if 'clk' in DBG: k('s_memtime s[96:97]\ns_memrealtime s[92:93]')
    k('s_barrier')
    stamp(2)
    trread(0)
    for i in range(5):
        if i < 4:
            k('s_waitcnt lgkmcnt(4)'); trread(i + 1); k('s_waitcnt lgkmcnt(8)')
        else: k('s_waitcnt lgkmcnt(0)')
        for tile in range(4): mfma(AC + 4 * tile, WT + (i * 4 + tile) * 4, CB + 4 * i, i == 0)
    k('s_branch L_wide')

    k.lab('L_p2')
    LN, SG, CG = 132, 56, 76
    k(f'v_mul_u32_u24 v8, 1152, v7')
    k(f'buffer_load_ushort v36, v8, {sr(sD_,4)}, 0 offen {CP}')
    for i in range(5):
        k(f'buffer_load_dwordx2 {vr(CB+4*i,2)}, v4, {sr(sD_,4)}, s{sT0} offen offset:{256*i} {CP}')
    k(f'v_mul_u32_u24 v4, 13824, v7\nv_lshl_add_u32 v4, v2, 5, v4\nv_lshl_add_u32 v4, v9, 4, v4')
    k(f'v_lshlrev_b32 v7, 5, v7\nv_add_u32 v7, {L_RED}, v7\nv_lshl_add_u32 v9, s{sW}, 3, v7')
    epoch()
    k(f's_lshl_b32 s78, s{sPI}, 11\ns_add_u32 s78, s78, {WS_Q}')
    traddr(); redaddr(256)
    k(f's_cmp_lt_u32 s{sW}, 2\ns_cselect_b32 s72, 1.0, 0')
    k('s_waitcnt vmcnt(0)')
    k('v_lshlrev_b32 v8, 16, v36')
    for i in range(5):
        unp(LN + 4 * i, CB + 4 * i); unp(LN + 4 * i + 2, CB + 4 * i + 1)
    for e in range(4): k(f'v_sub_f32 v{RR+e}, v{LN+16+e}, v8')
    k(f'v_add_f32 v10, v{RR}, v{RR+1}\nv_mul_f32 v11, v{RR}, v{RR}\nv_add_f32 v10, v10, v{RR+2}\nv_fmac_f32 v11, v{RR+1}, v{RR+1}')
    k(f'v_add_f32 v10, v10, v{RR+3}\nv_fmac_f32 v11, v{RR+2}, v{RR+2}\nv_mul_f32 v10, s72, v10\nv_fmac_f32 v11, v{RR+3}, v{RR+3}\nv_mul_f32 v11, s72, v11')
    for r in range(16): k(f'v_sub_f32 v{RR+r}, v{LN+r}, v8')
    for r in range(16): k(f'v_add_f32 v10, v10, v{RR+r}\nv_fmac_f32 v11, v{RR+r}, v{RR+r}')
    k(f'v_add_f32_dpp v10, v10, v10 row_ror:8 {DPPALL}\nv_add_f32_dpp v11, v11, v11 row_ror:8 {DPPALL}')
    xrow('v_add_f32', 10, 12); xrow('v_add_f32', 11, 12)
    k('ds_write_b64 v9, v[10:11]')
    k(f's_lshl_b32 s{sT0}, s{sW}, 7\ns_add_u32 s{sT0}, s{sT0}, {WS_MOD}\ns_add_u32 s{sT1}, s{sT0}, 2304')
    k(f's_cmp_lt_u32 s{sW}, 2\ns_cselect_b32 s{sT2}, 512, 0\ns_add_u32 s{sT2}, s{sT2}, s{sT0}\ns_add_u32 s{sT3}, s{sT2}, 2304')
    k('s_waitcnt lgkmcnt(0)\ns_barrier')
    stamp(1)
    k(f'ds_read_b128 {vr(RR,4)}, v7\nds_read_b128 {vr(RR+4,4)}, v7 offset:16')
    trread(0)
    k('s_waitcnt lgkmcnt(8)')
    k(f'v_add_f32 v10, v{RR}, v{RR+2}\nv_add_f32 v11, v{RR+1}, v{RR+3}\nv_add_f32 v12, v{RR+4}, v{RR+6}\nv_add_f32 v13, v{RR+5}, v{RR+7}')
    k(f'v_add_f32 v10, v10, v12\nv_add_f32 v11, v11, v13\nv_mul_f32 v10, 0x3ae38e39, v10\nv_mul_f32 v11, 0x3ae38e39, v11')
    k('v_fma_f32 v11, -v10, v10, v11\nv_add_f32 v10, v10, v8\nv_max_f32 v11, 0, v11')
    rnd2(10, 11, 12)
    k('v_add_f32 v11, 0x3727c5ac, v11')
    rnd1(11, 12)
    k('v_sqrt_f32 v11, v11')
    rnd1(11, 12)
    k('v_rcp_f32 v11, v11')
    for i in range(5):
        d = LN + 4 * i
        if i < 4:
            k('s_waitcnt lgkmcnt(0)'); trread(i + 1)
        for e in range(4): k(f'v_sub_f32 v{d+e}, v{d+e}, v10')
        rnd4(d, 12)
        for e in range(4): k(f'v_mul_f32 v{d+e}, v{d+e}, v11')
        rnd4(d, 12)
    k('s_waitcnt lgkmcnt(0)')
    if 'st' in DBG: stamp(5)
    poll('hpoll', [f'buffer_load_dwordx4 {vr(CG+4*i,4)}, v4, {sr(sWS,4)}, s{sT1 if i < 4 else sT3} offen offset:{512*min(i,3)} sc1' for i in range(5)] +
                  [f'buffer_load_dwordx4 {vr(SG+4*i,4)}, v4, {sr(sWS,4)}, s{sT0 if i < 4 else sT2} offen offset:{512*min(i,3)} sc1' for i in range(5)],
         [SG + 4 * i for i in range(10)], 12, 10, PSL, MASKED)
    stamp(2)
    for i in range(5):
        d, c_, s_ = LN + 4 * i, CG + 4 * i, SG + 4 * i
        unp(RR, c_); unp(RR + 2, c_ + 2); unp(RR + 4, s_); unp(RR + 6, s_ + 2)
        for e in range(4): k(f'v_add_f32 v{RR+e}, 1.0, v{RR+e}')
        rnd4(RR, 12)
        for e in range(4): k(f'v_mul_f32 v{d+e}, v{d+e}, v{RR+e}')
        rnd4(d, 12)
        for e in range(4): k(f'v_add_f32 v{d+e}, v{d+e}, v{RR+4+e}')
        k(f'v_cvt_pk_bf16_f32 v{CB+4*i}, v{d}, v{d+1}\nv_cvt_pk_bf16_f32 v{CB+4*i+1}, v{d+2}, v{d+3}')
        if i > 0:
            strip2(CB + 4 * (i - 1))
        if i > 1:
            for tile in range(4): mfma(AC + 4 * tile, WT + ((i - 2) * 4 + tile) * 4, CB + 4 * (i - 2), i == 2)
    strip2(CB + 16)
    for i in (3, 4):
        for tile in range(4): mfma(AC + 4 * tile, WT + (i * 4 + tile) * 4, CB + 4 * i, False)
    k.lab('L_wide')
    k(f's_mov_b64 exec, {sr(sM0,2)}')
    for tile in range(4): k(f'ds_write_b128 v14, {vr(AC+4*tile,4)} offset:{64*tile}')
    k('s_mov_b64 exec, -1\ns_waitcnt lgkmcnt(0)\ns_barrier')
    for i in range(4): k(f'ds_read_b128 {vr(RR+4*i,4)}, v15 offset:{2176*i}')
    k('s_waitcnt lgkmcnt(0)')
    for e in range(4): k(f'v_add_f32 v{RR+e}, v{RR+e}, v{RR+4+e}\nv_add_f32 v{RR+8+e}, v{RR+8+e}, v{RR+12+e}')
    for e in range(4): k(f'v_add_f32 v{RR+e}, v{RR+e}, v{RR+8+e}')
    k(f'v_cvt_pk_bf16_f32 v36, v{RR}, v{RR+1}\nv_cvt_pk_bf16_f32 v38, v{RR+2}, v{RR+3}')
    k(f's_mov_b32 exec_hi, 0\nbuffer_store_dwordx4 v[36:39], v5, {sr(sWS,4)}, s78 offen sc1\ns_mov_b64 exec, -1')
    k('s_barrier')
    k.lab('L_pdone')
    stamp(3)
    k(f's_cmp_lg_u32 s{sW}, 0\ns_cbranch_scc1 L_qdone')
    k(f's_lshl_b32 s{sT0}, s{sHKV}, 13\ns_lshl_b32 s{sT1}, s{sBB}, 8\ns_add_u32 s{sT0}, s{sT0}, s{sT1}\ns_add_u32 s{sT0}, s{sT0}, {WS_Q}')
    k(f'v_lshlrev_b32 v4, 11, v2\nv_lshl_add_u32 v4, v3, 4, v4\nv_lshlrev_b32 v5, 3, v1\nv_add_u32 v5, {L_Q}, v5\nv_mov_b32 v12, {L_FLG}\nv_mov_b32 v13, 1')
    poll('qpoll', [f'buffer_load_dwordx4 v[24:27], v4, {sr(sWS,4)}, s{sT0} offen sc1'], [24], 10, 11, QSL)
    k(f'ds_write2_b32 v5, v24, v26 offset0:0 offset1:1\nds_write_b32 v12, v13 offset:{F_QRDY}')
    k.lab('L_qdone')
    stamp(4)
    if 'norole' in DBG: k('s_branch L_nrole')
    k(f's_cmp_eq_u32 s{sROLE}, 1\ns_cbranch_scc1 L_wrole\ns_cmp_eq_u32 s{sROLE}, 2\ns_cbranch_scc1 L_rrole\ns_cmp_eq_u32 s{sROLE}, 3\ns_cbranch_scc1 L_nrole')

    def balance(name):
        if not BAL: return
        k(f's_cmp_lg_u32 s{sW}, 1\ns_cbranch_scc1 L_{name}bd')
        k(f'v_mov_b32 v32, {L_FLG}')
        k.lab(f'L_{name}bw')
        k(f'ds_read_b32 v33, v32 offset:{F_JC}\ns_waitcnt lgkmcnt(0)\nv_readfirstlane_b32 s18, v33\ns_cmp_eq_u32 s18, 4\ns_cbranch_scc1 L_{name}bt')
        retry(f'L_{name}bw', 6)
        k.lab(f'L_{name}bt')
        k(f's_memrealtime s[18:19]\ns_lshl_b32 s20, s2, 7\ns_add_u32 s20, s20, {WS_BAL}\ns_xor_b32 s21, s20, {PAIR << 7}')
        k(f'v_mov_b32 v33, 0\nv_mov_b32 v35, s{sTAG}\nv_mov_b32 v37, s{sTAG}\ns_waitcnt lgkmcnt(0)\ns_add_u32 s18, s18, {BIAS if name == "g" else 0}\nv_mov_b32 v34, s18\nv_mov_b32 v36, s18')
        k(f's_mov_b64 exec, 1\nbuffer_store_dwordx4 v[34:37], v33, {sr(sWS,4)}, s20 offen sc1')
        poll(f'{name}balp', [f'buffer_load_dwordx4 v[56:59], v33, {sr(sWS,4)}, s21 offen sc1'], [56], 38, 39, 16)
        k(f'v_readfirstlane_b32 s19, v56\ns_sub_i32 s19, s19, s18\ns_sub_i32 s18, 0, s19\ns_cmp_eq_u32 s{sSP}, 0\ns_cselect_b32 s18, s19, s18')
        k(f's_max_i32 s18, s18, -8000\ns_min_i32 s18, s18, 8000\ns_mul_i32 s18, s18, {round(GAM * 2 / 112 * 65536)}\ns_add_i32 s18, s18, 32768\ns_ashr_i32 s18, s18, 16')
        k(f's_max_i32 s18, s18, {QMIN-256}\ns_min_i32 s18, s18, {256-QMIN}\ns_sub_i32 s19, 0, s18\ns_cmp_eq_u32 s{sSP}, 0\ns_cselect_b32 s18, s18, s19')
        k(f's_add_i32 s18, s18, 256\nv_mov_b32 v33, s18\nds_write_b32 v32, v33 offset:{F_LIM}\ns_mov_b64 exec, -1')
        k.lab(f'L_{name}bd')
    def dma(voff, srd_, soff, lds_imm, idx, th):
        if idx >= th: k(f's_waitcnt vmcnt({th-1})')
        k(f's_add_u32 m0, s{sST}, {lds_imm}')
        k(f'buffer_load_dwordx4 v{voff}, {sr(srd_,4)}, s{soff} offen nt lds')
    def selmasks(a, b):
        k(f'v_and_b32 v8, 1, v3\nv_lshlrev_b32 v8, 4, v8\nv_mov_b32 v9, 0x3f80\nv_lshlrev_b32 v9, v8, v9')
        k(f'v_and_b32 v8, 2, v3\nv_cmp_eq_u32 vcc, 0, v8\nv_cndmask_b32 v{a}, 0, v9, vcc\nv_sub_u32 v{b}, v9, v{a}')

    GW, DW, YA, BO, FS, FS5, XG, GB = 176, 140, 104, 84, 76, 80, 72, 68
    srd(sA, pGA, 576 * 9216); srd(sB_, pUP, 576 * 9216); srd(sC_, pDN, 4608 * 1152); srd(sD_, pOUT, 9216)
    k(f's_lshr_b32 s77, s{sR}, 2\ns_and_b32 s78, s{sR}, 3')
    k(f'v_bfe_u32 v8, v3, 2, 1\nv_lshl_add_u32 v8, s78, 1, v8\nv_and_b32 v9, 3, v3\nv_lshl_add_u32 v9, s77, 2, v9')
    k(f'v_mul_u32_u24 v20, 13824, v8\nv_lshl_add_u32 v20, v9, 4, v20')
    k(f'v_mul_u32_u24 v21, 1152, v8\nv_lshl_add_u32 v21, v9, 3, v21')
    k(f'v_mul_u32_u24 v10, 1821, v9\nv_lshrrev_b32 v10, 16, v10\nv_lshlrev_b32 v10, 6, v10')
    k(f'v_mul_u32_u24 v22, 2560, v8\nv_lshl_add_u32 v22, v9, 4, v22\nv_add_u32 v22, v22, v10')
    k(f'v_mov_b32 v12, {L_FLG}')
    if LATE > JC: balance('g')
    if LATE == 0: k('s_branch L_glok')
    k.lab('L_glate')
    k(f'ds_read_b32 v13, v12 offset:{F_LATE}\ns_waitcnt lgkmcnt(0)\nv_readfirstlane_b32 s{sT0}, v13\ns_cmp_eq_u32 s{sT0}, 1\ns_cbranch_scc1 L_glok')
    retry('L_glate', 8)
    k.lab('L_glok')
    k(f'v_lshrrev_b32 v30, 2, v1\nv_mul_u32_u24 v30, 9216, v30\nv_and_b32 v5, 3, v1\nv_lshl_add_u32 v30, v5, 4, v30\nv_lshlrev_b32 v6, 4, v1')
    def stage(parts, th):
        n = 0
        for part in parts:
            if part < 2:
                k(f's_mul_i32 s{sT2}, s{sW}, {144*9216}\ns_lshl_b32 s{sT3}, s{sR}, 6\ns_add_u32 s{sT2}, s{sT2}, s{sT3}')
            else:
                k(f's_mul_i32 s{sT2}, s{sR}, 36864\ns_mul_i32 s{sT3}, s{sW}, 9216\ns_add_u32 s{sT2}, s{sT2}, s{sT3}')
            for i in range(9):
                dma(30 if part < 2 else 6, (sA, sB_, sC_)[part], sT2, 9216 * part + 1024 * i, n, th); n += 1
                if i < 8: k(f's_add_u32 s{sT2}, s{sT2}, {16*9216 if part < 2 else 1024}')
    def conv(part):
        if part < 2:
            for t_ in range(5):
                for tile in (2 * part, 2 * part + 1):
                    o = part * 9216 + (tile & 1) * 32 + t_ * 2048
                    r = GW + (t_ * 4 + tile) * 4
                    va = 16 if t_ < 4 else 17
                    k(f'ds_read_b64_tr_b16 {vr(r,2)}, v{va} offset:{o}\nds_read_b64_tr_b16 {vr(r+2,2)}, v{va} offset:{o+256}')
                if t_ in (2, 4): k('s_waitcnt lgkmcnt(0)')
        else:
            for u in range(9):
                k(f'ds_read_b64_tr_b16 {vr(DW+4*u,2)}, v31 offset:{32*u}\nds_read_b64_tr_b16 {vr(DW+4*u+2,2)}, v31 offset:{4608+32*u}')
                if u in (4, 8): k('s_waitcnt lgkmcnt(0)')
    early = [0, 1, 2][:3 - SPLIT]; late = [0, 1, 2][3 - SPLIT:]
    stage(early, STG_TH)
    selmasks(FS, FS + 2)
    k(f'v_mov_b32 v{FS+1}, 0\nv_mov_b32 v{FS+3}, 0\nv_mov_b32 v{FS5+1}, 0\nv_mov_b32 v{FS5+3}, 0')
    k(f's_cmp_lt_u32 s{sW}, 2\ns_cselect_b32 s{sT0}, -1, 0\nv_and_b32 v{FS5}, s{sT0}, v{FS}\nv_and_b32 v{FS5+2}, s{sT0}, v{FS+2}')
    mask64(sM0, 0x00ff)
    k(f'v_lshrrev_b32 v8, 2, v3\nv_and_b32 v9, 3, v3\nv_lshlrev_b32 v17, 6, v8\nv_lshl_add_u32 v17, v9, 3, v17\nv_add_u32 v17, s{sST}, v17')
    k(f'v_lshl_add_u32 v16, v2, 9, v17\nv_and_b32 v10, 1, v2\nv_lshl_add_u32 v17, v10, 9, v17')
    k(f'v_mul_u32_u24 v31, 1152, v8\nv_lshl_add_u32 v31, v9, 3, v31\nv_mul_u32_u24 v10, 27648, v2\ns_mul_i32 s{sT0}, s{sW}, 288\ns_add_u32 s{sT0}, s{sT0}, 18432\nv_add3_u32 v31, v31, v10, s{sT0}')
    k(f'v_and_b32 v8, 7, v3\nv_lshrrev_b32 v9, 3, v3')
    k(f'v_mul_u32_u24 v4, 2560, v8\nv_lshl_add_u32 v4, v2, 5, v4\nv_lshl_add_u32 v4, v9, 4, v4')
    k(f'v_lshrrev_b32 v5, 1, v8\nv_mul_u32_u24 v5, 18432, v5\nv_and_b32 v10, 1, v3\nv_lshl_add_u32 v5, v10, 6, v5\nv_lshl_add_u32 v5, v2, 4, v5')
    k(f'v_mul_u32_u24 v14, 272, v8\nv_lshl_add_u32 v15, v2, 5, v14\nv_lshl_add_u32 v15, v9, 4, v15\nv_add_u32 v15, {L_PT}, v15')
    k(f's_mul_i32 s{sT0}, s{sW}, 2176\ns_add_u32 s{sT0}, s{sT0}, {L_PT}\nv_lshl_add_u32 v14, v2, 4, v14\nv_add_u32 v14, s{sT0}, v14')
    k(f'v_lshlrev_b32 v19, 4, v8\nv_add_u32 v19, {L_RED}, v19\ns_lshl_b32 s{sT0}, s{sW}, 7\nv_add_u32 v18, s{sT0}, v19')
    k('s_waitcnt vmcnt(0)')
    for part in early:
        if part < 2: conv(part)
    k(f's_mov_b32 s{sT0}, {WS_MOD + 11520}')
    poll('gbp', [f'buffer_load_dwordx4 v[24:27], v20, {sr(sWS,4)}, s{sT0} offen sc1'], [24], 28, 29, 8)
    unp(GB, 24); unp(GB + 2, 26)
    k(f's_mul_i32 s{sT0}, s{sW}, 640\ns_add_u32 s{sT0}, s{sT0}, {WS_H2}\ns_mov_b32 s{sT1}, {WS_X2}')
    k(f's_mul_i32 s72, s{sW}, {36*18432}\ns_lshl_b32 s73, s{sR}, 7\ns_add_u32 s72, s72, s73\ns_add_u32 s72, s72, {WS_YP}')
    k('s_waitcnt lgkmcnt(0)')
    if LATE <= JC: balance('g')
    k('s_barrier')
    stamp(5)
    if late:
        stage(late, 27)
        for n_, part in enumerate(late):
            if part < 2:
                k(f's_waitcnt vmcnt({9 * (len(late) - 1 - n_)})'); conv(part)
    else: conv(2)
    stamp(6)
    poll('h2p', [f'buffer_load_dwordx4 {vr(BO+4*i,4)}, v4, {sr(sWS,4)}, s{sT0} offen offset:{128*i} sc1' for i in range(5)] +
         [f'buffer_load_dwordx4 {vr(XG,4)}, v22, {sr(sWS,4)}, s{sT1} offen sc1'], [BO + 4 * i for i in range(5)] + [XG], 12, 10, 0, MASKED)
    stamp(7)
    for i in range(5): strip(BO + 4 * i)
    strip2(BO); strip2(BO + 4)
    for t_ in range(5):
        for tile in range(4):
            mfma(AC + 4 * tile, GW + (t_ * 4 + tile) * 4, BO + 4 * t_, t_ == 0)
            if tile == 0 and t_ + 2 < 5: strip2(BO + 4 * (t_ + 2))
    k(f's_mov_b64 exec, {sr(sM0,2)}')
    for tile in range(4): k(f'ds_write_b128 v14, {vr(AC+4*tile,4)} offset:{64*tile}')
    k('s_mov_b64 exec, -1\ns_waitcnt lgkmcnt(0)\ns_barrier')
    for i in range(4): k(f'ds_read_b128 {vr(YA+4*i,4)}, v15 offset:{2176*i}')
    for i in range(4): k(f'ds_read_b128 {vr(YA+16+4*i,4)}, v15 offset:{2176*i+128}')
    G_, U_ = YA, YA + 16
    DLATE = bool(late)
    c1 = -2 * 0.7978845608028654 * 1.4426950408889634
    k(f's_mov_b32 s{sT2}, {f2u(c1*0.044715):#x}\nv_mov_b32 v13, {f2u(c1):#x}')
    k('s_waitcnt lgkmcnt(4)')
    for e in range(4): k(f'v_add_f32 v{G_+e}, v{G_+e}, v{G_+4+e}\nv_add_f32 v{G_+8+e}, v{G_+8+e}, v{G_+12+e}')
    for e in range(4): k(f'v_add_f32 v{G_+e}, v{G_+e}, v{G_+8+e}')
    rnd4(G_, 8)
    for e in range(4): k(f'v_mul_f32 v{G_+4+e}, v{G_+e}, v{G_+e}')
    for e in range(4): k(f'v_fma_f32 v{G_+4+e}, v{G_+4+e}, s{sT2}, v13')
    for e in range(4): k(f'v_mul_f32 v{G_+4+e}, v{G_+4+e}, v{G_+e}')
    for e in range(4): k(f'v_exp_f32 v{G_+4+e}, v{G_+4+e}')
    k('s_waitcnt lgkmcnt(0)')
    if DLATE:
        for u in range(7): k(f'ds_read_b64_tr_b16 {vr(DW+4*u,2)}, v31 offset:{32*u}\nds_read_b64_tr_b16 {vr(DW+4*u+2,2)}, v31 offset:{4608+32*u}')
    for e in range(4): k(f'v_add_f32 v{U_+e}, v{U_+e}, v{U_+4+e}\nv_add_f32 v{U_+8+e}, v{U_+8+e}, v{U_+12+e}')
    for e in range(4): k(f'v_add_f32 v{G_+4+e}, 1.0, v{G_+4+e}')
    for e in range(4): k(f'v_rcp_f32 v{G_+4+e}, v{G_+4+e}')
    for e in range(4): k(f'v_add_f32 v{U_+e}, v{U_+e}, v{U_+8+e}')
    for e in range(4): k(f'v_mul_f32 v{G_+e}, v{G_+e}, v{G_+4+e}')
    if DLATE:
        k('s_waitcnt lgkmcnt(8)')
        for u in range(7, 9): k(f'ds_read_b64_tr_b16 {vr(DW+4*u,2)}, v31 offset:{32*u}\nds_read_b64_tr_b16 {vr(DW+4*u+2,2)}, v31 offset:{4608+32*u}')
    rnd4(U_, 8); rnd4(G_, 10)
    for e in range(4): k(f'v_mul_f32 v{G_+e}, v{G_+e}, v{U_+e}')
    k(f'v_cvt_pk_bf16_f32 v{BO}, v{G_}, v{G_+1}\nv_cvt_pk_bf16_f32 v{BO+1}, v{G_+2}, v{G_+3}')
    strip2(BO)
    if DLATE: k('s_waitcnt lgkmcnt(0)')
    for u in range(9): mfma(YA + 4 * u, DW + 4 * u, BO, True)
    k(f's_mov_b64 exec, {sr(sM0,2)}')
    for u in range(9):
        r = YA + 4 * u
        k(f'v_cvt_pk_bf16_f32 v{r}, v{r}, v{r+1}\nv_cvt_pk_bf16_f32 v{r+2}, v{r+2}, v{r+3}\nv_mov_b32 v{r+1}, s{sTAG}\nv_mov_b32 v{r+3}, s{sTAG}')
        k(f'buffer_store_dwordx4 {vr(r,4)}, v5, {sr(sWS,4)}, s72 offen sc1')
        if u < 8: k(f's_add_u32 s72, s72, {4*18432}')
    k('s_mov_b64 exec, -1')
    stamp(8)
    unp(24, XG); unp(26, XG + 2)
    k(f's_mul_i32 s72, s{sR}, 18432\ns_lshl_b32 s73, s{sW}, 10\ns_add_u32 s72, s72, s73\ns_add_u32 s72, s72, {WS_YP}')
    k(f's_add_u32 s73, s72, 4096\ns_add_u32 s74, s72, 8192\ns_add_u32 s75, s72, 12288')
    k(f's_cmp_lt_u32 s{sW}, 2\ns_cselect_b32 s76, 4096, 0\ns_add_u32 s76, s76, s75')
    k('s_waitcnt vmcnt(0)')
    if 'nobar' not in DBG: k('s_barrier')
    poll('yp', [f'buffer_load_dwordx4 {vr(BO+4*i,4)}, v6, {sr(sWS,4)}, s{72+i} offen sc1' for i in range(5)], [BO + 4 * i for i in range(5)], 12, 10, 0, MASKED)
    stamp(9)
    for i in range(5): mfma(AC, FS if i < 4 else FS5, BO + 4 * i, i == 0)
    for e in range(4): k(f'v_add_f32_dpp v{AC+e}, v{AC+e}, v{AC+e} row_ror:8 {DPPALL}')
    k(f's_mov_b64 exec, 0xff\nds_write_b128 v18, {vr(AC,4)}\ns_waitcnt lgkmcnt(0)\ns_barrier')
    k(f's_cmp_lg_u32 s{sW}, 0\ns_cbranch_scc1 L_exit')
    for i in range(4): k(f'ds_read_b128 {vr(YA+4*i,4)}, v19 offset:{128*i}')
    k('s_waitcnt lgkmcnt(0)')
    for e in range(4): k(f'v_add_f32 v{YA+e}, v{YA+e}, v{YA+4+e}\nv_add_f32 v{YA+8+e}, v{YA+8+e}, v{YA+12+e}')
    for e in range(4): k(f'v_add_f32 v{YA+e}, v{YA+e}, v{YA+8+e}')
    rnd4(YA, 8)
    for e in range(4): k(f'v_mul_f32 v{YA+e}, v{GB+e}, v{YA+e}')
    rnd4(YA, 8)
    for e in range(4): k(f'v_add_f32 v{YA+e}, v{24+e}, v{YA+e}')
    k(f'v_cvt_pk_bf16_f32 v8, v{YA}, v{YA+1}\nv_cvt_pk_bf16_f32 v9, v{YA+2}, v{YA+3}')
    k(f'buffer_store_dwordx2 v[8:9], v21, {sr(sD_,4)}, 0 offen')
    k(f's_cmp_lg_u32 s{sR}, 0\ns_cbranch_scc1 L_exit')
    k(f'v_mov_b32 v10, s{sEP}\nv_mov_b32 v11, 0\ns_mov_b64 exec, 1\nbuffer_store_dword v10, v11, {sr(sWS,4)}, 0 offen')
    k('s_branch L_exit')

    k.lab('L_wrole')
    WW, OG, MLG, BW = 192, 160, 156, 140
    sCN = 77
    srd(sA, pWO, 4096 * 1152)
    k(f'v_lshrrev_b32 v4, 3, v1\nv_mul_u32_u24 v4, 1152, v4\nv_and_b32 v5, 7, v1\nv_lshl_add_u32 v4, v5, 4, v4')
    k(f's_lshl_b32 s{sT0}, s{sX}, 2\ns_add_u32 s{sT0}, s{sT0}, s{sW}\ns_mul_i32 s{sT0}, s{sT0}, {128*1152}\ns_lshl_b32 s{sT1}, s{sCN}, 7\ns_add_u32 s{sT0}, s{sT0}, s{sT1}')
    for i in range(16):
        dma(4, sA, sT0, 1024 * i, i, WTH)
        k(f's_add_u32 s{sT0}, s{sT0}, {8*1152}')
    mask64(sM0, 0x00ff)
    k(f'v_lshrrev_b32 v8, 2, v3\nv_and_b32 v9, 3, v3\nv_lshl_add_u32 v10, v2, 3, v8\nv_lshlrev_b32 v10, 7, v10\nv_lshl_add_u32 v10, v9, 3, v10\nv_add_u32 v10, s{sST}, v10')
    k('s_waitcnt vmcnt(0)')
    for t_ in range(4):
        for tile in range(4):
            r = WW + (t_ * 4 + tile) * 4
            o = t_ * 4096 + tile * 32
            k(f'ds_read_b64_tr_b16 {vr(r,2)}, v10 offset:{o}\nds_read_b64_tr_b16 {vr(r+2,2)}, v10 offset:{o+512}')
        k('s_waitcnt lgkmcnt(0)')
    k(f's_and_b32 s{sT0}, s{sW}, 1\ns_lshl_b32 s{sT1}, s{sT0}, 9\ns_lshl_b32 s{sT0}, s{sT0}, 4\ns_add_u32 s{sT0}, s{sT0}, 1024')
    k(f'v_and_b32 v8, 7, v3\nv_lshrrev_b32 v9, 3, v3\nv_mul_u32_u24 v5, 2304, v8')
    k(f'v_lshl_add_u32 v4, v2, 5, v5\nv_lshl_add_u32 v4, v9, 4, v4\nv_add_u32 v4, s{sT1}, v4')
    k(f'v_mul_u32_u24 v9, 1152, v9\nv_add3_u32 v5, v5, v9, s{sT0}')
    k(f'v_mul_u32_u24 v14, 272, v8\nv_lshl_add_u32 v14, v2, 4, v14\ns_mul_i32 s{sT0}, s{sW}, 2176\ns_add_u32 s{sT0}, s{sT0}, {L_PT}\nv_add_u32 v14, s{sT0}, v14')
    k(f'v_and_b32 v8, 1, v2\nv_lshl_add_u32 v8, s{sW}, 1, v8\nv_mul_u32_u24 v15, 272, v8\nv_lshl_add_u32 v15, v3, 4, v15\nv_add_u32 v15, {L_PT}, v15')
    k(f'v_mul_u32_u24 v7, 18432, v8\nv_lshl_add_u32 v7, v3, 4, v7\nv_mov_b32 v17, s{sTAG}\nv_mov_b32 v19, s{sTAG}')
    k(f's_lshl_b32 s{sT0}, s{sX}, 1\ns_lshr_b32 s{sT1}, s{sW}, 1\ns_add_u32 s{sT0}, s{sT0}, s{sT1}\ns_mul_i32 s{sT0}, s{sT0}, {16*1152}\ns_add_u32 s{sT0}, s{sT0}, {WS_OP}')
    k(f's_mul_i32 s{sT1}, s{sX}, 2304\ns_lshl_b32 s{sT2}, s{sCN}, 8\ns_add_u32 s{sT1}, s{sT1}, s{sT2}\ns_add_u32 s{sT1}, s{sT1}, {WS_AP}')
    stamp(6)
    balance('w')
    k('s_barrier')
    stamp(5)
    poll('op', [f'buffer_load_dwordx4 {vr(MLG,4)}, v5, {sr(sWS,4)}, s{sT0} offen sc1'] +
         [f'buffer_load_dwordx4 {vr(OG+(2*t_+sp)*4,4)}, v4, {sr(sWS,4)}, s{sT0} offen offset:{1152*sp+128*t_} sc1' for t_ in range(4) for sp in range(2)],
         [MLG] + [OG + 4 * i for i in range(8)], 12, 10, 0, MASKED)
    stamp(7)
    def wb(t_):
        A_, B_, X = OG + 8 * t_, OG + 8 * t_ + 4, BW + 4 * t_
        k(f'v_mov_b32 v{X}, v{A_}\nv_mov_b32 v{X+1}, v{A_+2}\nv_mov_b32 v{X+2}, v{B_}\nv_mov_b32 v{X+3}, v{B_+2}')
        k(f'v_mov_b32_dpp v{X}, v{B_} row_ror:8 row_mask:0xf bank_mask:0xc\nv_mov_b32_dpp v{X+1}, v{B_+2} row_ror:8 row_mask:0xf bank_mask:0xc')
        k(f'v_mov_b32_dpp v{X+2}, v{A_} row_ror:8 row_mask:0xf bank_mask:0x3\nv_mov_b32_dpp v{X+3}, v{A_+2} row_ror:8 row_mask:0xf bank_mask:0x3')
    wb(0)
    for t_ in range(4):
        for tile in range(4):
            mfma(AC + 4 * tile, WW + (t_ * 4 + tile) * 4, BW + 4 * t_, t_ == 0)
            if tile == 0 and t_ + 1 < 4: wb(t_ + 1)
            if tile == 0 and t_ == 3:
                k(f'v_max_f32_dpp v12, v{MLG}, v{MLG} row_ror:8 {DPPALL}\nv_sub_f32 v12, v{MLG}, v12\nv_exp_f32 v12, v12')
                k(f'v_mul_f32 v13, v12, v{MLG+2}\nv_add_f32_dpp v13, v13, v13 row_ror:8 {DPPALL}\nv_rcp_f32 v13, v13\nv_mul_f32 v12, v12, v13')
    for r in range(16): k(f'v_mul_f32 v{AC+r}, v12, v{AC+r}')
    for r in range(16): k(f'v_add_f32_dpp v{AC+r}, v{AC+r}, v{AC+r} row_ror:8 {DPPALL}')
    k(f's_mov_b64 exec, {sr(sM0,2)}')
    for tile in range(4): k(f'ds_write_b128 v14, {vr(AC+4*tile,4)} offset:{64*tile}')
    k('s_mov_b64 exec, -1\ns_waitcnt lgkmcnt(0)\ns_barrier')
    for i in range(4): k(f'ds_read_b128 {vr(BW+4*i,4)}, v15 offset:{2176*i}')
    k('s_waitcnt lgkmcnt(0)')
    for e in range(4): k(f'v_add_f32 v{BW+e}, v{BW+e}, v{BW+4+e}\nv_add_f32 v{BW+8+e}, v{BW+8+e}, v{BW+12+e}')
    for e in range(4): k(f'v_add_f32 v{BW+e}, v{BW+e}, v{BW+8+e}')
    k(f'v_cvt_pk_bf16_f32 v16, v{BW}, v{BW+1}\nv_cvt_pk_bf16_f32 v18, v{BW+2}, v{BW+3}')
    k(f's_mov_b32 exec_hi, 0\nbuffer_store_dwordx4 v[16:19], v7, {sr(sWS,4)}, s{sT1} offen sc1')
    stamp(8)
    k('s_branch L_exit')

    k.lab('L_rrole')
    GA, SEL, RAW, MG, MS, MC, MX = 108, 92, 76, 60, 64, 68, 72
    selmasks(10, 11)
    for r in range(SEL, SEL + 16): k(f'v_mov_b32 v{r}, 0')
    for v in range(4):
        k(f'v_mov_b32_dpp v{SEL+4*v}, v10 quad_perm:[0,1,2,3] row_mask:0xf bank_mask:{1<<v:#x}')
        k(f'v_mov_b32_dpp v{SEL+4*v+2}, v11 quad_perm:[0,1,2,3] row_mask:0xf bank_mask:{1<<v:#x}')
    mask64(sM0, 0x01ff); mask64(sM1, 0x03ff)
    k(f'v_min_u32 v8, 8, v3\ns_mul_i32 s{sT0}, s{sW}, 576')
    k(f'v_mul_u32_u24 v7, 144, v2\nv_lshl_add_u32 v7, v8, 4, v7\nv_add_u32 v4, s{sT0}, v7')
    k(f'v_mul_u32_u24 v5, 2304, v2\nv_lshl_add_u32 v5, v8, 4, v5\nv_add_u32 v5, s{sT0}, v5')
    k(f'v_lshlrev_b32 v9, 4, v2\nv_add_u32 v9, 576, v9\nv_cndmask_b32 v7, v9, v7, {sr(sM0,2)}')
    k(f's_mul_i32 s{sT0}, s{sX}, 13824\ns_add_u32 s{sT0}, s{sT0}, {WS_MOD + 4608}\ns_add_u32 s{sT1}, s{sT0}, 4608')
    k(f's_mul_i32 s{sT2}, s{sX}, 1152\nv_lshrrev_b32 v8, 1, v4')
    k(f'buffer_load_dwordx2 {vr(RAW+12,2)}, v8, {sr(sD_,4)}, s{sT2} offen nt')
    poll('rmod', [f'buffer_load_dwordx4 {vr(RAW,4)}, v4, {sr(sWS,4)}, s{sT0} offen sc1',
                  f'buffer_load_dwordx4 {vr(RAW+4,4)}, v4, {sr(sWS,4)}, s{sT0} offen offset:2304 sc1',
                  f'buffer_load_dwordx4 {vr(RAW+8,4)}, v4, {sr(sWS,4)}, s{sT1} offen sc1'], [RAW, RAW + 4, RAW + 8], 10, 11, 16)
    for j, d in enumerate((MG, MS, MC)):
        unp(d, RAW + 4 * j); unp(d + 2, RAW + 4 * j + 2)
    unp(MX, RAW + 12); unp(MX + 2, RAW + 13)
    for e in range(4): k(f'v_add_f32 v{MC+e}, 1.0, v{MC+e}')
    rnd4(MC, 8)
    k(f's_mul_i32 s{sT0}, s{sX}, 18432\ns_add_u32 s{sT0}, s{sT0}, {WS_AP}\ns_add_u32 s{sT1}, s{sT0}, 9216')
    k(f's_mul_i32 s72, s{sX}, 2560\ns_mul_i32 s73, s{sW}, 640\ns_add_u32 s72, s72, s73\ns_add_u32 s73, s72, {WS_X2}\ns_add_u32 s72, s72, {WS_H2}')
    k(f's_lshl_b32 s{sT2}, s{sW}, 3\ns_add_u32 s{sT2}, s{sT2}, {L_STA}\nv_mov_b32 v22, s{sT2}\nv_mov_b32 v23, {L_STA}')
    for r in (25, 27, 29, 31): k(f'v_mov_b32 v{r}, s{sTAG}')
    k(f'v_mov_b32 v28, 0\nv_mov_b32 v30, 0\ns_mov_b32 s{sT3}, 0x3be38e39')
    stamp(6)
    balance('r')
    k('s_barrier')
    poll('ap', [f'buffer_load_dwordx4 {vr(GA+(u*4+v)*4,4)}, v5, {sr(sWS,4)}, s{sT0+u} offen offset:{144*v} sc1' for u in range(2) for v in range(4)],
         [GA + 4 * i for i in range(8)], 8, 9, 0, MASKED)
    stamp(7)
    X2 = 12
    for i in range(8): mfma(X2, SEL + 4 * (i & 3), GA + 4 * i, i == 0)
    rnd4(X2, 8)
    for e in range(4): k(f'v_mul_f32 v{X2+e}, v{MG+e}, v{X2+e}')
    rnd4(X2, 8)
    for e in range(4): k(f'v_add_f32 v{X2+e}, v{MX+e}, v{X2+e}')
    k(f'v_cvt_pk_bf16_f32 v24, v{X2}, v{X2+1}\nv_cvt_pk_bf16_f32 v26, v{X2+2}, v{X2+3}')
    unp(X2, 24); unp(X2 + 2, 26)
    k(f'v_readfirstlane_b32 s{sT2}, v{X2}')
    for e in range(4): k(f'v_subrev_f32 v{16+e}, s{sT2}, v{X2+e}')
    k(f'v_add_f32 v8, v16, v17\nv_mul_f32 v9, v16, v16\nv_add_f32 v10, v18, v19\nv_fmac_f32 v9, v17, v17\nv_add_f32 v8, v8, v10\nv_fmac_f32 v9, v18, v18\nv_fmac_f32 v9, v19, v19')
    k(f'v_cndmask_b32 v8, 0, v8, {sr(sM0,2)}\nv_cndmask_b32 v9, 0, v9, {sr(sM0,2)}')
    for m in ('row_shr:1 row_mask:0xf', 'row_shr:2 row_mask:0xf', 'row_shr:4 row_mask:0xf', 'row_shr:8 row_mask:0xf', 'row_bcast:15 row_mask:0xa', 'row_bcast:31 row_mask:0xc'):
        bc = ' bound_ctrl:0' if 'shr' in m else ''
        k(f'v_add_f32_dpp v8, v8, v8 {m} bank_mask:0xf{bc}\nv_add_f32_dpp v9, v9, v9 {m} bank_mask:0xf{bc}')
    k(f'v_mul_f32 v10, s{sT3}, v8\nv_fma_f32 v9, -v10, v8, v9\nv_add_f32 v8, s{sT2}, v10')
    k(f's_mov_b32 exec_lo, 0\ns_mov_b32 exec_hi, 0x80000000\nds_write_b64 v22, v[8:9]')
    k(f's_mov_b64 exec, {sr(sM0,2)}\nbuffer_store_dwordx4 v[24:27], v7, {sr(sWS,4)}, s73 offen sc1')
    k(f's_mov_b64 exec, -1\ns_waitcnt lgkmcnt(0)\ns_barrier')
    k(f'ds_read_b128 {vr(AC,4)}, v23\nds_read_b128 {vr(AC+4,4)}, v23 offset:16\ns_waitcnt lgkmcnt(0)')
    k(f'v_add_f32 v8, v{AC}, v{AC+2}\nv_add_f32 v9, v{AC+4}, v{AC+6}\nv_add_f32 v10, v{AC+1}, v{AC+3}\nv_add_f32 v11, v{AC+5}, v{AC+7}')
    k(f'v_add_f32 v8, v8, v9\nv_add_f32 v10, v10, v11\nv_mul_f32 v8, 0x3e800000, v8')
    for i in range(4): k(f'v_sub_f32 v{AC+2*i}, v{AC+2*i}, v8')
    k(f'v_mul_f32 v9, v{AC}, v{AC}\nv_fmac_f32 v9, v{AC+2}, v{AC+2}\nv_fmac_f32 v9, v{AC+4}, v{AC+4}\nv_fmac_f32 v9, v{AC+6}, v{AC+6}')
    k(f'v_mul_f32 v10, 0x3ae38e39, v10\nv_fmac_f32 v10, 0x3e800000, v9')
    rnd2(8, 10, 9)
    k('v_add_f32 v10, 0x3727c5ac, v10')
    for e in range(4): k(f'v_sub_f32 v{X2+e}, v{X2+e}, v8')
    rnd1(10, 9)
    k('v_sqrt_f32 v10, v10')
    rnd4(X2, 16)
    rnd1(10, 9)
    k('v_rcp_f32 v10, v10')
    for e in range(4): k(f'v_mul_f32 v{X2+e}, v{X2+e}, v10')
    rnd4(X2, 16)
    for e in range(4): k(f'v_mul_f32 v{X2+e}, v{X2+e}, v{MC+e}')
    rnd4(X2, 16)
    for e in range(4): k(f'v_add_f32 v{X2+e}, v{X2+e}, v{MS+e}')
    k(f's_mov_b64 exec, {sr(sM0,2)}')
    k(f'v_cvt_pk_bf16_f32 v28, v{X2}, v{X2+1}\nv_cvt_pk_bf16_f32 v30, v{X2+2}, v{X2+3}')
    k(f's_mov_b64 exec, {sr(sM1,2)}\nbuffer_store_dwordx4 v[28:31], v7, {sr(sWS,4)}, s72 offen sc1')
    stamp(8)
    k('s_branch L_exit')
    k.lab('L_nrole')
    balance('n')

    k.lab('L_exit')
    if DIAG is not None:
        if DIAG == 10: stamp(10)
        if DG is not None: k(f's_cmp_lt_u32 s2, {DG[0]}\ns_cbranch_scc1 L_end\ns_cmp_gt_u32 s2, {DG[1]}\ns_cbranch_scc1 L_end')
        k(f's_cmp_lt_u32 s3, 4\ns_cbranch_scc1 L_end\ns_waitcnt lgkmcnt(0)\ns_add_u32 s62, s{STR[DIAG]}, 15000')
        k.lab('L_spin')
        k('s_sleep 2\ns_memrealtime s[64:65]\ns_waitcnt lgkmcnt(0)\ns_sub_u32 s64, s64, s62\ns_cmp_lt_i32 s64, 0\ns_cbranch_scc1 L_spin')
    if PROF:
        stamp(10)
        k(f's_waitcnt lgkmcnt(0)\ns_lshl_b32 s{sT0}, s2, 3\ns_add_u32 s{sT0}, s{sT0}, s3\ns_lshl_b32 s{sT0}, s{sT0}, 7\ns_add_u32 s{sT0}, s{sT0}, {WS_PROF}')
        k(f's_mov_b64 exec, 1\nv_mov_b32 v8, 0')
        for i in range(11):
            k(f'v_mov_b32 v10, s{STR[i]}\nv_mov_b32 v11, s{STR[i]+1}\nbuffer_store_dwordx2 v[10:11], v8, {sr(sWS,4)}, s{sT0} offen offset:{8*i}')
        k(f'v_mov_b32 v10, s{sTO}\nv_mov_b32 v11, s77\nbuffer_store_dwordx2 v[10:11], v8, {sr(sWS,4)}, s{sT0} offen offset:88')
    k.lab('L_end')
    k('s_endpgm')
    k.lab('L_codeend')

    body = fix_hazards(k.L)
    hdr = open('cdna_kernels/' + NAME + '.s.ref').read().split('; Override launch')[0]
    out = [hdr.rstrip('\n'),
           f'; @launch grid=(256,1,1) block=(512,1,1) lds={LDS_BYTES}',
           '.amdgcn_target "amdgcn-amd-amdhsa--gfx950"', '.text', f'.globl {NAME}_kernel', '.p2align 8',
           f'.type {NAME}_kernel,@function', f'{NAME}_kernel:', 'L_start:']
    out += body
    out += ['.section .rodata,"a"', '.p2align 6', f'.amdhsa_kernel {NAME}_kernel',
            '  .amdhsa_next_free_vgpr 256', '  .amdhsa_next_free_sgpr 102', '  .amdhsa_accum_offset 256',
            '  .amdhsa_group_segment_fixed_size 0', '  .amdhsa_kernarg_size 112', '  .amdhsa_user_sgpr_count 2',
            '  .amdhsa_user_sgpr_kernarg_segment_ptr 1', '  .amdhsa_system_sgpr_workgroup_id_x 1', '.end_amdhsa_kernel']
    return '\n'.join(out) + '\n'

if __name__ == '__main__':
    kw = eval('dict(' + (sys.argv[2] if len(sys.argv) > 2 else '') + ')')
    open(sys.argv[1], 'w').write(gen(**kw))
```

```python
import sys, struct
from asmlib import K, fix_hazards, vr, sr

NAME = 'adaLN_cond__gqa_block_cached__glu_gated_geglu__decode'
WS_BAL, WS_XC, WS_MOD, WS_Q, WS_OP, WS_AP = 0x8000, 0x10000, 0x20000, 0x40000, 0x80000, 0x100000
WS_H2, WS_X2, WS_H2L, WS_YP, WS_PROF = 0x130000, 0x138000, 0x140000, 0x200000, 0x600000
WS_SIZE = 0x800000
L_PT, L_RED, L_SP, L_Q, L_FLG, L_STA = 110592, 131072, 139264, 143424, 143936, 144192
LDS_BYTES = 144384
F_CNT, F_QRDY, F_LIM, F_BST, F_POS, F_PUB, F_PRE = 0, 4, 8, 12, 16, 20, 24
WS_PACE = 0x180000
LOG2E = 0x3FB8AA3B
SCALE = 0x3DB504F3
TIMEOUT = 200000
OOB = 0x7ff00000
f2u = lambda f: struct.unpack('<I', struct.pack('<f', f))[0]

def tables(kind):
    G, W, N = 0, 1, 3
    if kind == 1:
        roles = [G, W] * 9 + [G, N] * 5 + [G, G] * 2
        pro = [0, 2] * 6 + [0, 3] * 8 + [0, 2, 0, 0]
    elif kind == 2:
        roles = [N, W] * 5 + [G, W] * 4 + [G, G] * 7
        pro = [0, 3] * 8 + [0, 2] * 7 + [0, 0]
    elif kind == 3:
        roles = [G, W] * 9 + [G, N] * 5 + [G, G] * 2
        pro = [0, 3] * 8 + [0, 2] * 7 + [0, 0]
    cnt = {}; tail = []
    for r in roles:
        tail.append((r, cnt.get(r, 0))); cnt[r] = cnt.get(r, 0) + 1
    cnt = {}; pi = []
    for p in pro:
        pi.append(cnt.get(p, 0) if p else 0); cnt[p] = cnt.get(p, 0) + 1
    return tail, pro, pi
TAIL, PRO, PIX = tables(2)

def gen(PROF=False, TAB=2, PAIR=1, PFROW=64, PSL=1, QSL=2, SPLIT=2, FTH=3, WTH=4, WHOLD=True,
        QM=208, LA=10, LAG=None, LAW=None, CMIN=4, CMAX=16, CSH=2,
        RMODE='2000', RSL='0000', LOCAL=True, WST='bar', FBAR=True, DIAG=None, DG=None, MID=64, F0=False, QW=False, FQ=None, FB=None, CP=(), PD=0, PK=3.0, PW0=10, PSPAN=28, PN=64, PSTR=4352, POFF=(0, 0, 0)):
    if CP and FB is None: FB = (0, 0)
    if FB is not None: FQ = 0
    global TAIL, PRO, PIX
    TAIL, PRO, PIX = tables(TAB)
    k = K()
    sWS, sTAG, sEP, sHKV, sBB, sX, sIP, sR, sW = 4, 8, 9, 10, 11, 12, 13, 14, 15
    pX, pK, pV, pWQ, pWO, pGA, pUP, pDN, pC, pWM, pOUT, pWSP = 16, 18, 20, 22, 24, 28, 30, 32, 34, 36, 38, 42
    sA, sB_, sC_, sD_ = 44, 48, 52, 56
    sHI, sL2E, sT0, sT1, sT2, sT3, sTO, sSP = 60, 61, 62, 63, 64, 65, 66, 67
    sM0 = 68
    sROLE, sPRO, sPI, sST = 98, 99, 100, 101
    sCN = 77
    DPPALL = 'row_mask:0xf bank_mask:0xf'
    STR = [80 + 2 * i for i in range(9)] + [26, 40]
    def stamp(i):
        if PROF or (DIAG is not None and i in (0, DIAG)): k(f's_memrealtime {sr(STR[i], 2)}')
    def srd(d, p, size):
        k(f's_mov_b32 s{d}, s{p}\ns_mov_b32 s{d+1}, s{p+1}\ns_mov_b32 s{d+2}, {size}\ns_mov_b32 s{d+3}, 0x20000')
    def unp(d, s_):
        k(f'v_lshlrev_b32 v{d}, 16, v{s_}\nv_and_b32 v{d+1}, s{sHI}, v{s_}')
    def rnd2(a, b, t):
        k(f'v_cvt_pk_bf16_f32 v{t}, v{a}, v{b}\nv_lshlrev_b32 v{a}, 16, v{t}\nv_and_b32 v{b}, s{sHI}, v{t}')
    def rnd4(a, t):
        k(f'v_cvt_pk_bf16_f32 v{t}, v{a}, v{a+1}\nv_cvt_pk_bf16_f32 v{t+1}, v{a+2}, v{a+3}')
        unp(a, t); unp(a + 2, t + 1)
    def rnd1(a, t):
        k(f'v_cvt_pk_bf16_f32 v{t}, v{a}, v{a}\nv_and_b32 v{a}, s{sHI}, v{t}')
    def xrow(op, x, t, steps=(16, 32)):
        for st in steps:
            k(f'v_mov_b32 v{t}, v{x}\nv_permlane{st}_swap_b32 v{x}, v{t}\n{op} v{x}, v{x}, v{t}')
    def sum4(b):
        for e in range(4): k(f'v_add_f32 v{b+e}, v{b+e}, v{b+4+e}\nv_add_f32 v{b+8+e}, v{b+8+e}, v{b+12+e}')
        for e in range(4): k(f'v_add_f32 v{b+e}, v{b+e}, v{b+8+e}')
    def tagcheck(bases, acc, tmp):
        for i, b in enumerate(bases):
            d = acc if i == 0 else tmp + ((i - 1) & 1)
            k(f'v_bitop3_b32 v{d}, v{b+1}, v{b+3}, s{sTAG} bitop3:0x7e')
            if i > 0 and (i & 1) == 0: k(f'v_or3_b32 v{acc}, v{acc}, v{tmp}, v{tmp+1}')
        if len(bases) > 1 and (len(bases) & 1) == 0: k(f'v_or_b32 v{acc}, v{acc}, v{tmp}')
        k(f'v_cmp_ne_u32 vcc, 0, v{acc}')
    def retry(lab, sleep=0):
        if sleep: k(f's_sleep {sleep}')
        k(f's_sub_u32 s{sTO}, s{sTO}, 1\ns_cmp_lg_u32 s{sTO}, 0\ns_cbranch_scc1 {lab}\ns_branch L_exit')
    def wsld(dst, voff, soff, imm=0):
        return f'buffer_load_dwordx4 {vr(dst,4)}, v{voff}, {sr(sWS,4)}, s{soff} offen offset:{imm} sc1'
    def poll(name, loads, bases, acc, tmp, sleep=0, masked=False):
        k.lab(f'L_{name}')
        for l in loads: k(l)
        k('s_waitcnt vmcnt(0)')
        tagcheck(bases, acc, tmp)
        k(f's_cbranch_vccz L_{name}ok')
        if masked: k('s_mov_b64 exec, vcc')
        retry(f'L_{name}', sleep)
        k.lab(f'L_{name}ok')
        if masked: k('s_mov_b64 exec, -1')
    def gather(name, items, mode, sleep, issued=False):
        n = len(items)
        if not issued:
            for l, _, _ in items: k(l)
        if mode == 0:
            k.lab(f'L_{name}')
            k('s_waitcnt vmcnt(0)')
            tagcheck([b for _, b, _ in items], 12, 10)
            k(f's_cbranch_vccz L_{name}ok\ns_mov_b64 exec, vcc')
            if sleep: k(f's_sleep {sleep}')
            for l, _, _ in items: k(l)
            retry(f'L_{name}')
            k.lab(f'L_{name}ok')
            k('s_mov_b64 exec, -1')
            for _, _, act in items: act()
            return
        k(f's_mov_b32 s22, 0\ns_mov_b32 s23, {OOB:#x}')
        k.lab(f'L_{name}')
        for i, (l, b, act) in enumerate(items):
            k(f's_bitcmp1_b32 s22, {i}\ns_cbranch_scc1 L_{name}n{i}')
            k(f's_waitcnt vmcnt({n-1-i})')
            k(f'v_bitop3_b32 v10, v{b+1}, v{b+3}, s{sTAG} bitop3:0x7e\nv_cmp_ne_u32 vcc, 0, v10\ns_cbranch_vccnz L_{name}n{i}')
            act()
            k(f's_bitset1_b32 s22, {i}')
            k.lab(f'L_{name}n{i}')
        k(f's_cmp_eq_u32 s22, {(1 << n) - 1}\ns_cbranch_scc1 L_{name}ok')
        if sleep: k(f's_sleep {sleep}')
        for i, (l, b, act) in enumerate(items):
            k(f's_bitcmp1_b32 s22, {i}\ns_cbranch_scc1 L_{name}d{i}')
            k(f'v_bitop3_b32 v10, v{b+1}, v{b+3}, s{sTAG} bitop3:0x7e\nv_cmp_ne_u32 vcc, 0, v10\ns_mov_b64 exec, vcc')
            k(l); k(f's_mov_b64 exec, -1\ns_branch L_{name}e{i}')
            k.lab(f'L_{name}d{i}')
            k(f'buffer_load_dword v0, off, {sr(sWS,4)}, s23')
            k.lab(f'L_{name}e{i}')
        retry(f'L_{name}')
        k.lab(f'L_{name}ok')
    def ldswait(name, flag, val, sleep):
        k(f'v_mov_b32 v12, {L_FLG}')
        k.lab(f'L_{name}')
        k(f'ds_read_b32 v13, v12 offset:{flag}\ns_waitcnt lgkmcnt(0)\nv_readfirstlane_b32 s22, v13\ns_cmp_ge_u32 s22, {val}\ns_cbranch_scc1 L_{name}ok')
        retry(f'L_{name}', sleep)
        k.lab(f'L_{name}ok')
    def mask64(d, lo16):
        m = lo16 | (lo16 << 16)
        k(f's_mov_b32 s{d}, {m:#x}\ns_mov_b32 s{d+1}, {m:#x}')
    def mfma(d, a, b, first):
        k(f'v_mfma_f32_16x16x32_bf16 {vr(d,4)}, {vr(a,4)}, {vr(b,4)}, {"0" if first else vr(d,4)}')
    def ror8pair(b):
        k(f'v_mov_b32_dpp v{b+2}, v{b} row_ror:8 {DPPALL}\nv_mov_b32_dpp v{b+3}, v{b+1} row_ror:8 {DPPALL}')
    def strip(b):
        k(f'v_mov_b32_dpp v{b+3}, v{b+2} row_ror:8 {DPPALL}\nv_mov_b32 v{b+1}, v{b+2}\nv_mov_b32_dpp v{b+2}, v{b} row_ror:8 {DPPALL}')
    def tag_from_epoch():
        k(f's_add_u32 s{sEP}, s{sEP}, 0x9e3779b9\ns_and_b32 s{sTAG}, s{sEP}, 0xbfffbfff')

    k('s_cmp_ge_u32 s2, 256\ns_cbranch_scc1 L_end')
    k('s_load_dwordx16 s[16:31], s[0:1], 0')
    k('s_load_dwordx8 s[32:39], s[0:1], 64')
    k('s_load_dwordx4 s[40:43], s[0:1], 96')
    stamp(0)
    if DIAG: stamp(DIAG)
    k('v_lshrrev_b32 v2, 6, v0\nv_and_b32 v1, 63, v0')
    k('v_readfirstlane_b32 s3, v2')
    k(f's_mov_b32 s{sHI}, 0xffff0000\ns_mov_b32 s{sL2E}, {LOG2E:#x}\ns_mov_b32 s{sTO}, {TIMEOUT}')
    k(f's_and_b32 s{sSP}, s2, 1\ns_mul_i32 s{sT0}, s{sSP}, {PAIR}\ns_xor_b32 s{sT0}, s{sT0}, s2\ns_lshr_b32 s{sT0}, s{sT0}, 1')
    k(f's_and_b32 s{sHKV}, s{sT0}, 15\ns_lshr_b32 s{sBB}, s{sT0}, 4\ns_and_b32 s{sW}, s3, 3\ns_lshl_b32 s79, s{sT0}, 21')
    k('v_lshrrev_b32 v2, 4, v1\nv_and_b32 v3, 15, v1')
    k(f's_and_b32 s{sX}, s2, 7\ns_lshr_b32 s{sIP}, s2, 3\ns_xor_b32 s{sIP}, s{sIP}, s{sSP}')
    pk = sum(p << (2 * u) for u, p in enumerate(PRO))
    k(f's_mov_b32 s62, {pk & 0xffffffff:#x}\ns_mov_b32 s63, {pk >> 32:#x}\ns_andn2_b32 s65, s{sIP}, 1\ns_lshl_b32 s65, s65, 1\ns_lshr_b64 s[62:63], s[62:63], s65')
    k(f's_lshr_b32 s68, s62, 2\ns_or_b32 s68, s68, s62\ns_and_b32 s68, s68, 3')
    k(f's_and_b32 s64, s{sIP}, 1\ns_lshl_b32 s64, s64, 1\ns_lshr_b32 s{sPRO}, s62, s64\ns_and_b32 s{sPRO}, s{sPRO}, 3')
    xk = sum(max(PIX[2 * m], PIX[2 * m + 1]) << (4 * m) for m in range(16))
    k(f's_mov_b32 s62, {xk & 0xffffffff:#x}\ns_mov_b32 s63, {xk >> 32:#x}\ns_lshr_b64 s[62:63], s[62:63], s65\ns_and_b32 s{sPI}, s62, 7')
    k(f's_lshl_b32 s{sPI}, s{sPI}, 3\ns_add_u32 s{sPI}, s{sPI}, s{sX}')
    k(f's_cmp_lt_u32 s{sPI}, 54\ns_cselect_b32 s64, 3, 1\ns_and_b32 s65, s68, s64\ns_cmp_eq_u32 s65, 0\ns_cselect_b32 s{sPRO}, 0, s{sPRO}\ns_cselect_b32 s68, 0, s68')
    k(f's_mul_i32 s{sST}, s{sW}, 27648')
    k('s_cmp_ge_u32 s3, 4\ns_cbranch_scc1 L_helper')

    vKO, vVO, vHALF, vM, vL, S, O, Q, P, T = 4, 5, 6, 7, 60, 8, 12, 16, 32, 48
    sOFF, sI, sLIM, sBASE, sSCL, sVAL = 72, 76, 77, 79, 69, 70
    SLOT = lambda j: 64 + 32 * j
    R_, ML, E = SLOT(2), SLOT(2) + 16, SLOT(3)
    k('s_getpc_b64 s[62:63]\nv_lshlrev_b32 v8, 7, v0\nv_min_u32 v8, L_codeend-L_start-512, v8')
    k('global_load_dword v9, v8, s[62:63]')
    k(f'v_lshlrev_b32 v{vKO}, 8, v3\nv_lshl_add_u32 v{vKO}, v2, 4, v{vKO}')
    k(f'v_lshlrev_b32 v{vVO}, 4, v3\nv_lshl_add_u32 v{vVO}, v2, 10, v{vVO}')
    k('v_lshrrev_b32 v58, 1, v3\nv_lshlrev_b32 v58, 8, v58\nv_lshl_add_u32 v58, v2, 5, v58\nv_and_b32 v59, 1, v3\nv_lshl_add_u32 v58, v59, 4, v58')
    k('v_lshlrev_b32 v59, 4, v3\nv_lshl_add_u32 v59, v2, 9, v59')
    k(f's_mov_b32 s{sI}, s{sW}\ns_mov_b32 s{sLIM}, 1024')
    def nextoff(a):
        k(f's_sub_u32 s{sT2}, 511, s{sI}\ns_xor_b32 s{sT3}, s{sSP}, 1\ns_cmp_lt_u32 s{sI}, 256')
        k(f's_cselect_b32 s{sT2}, s{sI}, s{sT2}\ns_cselect_b32 s{sT3}, s{sSP}, s{sT3}')
        k(f's_lshl_b32 s{sT3}, s{sT3}, 2\ns_andn2_b32 s{sOFF+a}, s{sT2}, 3\ns_add_u32 s{sT2}, s{sT2}, s{sOFF+a}\ns_add_u32 s{sT2}, s{sT2}, s{sT3}')
        k(f's_lshl_b32 s{sT2}, s{sT2}, 12\ns_add_u32 s{sOFF+a}, s{sT2}, s{sBASE}')
        k(f's_cmp_lt_u32 s{sI}, s{sLIM}\ns_cselect_b32 s{sOFF+a}, s{sOFF+a}, 0x20000000\ns_cselect_b32 s{sVAL+a}, 1, 0\ns_add_u32 s{sI}, s{sI}, 4')
    QF, SF, vKF, vVF, sFUL = SLOT(4), SLOT(4) + 8, SLOT(4) + 16, SLOT(4) + 17, 24
    def ldk(j, a, full=False, kf=58):
        for i in range(4):
            va, o = (kf, 2048 * (i >> 1) + 128 * (i & 1)) if full else (vKO, 64 * i)
            k(f'buffer_load_dwordx4 {vr(SLOT(j)+4*i,4)}, v{va}, {sr(sA,4)}, s{sOFF+a} offen offset:{o} nt')
    def ldv(j, a, full=False, vf=59):
        for i in range(4):
            va, o = (vf, 2048 * (i >> 1) + 256 * (i & 1)) if full else (vVO, 256 * i)
            k(f'buffer_load_dwordx4 {vr(SLOT(j)+16+4*i,4)}, v{va}, {sr(sB_,4)}, s{sOFF+a} offen offset:{o} nt')
    nextoff(0)
    k(f's_movk_i32 s74, 6912\ns_cmp_eq_u32 s68, 3\ns_cselect_b32 s74, 8192, s74')
    k('v_lshrrev_b32 v10, 3, v1\nv_and_b32 v11, 2, v10\nv_mul_lo_u32 v10, v10, s74\nv_xor_b32 v11, v11, v1\nv_and_b32 v11, 7, v11\nv_lshl_add_u32 v10, v11, 4, v10\nv_xor_b32 v12, 64, v10')
    k(f'v_add_u32 v11, {PFROW}, v0\nv_mul_lo_u32 v11, v11, s74')
    k(f's_mul_i32 s75, s74, s{sW}\ns_lshl_b32 s75, s75, 5\ns_lshl_b32 s69, s{sPI}, 7\ns_add_u32 s75, s75, s69')
    k(f's_mul_i32 s{sC_+2}, s74, 576\ns_mov_b32 s{sC_+3}, 0x20000\ns_mul_i32 s78, s74, 104\ns_lshl_b32 s74, s74, 3')
    k('s_waitcnt lgkmcnt(0)')
    k(f's_cmp_eq_u32 s68, 3\ns_cselect_b32 s{sC_}, s{pWQ}, s{pWM}\ns_cselect_b32 s{sC_+1}, s{pWQ+1}, s{pWM+1}')
    srd(sA, pK, 0x10000000); srd(sB_, pV, 0x10000000)
    k(f's_cmp_eq_u32 s{sPRO}, 0\ns_cbranch_scc1 L_notile')
    for i in range(5):
        for j in range(4):
            k(f's_add_u32 m0, s{sST}, {4096*i+1024*j}')
            k(f'buffer_load_dwordx4 v{10 + 2 * (j & 1)}, {sr(sC_,4)}, s75 offen nt lds')
            if (i, j) != (4, 3): k(f's_add_u32 s75, s75, s{74 if j < 3 else 78}')
    k('s_waitcnt vmcnt(0)\ns_barrier\ns_barrier\ns_barrier')
    ldk(0, 0, True); ldv(0, 0, True)
    k('s_branch L_first')
    k.lab('L_notile')
    k('s_cmp_eq_u32 s68, 0\ns_cbranch_scc1 L_nopf')
    k(f'buffer_load_dword v9, v11, {sr(sC_,4)}, s69 offen')
    if PFROW < 320: k(f's_mul_i32 s75, s74, 32\ns_add_u32 s69, s69, s75\nbuffer_load_dword v10, v11, {sr(sC_,4)}, s69 offen')
    k.lab('L_nopf')
    ldk(0, 0, True); ldv(0, 0, True)
    k('s_barrier')
    k.lab('L_first')
    k(f's_load_dword s{sEP}, {sr(pWSP,2)}, 0')
    srd(sWS, pWSP, WS_SIZE)
    k(f'v_mov_b32 v{vHALF}, 0xffff\nv_and_b32 v8, 2, v3\nv_lshlrev_b32 v8, 3, v8\nv_lshlrev_b32 v{vHALF}, v8, v{vHALF}')
    for r in list(range(P, P + 16)) + list(range(O, O + 4)) + [vL]: k(f'v_mov_b32 v{r}, 0')
    k(f'v_mov_b32 v{vM}, 0xff800000')
    k(f'v_and_b32 v61, 1, v3\nv_lshlrev_b32 v61, 8, v61\nv_lshl_add_u32 v61, v2, 4, v61\nv_add_u32 v61, {L_Q}, v61')
    k(f'v_lshl_add_u32 v8, v2, 4, v8\nv_add_u32 v8, v61, v8\nv_mov_b32 v62, {L_FLG}\nv_mov_b32 v63, 1\ns_mov_b32 s{sSCL}, {SCALE:#x}')
    for j in range(1, 6):
        nextoff(0); ldk(j, 0, True); ldv(j, 0, True)
    stamp(1)
    k(f's_mov_b64 exec, 1\nds_add_u32 v62, v63 offset:{F_PRE}\ns_mov_b64 exec, -1')
    k('s_waitcnt vmcnt(48) lgkmcnt(0)')
    tag_from_epoch()
    k.lab('L_qwait')
    k(f'ds_read_b32 v9, v62 offset:{F_QRDY}')
    for i in range(2): k(f'ds_read_b128 {vr(Q+4*i,4)}, v8 offset:{128*i}')
    k(f's_waitcnt lgkmcnt(0)\nv_readfirstlane_b32 s{sT0}, v9\ns_cmp_eq_u32 s{sT0}, 1\ns_cbranch_scc1 L_qok')
    retry('L_qwait', 2)
    k.lab('L_qok')
    stamp(2)
    def consume(j, kw, vw, a, full):
        Kb, Vb = SLOT(j), SLOT(j) + 16
        t, S2 = T, Q + 8
        k(f's_waitcnt vmcnt({kw})')
        if full:
            mfma(S2, Kb, Q, True); mfma(S2 + 4, Kb + 8, Q, True); mfma(S2, Kb + 4, Q + 4, False); mfma(S2 + 4, Kb + 12, Q + 4, False)
        else:
            k(f's_mov_b64 exec, 1\nds_add_rtn_u32 v{E+6}, v62, v63 offset:{F_POS}\nds_read_b64 {vr(E+16,2)}, v62 offset:{F_LIM}\ns_mov_b64 exec, -1')
            if FQ is not None:
                k(f's_cmp_eq_u32 s{sFUL+a}, 0\ns_cbranch_scc1 L_qr{a}')
                mfma(SF, Kb, QF, True); mfma(SF + 4, Kb + 8, QF, True); mfma(SF, Kb + 4, QF + 4, False); mfma(SF + 4, Kb + 12, QF + 4, False)
                for i in range(4): k(f'v_mov_b32_dpp v{S+i}, v{SF+2*i} quad_perm:[0,1,0,1] {DPPALL}')
                for i in range(4): k(f'v_add_f32_dpp v{S+i}, v{SF+2*i+1}, v{S+i} quad_perm:[2,3,2,3] {DPPALL}')
                k(f's_branch L_qd{a}')
                k.lab(f'L_qr{a}')
            for i in range(4): mfma(S, Kb + 4 * i, Q + 4 * i, i == 0)
            k.lab(f'L_qd{a}')
            k(f's_waitcnt lgkmcnt(0)\nv_readfirstlane_b32 s{sI}, v{E+6}')
            if CP: k(f'v_readfirstlane_b32 s29, v{E+17}\ns_max_u32 s28, s28, s29')
            k.lab(f'L_chk{a}')
            k(f'v_readfirstlane_b32 s{sT0}, v{E+16}\ns_and_b32 s{sLIM}, s{sT0}, 0xffff\ns_max_u32 s{sLIM}, s{sLIM}, {QM-32}')
            k(f's_cmp_lt_u32 s{sI}, s{sLIM}\ns_cbranch_scc1 L_go{a}\ns_cmp_lt_i32 s{sT0}, 0\ns_cbranch_scc1 L_go{a}')
            k(f's_sleep 1\nds_read_b32 v{E+16}, v62 offset:{F_LIM}\ns_waitcnt lgkmcnt(0)')
            if PROF: k('s_add_u32 s78, s78, 1')
            retry(f'L_chk{a}')
            k.lab(f'L_go{a}')
            k(f's_add_u32 s{sI}, s{sI}, 32\ns_add_u32 s{sLIM}, s{sLIM}, 32')
        if a is not None:
            nextoff(a)
            if FQ is not None and not full:
                if FB is not None: k(f's_cmp_lt_u32 s{sI}, s28')
                else: k(f's_cmp_ge_u32 s{sI}, {FQ + 4}')
                k(f's_cselect_b32 s{sFUL+a}, 1, 0\ns_cbranch_scc0 L_kr{a}')
                ldk(j, a, True, vKF)
                k(f's_branch L_kd{a}')
                k.lab(f'L_kr{a}')
            ldk(j, a)
            if not full: k.lab(f'L_kd{a}')
        if full:
            for i in range(4): k(f'v_mov_b32_dpp v{S+i}, v{S2+2*i} quad_perm:[0,1,0,1] {DPPALL}')
            for i in range(4): k(f'v_add_f32_dpp v{S+i}, v{S2+2*i+1}, v{S+i} quad_perm:[2,3,2,3] {DPPALL}')
        k(f'v_cvt_pk_bf16_f32 v{t}, v{S}, v{S+1}\nv_cvt_pk_bf16_f32 v{t+1}, v{S+2}, v{S+3}')
        unp(t + 2, t); unp(t + 4, t + 1)
        for i in range(4): k(f'v_mul_f32 v{t+2+i}, s{sSCL}, v{t+2+i}')
        rnd4(t + 2, t)
        k(f'v_max3_f32 v{t+6}, v{t+2}, v{t+3}, v{t+4}\nv_max3_f32 v{t+6}, v{t+6}, v{t+5}, v{vM}')
        xrow('v_max_f32', t + 6, t + 7)
        k(f'v_sub_f32 v{t+7}, v{vM}, v{t+6}\nv_mul_f32 v{t+8}, s{sL2E}, v{t+6}\nv_mul_f32 v{t+7}, s{sL2E}, v{t+7}\nv_mov_b32 v{vM}, v{t+6}')
        for i in range(4): k(f'v_fma_f32 v{t+2+i}, v{t+2+i}, s{sL2E}, -v{t+8}')
        k(f'v_exp_f32 v{t+7}, v{t+7}')
        for i in range(4): k(f'v_exp_f32 v{t+2+i}, v{t+2+i}')
        k(f'v_mul_f32 v{vL}, v{vL}, v{t+7}')
        for i in range(4):
            qp = '[0,0,2,2]' if i % 2 == 0 else '[1,1,3,3]'
            k(f'v_mul_f32_dpp v{O+i}, v{t+7}, v{O+i} quad_perm:{qp} {DPPALL}')
        for i in range(4): k(f'v_cvt_pk_bf16_f32 v{t+8+i}, v{t+2+i}, v{t+2+i}')
        k(f'v_add_f32 v{t+2}, v{t+2}, v{t+3}\nv_add_f32 v{t+4}, v{t+4}, v{t+5}\nv_add_f32 v{vL}, v{vL}, v{t+2}\nv_add_f32 v{vL}, v{vL}, v{t+4}')
        for i in range(4):
            for r in range(4):
                k(f'v_and_b32_dpp v{P+4*i+r}, v{t+8+i}, v{vHALF} quad_perm:[0,1,2,3] row_mask:0xf bank_mask:{1<<r:#x}')
        k(f's_waitcnt vmcnt({vw})')
        for i in range(4): mfma(O, P + 4 * i, Vb + 4 * i, False)
        if a is not None:
            if FQ is not None and not full:
                k(f's_cmp_eq_u32 s{sFUL+a}, 0\ns_cbranch_scc1 L_vr{a}')
                ldv(j, a, True, vVF)
                k(f's_branch L_vd{a}')
                k.lab(f'L_vr{a}')
            ldv(j, a)
            if not full: k.lab(f'L_vd{a}')
    for j, (kw, vw) in enumerate(((44, 44), (44, 44), (44, 40), (36, 32), (28, 24), (20, 16))):
        consume(j, kw, vw, j if j < 2 else None, True)
    if FQ is not None:
        if FB is not None: k(f's_cmp_eq_u32 s{sPRO}, 3\ns_cselect_b32 s28, {FB[1]+36}, 0\ns_cmp_eq_u32 s{sPRO}, 2\ns_cselect_b32 s28, {FB[0]+36}, s28')
        for r in range(8): k(f'v_mov_b32 v{QF+r}, v{Q+r}')
        k(f'v_lshrrev_b32 v{vKF}, 1, v3\nv_lshlrev_b32 v{vKF}, 8, v{vKF}\nv_lshl_add_u32 v{vKF}, v2, 5, v{vKF}\nv_and_b32 v{vVF}, 1, v3\nv_lshl_add_u32 v{vKF}, v{vVF}, 4, v{vKF}')
        k(f'v_lshlrev_b32 v{vVF}, 4, v3\nv_lshl_add_u32 v{vVF}, v2, 9, v{vVF}\ns_mov_b32 s{sFUL}, 0\ns_mov_b32 s{sFUL+1}, 0')
    for i in range(4): k(f'ds_read_b128 {vr(Q+4*i,4)}, v61 offset:{64*i}')
    stamp(3)
    k(f's_mul_i32 s{sT1}, s{sW}, 1040\ns_add_u32 s{sT1}, s{sT1}, {L_SP}')
    k(f'v_lshlrev_b32 v{E}, 5, v3\nv_lshl_add_u32 v{E}, v2, 3, v{E}\nv_add_u32 v{E}, s{sT1}, v{E}')
    k(f'v_and_b32 v{E+1}, 1, v3\nv_lshlrev_b32 v{E+1}, 3, v{E+1}\ns_add_u32 s{sT1}, s{sT1}, 1024\nv_add_u32 v{E+1}, s{sT1}, v{E+1}')
    k(f'v_lshlrev_b32 v{E+2}, 4, v1\nv_add_u32 v{E+3}, {L_SP}, v{E+2}')
    k(f'v_lshrrev_b32 v{E+5}, 5, v1\nv_lshlrev_b32 v{E+4}, 3, v{E+5}\nv_add_u32 v{E+4}, {L_SP}, v{E+4}\nv_lshlrev_b32 v{E+5}, 4, v{E+5}')
    for r in (9, 11, 13, 15): k(f'v_mov_b32 v{E+r}, s{sTAG}')
    k(f's_lshl_b32 s74, s{sHKV}, 3\ns_add_u32 s74, s74, s{sBB}\ns_lshl_b32 s74, s74, 1\ns_add_u32 s74, s74, s{sSP}\ns_mul_i32 s74, s74, 1152\ns_add_u32 s74, s74, {WS_OP}')
    k('s_waitcnt lgkmcnt(0)')
    if PROF: k('s_mov_b32 s75, 0\ns_mov_b32 s78, 0')
    k.lab('L_top')
    if PROF:
        k(f's_lshr_b32 s{sT0}, s{sI}, 2')
        for n_, stp in enumerate((16, 28, 40, 52)):
            k(f's_cmp_lt_u32 s{sT0}, {stp}\ns_cbranch_scc1 L_ns{n_}\ns_cmp_gt_u32 s75, {n_}\ns_cbranch_scc1 L_ns{n_}\ns_mov_b32 s75, {n_+1}')
            stamp(6 + n_)
            k.lab(f'L_ns{n_}')
    for a in range(2):
        k(f's_cmp_eq_u32 s{sVAL+a}, 0\ns_cbranch_scc1 L_send')
        consume(a, 12, 12, a, False)
    k('s_branch L_top')
    k.lab('L_send')
    stamp(4)
    t = T
    xrow('v_add_f32', vL, t)
    k(f'ds_write2_b32 v{E+1}, v{vM}, v{vL} offset0:0 offset1:1')
    k(f'ds_write2_b32 v{E}, v{O}, v{O+2} offset0:0 offset1:1')
    k(f'ds_write2_b32 v{E}, v{O+1}, v{O+3} offset0:128 offset1:129')
    k(f's_mov_b64 exec, 1\nds_add_rtn_u32 v{E+6}, v62, v63 offset:{F_CNT}\ns_mov_b64 exec, -1')
    for i in range(4): k(f'ds_read_b64 {vr(ML+2*i,2)}, v{E+4} offset:{1024+1040*i}')
    for i in range(4): k(f'ds_read_b128 {vr(R_+4*i,4)}, v{E+3} offset:{1040*i}')
    k('s_waitcnt lgkmcnt(4)')
    k(f'v_readfirstlane_b32 s{sT1}, v{E+6}\ns_cmp_lg_u32 s{sT1}, 3\ns_cbranch_scc1 L_exit')
    k(f'v_max3_f32 v{t}, v{ML}, v{ML+2}, v{ML+4}\nv_max_f32 v{t}, v{t}, v{ML+6}')
    k(f'v_mul_f32 v{t}, s{sL2E}, v{t}\nv_max_f32 v{E+8}, 0xf149f2ca, v{t}')
    for i in range(4): k(f'v_fma_f32 v{ML+2*i}, v{ML+2*i}, s{sL2E}, -v{E+8}')
    for i in range(4): k(f'v_exp_f32 v{ML+2*i}, v{ML+2*i}')
    k('s_waitcnt lgkmcnt(0)')
    for e in range(4): k(f'v_mul_f32 v{R_+e}, v{ML}, v{R_+e}')
    for i in range(1, 4):
        for e in range(4): k(f'v_fmac_f32 v{R_+e}, v{ML+2*i}, v{R_+4*i+e}')
    k(f'v_cvt_pk_bf16_f32 v{E+12}, v{R_}, v{R_+1}\nv_cvt_pk_bf16_f32 v{E+14}, v{R_+2}, v{R_+3}')
    k(f'buffer_store_dwordx4 {vr(E+12,4)}, v{E+2}, {sr(sWS,4)}, s74 offen sc1')
    k(f'v_mul_f32 v{E+10}, v{ML}, v{ML+1}')
    for i in range(1, 4): k(f'v_fmac_f32 v{E+10}, v{ML+2*i}, v{ML+2*i+1}')
    k('s_mov_b32 exec_lo, 1\ns_mov_b32 exec_hi, 1')
    k(f'buffer_store_dwordx4 {vr(E+8,4)}, v{E+5}, {sr(sWS,4)}, s74 offen offset:1024 sc1')
    if WST == 'pub': k(f'ds_write_b32 v62, v63 offset:{F_PUB}')
    stamp(5)
    k('s_branch L_exit')

    k.lab('L_helper')
    k('s_setprio 2')
    CB, WT, AC, RR, TA = 16, 176, 40, 100, 168
    k(f'v_lshlrev_b32 v8, 2, v1\nv_add_u32 v8, {L_FLG}, v8\nv_mov_b32 v10, 0\nds_write_b32 v8, v10')
    k('v_and_b32 v7, 7, v3\nv_lshrrev_b32 v9, 3, v3\nv_mul_u32_u24 v11, 1152, v7')
    k('v_lshl_add_u32 v4, v2, 4, v11\nv_lshl_add_u32 v4, v9, 3, v4')
    k(f's_lshl_b32 s{sT0}, s{sW}, 6')
    k('s_waitcnt lgkmcnt(0)')
    srd(sA, pC, 9216); srd(sD_, pX, 9216)
    def epoch():
        srd(sWS, pWSP, WS_SIZE)
        k(f's_load_dword s{sEP}, {sr(pWSP,2)}, 0')
        gm = sum(1 << u for u, (r, _) in enumerate(TAIL) if r == 0); wm = sum(1 << u for u, (r, _) in enumerate(TAIL) if r == 1)
        k(f's_mov_b32 s62, {gm:#x}\ns_mov_b32 s63, {wm:#x}\ns_mov_b32 s{sROLE}, 3')
        k(f's_bitcmp1_b32 s62, s{sIP}\ns_cselect_b32 s{sROLE}, 0, s{sROLE}\ns_bitcmp1_b32 s63, s{sIP}\ns_cselect_b32 s{sROLE}, 1, s{sROLE}')
        k(f's_bfm_b32 s64, s{sIP}, 0\ns_and_b32 s63, s63, s64\ns_bcnt1_i32_b32 s{sCN}, s63\ns_and_b32 s62, s62, s64\ns_bcnt1_i32_b32 s62, s62')
        k(f's_mul_i32 s{sR}, s{sX}, 18\ns_add_u32 s{sR}, s{sR}, s62\ns_waitcnt lgkmcnt(0)')
        tag_from_epoch()
    def traddr():
        k('v_lshrrev_b32 v5, 2, v3\nv_lshl_add_u32 v6, v2, 3, v5\nv_lshlrev_b32 v6, 7, v6\nv_and_b32 v5, 3, v3\nv_lshl_add_u32 v6, v5, 3, v6')
        k('v_bfe_u32 v5, v1, 3, 2\nv_lshl_add_u32 v6, v5, 5, v6')
        for tile in range(4): k(f'v_xor_b32 v{TA+tile}, {32*tile}, v6\nv_add_u32 v{TA+tile}, s{sST}, v{TA+tile}')
    def trread(i):
        for tile in range(4):
            r = WT + (i * 4 + tile) * 4; o = 4096 * i
            k(f'ds_read_b64_tr_b16 {vr(r,2)}, v{TA+tile} offset:{o}\nds_read_b64_tr_b16 {vr(r+2,2)}, v{TA+tile} offset:{o+512}')
    def redaddr(rowstride, so, t0, t1):
        k(f'v_and_b32 v14, 7, v3\nv_mul_u32_u24 v14, 272, v14\nv_lshl_add_u32 v14, v2, 4, v14\ns_mul_i32 s{sT0}, s{sW}, 2176\ns_add_u32 s{sT0}, s{sT0}, {L_PT}\nv_add_u32 v14, s{sT0}, v14')
        k(f'v_and_b32 v{so}, 1, v2\nv_lshl_add_u32 v{so}, s{sW}, 1, v{so}\nv_mul_u32_u24 v15, 272, v{so}\nv_lshl_add_u32 v15, v3, 4, v15\nv_add_u32 v15, {L_PT}, v15')
        k(f'v_mul_u32_u24 v{so}, {rowstride}, v{so}\nv_lshl_add_u32 v{so}, v3, 4, v{so}\nv_mov_b32 v{t0}, s{sTAG}\nv_mov_b32 v{t1}, s{sTAG}')
        mask64(sM0, 0x00ff)
    def reduce_publish(rd, z, so, soff):
        k(f's_mov_b64 exec, {sr(sM0,2)}')
        for tile in range(4): k(f'ds_write_b128 v14, {vr(AC+4*tile,4)} offset:{64*tile}')
        k('s_mov_b64 exec, -1\ns_waitcnt lgkmcnt(0)\ns_barrier')
        for i in range(4): k(f'ds_read_b128 {vr(rd+4*i,4)}, v15 offset:{2176*i}')
        k('s_waitcnt lgkmcnt(0)')
        sum4(rd)
        k(f'v_cvt_pk_bf16_f32 v{z}, v{rd}, v{rd+1}\nv_cvt_pk_bf16_f32 v{z+2}, v{rd+2}, v{rd+3}')
        k(f's_mov_b32 exec_hi, 0\nbuffer_store_dwordx4 {vr(z,4)}, v{so}, {sr(sWS,4)}, s{soff} offen sc1\ns_mov_b64 exec, -1')
    def dma(voff, srd_, soff, lds_imm, idx, th):
        if idx >= th: k(f's_waitcnt vmcnt({th-1})')
        k(f's_add_u32 m0, s{sST}, {lds_imm}')
        k(f'buffer_load_dwordx4 v{voff}, {sr(srd_,4)}, s{soff} offen nt lds')
    def wstage(th):
        srd(sB_, pWO, 4096 * 1152)
        k('v_lshrrev_b32 v8, 3, v1\nv_mul_u32_u24 v8, 1152, v8\nv_and_b32 v9, 7, v1\nv_lshl_add_u32 v8, v9, 4, v8')
        k(f's_lshl_b32 s72, s{sX}, 2\ns_add_u32 s72, s72, s{sW}\ns_mul_i32 s72, s72, {128*1152}\ns_lshl_b32 s73, s{sCN}, 7\ns_add_u32 s72, s72, s73')
        for i in range(16):
            dma(8, sB_, 72, 1024 * i, i, th)
            if i < 15: k(f's_add_u32 s72, s72, {8*1152}')
    k(f's_cmp_eq_u32 s{sPRO}, 2\ns_cbranch_scc1 L_p1\ns_cmp_eq_u32 s{sPRO}, 3\ns_cbranch_scc1 L_p2')
    k('s_barrier')
    epoch()
    k('s_branch L_pdone')

    k.lab('L_p1')
    for i in range(5):
        k(f'buffer_load_dwordx2 {vr(CB+4*i,2)}, v4, {sr(sA,4)}, s{sT0} offen offset:{256*i}')
    epoch()
    traddr(); redaddr(13824, 5, 37, 39)
    k(f's_lshl_b32 s78, s{sPI}, 8\ns_add_u32 s78, s78, {WS_MOD}\ns_mov_b32 s{sT0}, 0xbfb8aa3b')
    k('s_waitcnt vmcnt(0)')
    stamp(1)
    for i in range(5):
        b = CB + 4 * i
        unp(RR, b); unp(RR + 2, b + 1)
        for e in range(4): k(f'v_mul_f32 v{RR+4+e}, s{sT0}, v{RR+e}')
        for e in range(4): k(f'v_exp_f32 v{RR+4+e}, v{RR+4+e}')
        for e in range(4): k(f'v_add_f32 v{RR+4+e}, 1.0, v{RR+4+e}')
        for e in range(4): k(f'v_min_f32 v{RR+4+e}, 0x7e800000, v{RR+4+e}')
        for e in range(4): k(f'v_rcp_f32 v{RR+8+e}, v{RR+4+e}')
        for e in range(4): k(f'v_mul_f32 v{RR+12+e}, v{RR+e}, v{RR+8+e}')
        for e in range(4): k(f'v_fma_f32 v{RR+e}, -v{RR+12+e}, v{RR+4+e}, v{RR+e}')
        for e in range(4): k(f'v_fmac_f32 v{RR+12+e}, v{RR+e}, v{RR+8+e}')
        k(f'v_cvt_pk_bf16_f32 v{b}, v{RR+12}, v{RR+13}\nv_cvt_pk_bf16_f32 v{b+1}, v{RR+14}, v{RR+15}')
    for i in range(5): ror8pair(CB + 4 * i)
    k('s_barrier')
    stamp(2)
    trread(0)
    for i in range(5):
        if i < 4:
            k('s_waitcnt lgkmcnt(4)'); trread(i + 1); k('s_waitcnt lgkmcnt(8)')
        else: k('s_waitcnt lgkmcnt(0)')
        for tile in range(4): mfma(AC + 4 * tile, WT + (i * 4 + tile) * 4, CB + 4 * i, i == 0)
    k('s_branch L_wide')

    k.lab('L_p2')
    LN, SG, CG = 132, 56, 76
    k(f'buffer_load_ushort v36, v11, {sr(sD_,4)}, 0 offen')
    for i in range(5):
        k(f'buffer_load_dwordx2 {vr(CB+4*i,2)}, v4, {sr(sD_,4)}, s{sT0} offen offset:{256*i}')
    k('v_mul_u32_u24 v4, 13824, v7\nv_lshl_add_u32 v4, v2, 5, v4\nv_lshl_add_u32 v4, v9, 4, v4')
    k(f'v_lshlrev_b32 v7, 5, v7\nv_add_u32 v7, {L_RED}, v7\nv_lshl_add_u32 v9, s{sW}, 3, v7')
    epoch()
    k(f's_lshl_b32 s78, s{sPI}, 11\ns_add_u32 s78, s78, {WS_Q}')
    traddr(); redaddr(256, 5, 37, 39)
    k(f's_cmp_lt_u32 s{sW}, 2\ns_cselect_b32 s72, 1.0, 0')
    k('s_waitcnt vmcnt(0)')
    k('v_lshlrev_b32 v8, 16, v36')
    for i in range(5):
        unp(LN + 4 * i, CB + 4 * i); unp(LN + 4 * i + 2, CB + 4 * i + 1)
    for e in range(4): k(f'v_sub_f32 v{RR+e}, v{LN+16+e}, v8')
    k(f'v_add_f32 v10, v{RR}, v{RR+1}\nv_mul_f32 v11, v{RR}, v{RR}\nv_add_f32 v10, v10, v{RR+2}\nv_fmac_f32 v11, v{RR+1}, v{RR+1}')
    k(f'v_add_f32 v10, v10, v{RR+3}\nv_fmac_f32 v11, v{RR+2}, v{RR+2}\nv_mul_f32 v10, s72, v10\nv_fmac_f32 v11, v{RR+3}, v{RR+3}\nv_mul_f32 v11, s72, v11')
    for r in range(16): k(f'v_sub_f32 v{RR+r}, v{LN+r}, v8')
    for r in range(16): k(f'v_add_f32 v10, v10, v{RR+r}\nv_fmac_f32 v11, v{RR+r}, v{RR+r}')
    k(f'v_add_f32_dpp v10, v10, v10 row_ror:8 {DPPALL}\nv_add_f32_dpp v11, v11, v11 row_ror:8 {DPPALL}')
    xrow('v_add_f32', 10, 12); xrow('v_add_f32', 11, 12)
    k('ds_write_b64 v9, v[10:11]')
    k(f's_lshl_b32 s{sT0}, s{sW}, 7\ns_add_u32 s{sT0}, s{sT0}, {WS_MOD}\ns_add_u32 s{sT1}, s{sT0}, 2304')
    k(f's_cmp_lt_u32 s{sW}, 2\ns_cselect_b32 s{sT2}, 512, 0\ns_add_u32 s{sT2}, s{sT2}, s{sT0}\ns_add_u32 s{sT3}, s{sT2}, 2304')
    k('s_waitcnt lgkmcnt(0)\ns_barrier')
    stamp(1)
    k(f'ds_read_b128 {vr(RR,4)}, v7\nds_read_b128 {vr(RR+4,4)}, v7 offset:16')
    for i in range(5):
        trread(i); k(f's_waitcnt lgkmcnt({4 if i < 4 else 0})')
    k(f'v_add_f32 v10, v{RR}, v{RR+2}\nv_add_f32 v11, v{RR+1}, v{RR+3}\nv_add_f32 v12, v{RR+4}, v{RR+6}\nv_add_f32 v13, v{RR+5}, v{RR+7}')
    k('v_add_f32 v10, v10, v12\nv_add_f32 v11, v11, v13\nv_mul_f32 v10, 0x3ae38e39, v10\nv_mul_f32 v11, 0x3ae38e39, v11')
    k('v_fma_f32 v11, -v10, v10, v11\nv_add_f32 v10, v10, v8\nv_max_f32 v11, 0, v11')
    if WHOLD:
        k(f's_cmp_lg_u32 s{sROLE}, 1\ns_cbranch_scc1 L_nowh')
        wstage(16)
        k.lab('L_nowh')
    rnd2(10, 11, 12)
    k('v_add_f32 v11, 0x3727c5ac, v11')
    rnd1(11, 12)
    k('v_sqrt_f32 v11, v11')
    rnd1(11, 12)
    k('v_rcp_f32 v11, v11')
    for i in range(5):
        d = LN + 4 * i
        for e in range(4): k(f'v_sub_f32 v{d+e}, v{d+e}, v10')
        rnd4(d, 12)
        for e in range(4): k(f'v_mul_f32 v{d+e}, v{d+e}, v11')
        rnd4(d, 12)
    poll('hpoll', [wsld(CG + 4 * i, 4, sT1 if i < 4 else sT3, 512 * min(i, 3)) for i in range(5)] +
                  [wsld(SG + 4 * i, 4, sT0 if i < 4 else sT2, 512 * min(i, 3)) for i in range(5)],
         [SG + 4 * i for i in range(10)], 12, 10, PSL, True)
    stamp(2)
    for i in range(5):
        d, c_, s_ = LN + 4 * i, CG + 4 * i, SG + 4 * i
        unp(RR, c_); unp(RR + 2, c_ + 2); unp(RR + 4, s_); unp(RR + 6, s_ + 2)
        for e in range(4): k(f'v_add_f32 v{RR+e}, 1.0, v{RR+e}')
        rnd4(RR, 12)
        for e in range(4): k(f'v_mul_f32 v{d+e}, v{d+e}, v{RR+e}')
        rnd4(d, 12)
        for e in range(4): k(f'v_add_f32 v{d+e}, v{d+e}, v{RR+4+e}')
        k(f'v_cvt_pk_bf16_f32 v{CB+4*i}, v{d}, v{d+1}\nv_cvt_pk_bf16_f32 v{CB+4*i+1}, v{d+2}, v{d+3}')
        if i > 0:
            ror8pair(CB + 4 * (i - 1))
        if i > 1:
            for tile in range(4): mfma(AC + 4 * tile, WT + ((i - 2) * 4 + tile) * 4, CB + 4 * (i - 2), i == 2)
    ror8pair(CB + 16)
    for i in (3, 4):
        for tile in range(4): mfma(AC + 4 * tile, WT + (i * 4 + tile) * 4, CB + 4 * i, False)
    k.lab('L_wide')
    reduce_publish(RR, 36, 5, 78)
    k('s_barrier')
    def stage(parts, th):
        n = 0
        for part in parts:
            if part < 2: k(f's_mul_i32 s{sT2}, s{sW}, {144*9216}\ns_lshl_b32 s{sT3}, s{sR}, 6\ns_add_u32 s{sT2}, s{sT2}, s{sT3}')
            else: k(f's_mul_i32 s{sT2}, s{sR}, 36864\ns_mul_i32 s{sT3}, s{sW}, 9216\ns_add_u32 s{sT2}, s{sT2}, s{sT3}')
            for i in range(9):
                dma(30 if part < 2 else 6, (sA, sB_, sC_)[part], sT2, 9216 * part + 1024 * i, n, th); n += 1
                if i < 8: k(f's_add_u32 s{sT2}, s{sT2}, {16*9216 if part < 2 else 1024}')
    early = [0, 1, 2][:3 - SPLIT]; late = [0, 1, 2][3 - SPLIT:]
    def gfill(fill=True):
        srd(sA, pGA, 576 * 9216); srd(sB_, pUP, 576 * 9216); srd(sC_, pDN, 4608 * 1152); srd(sD_, pOUT, 9216)
        k('v_lshrrev_b32 v30, 2, v1\nv_mul_u32_u24 v30, 9216, v30\nv_and_b32 v5, 3, v1\nv_lshl_add_u32 v30, v5, 4, v30\nv_lshlrev_b32 v6, 4, v1')
        if early and fill:
            ldswait('gpre', F_PRE, 4, 4)
            stage(early, FTH)
    k.lab('L_pdone')
    stamp(3)
    if F0:
        k(f's_cmp_lg_u32 s{sROLE}, 0\ns_cbranch_scc1 L_nof0')
        gfill()
        k.lab('L_nof0')
    k(f's_cmp_lg_u32 s{sW}, 0\ns_cbranch_scc1 L_qdone')
    if QW: ldswait('qpre', F_PRE, QW, 4)
    k(f's_lshl_b32 s{sT0}, s{sHKV}, 13\ns_lshl_b32 s{sT1}, s{sBB}, 8\ns_add_u32 s{sT0}, s{sT0}, s{sT1}\ns_add_u32 s{sT0}, s{sT0}, {WS_Q}')
    k(f'v_lshlrev_b32 v4, 11, v2\nv_lshl_add_u32 v4, v3, 4, v4\nv_lshlrev_b32 v5, 3, v1\nv_add_u32 v5, {L_Q}, v5\nv_mov_b32 v12, {L_FLG}\nv_mov_b32 v13, 1')
    poll('qpoll', [wsld(24, 4, sT0)], [24], 10, 11, QSL)
    k(f'ds_write2_b32 v5, v24, v26 offset0:0 offset1:1\nds_write_b32 v12, v13 offset:{F_QRDY}')
    k.lab('L_qdone')
    stamp(4)
    k(f's_cmp_eq_u32 s{sROLE}, 1\ns_cbranch_scc1 L_wrole\ns_cmp_eq_u32 s{sROLE}, 3\ns_cbranch_scc1 L_nrole')

    def balance(name):
        POOL = 512 - 2 * QM
        la = dict(g=LAG, w=LAW).get(name) or LA
        k(f's_cmp_lg_u32 s{sW}, 1\ns_cbranch_scc1 L_{name}bd')
        k(f's_lshl_b32 s20, s{sBB}, 4\ns_add_u32 s20, s20, s{sHKV}\ns_lshl_b32 s20, s20, 7\ns_add_u32 s20, s20, {WS_BAL}')
        k(f'v_mov_b32 v32, {L_FLG}\nv_mov_b32 v33, 0\nv_mov_b32 v34, 0\nv_mov_b32 v35, s{sTAG}\nv_mov_b32 v36, 0\nv_mov_b32 v37, s{sTAG}\ns_mov_b64 exec, 1')
        k(f's_cmp_lg_u32 s{sSP}, 0\ns_cbranch_scc1 L_{name}bi\nbuffer_store_dwordx4 v[34:37], v33, {sr(sWS,4)}, s20 offen sc1\ns_waitcnt vmcnt(0)')
        k.lab(f'L_{name}bi')
        if MID: ldswait(f'{name}mid2', F_POS, 2 * MID, 64)
        poll(f'{name}balp', [wsld(56, 33, 20)], [56], 38, 39, 32)
        k(f's_mov_b32 s18, {QM-32}\ns_mov_b32 s19, 0')
        k.lab(f'L_{name}bw')
        k(f'ds_read_b32 v34, v32 offset:{F_POS}\ns_waitcnt lgkmcnt(0)\nv_readfirstlane_b32 s21, v34\ns_add_u32 s21, s21, {la}\ns_cmp_ge_u32 s21, s18\ns_cbranch_scc1 L_{name}bt')
        retry(f'L_{name}bw', 4)
        k.lab(f'L_{name}bt')
        k(f's_sub_u32 s21, {POOL}, s19\ns_lshr_b32 s21, s21, {CSH}\ns_max_u32 s21, s21, {CMIN}\ns_min_u32 s21, s21, {CMAX}\nv_mov_b32 v34, s21')
        k(f'buffer_atomic_add v34, v33, {sr(sWS,4)}, s20 offen sc0 sc1\ns_waitcnt vmcnt(0)\nv_readfirstlane_b32 s19, v34')
        k(f's_min_u32 s23, s19, {POOL}\ns_add_u32 s19, s19, s21\ns_min_u32 s19, s19, {POOL}\ns_sub_u32 s23, s19, s23\ns_add_u32 s18, s18, s23')
        k(f's_cmp_ge_u32 s19, {POOL}\ns_cselect_b32 s23, 0x80000000, 0\ns_or_b32 s23, s23, s18\nv_mov_b32 v34, s23\nds_write_b32 v32, v34 offset:{F_LIM}')
        k(f's_cmp_lt_u32 s19, {POOL}\ns_cbranch_scc1 L_{name}bw\ns_mov_b64 exec, -1')
        k.lab(f'L_{name}bd')
    def pace(name):
        if not CP: return
        off = dict(g=POFF[0], w=POFF[1]).get(name, POFF[2])
        sh = {64: 2, 32: 3}[PN]
        k(f's_cmp_lt_u32 s{sW}, 2\ns_cbranch_scc1 L_{name}pd')
        k(f'v_mov_b32 v32, {L_FLG}\nv_and_b32 v33, {PN-1}, v1\nv_mul_u32_u24 v33, {PSTR}, v33\nv_mov_b32 v34, s{sTAG}')
        k(f's_cmp_eq_u32 s{sW}, 2\ns_cbranch_scc1 L_{name}pw')
        k(f's_lshr_b32 s18, s2, 3\ns_lshr_b32 s19, s2, 5\ns_add_u32 s18, s18, s19\ns_add_u32 s18, s18, s2\ns_and_b32 s18, s18, {(1 << sh) - 1}\ns_cmp_lg_u32 s18, 0\ns_cbranch_scc1 L_{name}pd')
        k(f's_lshr_b32 s18, s2, {sh}\ns_mul_i32 s19, s18, 37\ns_and_b32 s19, s19, {PN-1}\ns_mul_i32 s19, s19, {PSPAN}\ns_lshr_b32 s19, s19, {8-sh}\ns_mul_i32 s18, s18, {PSTR}')
        for ci, C in enumerate(CP):
            k(f's_add_u32 s20, s19, {C - 32 - PW0}\ns_add_u32 s21, s18, {WS_PACE + 128 * ci}')
            ldswait(f'{name}mk{ci}', F_POS, 's20', 6)
            k(f's_mov_b64 exec, 1\nbuffer_store_dword v34, off, {sr(sWS,4)}, s21 sc1\ns_mov_b64 exec, -1')
        k(f's_branch L_{name}pd')
        k.lab(f'L_{name}pw')
        for ci, C in enumerate(CP):
            n_ = f'{name}p{ci}'
            k(f's_mov_b32 s21, {WS_PACE + 128 * ci}')
            ldswait(f'{n_}w', F_POS, C - 32, 6)
            k(f'buffer_load_dword v35, v33, {sr(sWS,4)}, s21 offen sc1\ns_waitcnt vmcnt(0)\nds_read_b32 v38, v32 offset:{F_POS}\nv_cmp_eq_u32 vcc, v34, v35\ns_bcnt1_i32_b64 s23, vcc')
            k(f's_mul_i32 s23, s23, {PSPAN * 4}\ns_sub_i32 s23, s23, {round(256 * (PW0 - PD - off))}\ns_cmp_le_i32 s23, 0\ns_cbranch_scc1 L_{n_}e')
            k(f's_mul_i32 s23, s23, {round(PK * 16)}\ns_lshr_b32 s23, s23, 12\ns_waitcnt lgkmcnt(0)\nv_readfirstlane_b32 s22, v38')
            k(f's_add_u32 s23, s23, s22\ns_add_u32 s23, s23, 36\nv_mov_b32 v38, s23\nds_write_b32 v32, v38 offset:{F_BST}')
            k.lab(f'L_{n_}e')
            k('s_waitcnt lgkmcnt(0)')
        k.lab(f'L_{name}pd')
    def selmasks(a, b):
        k('v_and_b32 v8, 1, v3\nv_lshlrev_b32 v8, 4, v8\nv_mov_b32 v9, 0x3f80\nv_lshlrev_b32 v9, v8, v9')
        k(f'v_and_b32 v8, 2, v3\nv_cmp_eq_u32 vcc, 0, v8\nv_cndmask_b32 v{a}, 0, v9, vcc\nv_sub_u32 v{b}, v9, v{a}')
    def stream_done(name):
        if WST == 'pub': ldswait(name, F_PUB, 1, 2)
        else: k('s_barrier')
    rm = [int(c) for c in RMODE]; rs = [int(c, 16) for c in RSL]

    GW, DW, YA, BO, FS, FS5, XG, GB = 176, 140, 104, 84, 76, 80, 72, 68
    def conv(part):
        if part < 2:
            for t_ in range(5):
                for tile in (2 * part, 2 * part + 1):
                    o = part * 9216 + (tile & 1) * 32 + t_ * 2048
                    r = GW + (t_ * 4 + tile) * 4
                    va = 16 if t_ < 4 else 17
                    k(f'ds_read_b64_tr_b16 {vr(r,2)}, v{va} offset:{o}\nds_read_b64_tr_b16 {vr(r+2,2)}, v{va} offset:{o+256}')
                if t_ in (2, 4): k(f's_waitcnt lgkmcnt({4 if t_ == 2 else 0})')
        else:
            for u in range(9):
                k(f'ds_read_b64_tr_b16 {vr(DW+4*u,2)}, v31 offset:{32*u}\nds_read_b64_tr_b16 {vr(DW+4*u+2,2)}, v31 offset:{4608+32*u}')
                if u in (5, 8): k(f's_waitcnt lgkmcnt({6 if u == 5 else 0})')
    gfill(not F0)
    k(f's_lshr_b32 s72, s{sR}, 2\ns_and_b32 s73, s{sR}, 3')
    k('v_bfe_u32 v8, v3, 2, 1\nv_lshl_add_u32 v8, s73, 1, v8\nv_and_b32 v9, 3, v3\nv_lshl_add_u32 v9, s72, 2, v9')
    k('v_mul_u32_u24 v20, 13824, v8\nv_lshl_add_u32 v20, v9, 4, v20')
    k('v_mul_u32_u24 v21, 1152, v8\nv_lshl_add_u32 v21, v9, 3, v21')
    k('v_mul_u32_u24 v10, 1821, v9\nv_lshrrev_b32 v10, 16, v10\nv_lshlrev_b32 v10, 6, v10')
    k('v_mul_u32_u24 v22, 2560, v8\nv_lshl_add_u32 v22, v9, 4, v22\nv_add_u32 v22, v22, v10')
    selmasks(FS, FS + 2)
    k(f'v_mov_b32 v{FS+1}, 0\nv_mov_b32 v{FS+3}, 0\nv_mov_b32 v{FS5+1}, 0\nv_mov_b32 v{FS5+3}, 0')
    k(f's_cmp_lt_u32 s{sW}, 2\ns_cselect_b32 s{sT0}, -1, 0\nv_and_b32 v{FS5}, s{sT0}, v{FS}\nv_and_b32 v{FS5+2}, s{sT0}, v{FS+2}')
    mask64(sM0, 0x00ff)
    k(f'v_lshrrev_b32 v8, 2, v3\nv_and_b32 v9, 3, v3\nv_lshlrev_b32 v17, 6, v8\nv_lshl_add_u32 v17, v9, 3, v17\nv_add_u32 v17, s{sST}, v17')
    k('v_lshl_add_u32 v16, v2, 9, v17\nv_and_b32 v10, 1, v2\nv_lshl_add_u32 v17, v10, 9, v17')
    k(f'v_mul_u32_u24 v31, 1152, v8\nv_lshl_add_u32 v31, v9, 3, v31\nv_mul_u32_u24 v10, 27648, v2\ns_mul_i32 s{sT0}, s{sW}, 288\ns_add_u32 s{sT0}, s{sT0}, 18432\nv_add3_u32 v31, v31, v10, s{sT0}')
    k('v_and_b32 v8, 7, v3\nv_lshrrev_b32 v9, 3, v3')
    k('v_mul_u32_u24 v4, 2560, v8\nv_lshl_add_u32 v4, v2, 5, v4\nv_lshl_add_u32 v4, v9, 4, v4')
    k('v_lshrrev_b32 v5, 1, v8\nv_mul_u32_u24 v5, 18432, v5\nv_and_b32 v10, 1, v3\nv_lshl_add_u32 v5, v10, 6, v5\nv_lshl_add_u32 v5, v2, 4, v5\nv_lshl_add_u32 v5, v9, 30, v5')
    k(f'v_mul_u32_u24 v14, 272, v8\nv_lshl_add_u32 v15, v2, 5, v14\nv_lshl_add_u32 v15, v9, 4, v15\nv_add_u32 v15, {L_PT}, v15')
    k(f's_mul_i32 s{sT0}, s{sW}, 2176\ns_add_u32 s{sT0}, s{sT0}, {L_PT}\nv_lshl_add_u32 v14, v2, 4, v14\nv_add_u32 v14, s{sT0}, v14')
    k(f'v_lshlrev_b32 v19, 4, v8\nv_add_u32 v19, {L_RED}, v19\ns_lshl_b32 s{sT0}, s{sW}, 7\nv_add_u32 v18, s{sT0}, v19\nv_lshlrev_b32 v23, 7, v8')
    k('s_waitcnt vmcnt(0)')
    for part in early:
        if part < 2: conv(part)
    if MID: ldswait('gmid', F_POS, MID, 64)
    k(f's_mov_b32 s{sT0}, {WS_MOD + 11520}\ns_lshl_b32 s{sT1}, s{sX}, 10\ns_add_u32 s{sT1}, s{sT1}, {WS_XC}')
    poll('gbp', [wsld(24, 20, sT0)] + ([wsld(56, 23, sT1)] if LOCAL else []), [24, 56] if LOCAL else [24], 28, 29, 32)
    unp(GB, 24); unp(GB + 2, 26)
    if LOCAL:
        k(f's_getreg_b32 s{sT2}, hwreg(HW_REG_XCC_ID)\ns_mul_i32 s{sT3}, s{sX}, 20480\ns_add_u32 s{sT3}, s{sT3}, {WS_H2L - WS_H2}')
        k(f'v_add_u32 v8, s{sT3}, v4\nv_cmp_eq_u32 vcc, s{sT2}, v56\nv_cndmask_b32 v4, v4, v8, vcc')
    k(f's_mul_i32 s{sT0}, s{sW}, 640\ns_add_u32 s{sT0}, s{sT0}, {WS_H2}\ns_mov_b32 s{sT1}, {WS_X2}')
    k(f's_mul_i32 s72, s{sW}, {36*18432}\ns_lshl_b32 s73, s{sR}, 7\ns_add_u32 s72, s72, s73\ns_add_u32 s72, s72, {WS_YP}')
    balance('g'); pace('g')
    for r in range(AC, AC + 16): k(f'v_mov_b32 v{r}, 0')
    stream_done('gpub')
    stamp(5)
    stage(late, 27)
    def gact(i):
        def f():
            strip(BO + 4 * i)
            for tile in range(4): mfma(AC + 4 * tile, GW + (i * 4 + tile) * 4, BO + 4 * i, False)
        return f
    h2items = [(wsld(BO + 4 * i, 4, sT0, 128 * i), BO + 4 * i, gact(i)) for i in range(5)]
    for l, _, _ in h2items: k(l)
    for n_, part in enumerate(late):
        k(f's_waitcnt vmcnt({5 + 9 * (len(late) - 1 - n_)})')
        if part < 2: conv(part)
    k('s_barrier')
    conv(2)
    stamp(6)
    gather('h2p', h2items, rm[2], rs[2], True)
    stamp(7)
    k(f's_mov_b64 exec, {sr(sM0,2)}')
    for tile in range(4): k(f'ds_write_b128 v14, {vr(AC+4*tile,4)} offset:{64*tile}')
    k('s_mov_b64 exec, -1')
    for u in range(9): k(f'v_mov_b32 v{GW+4*u+1}, s{sTAG}\nv_mov_b32 v{GW+4*u+3}, s{sTAG}')
    k('s_waitcnt lgkmcnt(0)\ns_barrier')
    for i in range(4): k(f'ds_read_b128 {vr(YA+4*i,4)}, v15 offset:{2176*i}')
    for i in range(4): k(f'ds_read_b128 {vr(YA+16+4*i,4)}, v15 offset:{2176*i+128}')
    G_, U_ = YA, YA + 16
    c1 = -2 * 0.7978845608028654 * 1.4426950408889634
    k(f's_mov_b32 s{sT2}, {f2u(c1*0.044715):#x}\nv_mov_b32 v13, {f2u(c1):#x}')
    for r in range(AC, AC + 4): k(f'v_mov_b32 v{r}, 0')
    k('s_waitcnt lgkmcnt(4)')
    sum4(G_)
    rnd4(G_, 8)
    for e in range(4): k(f'v_mul_f32 v{G_+4+e}, v{G_+e}, v{G_+e}')
    for e in range(4): k(f'v_fma_f32 v{G_+4+e}, v{G_+4+e}, s{sT2}, v13')
    for e in range(4): k(f'v_mul_f32 v{G_+4+e}, v{G_+4+e}, v{G_+e}')
    for e in range(4): k(f'v_exp_f32 v{G_+4+e}, v{G_+4+e}')
    k('s_waitcnt lgkmcnt(0)')
    sum4(U_)
    for e in range(4): k(f'v_add_f32 v{G_+4+e}, 1.0, v{G_+4+e}')
    for e in range(4): k(f'v_rcp_f32 v{G_+4+e}, v{G_+4+e}')
    rnd4(U_, 8)
    for e in range(4): k(f'v_mul_f32 v{G_+e}, v{G_+e}, v{G_+4+e}')
    rnd4(G_, 10)
    for e in range(4): k(f'v_mul_f32 v{G_+e}, v{G_+e}, v{U_+e}')
    k(f'v_cvt_pk_bf16_f32 v{BO}, v{G_}, v{G_+1}\nv_cvt_pk_bf16_f32 v{BO+1}, v{G_+2}, v{G_+3}')
    ror8pair(BO)
    def ystore(u):
        r, z = YA + 4 * u, GW + 4 * u
        k(f'v_cvt_pk_bf16_f32 v{z}, v{r}, v{r+1}\nv_cvt_pk_bf16_f32 v{z+2}, v{r+2}, v{r+3}')
        k(f'buffer_store_dwordx4 {vr(z,4)}, v5, {sr(sWS,4)}, s72 offen sc1')
        if u < 8: k(f's_add_u32 s72, s72, {4*18432}')
    for u in range(9):
        mfma(YA + 4 * u, DW + 4 * u, BO, True)
        if u >= 3: ystore(u - 3)
    for u in range(6, 9): ystore(u)
    stamp(8)
    k(f's_mul_i32 s72, s{sR}, 18432\ns_lshl_b32 s73, s{sW}, 10\ns_add_u32 s72, s72, s73\ns_add_u32 s72, s72, {WS_YP}')
    k('s_add_u32 s73, s72, 4096\ns_add_u32 s74, s72, 8192\ns_add_u32 s75, s72, 12288')
    k(f's_cmp_lt_u32 s{sW}, 2\ns_cselect_b32 s76, 4096, 0\ns_add_u32 s76, s76, s75')
    k('s_waitcnt vmcnt(0)')
    if FBAR: k('s_barrier')
    gather('yp', [(wsld(BO + 4 * i, 6, 72 + i), BO + 4 * i, (lambda i=i: mfma(AC, FS if i < 4 else FS5, BO + 4 * i, False))) for i in range(5)] +
           [(wsld(XG, 22, sT1), XG, lambda: (unp(24, XG), unp(26, XG + 2)))], rm[3], rs[3])
    stamp(9)
    for e in range(4): k(f'v_add_f32_dpp v{AC+e}, v{AC+e}, v{AC+e} row_ror:8 {DPPALL}')
    k(f's_mov_b64 exec, 0xff\nds_write_b128 v18, {vr(AC,4)}\ns_waitcnt lgkmcnt(0)\ns_barrier')
    k(f's_cmp_lg_u32 s{sW}, 0\ns_cbranch_scc1 L_exit')
    for i in range(4): k(f'ds_read_b128 {vr(YA+4*i,4)}, v19 offset:{128*i}')
    k('s_waitcnt lgkmcnt(0)')
    sum4(YA)
    rnd4(YA, 8)
    for e in range(4): k(f'v_mul_f32 v{YA+e}, v{GB+e}, v{YA+e}')
    rnd4(YA, 8)
    for e in range(4): k(f'v_add_f32 v{YA+e}, v{24+e}, v{YA+e}')
    k(f'v_cvt_pk_bf16_f32 v8, v{YA}, v{YA+1}\nv_cvt_pk_bf16_f32 v9, v{YA+2}, v{YA+3}')
    k(f'buffer_store_dwordx2 v[8:9], v21, {sr(sD_,4)}, 0 offen')
    k(f's_cmp_lg_u32 s{sR}, 0\ns_cbranch_scc1 L_exit')
    k(f'v_mov_b32 v10, s{sEP}\nv_mov_b32 v11, 0\ns_mov_b64 exec, 1\nbuffer_store_dword v10, v11, {sr(sWS,4)}, 0 offen')
    k('s_branch L_exit')

    k.lab('L_wrole')
    WW, OG, MLG, BW, AB = 192, 160, 156, 140, 112
    GA, SEL, RAW, MG, MS, MC, MX, X2 = 160, 92, 76, 60, 64, 68, 72, 128
    sM9, sM10 = 28, 30
    if WHOLD: k(f's_cmp_eq_u32 s{sPRO}, 3\ns_cbranch_scc1 L_wst')
    wstage(WTH)
    k.lab('L_wst')
    k(f'v_lshrrev_b32 v8, 2, v3\nv_and_b32 v9, 3, v3\nv_lshl_add_u32 v10, v2, 3, v8\nv_lshlrev_b32 v10, 7, v10\nv_lshl_add_u32 v10, v9, 3, v10\nv_add_u32 v10, s{sST}, v10')
    k('s_waitcnt vmcnt(0)')
    for t_ in range(4):
        for tile in range(4):
            r = WW + (t_ * 4 + tile) * 4
            o = t_ * 4096 + tile * 32
            k(f'ds_read_b64_tr_b16 {vr(r,2)}, v10 offset:{o}\nds_read_b64_tr_b16 {vr(r+2,2)}, v10 offset:{o+512}')
        k('s_waitcnt lgkmcnt(0)')
    if LOCAL: k(f's_cmp_lt_u32 s{sCN}, 8\ns_cselect_b32 s76, 1, 0')
    else: k(f's_cmp_eq_u32 s{sCN}, s{sX}\ns_cselect_b32 s76, 1, 0')
    k('v_mov_b32 v108, 0\nv_mov_b32 v109, 0\ns_cbranch_scc0 L_wnor')
    if LOCAL:
        k(f's_getreg_b32 s{sT0}, hwreg(HW_REG_XCC_ID)\ns_lshl_b32 s{sT1}, s{sX}, 3\ns_add_u32 s{sT1}, s{sT1}, s{sCN}\ns_lshl_b32 s{sT1}, s{sT1}, 7\ns_add_u32 s{sT1}, s{sT1}, {WS_XC}')
        k(f'v_mov_b32 v24, s{sT0}\nv_mov_b32 v25, s{sTAG}\nv_mov_b32 v26, s{sT0}\nv_mov_b32 v27, s{sTAG}')
        k(f's_cmp_lg_u32 s{sW}, 2\ns_cbranch_scc1 L_wnox\ns_mov_b64 exec, 1\nbuffer_store_dwordx4 v[24:27], off, {sr(sWS,4)}, s{sT1} sc1\ns_mov_b64 exec, -1')
        k.lab('L_wnox')
    selmasks(10, 11)
    for r in range(SEL, SEL + 16): k(f'v_mov_b32 v{r}, 0')
    for v in range(4):
        k(f'v_mov_b32_dpp v{SEL+4*v}, v10 quad_perm:[0,1,2,3] row_mask:0xf bank_mask:{1<<v:#x}')
        k(f'v_mov_b32_dpp v{SEL+4*v+2}, v11 quad_perm:[0,1,2,3] row_mask:0xf bank_mask:{1<<v:#x}')
    mask64(sM9, 0x01ff); mask64(sM10, 0x03ff)
    k(f'v_min_u32 v8, 8, v3\ns_mul_i32 s{sT0}, s{sW}, 576')
    k(f'v_mul_u32_u24 v109, 144, v2\nv_lshl_add_u32 v109, v8, 4, v109\nv_add_u32 v4, s{sT0}, v109')
    k(f'v_mul_u32_u24 v108, 2304, v2\nv_lshl_add_u32 v108, v8, 4, v108\nv_add_u32 v108, s{sT0}, v108')
    k(f'v_lshlrev_b32 v9, 4, v2\nv_add_u32 v9, 576, v9\nv_cndmask_b32 v109, v9, v109, {sr(sM9,2)}')
    k(f's_mul_i32 s{sT0}, s{sCN}, 13824\ns_add_u32 s{sT0}, s{sT0}, {WS_MOD + 4608}\ns_add_u32 s{sT1}, s{sT0}, 4608')
    k(f's_mul_i32 s{sT2}, s{sCN}, 1152\nv_lshrrev_b32 v8, 1, v4')
    if MID: ldswait('wmid', F_POS, MID, 64)
    k(f'buffer_load_dwordx2 {vr(RAW+12,2)}, v8, {sr(sD_,4)}, s{sT2} offen')
    poll('rmod', [wsld(RAW, 4, sT0), wsld(RAW + 4, 4, sT0, 2304), wsld(RAW + 8, 4, sT1)], [RAW, RAW + 4, RAW + 8], 10, 11, 32)
    for j, d in enumerate((MG, MS, MC)):
        unp(d, RAW + 4 * j); unp(d + 2, RAW + 4 * j + 2)
    unp(MX, RAW + 12); unp(MX + 2, RAW + 13)
    for e in range(4): k(f'v_add_f32 v{MC+e}, 1.0, v{MC+e}')
    rnd4(MC, 8)
    k(f's_mul_i32 s74, s{sCN}, 18432\ns_add_u32 s74, s74, {WS_AP}\ns_add_u32 s75, s74, 9216')
    k(f's_mul_i32 s72, s{sCN}, 2560\ns_mul_i32 s73, s{sW}, 640\ns_add_u32 s72, s72, s73')
    k(f's_mul_i32 s32, s{sX}, 20480\ns_add_u32 s32, s32, s72\ns_add_u32 s32, s32, {WS_H2L}')
    k(f's_add_u32 s73, s72, {WS_X2}\ns_add_u32 s72, s72, {WS_H2}\ns_cmp_eq_u32 s{sCN}, s{sX}\ns_cselect_b32 s72, s72, {OOB:#x}\ns_cselect_b32 s73, s73, {OOB:#x}')
    k(f's_lshl_b32 s{sT2}, s{sW}, 3\ns_add_u32 s{sT2}, s{sT2}, {L_STA}\nv_mov_b32 v22, s{sT2}\nv_mov_b32 v23, {L_STA}')
    for r in (25, 27, 29, 31): k(f'v_mov_b32 v{r}, s{sTAG}')
    for r in [28, 30] + list(range(X2, X2 + 4)): k(f'v_mov_b32 v{r}, 0')
    k('s_mov_b32 s33, 0x3be38e39')
    k.lab('L_wnor')
    redaddr(18432, 7, 17, 19)
    k(f's_and_b32 s{sT0}, s{sW}, 1\ns_lshl_b32 s{sT1}, s{sT0}, 9\ns_lshl_b32 s{sT0}, s{sT0}, 4\ns_add_u32 s{sT0}, s{sT0}, 1024')
    k('v_and_b32 v8, 7, v3\nv_lshrrev_b32 v9, 3, v3\nv_mul_u32_u24 v5, 2304, v8')
    k(f'v_lshl_add_u32 v4, v2, 5, v5\nv_lshl_add_u32 v4, v9, 4, v4\nv_add_u32 v4, s{sT1}, v4')
    k(f'v_mul_u32_u24 v9, 1152, v9\nv_add3_u32 v5, v5, v9, s{sT0}')
    k(f's_lshl_b32 s{sT0}, s{sX}, 1\ns_lshr_b32 s{sT1}, s{sW}, 1\ns_add_u32 s{sT0}, s{sT0}, s{sT1}\ns_mul_i32 s{sT0}, s{sT0}, {16*1152}\ns_add_u32 s{sT0}, s{sT0}, {WS_OP}')
    k(f's_mul_i32 s{sT1}, s{sX}, 2304\ns_lshl_b32 s{sT2}, s{sCN}, 8\ns_add_u32 s{sT1}, s{sT1}, s{sT2}\ns_add_u32 s{sT1}, s{sT1}, {WS_AP}')
    balance('w'); pace('w')
    for r in list(range(AC, AC + 16)) + list(range(AB, AB + 16)): k(f'v_mov_b32 v{r}, 0')
    stream_done('wpub')
    stamp(5)
    def wact(t_, sp):
        def f():
            b = OG + (2 * t_ + sp) * 4
            strip(b)
            for tile in range(4): mfma((AB if sp else AC) + 4 * tile, WW + (t_ * 4 + tile) * 4, b, False)
        return f
    def mlact():
        k(f'v_max_f32_dpp v20, v{MLG}, v{MLG} row_ror:8 {DPPALL}\nv_sub_f32 v20, v{MLG}, v20\nv_exp_f32 v20, v20')
        k(f'v_mul_f32 v21, v20, v{MLG+2}\nv_add_f32_dpp v21, v21, v21 row_ror:8 {DPPALL}\nv_rcp_f32 v21, v21\nv_mul_f32 v20, v20, v21')
        k(f'v_mov_b32_dpp v21, v20 row_ror:8 {DPPALL}')
    gather('op', [(wsld(OG + (2 * t_ + sp) * 4, 4, sT0, 1152 * sp + 128 * t_), OG + (2 * t_ + sp) * 4, wact(t_, sp)) for sp in range(2) for t_ in range(4)] +
           [(wsld(MLG, 5, sT0), MLG, mlact)], rm[0], rs[0])
    stamp(6)
    for r in range(16): k(f'v_mul_f32 v{AC+r}, v20, v{AC+r}')
    for r in range(16): k(f'v_fmac_f32 v{AC+r}, v21, v{AB+r}')
    reduce_publish(BW, 16, 7, sT1)
    stamp(7)
    k('s_cmp_eq_u32 s76, 0\ns_cbranch_scc1 L_exit')
    k('s_waitcnt vmcnt(0)')
    gather('ap', [(wsld(GA + (u * 4 + v) * 4, 108, 74 + u, 144 * v), GA + (u * 4 + v) * 4,
                   (lambda u=u, v=v: mfma(X2, SEL + 4 * v, GA + (u * 4 + v) * 4, False))) for u in range(2) for v in range(4)], rm[1], rs[1])
    stamp(8)
    rnd4(X2, 8)
    for e in range(4): k(f'v_mul_f32 v{X2+e}, v{MG+e}, v{X2+e}')
    rnd4(X2, 8)
    for e in range(4): k(f'v_add_f32 v{X2+e}, v{MX+e}, v{X2+e}')
    k(f'v_cvt_pk_bf16_f32 v24, v{X2}, v{X2+1}\nv_cvt_pk_bf16_f32 v26, v{X2+2}, v{X2+3}')
    unp(X2, 24); unp(X2 + 2, 26)
    k(f'v_readfirstlane_b32 s{sT2}, v{X2}')
    for e in range(4): k(f'v_subrev_f32 v{12+e}, s{sT2}, v{X2+e}')
    k('v_add_f32 v8, v12, v13\nv_mul_f32 v9, v12, v12\nv_add_f32 v10, v14, v15\nv_fmac_f32 v9, v13, v13\nv_add_f32 v8, v8, v10\nv_fmac_f32 v9, v14, v14\nv_fmac_f32 v9, v15, v15')
    k(f'v_cndmask_b32 v8, 0, v8, {sr(sM9,2)}\nv_cndmask_b32 v9, 0, v9, {sr(sM9,2)}')
    for m in ('row_shr:1 row_mask:0xf', 'row_shr:2 row_mask:0xf', 'row_shr:4 row_mask:0xf', 'row_shr:8 row_mask:0xf', 'row_bcast:15 row_mask:0xa', 'row_bcast:31 row_mask:0xc'):
        bc = ' bound_ctrl:0' if 'shr' in m else ''
        k(f'v_add_f32_dpp v8, v8, v8 {m} bank_mask:0xf{bc}\nv_add_f32_dpp v9, v9, v9 {m} bank_mask:0xf{bc}')
    k(f'v_mul_f32 v10, s33, v8\nv_fma_f32 v9, -v10, v8, v9\nv_add_f32 v8, s{sT2}, v10')
    k('s_mov_b32 exec_lo, 0\ns_mov_b32 exec_hi, 0x80000000\nds_write_b64 v22, v[8:9]')
    k('s_mov_b64 exec, -1\ns_waitcnt lgkmcnt(0)\ns_barrier')
    k(f'ds_read_b128 {vr(AC,4)}, v23\nds_read_b128 {vr(AC+4,4)}, v23 offset:16\ns_waitcnt lgkmcnt(0)')
    k(f'v_add_f32 v8, v{AC}, v{AC+2}\nv_add_f32 v9, v{AC+4}, v{AC+6}\nv_add_f32 v10, v{AC+1}, v{AC+3}\nv_add_f32 v11, v{AC+5}, v{AC+7}')
    k('v_add_f32 v8, v8, v9\nv_add_f32 v10, v10, v11\nv_mul_f32 v8, 0x3e800000, v8')
    for i in range(4): k(f'v_sub_f32 v{AC+2*i}, v{AC+2*i}, v8')
    k(f'v_mul_f32 v9, v{AC}, v{AC}\nv_fmac_f32 v9, v{AC+2}, v{AC+2}\nv_fmac_f32 v9, v{AC+4}, v{AC+4}\nv_fmac_f32 v9, v{AC+6}, v{AC+6}')
    k('v_mul_f32 v10, 0x3ae38e39, v10\nv_fmac_f32 v10, 0x3e800000, v9\nv_max_f32 v10, 0, v10')
    rnd2(8, 10, 9)
    k('v_add_f32 v10, 0x3727c5ac, v10')
    for e in range(4): k(f'v_sub_f32 v{X2+e}, v{X2+e}, v8')
    rnd1(10, 9)
    k('v_sqrt_f32 v10, v10')
    rnd4(X2, 12)
    rnd1(10, 9)
    k('v_rcp_f32 v10, v10')
    for e in range(4): k(f'v_mul_f32 v{X2+e}, v{X2+e}, v10')
    rnd4(X2, 12)
    for e in range(4): k(f'v_mul_f32 v{X2+e}, v{X2+e}, v{MC+e}')
    rnd4(X2, 12)
    for e in range(4): k(f'v_add_f32 v{X2+e}, v{X2+e}, v{MS+e}')
    k(f's_mov_b64 exec, {sr(sM9,2)}')
    k(f'v_cvt_pk_bf16_f32 v28, v{X2}, v{X2+1}\nv_cvt_pk_bf16_f32 v30, v{X2+2}, v{X2+3}')
    k(f's_mov_b64 exec, {sr(sM10,2)}')
    if LOCAL: k(f'buffer_store_dwordx4 v[28:31], v109, {sr(sWS,4)}, s32 offen')
    k(f'buffer_store_dwordx4 v[28:31], v109, {sr(sWS,4)}, s72 offen sc1')
    k(f'buffer_store_dwordx4 v[24:27], v109, {sr(sWS,4)}, s73 offen sc1')
    stamp(9)
    k('s_branch L_exit')

    k.lab('L_nrole')
    balance('n'); pace('n')

    k.lab('L_exit')
    if DIAG is not None:
        if DIAG == 10: stamp(10)
        if DG is not None: k(f's_cmp_lt_u32 s2, {DG[0]}\ns_cbranch_scc1 L_end\ns_cmp_gt_u32 s2, {DG[1]}\ns_cbranch_scc1 L_end')
        k(f's_cmp_lt_u32 s3, 4\ns_cbranch_scc1 L_end\ns_waitcnt lgkmcnt(0)\ns_add_u32 s62, s{STR[DIAG]}, 15000')
        k.lab('L_spin')
        k('s_sleep 2\ns_memrealtime s[64:65]\ns_waitcnt lgkmcnt(0)\ns_sub_u32 s64, s64, s62\ns_cmp_lt_i32 s64, 0\ns_cbranch_scc1 L_spin')
    if PROF:
        stamp(10)
        k(f's_waitcnt lgkmcnt(0)\ns_lshl_b32 s{sT0}, s2, 3\ns_add_u32 s{sT0}, s{sT0}, s3\ns_lshl_b32 s{sT0}, s{sT0}, 7\ns_add_u32 s{sT0}, s{sT0}, {WS_PROF}')
        k('s_mov_b64 exec, 1\nv_mov_b32 v8, 0')
        for i in range(0, 12, 2):
            for j in range(2):
                if i + j < 11: k(f'v_mov_b32 v{12+2*j}, s{STR[i+j]}\nv_mov_b32 v{13+2*j}, s{STR[i+j]+1}')
                else: k(f'v_mov_b32 v14, s{sTO}\nv_mov_b32 v15, s77\nv_lshl_add_u32 v15, s{28 if CP else 78}, 16, v15')
            k(f'buffer_store_dwordx4 v[12:15], v8, {sr(sWS,4)}, s{sT0} offen offset:{8*i}')
    k.lab('L_end')
    k('s_endpgm')
    k.lab('L_codeend')

    body = fix_hazards(k.L)
    hdr = open('cdna_kernels/' + NAME + '.s.ref').read().split('; Override launch')[0]
    out = [hdr.rstrip('\n'),
           f'; @launch grid=(256,1,1) block=(512,1,1) lds={LDS_BYTES}',
           '.amdgcn_target "amdgcn-amd-amdhsa--gfx950"', '.text', f'.globl {NAME}_kernel', '.p2align 8',
           f'.type {NAME}_kernel,@function', f'{NAME}_kernel:', 'L_start:']
    out += body
    out += ['.section .rodata,"a"', '.p2align 6', f'.amdhsa_kernel {NAME}_kernel',
            '  .amdhsa_next_free_vgpr 256', '  .amdhsa_next_free_sgpr 102', '  .amdhsa_accum_offset 256',
            '  .amdhsa_group_segment_fixed_size 0', '  .amdhsa_kernarg_size 112', '  .amdhsa_user_sgpr_count 2',
            '  .amdhsa_user_sgpr_kernarg_segment_ptr 1', '  .amdhsa_system_sgpr_workgroup_id_x 1', '.end_amdhsa_kernel']
    return '\n'.join(out) + '\n'

if __name__ == '__main__':
    kw = eval('dict(' + (sys.argv[2] if len(sys.argv) > 2 else '') + ')')
    open(sys.argv[1], 'w').write(gen(**kw))
```

```python
import sys, struct
from asmlib import K, fix_hazards, vr, sr

NAME = 'adaLN_cond__gqa_block_cached__glu_gated_geglu__decode'
WS_BAL, WS_XC, WS_MOD, WS_Q, WS_OP, WS_AP = 0x8000, 0x10000, 0x20000, 0x40000, 0x80000, 0x100000
WS_UNUSED, WS_UNUSED2, WS_H2, WS_YP, WS_PROF = 0x130000, 0x138000, 0x140000, 0x200000, 0x600000
WS_SIZE = 0x800000
WS_X2 = 0x1d0000
L_PT, L_RED, L_SP, L_Q, L_FLG, L_STA = 110592, 131072, 139264, 143424, 143936, 144192
LDS_BYTES = 144384
F_CNT, F_QRDY, F_LIM, F_BST, F_POS, F_PUB, F_PRE, F_LOC = 0, 4, 8, 12, 16, 20, 24, 28
WS_PACE = 0x180000
LOG2E = 0x3FB8AA3B
SCALE = 0x3DB504F3
TIMEOUT = 200000
OOB = 0x7ff00000
f2u = lambda f: struct.unpack('<I', struct.pack('<f', f))[0]

def tables(kind):
    G, W, N = 0, 1, 3
    if kind == 1:
        roles = [G, W] * 9 + [G, N] * 5 + [G, G] * 2
        pro = [0, 2] * 6 + [0, 3] * 8 + [0, 2, 0, 0]
    elif kind == 2:
        roles = [N, W] * 5 + [G, W] * 4 + [G, G] * 7
        pro = [0, 3] * 8 + [0, 2] * 7 + [0, 0]
    elif kind == 3:
        roles = [G, W] * 9 + [G, N] * 5 + [G, G] * 2
        pro = [0, 3] * 8 + [0, 2] * 7 + [0, 0]
    cnt = {}; tail = []
    for r in roles:
        tail.append((r, cnt.get(r, 0))); cnt[r] = cnt.get(r, 0) + 1
    cnt = {}; pi = []
    for p in pro:
        pi.append(cnt.get(p, 0) if p else 0); cnt[p] = cnt.get(p, 0) + 1
    return tail, pro, pi
TAIL, PRO, PIX = tables(3)

def gen(PROF=False, TAB=3, PAIR=1, PFROW=64, PSL=1, QSL=2, SPLIT=2, FTH=4, WTH=4, WHOLD=True,
        QM=256, LA=8, LAG=None, LAW=None, CMIN=2, CMAX=4, CSH=2,
        RMODE='0000', RSL='0000', WST='pub', GST='pub', FBAR=False, DIAG=None, DG=None, MID=64, F0=True, QW=False, FQ=None, FB=(8, 32), CP=(140, 228), PD=2, PK=3.0, PW0=10, PSPAN=28, PN=32, PSTR=4352, POFF=(0, 0, 0), PDBG='', PCLK=12, PSLP=6, LQ=True, LO=True, LH=True, WARM=236, LP=(), TSC=1.0, H2L=2, WMRG=True):
    if CP and FB is None: FB = (0, 0)
    if FB is not None: FQ = 0
    global TAIL, PRO, PIX
    TAIL, PRO, PIX = tables(TAB)
    k = K()
    sWS, sTAG, sEP, sHKV, sBB, sX, sIP, sR, sW = 4, 8, 9, 10, 11, 12, 13, 14, 15
    pX, pK, pV, pWQ, pWO, pGA, pUP, pDN, pC, pWM, pOUT, pWSP = 16, 18, 20, 22, 24, 28, 30, 32, 34, 36, 38, 42
    sA, sB_, sC_, sD_ = 44, 48, 52, 56
    sHI, sL2E, sT0, sT1, sT2, sT3, sTO, sSP = 60, 61, 62, 63, 64, 65, 66, 67
    sM0 = 68
    sROLE, sPRO, sPI, sST = 98, 99, 100, 101
    sCN = 77
    DPPALL = 'row_mask:0xf bank_mask:0xf'
    STR = [80 + 2 * i for i in range(9)] + [26, 40]
    def stamp(i):
        if PROF or (DIAG is not None and i in (0, DIAG)): k(f's_memrealtime {sr(STR[i], 2)}')
    def srd(d, p, size):
        k(f's_mov_b32 s{d}, s{p}\ns_mov_b32 s{d+1}, s{p+1}\ns_mov_b32 s{d+2}, {size}\ns_mov_b32 s{d+3}, 0x20000')
    def unp(d, s_):
        k(f'v_lshlrev_b32 v{d}, 16, v{s_}\nv_and_b32 v{d+1}, s{sHI}, v{s_}')
    def rnd2(a, b, t):
        k(f'v_cvt_pk_bf16_f32 v{t}, v{a}, v{b}\nv_lshlrev_b32 v{a}, 16, v{t}\nv_and_b32 v{b}, s{sHI}, v{t}')
    def rnd4(a, t):
        k(f'v_cvt_pk_bf16_f32 v{t}, v{a}, v{a+1}\nv_cvt_pk_bf16_f32 v{t+1}, v{a+2}, v{a+3}')
        unp(a, t); unp(a + 2, t + 1)
    def rnd1(a, t):
        k(f'v_cvt_pk_bf16_f32 v{t}, v{a}, v{a}\nv_and_b32 v{a}, s{sHI}, v{t}')
    def xrow(op, x, t, steps=(16, 32)):
        for st in steps:
            k(f'v_mov_b32 v{t}, v{x}\nv_permlane{st}_swap_b32 v{x}, v{t}\n{op} v{x}, v{x}, v{t}')
    def sum4(b):
        for e in range(4): k(f'v_add_f32 v{b+e}, v{b+e}, v{b+4+e}\nv_add_f32 v{b+8+e}, v{b+8+e}, v{b+12+e}')
        for e in range(4): k(f'v_add_f32 v{b+e}, v{b+e}, v{b+8+e}')
    def tagcheck(bases, acc, tmp):
        for i, b in enumerate(bases):
            d = acc if i == 0 else tmp + ((i - 1) & 1)
            k(f'v_bitop3_b32 v{d}, v{b+1}, v{b+3}, s{sTAG} bitop3:0x7e')
            if i > 0 and (i & 1) == 0: k(f'v_or3_b32 v{acc}, v{acc}, v{tmp}, v{tmp+1}')
        if len(bases) > 1 and (len(bases) & 1) == 0: k(f'v_or_b32 v{acc}, v{acc}, v{tmp}')
        k(f'v_cmp_ne_u32 vcc, 0, v{acc}')
    def retry(lab, sleep=0):
        if sleep: k(f's_sleep {sleep}')
        k(f's_sub_u32 s{sTO}, s{sTO}, 1\ns_cmp_lg_u32 s{sTO}, 0\ns_cbranch_scc1 {lab}\ns_branch L_exit')
    def wsld(dst, voff, soff, imm=0):
        return f'buffer_load_dwordx4 {vr(dst,4)}, v{voff}, {sr(sWS,4)}, s{soff} offen offset:{imm} sc1'
    def poll(name, loads, bases, acc, tmp, sleep=0, masked=False):
        k.lab(f'L_{name}')
        for l in loads: k(l)
        k('s_waitcnt vmcnt(0)')
        tagcheck(bases, acc, tmp)
        k(f's_cbranch_vccz L_{name}ok')
        if masked: k('s_mov_b64 exec, vcc')
        retry(f'L_{name}', sleep)
        k.lab(f'L_{name}ok')
        if masked: k('s_mov_b64 exec, -1')
    def gather(name, items, mode, sleep, issued=False):
        n = len(items)
        if mode == 3:
            if issued:
                k('s_waitcnt vmcnt(0)')
                tagcheck([b for _, b, _ in items], 12, 10)
                k(f's_cbranch_vccz L_{name}ok')
            poll(f'{name}w', [items[-1][0]], [items[-1][1]], 12, 10, sleep, True)
            for l, _, _ in items[:-1]: k(l)
            issued, mode, sleep = True, 0, 0
        if not issued:
            for l, _, _ in items: k(l)
        if mode == 0:
            k.lab(f'L_{name}')
            k('s_waitcnt vmcnt(0)')
            tagcheck([b for _, b, _ in items], 12, 10)
            k(f's_cbranch_vccz L_{name}ok\ns_mov_b64 exec, vcc')
            if sleep: k(f's_sleep {sleep}')
            for l, _, _ in items: k(l)
            retry(f'L_{name}')
            k.lab(f'L_{name}ok')
            k('s_mov_b64 exec, -1')
            for _, _, act in items: act()
            return
        k(f's_mov_b32 s22, 0\ns_mov_b32 s23, {OOB:#x}')
        k.lab(f'L_{name}')
        for i, (l, b, act) in enumerate(items):
            k(f's_bitcmp1_b32 s22, {i}\ns_cbranch_scc1 L_{name}n{i}')
            k(f's_waitcnt vmcnt({n-1-i})')
            k(f'v_bitop3_b32 v10, v{b+1}, v{b+3}, s{sTAG} bitop3:0x7e\nv_cmp_ne_u32 vcc, 0, v10\ns_cbranch_vccnz L_{name}n{i}')
            act()
            k(f's_bitset1_b32 s22, {i}')
            k.lab(f'L_{name}n{i}')
        k(f's_cmp_eq_u32 s22, {(1 << n) - 1}\ns_cbranch_scc1 L_{name}ok')
        if sleep: k(f's_sleep {sleep}')
        for i, (l, b, act) in enumerate(items):
            k(f's_bitcmp1_b32 s22, {i}\ns_cbranch_scc1 L_{name}d{i}')
            k(f'v_bitop3_b32 v10, v{b+1}, v{b+3}, s{sTAG} bitop3:0x7e\nv_cmp_ne_u32 vcc, 0, v10\ns_mov_b64 exec, vcc')
            k(l); k(f's_mov_b64 exec, -1\ns_branch L_{name}e{i}')
            k.lab(f'L_{name}d{i}')
            k(f'buffer_load_dword v0, off, {sr(sWS,4)}, s23')
            k.lab(f'L_{name}e{i}')
        retry(f'L_{name}')
        k.lab(f'L_{name}ok')
    def ldswait(name, flag, val, sleep):
        k(f'v_mov_b32 v12, {L_FLG}')
        k.lab(f'L_{name}')
        k(f'ds_read_b32 v13, v12 offset:{flag}\ns_waitcnt lgkmcnt(0)\nv_readfirstlane_b32 s22, v13\ns_cmp_ge_u32 s22, {val}\ns_cbranch_scc1 L_{name}ok')
        retry(f'L_{name}', sleep)
        k.lab(f'L_{name}ok')
    def mask64(d, lo16):
        m = lo16 | (lo16 << 16)
        k(f's_mov_b32 s{d}, {m:#x}\ns_mov_b32 s{d+1}, {m:#x}')
    def mfma(d, a, b, first):
        k(f'v_mfma_f32_16x16x32_bf16 {vr(d,4)}, {vr(a,4)}, {vr(b,4)}, {"0" if first else vr(d,4)}')
    def ror8pair(b):
        k(f'v_mov_b32_dpp v{b+2}, v{b} row_ror:8 {DPPALL}\nv_mov_b32_dpp v{b+3}, v{b+1} row_ror:8 {DPPALL}')
    def strip(b):
        k(f'v_mov_b32_dpp v{b+3}, v{b+2} row_ror:8 {DPPALL}\nv_mov_b32 v{b+1}, v{b+2}\nv_mov_b32_dpp v{b+2}, v{b} row_ror:8 {DPPALL}')
    def st2(st, flag, on):
        if not on:
            k(st + ' sc1'); return
        l = k.new('L_st')
        k(f's_cmp_eq_u32 s{flag}, 1\ns_cbranch_scc1 {l}a\n{st} sc1\ns_branch {l}b')
        k.lab(l + 'a'); k(st); k.lab(l + 'b')
    def xcld(dst, va):
        k(f'v_and_b32 v{va}, 31, v1\nv_lshlrev_b32 v{va}, 3, v{va}\ns_lshl_b32 s22, s{sX}, 8\ns_add_u32 s22, s22, {WS_XC}')
        k(f'buffer_load_dwordx2 {vr(dst,2)}, v{va}, {sr(sWS,4)}, s22 offen sc1')
    def xcchk(src, flag):
        k(f's_getreg_b32 s22, hwreg(HW_REG_XCC_ID)\nv_xor_b32 v{src}, s22, v{src}\nv_xor_b32 v{src+1}, s{sTAG}, v{src+1}\nv_or_b32 v{src}, v{src}, v{src+1}')
        k(f'v_cmp_ne_u32 vcc, 0, v{src}\ns_cmp_eq_u64 vcc, 0\ns_cselect_b32 s{flag}, 1, 0')
    def tag_from_epoch():
        k(f's_add_u32 s{sEP}, s{sEP}, 0x9e3779b9\ns_and_b32 s{sTAG}, s{sEP}, 0xbfffbfff')

    k('s_cmp_ge_u32 s2, 256\ns_cbranch_scc1 L_end')
    k('s_load_dwordx16 s[16:31], s[0:1], 0')
    k('s_load_dwordx8 s[32:39], s[0:1], 64')
    k('s_load_dwordx4 s[40:43], s[0:1], 96')
    stamp(0)
    if DIAG: stamp(DIAG)
    k('v_lshrrev_b32 v2, 6, v0\nv_and_b32 v1, 63, v0')
    k('v_readfirstlane_b32 s3, v2')
    k(f's_mov_b32 s{sHI}, 0xffff0000\ns_mov_b32 s{sL2E}, {LOG2E:#x}\ns_mov_b32 s{sTO}, {TIMEOUT}')
    k(f's_and_b32 s{sX}, s2, 7\ns_lshr_b32 s{sIP}, s2, 3\ns_and_b32 s{sSP}, s{sIP}, 1\ns_lshr_b32 s{sBB}, s{sIP}, 2\ns_bfe_u32 s{sHKV}, s{sIP}, 0x10001')
    k(f's_lshl_b32 s{sT0}, s{sX}, 1\ns_add_u32 s{sHKV}, s{sHKV}, s{sT0}\ns_lshl_b32 s{sT0}, s{sBB}, 4\ns_add_u32 s{sT0}, s{sT0}, s{sHKV}\ns_lshl_b32 s79, s{sT0}, 21\ns_and_b32 s{sW}, s3, 3')
    k('v_lshrrev_b32 v2, 4, v1\nv_and_b32 v3, 15, v1')
    pk = sum(p << (2 * u) for u, p in enumerate(PRO))
    k(f's_mov_b32 s62, {pk & 0xffffffff:#x}\ns_mov_b32 s63, {pk >> 32:#x}\ns_andn2_b32 s65, s{sIP}, 1\ns_lshl_b32 s65, s65, 1\ns_lshr_b64 s[62:63], s[62:63], s65')
    k(f's_lshr_b32 s68, s62, 2\ns_or_b32 s68, s68, s62\ns_and_b32 s68, s68, 3')
    k(f's_and_b32 s64, s{sIP}, 1\ns_lshl_b32 s64, s64, 1\ns_lshr_b32 s{sPRO}, s62, s64\ns_and_b32 s{sPRO}, s{sPRO}, 3')
    xk = sum(max(PIX[2 * m], PIX[2 * m + 1]) << (4 * m) for m in range(16))
    k(f's_mov_b32 s62, {xk & 0xffffffff:#x}\ns_mov_b32 s63, {xk >> 32:#x}\ns_lshr_b64 s[62:63], s[62:63], s65\ns_and_b32 s{sPI}, s62, 7')
    k(f's_lshl_b32 s62, s{sX}, 3\ns_add_u32 s62, s62, s{sPI}\ns_lshl_b32 s{sPI}, s{sPI}, 3\ns_add_u32 s{sPI}, s{sPI}, s{sX}\ns_cmp_eq_u32 s68, 3\ns_cselect_b32 s{sPI}, s62, s{sPI}')
    k(f's_cmp_lt_u32 s{sPI}, 54\ns_cselect_b32 s64, 3, 1\ns_and_b32 s65, s68, s64\ns_cmp_eq_u32 s65, 0\ns_cselect_b32 s{sPRO}, 0, s{sPRO}\ns_cselect_b32 s68, 0, s68')
    k(f's_mul_i32 s{sST}, s{sW}, 27648')
    k('s_cmp_ge_u32 s3, 4\ns_cbranch_scc1 L_helper')

    vKO, vVO, vHALF, vM, vL, S, O, Q, P, T = 4, 5, 6, 7, 60, 8, 12, 16, 32, 48
    sOFF, sI, sLIM, sBASE, sSCL, sVAL = 72, 76, 77, 79, 69, 70
    SLOT = lambda j: 64 + 32 * j
    R_, ML, E = SLOT(2), SLOT(2) + 16, SLOT(3)
    k('s_getpc_b64 s[62:63]\nv_lshlrev_b32 v8, 7, v0\nv_min_u32 v8, L_codeend-L_start-512, v8')
    k('global_load_dword v9, v8, s[62:63]')
    k(f'v_lshlrev_b32 v{vKO}, 8, v3\nv_lshl_add_u32 v{vKO}, v2, 4, v{vKO}')
    k(f'v_lshlrev_b32 v{vVO}, 4, v3\nv_lshl_add_u32 v{vVO}, v2, 10, v{vVO}')
    k('v_lshrrev_b32 v58, 1, v3\nv_lshlrev_b32 v58, 8, v58\nv_lshl_add_u32 v58, v2, 5, v58\nv_and_b32 v59, 1, v3\nv_lshl_add_u32 v58, v59, 4, v58')
    k('v_lshlrev_b32 v59, 4, v3\nv_lshl_add_u32 v59, v2, 9, v59')
    k(f's_mov_b32 s{sI}, s{sW}\ns_mov_b32 s{sLIM}, 1024')
    def nextoff(a):
        k(f's_sub_u32 s{sT2}, 511, s{sI}\ns_xor_b32 s{sT3}, s{sSP}, 1\ns_cmp_lt_u32 s{sI}, 256')
        k(f's_cselect_b32 s{sT2}, s{sI}, s{sT2}\ns_cselect_b32 s{sT3}, s{sSP}, s{sT3}')
        k(f's_lshl_b32 s{sT3}, s{sT3}, 2\ns_andn2_b32 s{sOFF+a}, s{sT2}, 3\ns_add_u32 s{sT2}, s{sT2}, s{sOFF+a}\ns_add_u32 s{sT2}, s{sT2}, s{sT3}')
        k(f's_lshl_b32 s{sT2}, s{sT2}, 12\ns_add_u32 s{sOFF+a}, s{sT2}, s{sBASE}')
        k(f's_cmp_lt_u32 s{sI}, s{sLIM}\ns_cselect_b32 s{sOFF+a}, s{sOFF+a}, 0x20000000\ns_cselect_b32 s{sVAL+a}, 1, 0\ns_add_u32 s{sI}, s{sI}, 4')
    QF, SF, vKF, vVF, sFUL = SLOT(4), SLOT(4) + 8, SLOT(4) + 16, SLOT(4) + 17, 24
    def ldk(j, a, full=False, kf=58):
        for i in range(4):
            va, o = (kf, 2048 * (i >> 1) + 128 * (i & 1)) if full else (vKO, 64 * i)
            k(f'buffer_load_dwordx4 {vr(SLOT(j)+4*i,4)}, v{va}, {sr(sA,4)}, s{sOFF+a} offen offset:{o} nt')
    def ldv(j, a, full=False, vf=59):
        for i in range(4):
            va, o = (vf, 2048 * (i >> 1) + 256 * (i & 1)) if full else (vVO, 256 * i)
            k(f'buffer_load_dwordx4 {vr(SLOT(j)+16+4*i,4)}, v{va}, {sr(sB_,4)}, s{sOFF+a} offen offset:{o} nt')
    nextoff(0)
    k(f's_movk_i32 s74, 6912\ns_cmp_eq_u32 s68, 3\ns_cselect_b32 s74, 8192, s74')
    k('v_lshrrev_b32 v10, 3, v1\nv_and_b32 v11, 2, v10\nv_mul_lo_u32 v10, v10, s74\nv_xor_b32 v11, v11, v1\nv_and_b32 v11, 7, v11\nv_lshl_add_u32 v10, v11, 4, v10\nv_xor_b32 v12, 64, v10')
    k(f'v_add_u32 v11, {PFROW}, v0\nv_mul_lo_u32 v11, v11, s74')
    k(f's_mul_i32 s75, s74, s{sW}\ns_lshl_b32 s75, s75, 5\ns_lshl_b32 s69, s{sPI}, 7\ns_add_u32 s75, s75, s69')
    k(f's_mul_i32 s{sC_+2}, s74, 576\ns_mov_b32 s{sC_+3}, 0x20000\ns_mul_i32 s78, s74, 104\ns_lshl_b32 s74, s74, 3')
    k('s_waitcnt lgkmcnt(0)')
    k(f's_cmp_eq_u32 s68, 3\ns_cselect_b32 s{sC_}, s{pWQ}, s{pWM}\ns_cselect_b32 s{sC_+1}, s{pWQ+1}, s{pWM+1}')
    srd(sA, pK, 0x10000000); srd(sB_, pV, 0x10000000)
    k(f's_cmp_eq_u32 s{sPRO}, 0\ns_cbranch_scc1 L_notile')
    for i in range(5):
        for j in range(4):
            k(f's_add_u32 m0, s{sST}, {4096*i+1024*j}')
            k(f'buffer_load_dwordx4 v{10 + 2 * (j & 1)}, {sr(sC_,4)}, s75 offen nt lds')
            if (i, j) != (4, 3): k(f's_add_u32 s75, s75, s{74 if j < 3 else 78}')
    k('s_waitcnt vmcnt(0)\ns_barrier\ns_barrier\ns_barrier')
    ldk(0, 0, True); ldv(0, 0, True)
    k('s_branch L_first')
    k.lab('L_notile')
    k('s_cmp_eq_u32 s68, 0\ns_cbranch_scc1 L_nopf')
    k(f'buffer_load_dword v9, v11, {sr(sC_,4)}, s69 offen')
    if PFROW < 320: k(f's_mul_i32 s75, s74, 32\ns_add_u32 s69, s69, s75\nbuffer_load_dword v10, v11, {sr(sC_,4)}, s69 offen')
    k.lab('L_nopf')
    ldk(0, 0, True); ldv(0, 0, True)
    k('s_barrier')
    k.lab('L_first')
    k(f's_load_dword s{sEP}, {sr(pWSP,2)}, 0')
    srd(sWS, pWSP, WS_SIZE)
    k(f'v_mov_b32 v{vHALF}, 0xffff\nv_and_b32 v8, 2, v3\nv_lshlrev_b32 v8, 3, v8\nv_lshlrev_b32 v{vHALF}, v8, v{vHALF}')
    for r in list(range(P, P + 16)) + list(range(O, O + 4)) + [vL]: k(f'v_mov_b32 v{r}, 0')
    k(f'v_mov_b32 v{vM}, 0xff800000')
    k(f'v_and_b32 v61, 1, v3\nv_lshlrev_b32 v61, 8, v61\nv_lshl_add_u32 v61, v2, 4, v61\nv_add_u32 v61, {L_Q}, v61')
    k(f'v_lshl_add_u32 v8, v2, 4, v8\nv_add_u32 v8, v61, v8\nv_mov_b32 v62, {L_FLG}\nv_mov_b32 v63, 1\ns_mov_b32 s{sSCL}, {SCALE:#x}')
    for j in range(1, 6):
        nextoff(0); ldk(j, 0, True); ldv(j, 0, True)
    stamp(1)
    k(f's_mov_b64 exec, 1\nds_add_u32 v62, v63 offset:{F_PRE}\ns_mov_b64 exec, -1')
    k('s_waitcnt vmcnt(48) lgkmcnt(0)')
    tag_from_epoch()
    k.lab('L_qwait')
    k(f'ds_read_b32 v9, v62 offset:{F_QRDY}')
    for i in range(2): k(f'ds_read_b128 {vr(Q+4*i,4)}, v8 offset:{128*i}')
    k(f's_waitcnt lgkmcnt(0)\nv_readfirstlane_b32 s{sT0}, v9\ns_cmp_eq_u32 s{sT0}, 1\ns_cbranch_scc1 L_qok')
    retry('L_qwait', 2)
    k.lab('L_qok')
    stamp(2)
    def consume(j, kw, vw, a, full):
        Kb, Vb = SLOT(j), SLOT(j) + 16
        t, S2 = T, Q + 8
        k(f's_waitcnt vmcnt({kw})')
        if full:
            mfma(S2, Kb, Q, True); mfma(S2 + 4, Kb + 8, Q, True); mfma(S2, Kb + 4, Q + 4, False); mfma(S2 + 4, Kb + 12, Q + 4, False)
        else:
            k(f's_mov_b64 exec, 1\nds_add_rtn_u32 v{E+6}, v62, v63 offset:{F_POS}\nds_read_b64 {vr(E+16,2)}, v62 offset:{F_LIM}\ns_mov_b64 exec, -1')
            if FQ is not None:
                k(f's_cmp_eq_u32 s{sFUL+a}, 0\ns_cbranch_scc1 L_qr{a}')
                mfma(SF, Kb, QF, True); mfma(SF + 4, Kb + 8, QF, True); mfma(SF, Kb + 4, QF + 4, False); mfma(SF + 4, Kb + 12, QF + 4, False)
                for i in range(4): k(f'v_mov_b32_dpp v{S+i}, v{SF+2*i} quad_perm:[0,1,0,1] {DPPALL}')
                for i in range(4): k(f'v_add_f32_dpp v{S+i}, v{SF+2*i+1}, v{S+i} quad_perm:[2,3,2,3] {DPPALL}')
                k(f's_branch L_qd{a}')
                k.lab(f'L_qr{a}')
            for i in range(4): mfma(S, Kb + 4 * i, Q + 4 * i, i == 0)
            k.lab(f'L_qd{a}')
            k(f's_waitcnt lgkmcnt(0)\nv_readfirstlane_b32 s{sI}, v{E+6}')
            if CP: k(f'v_readfirstlane_b32 s29, v{E+17}\ns_max_u32 s28, s30, s29')
            k.lab(f'L_chk{a}')
            k(f'v_readfirstlane_b32 s{sT0}, v{E+16}\ns_and_b32 s{sLIM}, s{sT0}, 0xffff\ns_max_u32 s{sLIM}, s{sLIM}, {QM-32}')
            if QM == 256: k(f's_branch L_go{a}')
            k(f's_cmp_lt_u32 s{sI}, s{sLIM}\ns_cbranch_scc1 L_go{a}\ns_cmp_lt_i32 s{sT0}, 0\ns_cbranch_scc1 L_go{a}')
            k(f's_sleep 1\nds_read_b32 v{E+16}, v62 offset:{F_LIM}\ns_waitcnt lgkmcnt(0)')
            if PROF: k('s_add_u32 s78, s78, 1')
            retry(f'L_chk{a}')
            k.lab(f'L_go{a}')
            k(f's_add_u32 s{sI}, s{sI}, 32\ns_add_u32 s{sLIM}, s{sLIM}, 32')
        if a is not None:
            nextoff(a)
            if FQ is not None and not full:
                if FB is not None: k(f's_cmp_lt_u32 s{sI}, s28')
                else: k(f's_cmp_ge_u32 s{sI}, {FQ + 4}')
                k(f's_cselect_b32 s{sFUL+a}, 1, 0\ns_cbranch_scc0 L_kr{a}')
                ldk(j, a, True, vKF)
                k(f's_branch L_kd{a}')
                k.lab(f'L_kr{a}')
            ldk(j, a)
            if not full: k.lab(f'L_kd{a}')
        if full:
            for i in range(4): k(f'v_mov_b32_dpp v{S+i}, v{S2+2*i} quad_perm:[0,1,0,1] {DPPALL}')
            for i in range(4): k(f'v_add_f32_dpp v{S+i}, v{S2+2*i+1}, v{S+i} quad_perm:[2,3,2,3] {DPPALL}')
        k(f'v_cvt_pk_bf16_f32 v{t}, v{S}, v{S+1}\nv_cvt_pk_bf16_f32 v{t+1}, v{S+2}, v{S+3}')
        unp(t + 2, t); unp(t + 4, t + 1)
        for i in range(4): k(f'v_mul_f32 v{t+2+i}, s{sSCL}, v{t+2+i}')
        rnd4(t + 2, t)
        k(f'v_max3_f32 v{t+6}, v{t+2}, v{t+3}, v{t+4}\nv_max3_f32 v{t+6}, v{t+6}, v{t+5}, v{vM}')
        xrow('v_max_f32', t + 6, t + 7)
        k(f'v_sub_f32 v{t+7}, v{vM}, v{t+6}\nv_mul_f32 v{t+8}, s{sL2E}, v{t+6}\nv_mul_f32 v{t+7}, s{sL2E}, v{t+7}\nv_mov_b32 v{vM}, v{t+6}')
        for i in range(4): k(f'v_fma_f32 v{t+2+i}, v{t+2+i}, s{sL2E}, -v{t+8}')
        k(f'v_exp_f32 v{t+7}, v{t+7}')
        for i in range(4): k(f'v_exp_f32 v{t+2+i}, v{t+2+i}')
        k(f'v_mul_f32 v{vL}, v{vL}, v{t+7}')
        for i in range(4):
            qp = '[0,0,2,2]' if i % 2 == 0 else '[1,1,3,3]'
            k(f'v_mul_f32_dpp v{O+i}, v{t+7}, v{O+i} quad_perm:{qp} {DPPALL}')
        for i in range(4): k(f'v_cvt_pk_bf16_f32 v{t+8+i}, v{t+2+i}, v{t+2+i}')
        k(f'v_add_f32 v{t+2}, v{t+2}, v{t+3}\nv_add_f32 v{t+4}, v{t+4}, v{t+5}\nv_add_f32 v{vL}, v{vL}, v{t+2}\nv_add_f32 v{vL}, v{vL}, v{t+4}')
        for i in range(4):
            for r in range(4):
                k(f'v_and_b32_dpp v{P+4*i+r}, v{t+8+i}, v{vHALF} quad_perm:[0,1,2,3] row_mask:0xf bank_mask:{1<<r:#x}')
        k(f's_waitcnt vmcnt({vw})')
        for i in range(4): mfma(O, P + 4 * i, Vb + 4 * i, False)
        if a is not None:
            if FQ is not None and not full:
                k(f's_cmp_eq_u32 s{sFUL+a}, 0\ns_cbranch_scc1 L_vr{a}')
                ldv(j, a, True, vVF)
                k(f's_branch L_vd{a}')
                k.lab(f'L_vr{a}')
            ldv(j, a)
            if not full: k.lab(f'L_vd{a}')
    for j, (kw, vw) in enumerate(((44, 44), (44, 44), (44, 40), (36, 32), (28, 24), (20, 16))):
        consume(j, kw, vw, j if j < 2 else None, True)
    if FQ is not None:
        if FB is not None: k(f's_cmp_eq_u32 s{sPRO}, 3\ns_cselect_b32 s28, {FB[1]+36}, 0\ns_cmp_eq_u32 s{sPRO}, 2\ns_cselect_b32 s28, {FB[0]+36}, s28\ns_mov_b32 s30, s28')
        for r in range(8): k(f'v_mov_b32 v{QF+r}, v{Q+r}')
        k(f'v_lshrrev_b32 v{vKF}, 1, v3\nv_lshlrev_b32 v{vKF}, 8, v{vKF}\nv_lshl_add_u32 v{vKF}, v2, 5, v{vKF}\nv_and_b32 v{vVF}, 1, v3\nv_lshl_add_u32 v{vKF}, v{vVF}, 4, v{vKF}')
        k(f'v_lshlrev_b32 v{vVF}, 4, v3\nv_lshl_add_u32 v{vVF}, v2, 9, v{vVF}\ns_mov_b32 s{sFUL}, 0\ns_mov_b32 s{sFUL+1}, 0')
    for i in range(4): k(f'ds_read_b128 {vr(Q+4*i,4)}, v61 offset:{64*i}')
    stamp(3)
    k(f's_mul_i32 s{sT1}, s{sW}, 1040\ns_add_u32 s{sT1}, s{sT1}, {L_SP}')
    k(f'v_lshlrev_b32 v{E}, 5, v3\nv_lshl_add_u32 v{E}, v2, 3, v{E}\nv_add_u32 v{E}, s{sT1}, v{E}')
    k(f'v_and_b32 v{E+1}, 1, v3\nv_lshlrev_b32 v{E+1}, 3, v{E+1}\ns_add_u32 s{sT1}, s{sT1}, 1024\nv_add_u32 v{E+1}, s{sT1}, v{E+1}')
    k(f'v_lshlrev_b32 v{E+2}, 4, v1\nv_add_u32 v{E+3}, {L_SP}, v{E+2}')
    k(f'v_lshrrev_b32 v{E+5}, 5, v1\nv_lshlrev_b32 v{E+4}, 3, v{E+5}\nv_add_u32 v{E+4}, {L_SP}, v{E+4}\nv_lshlrev_b32 v{E+5}, 4, v{E+5}')
    for r in (9, 11, 13, 15): k(f'v_mov_b32 v{E+r}, s{sTAG}')
    k(f's_lshl_b32 s74, s{sHKV}, 3\ns_add_u32 s74, s74, s{sBB}\ns_lshl_b32 s74, s74, 1\ns_add_u32 s74, s74, s{sSP}\ns_mul_i32 s74, s74, 1152\ns_add_u32 s74, s74, {WS_OP}')
    k('s_waitcnt lgkmcnt(0)')
    if PROF: k('s_mov_b32 s75, 0\ns_mov_b32 s78, 0')
    k.lab('L_top')
    if PROF:
        k(f's_lshr_b32 s{sT0}, s{sI}, 2')
        for n_, stp in enumerate((16, 28, 40, 52)):
            k(f's_cmp_lt_u32 s{sT0}, {stp}\ns_cbranch_scc1 L_ns{n_}\ns_cmp_gt_u32 s75, {n_}\ns_cbranch_scc1 L_ns{n_}\ns_mov_b32 s75, {n_+1}')
            stamp(6 + n_)
            k.lab(f'L_ns{n_}')
    for a in range(2):
        k(f's_cmp_eq_u32 s{sVAL+a}, 0\ns_cbranch_scc1 L_send')
        consume(a, 12, 12, a, False)
    k('s_branch L_top')
    k.lab('L_send')
    stamp(4)
    t = T
    xrow('v_add_f32', vL, t)
    k(f'ds_write2_b32 v{E+1}, v{vM}, v{vL} offset0:0 offset1:1')
    k(f'ds_write2_b32 v{E}, v{O}, v{O+2} offset0:0 offset1:1')
    k(f'ds_write2_b32 v{E}, v{O+1}, v{O+3} offset0:128 offset1:129')
    k(f's_mov_b64 exec, 1\nds_add_rtn_u32 v{E+6}, v62, v63 offset:{F_CNT}\ns_mov_b64 exec, -1')
    k(f'ds_read_b32 v{E+7}, v62 offset:{F_LOC}')
    for i in range(4): k(f'ds_read_b64 {vr(ML+2*i,2)}, v{E+4} offset:{1024+1040*i}')
    for i in range(4): k(f'ds_read_b128 {vr(R_+4*i,4)}, v{E+3} offset:{1040*i}')
    k('s_waitcnt lgkmcnt(4)')
    k(f'v_readfirstlane_b32 s{sT1}, v{E+6}\nv_readfirstlane_b32 s{sT0}, v{E+7}\ns_cmp_lg_u32 s{sT1}, 3\ns_cbranch_scc1 L_exit')
    k(f'v_max3_f32 v{t}, v{ML}, v{ML+2}, v{ML+4}\nv_max_f32 v{t}, v{t}, v{ML+6}')
    k(f'v_mul_f32 v{t}, s{sL2E}, v{t}\nv_max_f32 v{E+8}, 0xf149f2ca, v{t}')
    for i in range(4): k(f'v_fma_f32 v{ML+2*i}, v{ML+2*i}, s{sL2E}, -v{E+8}')
    for i in range(4): k(f'v_exp_f32 v{ML+2*i}, v{ML+2*i}')
    k('s_waitcnt lgkmcnt(0)')
    for e in range(4): k(f'v_mul_f32 v{R_+e}, v{ML}, v{R_+e}')
    for i in range(1, 4):
        for e in range(4): k(f'v_fmac_f32 v{R_+e}, v{ML+2*i}, v{R_+4*i+e}')
    k(f'v_cvt_pk_bf16_f32 v{E+12}, v{R_}, v{R_+1}\nv_cvt_pk_bf16_f32 v{E+14}, v{R_+2}, v{R_+3}')
    st2(f'buffer_store_dwordx4 {vr(E+12,4)}, v{E+2}, {sr(sWS,4)}, s74 offen', sT0, LO)
    k(f'v_mul_f32 v{E+10}, v{ML}, v{ML+1}')
    for i in range(1, 4): k(f'v_fmac_f32 v{E+10}, v{ML+2*i}, v{ML+2*i+1}')
    k('s_mov_b32 exec_lo, 1\ns_mov_b32 exec_hi, 1')
    st2(f'buffer_store_dwordx4 {vr(E+8,4)}, v{E+5}, {sr(sWS,4)}, s74 offen offset:1024', sT0, LO)
    if 'pub' in (WST, GST): k(f'ds_write_b32 v62, v63 offset:{F_PUB}')
    stamp(5)
    k('s_branch L_exit')

    k.lab('L_helper')
    k('s_setprio 2')
    CB, WT, AC, RR, TA = 16, 176, 40, 100, 168
    k(f'v_lshlrev_b32 v8, 2, v1\nv_add_u32 v8, {L_FLG}, v8\nv_mov_b32 v10, 0\nds_write_b32 v8, v10')
    k('v_and_b32 v7, 7, v3\nv_lshrrev_b32 v9, 3, v3\nv_mul_u32_u24 v11, 1152, v7')
    k('v_lshl_add_u32 v4, v2, 4, v11\nv_lshl_add_u32 v4, v9, 3, v4')
    k(f's_lshl_b32 s{sT0}, s{sW}, 6')
    k('s_waitcnt lgkmcnt(0)')
    srd(sA, pC, 9216); srd(sD_, pX, 9216)
    def epoch():
        srd(sWS, pWSP, WS_SIZE)
        k(f's_load_dword s{sEP}, {sr(pWSP,2)}, 0')
        gm = sum(1 << u for u, (r, _) in enumerate(TAIL) if r == 0); wm = sum(1 << u for u, (r, _) in enumerate(TAIL) if r == 1)
        k(f's_mov_b32 s62, {gm:#x}\ns_mov_b32 s63, {wm:#x}\ns_mov_b32 s{sROLE}, 3')
        k(f's_bitcmp1_b32 s62, s{sIP}\ns_cselect_b32 s{sROLE}, 0, s{sROLE}\ns_bitcmp1_b32 s63, s{sIP}\ns_cselect_b32 s{sROLE}, 1, s{sROLE}')
        k(f's_bfm_b32 s64, s{sIP}, 0\ns_and_b32 s63, s63, s64\ns_bcnt1_i32_b32 s{sCN}, s63\ns_and_b32 s62, s62, s64\ns_bcnt1_i32_b32 s62, s62')
        k(f's_mul_i32 s{sR}, s{sX}, 18\ns_add_u32 s{sR}, s{sR}, s62\ns_waitcnt lgkmcnt(0)')
        tag_from_epoch()
        l = k.new('L_xc')
        k(f's_mov_b32 s76, 0\ns_cmp_lg_u32 s{sW}, 3\ns_cbranch_scc1 {l}')
        k(f's_getreg_b32 s62, hwreg(HW_REG_XCC_ID)\ns_lshl_b32 s63, s{sX}, 5\ns_add_u32 s63, s63, s{sIP}\ns_lshl_b32 s63, s63, 3\ns_add_u32 s63, s63, {WS_XC}')
        k(f'v_mov_b32 v12, s62\nv_mov_b32 v13, s{sTAG}\ns_mov_b64 exec, 1\nbuffer_store_dwordx2 v[12:13], off, {sr(sWS,4)}, s63\ns_mov_b64 exec, -1')
        k.lab(l)
    def traddr():
        k('v_lshrrev_b32 v5, 2, v3\nv_lshl_add_u32 v6, v2, 3, v5\nv_lshlrev_b32 v6, 7, v6\nv_and_b32 v5, 3, v3\nv_lshl_add_u32 v6, v5, 3, v6')
        k('v_bfe_u32 v5, v1, 3, 2\nv_lshl_add_u32 v6, v5, 5, v6')
        for tile in range(4): k(f'v_xor_b32 v{TA+tile}, {32*tile}, v6\nv_add_u32 v{TA+tile}, s{sST}, v{TA+tile}')
    def trread(i):
        for tile in range(4):
            r = WT + (i * 4 + tile) * 4; o = 4096 * i
            k(f'ds_read_b64_tr_b16 {vr(r,2)}, v{TA+tile} offset:{o}\nds_read_b64_tr_b16 {vr(r+2,2)}, v{TA+tile} offset:{o+512}')
    def redaddr(rowstride, so, t0, t1):
        k(f'v_and_b32 v14, 7, v3\nv_mul_u32_u24 v14, 272, v14\nv_lshl_add_u32 v14, v2, 4, v14\ns_mul_i32 s{sT0}, s{sW}, 2176\ns_add_u32 s{sT0}, s{sT0}, {L_PT}\nv_add_u32 v14, s{sT0}, v14')
        k(f'v_and_b32 v{so}, 1, v2\nv_lshl_add_u32 v{so}, s{sW}, 1, v{so}\nv_mul_u32_u24 v15, 272, v{so}\nv_lshl_add_u32 v15, v3, 4, v15\nv_add_u32 v15, {L_PT}, v15')
        k(f'v_mul_u32_u24 v{so}, {rowstride}, v{so}\nv_lshl_add_u32 v{so}, v3, 4, v{so}\nv_mov_b32 v{t0}, s{sTAG}\nv_mov_b32 v{t1}, s{sTAG}')
        mask64(sM0, 0x00ff)
    def reduce_publish(rd, z, so, soff, flag=None):
        k(f's_mov_b64 exec, {sr(sM0,2)}')
        for tile in range(4): k(f'ds_write_b128 v14, {vr(AC+4*tile,4)} offset:{64*tile}')
        k('s_mov_b64 exec, -1\ns_waitcnt lgkmcnt(0)\ns_barrier')
        for i in range(4): k(f'ds_read_b128 {vr(rd+4*i,4)}, v15 offset:{2176*i}')
        k('s_waitcnt lgkmcnt(0)')
        sum4(rd)
        k(f'v_cvt_pk_bf16_f32 v{z}, v{rd}, v{rd+1}\nv_cvt_pk_bf16_f32 v{z+2}, v{rd+2}, v{rd+3}')
        k('s_mov_b32 exec_hi, 0')
        st2(f'buffer_store_dwordx4 {vr(z,4)}, v{so}, {sr(sWS,4)}, s{soff} offen', flag, flag is not None)
        k('s_mov_b64 exec, -1')
    def dma(voff, srd_, soff, lds_imm, idx, th):
        if idx >= th: k(f's_waitcnt vmcnt({th-1})')
        k(f's_add_u32 m0, s{sST}, {lds_imm}')
        k(f'buffer_load_dwordx4 v{voff}, {sr(srd_,4)}, s{soff} offen nt lds')
    def wstage(th):
        srd(sB_, pWO, 4096 * 1152)
        k('v_lshrrev_b32 v8, 3, v1\nv_mul_u32_u24 v8, 1152, v8\nv_and_b32 v9, 7, v1\nv_lshl_add_u32 v8, v9, 4, v8')
        k(f's_lshl_b32 s72, s{sX}, 2\ns_add_u32 s72, s72, s{sW}\ns_mul_i32 s72, s72, {128*1152}\ns_lshl_b32 s73, s{sCN}, 7\ns_add_u32 s72, s72, s73')
        for i in range(16):
            dma(8, sB_, 72, 1024 * i, i, th)
            if i < 15: k(f's_add_u32 s72, s72, {8*1152}')
    k(f's_cmp_eq_u32 s{sPRO}, 2\ns_cbranch_scc1 L_p1\ns_cmp_eq_u32 s{sPRO}, 3\ns_cbranch_scc1 L_p2')
    k('s_barrier')
    epoch()
    k('s_branch L_pdone')

    k.lab('L_p1')
    for i in range(5):
        k(f'buffer_load_dwordx2 {vr(CB+4*i,2)}, v4, {sr(sA,4)}, s{sT0} offen offset:{256*i}')
    epoch()
    traddr(); redaddr(13824, 5, 37, 39)
    k(f's_lshl_b32 s78, s{sPI}, 8\ns_add_u32 s78, s78, {WS_MOD}\ns_mov_b32 s{sT0}, 0xbfb8aa3b')
    k('s_waitcnt vmcnt(0)')
    stamp(1)
    for i in range(5):
        b = CB + 4 * i
        unp(RR, b); unp(RR + 2, b + 1)
        for e in range(4): k(f'v_mul_f32 v{RR+4+e}, s{sT0}, v{RR+e}')
        for e in range(4): k(f'v_exp_f32 v{RR+4+e}, v{RR+4+e}')
        for e in range(4): k(f'v_add_f32 v{RR+4+e}, 1.0, v{RR+4+e}')
        for e in range(4): k(f'v_min_f32 v{RR+4+e}, 0x7e800000, v{RR+4+e}')
        for e in range(4): k(f'v_rcp_f32 v{RR+8+e}, v{RR+4+e}')
        for e in range(4): k(f'v_mul_f32 v{RR+12+e}, v{RR+e}, v{RR+8+e}')
        for e in range(4): k(f'v_fma_f32 v{RR+e}, -v{RR+12+e}, v{RR+4+e}, v{RR+e}')
        for e in range(4): k(f'v_fmac_f32 v{RR+12+e}, v{RR+e}, v{RR+8+e}')
        k(f'v_cvt_pk_bf16_f32 v{b}, v{RR+12}, v{RR+13}\nv_cvt_pk_bf16_f32 v{b+1}, v{RR+14}, v{RR+15}')
    for i in range(5): ror8pair(CB + 4 * i)
    k('s_barrier')
    stamp(2)
    trread(0)
    for i in range(5):
        if i < 4:
            k('s_waitcnt lgkmcnt(4)'); trread(i + 1); k('s_waitcnt lgkmcnt(8)')
        else: k('s_waitcnt lgkmcnt(0)')
        for tile in range(4): mfma(AC + 4 * tile, WT + (i * 4 + tile) * 4, CB + 4 * i, i == 0)
    k('s_branch L_wide')

    k.lab('L_p2')
    LN, SG, CG = 132, 56, 76
    k(f'buffer_load_ushort v36, v11, {sr(sD_,4)}, 0 offen')
    for i in range(5):
        k(f'buffer_load_dwordx2 {vr(CB+4*i,2)}, v4, {sr(sD_,4)}, s{sT0} offen offset:{256*i}')
    k('v_mul_u32_u24 v4, 13824, v7\nv_lshl_add_u32 v4, v2, 5, v4\nv_lshl_add_u32 v4, v9, 4, v4')
    k(f'v_lshlrev_b32 v7, 5, v7\nv_add_u32 v7, {L_RED}, v7\nv_lshl_add_u32 v9, s{sW}, 3, v7')
    epoch()
    k(f's_lshl_b32 s78, s{sPI}, 11\ns_add_u32 s78, s78, {WS_Q}')
    traddr(); redaddr(256, 5, 37, 39)
    k(f's_cmp_lt_u32 s{sW}, 2\ns_cselect_b32 s72, 1.0, 0')
    k('s_waitcnt vmcnt(0)')
    k('v_lshlrev_b32 v8, 16, v36')
    for i in range(5):
        unp(LN + 4 * i, CB + 4 * i); unp(LN + 4 * i + 2, CB + 4 * i + 1)
    for e in range(4): k(f'v_sub_f32 v{RR+e}, v{LN+16+e}, v8')
    k(f'v_add_f32 v10, v{RR}, v{RR+1}\nv_mul_f32 v11, v{RR}, v{RR}\nv_add_f32 v10, v10, v{RR+2}\nv_fmac_f32 v11, v{RR+1}, v{RR+1}')
    k(f'v_add_f32 v10, v10, v{RR+3}\nv_fmac_f32 v11, v{RR+2}, v{RR+2}\nv_mul_f32 v10, s72, v10\nv_fmac_f32 v11, v{RR+3}, v{RR+3}\nv_mul_f32 v11, s72, v11')
    for r in range(16): k(f'v_sub_f32 v{RR+r}, v{LN+r}, v8')
    for r in range(16): k(f'v_add_f32 v10, v10, v{RR+r}\nv_fmac_f32 v11, v{RR+r}, v{RR+r}')
    k(f'v_add_f32_dpp v10, v10, v10 row_ror:8 {DPPALL}\nv_add_f32_dpp v11, v11, v11 row_ror:8 {DPPALL}')
    xrow('v_add_f32', 10, 12); xrow('v_add_f32', 11, 12)
    k('ds_write_b64 v9, v[10:11]')
    k(f's_lshl_b32 s{sT0}, s{sW}, 7\ns_add_u32 s{sT0}, s{sT0}, {WS_MOD}\ns_add_u32 s{sT1}, s{sT0}, 2304')
    k(f's_cmp_lt_u32 s{sW}, 2\ns_cselect_b32 s{sT2}, 512, 0\ns_add_u32 s{sT2}, s{sT2}, s{sT0}\ns_add_u32 s{sT3}, s{sT2}, 2304')
    k('s_waitcnt lgkmcnt(0)\ns_barrier')
    stamp(1)
    k(f'ds_read_b128 {vr(RR,4)}, v7\nds_read_b128 {vr(RR+4,4)}, v7 offset:16')
    for i in range(5):
        trread(i); k(f's_waitcnt lgkmcnt({4 if i < 4 else 0})')
    k(f'v_add_f32 v10, v{RR}, v{RR+2}\nv_add_f32 v11, v{RR+1}, v{RR+3}\nv_add_f32 v12, v{RR+4}, v{RR+6}\nv_add_f32 v13, v{RR+5}, v{RR+7}')
    k('v_add_f32 v10, v10, v12\nv_add_f32 v11, v11, v13\nv_mul_f32 v10, 0x3ae38e39, v10\nv_mul_f32 v11, 0x3ae38e39, v11')
    k('v_fma_f32 v11, -v10, v10, v11\nv_add_f32 v10, v10, v8\nv_max_f32 v11, 0, v11')
    if WHOLD:
        k(f's_cmp_lg_u32 s{sROLE}, 1\ns_cbranch_scc1 L_nowh')
        wstage(16)
        k.lab('L_nowh')
    rnd2(10, 11, 12)
    k('v_add_f32 v11, 0x3727c5ac, v11')
    rnd1(11, 12)
    k('v_sqrt_f32 v11, v11')
    rnd1(11, 12)
    k('v_rcp_f32 v11, v11')
    for i in range(5):
        d = LN + 4 * i
        for e in range(4): k(f'v_sub_f32 v{d+e}, v{d+e}, v10')
        rnd4(d, 12)
        for e in range(4): k(f'v_mul_f32 v{d+e}, v{d+e}, v11')
        rnd4(d, 12)
    if LQ: xcld(96, 98)
    poll('hpoll', [wsld(CG + 4 * i, 4, sT1 if i < 4 else sT3, 512 * min(i, 3)) for i in range(5)] +
                  [wsld(SG + 4 * i, 4, sT0 if i < 4 else sT2, 512 * min(i, 3)) for i in range(5)],
         [SG + 4 * i for i in range(10)], 12, 10, PSL, True)
    stamp(2)
    if LQ: xcchk(96, 76)
    for i in range(5):
        d, c_, s_ = LN + 4 * i, CG + 4 * i, SG + 4 * i
        unp(RR, c_); unp(RR + 2, c_ + 2); unp(RR + 4, s_); unp(RR + 6, s_ + 2)
        for e in range(4): k(f'v_add_f32 v{RR+e}, 1.0, v{RR+e}')
        rnd4(RR, 12)
        for e in range(4): k(f'v_mul_f32 v{d+e}, v{d+e}, v{RR+e}')
        rnd4(d, 12)
        for e in range(4): k(f'v_add_f32 v{d+e}, v{d+e}, v{RR+4+e}')
        k(f'v_cvt_pk_bf16_f32 v{CB+4*i}, v{d}, v{d+1}\nv_cvt_pk_bf16_f32 v{CB+4*i+1}, v{d+2}, v{d+3}')
        if i > 0:
            ror8pair(CB + 4 * (i - 1))
        if i > 1:
            for tile in range(4): mfma(AC + 4 * tile, WT + ((i - 2) * 4 + tile) * 4, CB + 4 * (i - 2), i == 2)
    ror8pair(CB + 16)
    for i in (3, 4):
        for tile in range(4): mfma(AC + 4 * tile, WT + (i * 4 + tile) * 4, CB + 4 * i, False)
    k.lab('L_wide')
    reduce_publish(RR, 36, 5, 78, 76 if LQ else None)
    k('s_barrier')
    def stage(parts, th):
        n = 0
        for part in parts:
            if part < 2: k(f's_mul_i32 s{sT2}, s{sW}, {144*9216}\ns_lshl_b32 s{sT3}, s{sR}, 6\ns_add_u32 s{sT2}, s{sT2}, s{sT3}')
            else: k(f's_mul_i32 s{sT2}, s{sR}, 36864\ns_mul_i32 s{sT3}, s{sW}, 9216\ns_add_u32 s{sT2}, s{sT2}, s{sT3}')
            for i in range(9):
                dma(30 if part < 2 else 6, (sA, sB_, sC_)[part], sT2, 9216 * part + 1024 * i, n, th); n += 1
                if i < 8: k(f's_add_u32 s{sT2}, s{sT2}, {16*9216 if part < 2 else 1024}')
    early = [0, 1, 2][:3 - SPLIT]; late = [0, 1, 2][3 - SPLIT:]
    def gfill(fill=True):
        srd(sA, pGA, 576 * 9216); srd(sB_, pUP, 576 * 9216); srd(sC_, pDN, 4608 * 1152); srd(sD_, pOUT, 9216)
        k('v_lshrrev_b32 v30, 2, v1\nv_mul_u32_u24 v30, 9216, v30\nv_and_b32 v5, 3, v1\nv_lshl_add_u32 v30, v5, 4, v30\nv_lshlrev_b32 v6, 4, v1')
        if early and fill:
            ldswait('gpre', F_PRE, 4, 4)
            stage(early, FTH)
    k.lab('L_pdone')
    stamp(3)
    if F0:
        k(f's_cmp_lg_u32 s{sROLE}, 0\ns_cbranch_scc1 L_nof0')
        gfill()
        k.lab('L_nof0')
    k(f's_cmp_lg_u32 s{sW}, 0\ns_cbranch_scc1 L_qdone')
    if QW: ldswait('qpre', F_PRE, QW, 4)
    k(f's_lshl_b32 s{sT0}, s{sHKV}, 13\ns_lshl_b32 s{sT1}, s{sBB}, 8\ns_add_u32 s{sT0}, s{sT0}, s{sT1}\ns_add_u32 s{sT0}, s{sT0}, {WS_Q}')
    k(f'v_lshlrev_b32 v4, 11, v2\nv_lshl_add_u32 v4, v3, 4, v4\nv_lshlrev_b32 v5, 3, v1\nv_add_u32 v5, {L_Q}, v5\nv_mov_b32 v12, {L_FLG}\nv_mov_b32 v13, 1')
    poll('qpoll', [wsld(24, 4, sT0)], [24], 10, 11, QSL)
    k(f'ds_write2_b32 v5, v24, v26 offset0:0 offset1:1\nds_write_b32 v12, v13 offset:{F_QRDY}')
    k.lab('L_qdone')
    stamp(4)
    k(f's_cmp_eq_u32 s{sROLE}, 1\ns_cbranch_scc1 L_wrole\ns_cmp_eq_u32 s{sROLE}, 3\ns_cbranch_scc1 L_nrole')

    def balance(name):
        POOL = 512 - 2 * QM
        if not POOL: return
        la = dict(g=LAG, w=LAW).get(name) or LA
        k(f's_cmp_lg_u32 s{sW}, 1\ns_cbranch_scc1 L_{name}bd')
        k(f's_lshl_b32 s20, s{sBB}, 4\ns_add_u32 s20, s20, s{sHKV}\ns_lshl_b32 s20, s20, 7\ns_add_u32 s20, s20, {WS_BAL}')
        k(f'v_mov_b32 v32, {L_FLG}\nv_mov_b32 v33, 0\nv_mov_b32 v34, 0\nv_mov_b32 v35, s{sTAG}\nv_mov_b32 v36, 0\nv_mov_b32 v37, s{sTAG}\ns_mov_b64 exec, 1')
        k(f's_cmp_lg_u32 s{sSP}, 0\ns_cbranch_scc1 L_{name}bi\nbuffer_store_dwordx4 v[34:37], v33, {sr(sWS,4)}, s20 offen sc1\ns_waitcnt vmcnt(0)')
        k.lab(f'L_{name}bi')
        if MID: ldswait(f'{name}mid2', F_POS, 2 * MID, 64)
        poll(f'{name}balp', [wsld(56, 33, 20)], [56], 38, 39, 32)
        k(f's_mov_b32 s18, {QM-32}\ns_mov_b32 s19, 0')
        k.lab(f'L_{name}bw')
        k(f'ds_read_b32 v34, v32 offset:{F_POS}\ns_waitcnt lgkmcnt(0)\nv_readfirstlane_b32 s21, v34\ns_add_u32 s21, s21, {la}\ns_cmp_ge_u32 s21, s18\ns_cbranch_scc1 L_{name}bt')
        retry(f'L_{name}bw', 4)
        k.lab(f'L_{name}bt')
        k(f's_sub_u32 s21, {POOL}, s19\ns_lshr_b32 s21, s21, {CSH}\ns_max_u32 s21, s21, {CMIN}\ns_min_u32 s21, s21, {CMAX}\nv_mov_b32 v34, s21')
        k(f'buffer_atomic_add v34, v33, {sr(sWS,4)}, s20 offen sc0 sc1\ns_waitcnt vmcnt(0)\nv_readfirstlane_b32 s19, v34')
        k(f's_min_u32 s23, s19, {POOL}\ns_add_u32 s19, s19, s21\ns_min_u32 s19, s19, {POOL}\ns_sub_u32 s23, s19, s23\ns_add_u32 s18, s18, s23')
        k(f's_cmp_ge_u32 s19, {POOL}\ns_cselect_b32 s23, 0x80000000, 0\ns_or_b32 s23, s23, s18\nv_mov_b32 v34, s23\nds_write_b32 v32, v34 offset:{F_LIM}')
        k(f's_cmp_lt_u32 s19, {POOL}\ns_cbranch_scc1 L_{name}bw\ns_mov_b64 exec, -1')
        k.lab(f'L_{name}bd')
    def pace(name):
        if not CP: return
        off = dict(g=POFF[0], w=POFF[1]).get(name, POFF[2])
        sh = {64: 2, 32: 3, 16: 4}[PN]
        if PCLK:
            k(f's_cmp_lg_u32 s{sW}, 2\ns_cbranch_scc1 L_{name}pd')
            k(f'v_mov_b32 v32, {L_FLG}\nv_and_b32 v33, {PN-1}, v1\nv_mul_u32_u24 v33, {PSTR}, v33\nv_mov_b32 v35, s{sTAG}')
            k(f's_lshr_b32 s18, s2, 3\ns_lshr_b32 s19, s2, 5\ns_add_u32 s18, s18, s19\ns_add_u32 s18, s18, s2\ns_and_b32 s19, s18, {(1 << sh) - 1}')
            k(f's_lshr_b32 s18, s2, {sh}\ns_mul_i32 s18, s18, {PSTR}\ns_cmp_eq_u32 s19, 0\ns_cselect_b32 s18, s18, {OOB:#x}')
            for ci, C in enumerate(CP):
                n_ = f'{name}c{ci}'
                ldswait(f'{n_}u', F_POS, C - 32 - PCLK - 6, 32)
                ldswait(f'{n_}v', F_POS, C - 32 - PCLK, 2)
                k(f's_memrealtime s[20:21]\ns_add_u32 s19, s18, {WS_PACE + 128 * ci}\ns_waitcnt lgkmcnt(0)\nv_mov_b32 v34, s20')
                k(f's_mov_b64 exec, 1\nbuffer_store_dwordx2 v[34:35], off, {sr(sWS,4)}, s19 sc1\ns_mov_b64 exec, -1')
                ldswait(f'{n_}w', F_POS, C - 32, 16)
                k(f's_mov_b32 s19, {WS_PACE + 128 * ci}\nbuffer_load_dwordx2 v[36:37], v33, {sr(sWS,4)}, s19 offen sc1\ns_waitcnt vmcnt(0)\nds_read_b32 v38, v32 offset:{F_POS}')
                k(f'v_sub_u32 v36, v34, v36\nv_mov_b32 v39, {-PCLK * 28}\nv_cmp_eq_u32 vcc, v35, v37\nv_cndmask_b32 v36, v39, v36, vcc\nv_cvt_f32_i32 v36, v36')
                for m in ('quad_perm:[1,0,3,2]', 'quad_perm:[2,3,0,1]', 'row_half_mirror', 'row_mirror'):
                    k(f'v_add_f32_dpp v36, v36, v36 {m} {DPPALL}')
                xrow('v_add_f32', 36, 39)
                if LP is None or ci < len(CP) - 1:
                    k(f'v_mov_b32 v39, {f2u(PK * (PD + off)):#x}\nv_fmac_f32 v39, {f2u(PK / 64 / 27.6):#x}, v36\nv_max_f32 v39, 0, v39\nv_min_f32 v39, 0x42800000, v39\nv_cvt_u32_f32 v39, v39')
                    k(f's_waitcnt lgkmcnt(0)\nv_add3_u32 v38, v38, v39, 36\nds_write_b32 v32, v38 offset:{F_BST}\ns_waitcnt lgkmcnt(0)')
                    k('v_mov_b32 v56, v34\nv_mov_b32 v57, v36')
                else:
                    k(f'v_sub_u32 v56, v34, v56\nv_cvt_f32_i32 v56, v56\nv_sub_f32 v57, v57, v36\nv_fmac_f32 v56, {f2u(1 / 64):#x}, v57')
                    k(f'v_rcp_f32 v56, v56\nv_mul_f32 v36, {f2u(1 / 64):#x}, v36\nv_mul_f32 v56, {f2u(float(C - CP[ci - 1]) * TSC):#x}, v56')
                    for li, P_ in enumerate((0,) + tuple(LP)):
                        if P_: ldswait(f'{n_}l{li}', F_POS, P_ - 32, 4)
                        k(f's_memrealtime s[20:21]\nds_read_b32 v38, v32 offset:{F_POS}\ns_waitcnt lgkmcnt(0)')
                        k(f'v_subrev_u32 v39, v34, s20'.replace('v_subrev_u32 v39, v34, s20', 'v_sub_u32 v39, s20, v34'))
                        k(f'v_cvt_f32_i32 v39, v39\nv_add_f32 v39, v39, v36\nv_cvt_f32_u32 v58, v38\nv_subrev_f32 v58, {f2u(float(C - 32 - PCLK + PD + off)):#x}, v58')
                        k(f'v_fma_f32 v39, v39, v56, -v58\nv_mul_f32 v39, {f2u(PK):#x}, v39\nv_max_f32 v39, 0, v39\nv_min_f32 v39, 0x42800000, v39\nv_cvt_u32_f32 v39, v39')
                        k(f'v_add3_u32 v38, v38, v39, 36\nds_write_b32 v32, v38 offset:{F_BST}\ns_waitcnt lgkmcnt(0)')
            k.lab(f'L_{name}pd')
            return
        k(f's_cmp_lt_u32 s{sW}, 2\ns_cbranch_scc1 L_{name}pd')
        k(f'v_mov_b32 v32, {L_FLG}\nv_and_b32 v33, {PN-1}, v1\nv_mul_u32_u24 v33, {PSTR}, v33\nv_mov_b32 v34, s{sTAG}')
        k(f's_cmp_eq_u32 s{sW}, 2\ns_cbranch_scc1 L_{name}pw')
        k(f's_lshr_b32 s18, s2, 3\ns_lshr_b32 s19, s2, 5\ns_add_u32 s18, s18, s19\ns_add_u32 s18, s18, s2\ns_and_b32 s18, s18, {(1 << sh) - 1}\ns_cmp_lg_u32 s18, 0\ns_cbranch_scc1 L_{name}pd')
        k(f's_lshr_b32 s18, s2, {sh}\ns_mul_i32 s19, s18, 37\ns_and_b32 s19, s19, {PN-1}\ns_mul_i32 s19, s19, {PSPAN}\ns_lshr_b32 s19, s19, {8-sh}\ns_mul_i32 s18, s18, {PSTR}')
        for ci, C in enumerate(CP):
            k(f's_add_u32 s20, s19, {C - 32 - PW0}\ns_add_u32 s21, s18, {WS_PACE + 128 * ci}')
            ldswait(f'{name}mk{ci}', F_POS, 's20', PSLP)
            if 'now' not in PDBG: k(f's_mov_b64 exec, 1\nbuffer_store_dword v34, off, {sr(sWS,4)}, s21 sc1\ns_mov_b64 exec, -1')
        k(f's_branch L_{name}pd')
        k.lab(f'L_{name}pw')
        for ci, C in enumerate(CP):
            n_ = f'{name}p{ci}'
            k(f's_mov_b32 s21, {OOB if "nor" in PDBG else WS_PACE + 128 * ci}')
            ldswait(f'{n_}w', F_POS, C - 32, PSLP)
            k(f'buffer_load_dword v35, v33, {sr(sWS,4)}, s21 offen sc1\ns_waitcnt vmcnt(0)\nds_read_b32 v38, v32 offset:{F_POS}\nv_cmp_eq_u32 vcc, v34, v35\ns_bcnt1_i32_b64 s23, vcc')
            k(f's_mul_i32 s23, s23, {PSPAN * 4}\ns_sub_i32 s23, s23, {round(256 * (PW0 - PD - off))}\ns_cmp_le_i32 s23, 0\ns_cbranch_scc1 L_{n_}e')
            k(f's_mul_i32 s23, s23, {round(PK * 16)}\ns_lshr_b32 s23, s23, 12\ns_waitcnt lgkmcnt(0)\nv_readfirstlane_b32 s22, v38')
            k(f's_add_u32 s23, s23, s22\ns_add_u32 s23, s23, 36\nv_mov_b32 v38, s23\nds_write_b32 v32, v38 offset:{F_BST}')
            k.lab(f'L_{n_}e')
            k('s_waitcnt lgkmcnt(0)')
        k.lab(f'L_{name}pd')
    def locality(name):
        ldswait(f'{name}loc', F_POS, MID, 64)
        xcld(56, 58)
        k('s_waitcnt vmcnt(0)')
        xcchk(56, 34)
        k(f'v_mov_b32 v13, s34\nds_write_b32 v12, v13 offset:{F_LOC}')
    def selmasks(a, b):
        k('v_and_b32 v8, 1, v3\nv_lshlrev_b32 v8, 4, v8\nv_mov_b32 v9, 0x3f80\nv_lshlrev_b32 v9, v8, v9')
        k(f'v_and_b32 v8, 2, v3\nv_cmp_eq_u32 vcc, 0, v8\nv_cndmask_b32 v{a}, 0, v9, vcc\nv_sub_u32 v{b}, v9, v{a}')
    def stream_done(name):
        m = WST if name == 'wpub' else GST
        if m == 'pub': ldswait(name, F_PUB, 1, 1)
        elif m.startswith('cnt'): ldswait(name, F_CNT, int(m[3:]), 1)
        else: k('s_barrier')
    rm = [int(c) for c in RMODE]; rs = [int(c, 16) for c in RSL]

    GW, DW, YA, BO, FS, FS5, XG, GB = 176, 140, 104, 84, 76, 80, 72, 68
    def conv(part):
        if part < 2:
            for t_ in range(5):
                for tile in (2 * part, 2 * part + 1):
                    o = part * 9216 + (tile & 1) * 32 + t_ * 2048
                    r = GW + (t_ * 4 + tile) * 4
                    va = 16 if t_ < 4 else 17
                    k(f'ds_read_b64_tr_b16 {vr(r,2)}, v{va} offset:{o}\nds_read_b64_tr_b16 {vr(r+2,2)}, v{va} offset:{o+256}')
                if t_ in (2, 4): k(f's_waitcnt lgkmcnt({4 if t_ == 2 else 0})')
        else:
            for u in range(9):
                k(f'ds_read_b64_tr_b16 {vr(DW+4*u,2)}, v31 offset:{32*u}\nds_read_b64_tr_b16 {vr(DW+4*u+2,2)}, v31 offset:{4608+32*u}')
                if u in (5, 8): k(f's_waitcnt lgkmcnt({6 if u == 5 else 0})')
    gfill(not F0)
    k(f's_lshr_b32 s72, s{sR}, 2\ns_and_b32 s73, s{sR}, 3')
    k('v_bfe_u32 v8, v3, 2, 1\nv_lshl_add_u32 v8, s73, 1, v8\nv_and_b32 v9, 3, v3\nv_lshl_add_u32 v9, s72, 2, v9')
    k('v_mul_u32_u24 v20, 13824, v8\nv_lshl_add_u32 v20, v9, 4, v20')
    k('v_mul_u32_u24 v21, 1152, v8\nv_lshl_add_u32 v21, v9, 3, v21')
    k('v_mul_u32_u24 v10, 1821, v9\nv_lshrrev_b32 v10, 16, v10\nv_lshlrev_b32 v10, 6, v10')
    k('v_mul_u32_u24 v22, 2560, v8\nv_lshl_add_u32 v22, v9, 4, v22\nv_add_u32 v22, v22, v10')
    selmasks(FS, FS + 2)
    k(f'v_mov_b32 v{FS+1}, 0\nv_mov_b32 v{FS+3}, 0\nv_mov_b32 v{FS5+1}, 0\nv_mov_b32 v{FS5+3}, 0')
    k(f's_cmp_lt_u32 s{sW}, 2\ns_cselect_b32 s{sT0}, -1, 0\nv_and_b32 v{FS5}, s{sT0}, v{FS}\nv_and_b32 v{FS5+2}, s{sT0}, v{FS+2}')
    mask64(sM0, 0x00ff)
    k(f'v_lshrrev_b32 v8, 2, v3\nv_and_b32 v9, 3, v3\nv_lshlrev_b32 v17, 6, v8\nv_lshl_add_u32 v17, v9, 3, v17\nv_add_u32 v17, s{sST}, v17')
    k('v_lshl_add_u32 v16, v2, 9, v17\nv_and_b32 v10, 1, v2\nv_lshl_add_u32 v17, v10, 9, v17')
    k(f'v_mul_u32_u24 v31, 1152, v8\nv_lshl_add_u32 v31, v9, 3, v31\nv_mul_u32_u24 v10, 27648, v2\ns_mul_i32 s{sT0}, s{sW}, 288\ns_add_u32 s{sT0}, s{sT0}, 18432\nv_add3_u32 v31, v31, v10, s{sT0}')
    k('v_and_b32 v8, 7, v3\nv_lshrrev_b32 v9, 3, v3')
    k('v_mul_u32_u24 v4, 2560, v8\nv_lshl_add_u32 v4, v2, 5, v4\nv_lshl_add_u32 v4, v9, 4, v4')
    k('v_lshrrev_b32 v5, 1, v8\nv_mul_u32_u24 v5, 18432, v5\nv_and_b32 v10, 1, v3\nv_lshl_add_u32 v5, v10, 6, v5\nv_lshl_add_u32 v5, v2, 4, v5\nv_lshl_add_u32 v5, v9, 30, v5')
    k(f'v_mul_u32_u24 v14, 272, v8\nv_lshl_add_u32 v15, v2, 5, v14\nv_lshl_add_u32 v15, v9, 4, v15\nv_add_u32 v15, {L_PT}, v15')
    k(f's_mul_i32 s{sT0}, s{sW}, 2176\ns_add_u32 s{sT0}, s{sT0}, {L_PT}\nv_lshl_add_u32 v14, v2, 4, v14\nv_add_u32 v14, s{sT0}, v14')
    k(f'v_lshlrev_b32 v19, 4, v8\nv_add_u32 v19, {L_RED}, v19\ns_lshl_b32 s{sT0}, s{sW}, 7\nv_add_u32 v18, s{sT0}, v19\nv_lshlrev_b32 v23, 7, v8')
    k('s_waitcnt vmcnt(0)')
    for part in early:
        if part < 2: conv(part)
    locality('g')
    k(f's_mov_b32 s{sT0}, {WS_MOD + 11520}')
    poll('gbp', [wsld(24, 20, sT0)], [24], 28, 29, 32)
    unp(GB, 24); unp(GB + 2, 26)
    k(f's_mul_i32 s{sT1}, s{sX}, 20480\ns_mul_i32 s{sT0}, s{sW}, 640\ns_add_u32 s{sT0}, s{sT0}, s{sT1}\ns_add_u32 s{sT0}, s{sT0}, {WS_H2}\ns_add_u32 s{sT1}, s{sT1}, {WS_X2}')
    k(f's_mul_i32 s72, s{sW}, {36*18432}\ns_lshl_b32 s73, s{sR}, 7\ns_add_u32 s72, s72, s73\ns_add_u32 s72, s72, {WS_YP}')
    balance('g'); pace('g')
    for r in range(AC, AC + 16): k(f'v_mov_b32 v{r}, 0')
    stream_done('gpub')
    stamp(5)
    stage(late, 27)
    def gact(i):
        def f():
            strip(BO + 4 * i)
            for tile in range(4): mfma(AC + 4 * tile, GW + (i * 4 + tile) * 4, BO + 4 * i, False)
        return f
    h2items = [(wsld(BO + 4 * i, 4, sT0, 128 * i), BO + 4 * i, gact(i)) for i in range(5)]
    if not H2L:
        for l, _, _ in h2items: k(l)
    for n_, part in enumerate(late):
        k(f's_waitcnt vmcnt({(0 if H2L else 5) + 9 * (len(late) - 1 - n_)})')
        if part < 2: conv(part)
    if H2L == 1:
        for l, _, _ in h2items: k(l)
    k('s_barrier')
    if H2L == 2:
        for l, _, _ in h2items: k(l)
    conv(2)
    stamp(6)
    if rm[2] in (0, 3):
        gather('h2p', [(l, b_, lambda: None) for l, b_, _ in h2items], rm[2], rs[2], True)
        strip(BO)
        for i in range(5):
            for tile in range(4):
                mfma(AC + 4 * tile, GW + (i * 4 + tile) * 4, BO + 4 * i, i == 0)
                if tile == 0 and i < 4: strip(BO + 4 * (i + 1))
    else: gather('h2p', h2items, rm[2], rs[2], True)
    stamp(7)
    k(f's_mov_b64 exec, {sr(sM0,2)}')
    for tile in range(4): k(f'ds_write_b128 v14, {vr(AC+4*tile,4)} offset:{64*tile}')
    k('s_mov_b64 exec, -1')
    for u in range(9): k(f'v_mov_b32 v{GW+4*u+1}, s{sTAG}\nv_mov_b32 v{GW+4*u+3}, s{sTAG}')
    k('s_waitcnt lgkmcnt(0)\ns_barrier')
    for i in range(4): k(f'ds_read_b128 {vr(YA+4*i,4)}, v15 offset:{2176*i}')
    for i in range(4): k(f'ds_read_b128 {vr(YA+16+4*i,4)}, v15 offset:{2176*i+128}')
    G_, U_ = YA, YA + 16
    c1 = -2 * 0.7978845608028654 * 1.4426950408889634
    k(f's_mov_b32 s{sT2}, {f2u(c1*0.044715):#x}\nv_mov_b32 v13, {f2u(c1):#x}')
    for r in range(AC, AC + 4): k(f'v_mov_b32 v{r}, 0')
    k('s_waitcnt lgkmcnt(4)')
    sum4(G_)
    rnd4(G_, 8)
    for e in range(4): k(f'v_mul_f32 v{G_+4+e}, v{G_+e}, v{G_+e}')
    for e in range(4): k(f'v_fma_f32 v{G_+4+e}, v{G_+4+e}, s{sT2}, v13')
    for e in range(4): k(f'v_mul_f32 v{G_+4+e}, v{G_+4+e}, v{G_+e}')
    for e in range(4): k(f'v_exp_f32 v{G_+4+e}, v{G_+4+e}')
    k('s_waitcnt lgkmcnt(0)')
    sum4(U_)
    for e in range(4): k(f'v_add_f32 v{G_+4+e}, 1.0, v{G_+4+e}')
    for e in range(4): k(f'v_rcp_f32 v{G_+4+e}, v{G_+4+e}')
    rnd4(U_, 8)
    for e in range(4): k(f'v_mul_f32 v{G_+e}, v{G_+e}, v{G_+4+e}')
    rnd4(G_, 10)
    for e in range(4): k(f'v_mul_f32 v{G_+e}, v{G_+e}, v{U_+e}')
    k(f'v_cvt_pk_bf16_f32 v{BO}, v{G_}, v{G_+1}\nv_cvt_pk_bf16_f32 v{BO+1}, v{G_+2}, v{G_+3}')
    ror8pair(BO)
    def ystore(u):
        r, z = YA + 4 * u, GW + 4 * u
        k(f'v_cvt_pk_bf16_f32 v{z}, v{r}, v{r+1}\nv_cvt_pk_bf16_f32 v{z+2}, v{r+2}, v{r+3}')
        k(f'buffer_store_dwordx4 {vr(z,4)}, v5, {sr(sWS,4)}, s72 offen sc1')
        if u < 8: k(f's_add_u32 s72, s72, {4*18432}')
    for u in range(9):
        mfma(YA + 4 * u, DW + 4 * u, BO, True)
        if u >= 3: ystore(u - 3)
    for u in range(6, 9): ystore(u)
    stamp(8)
    k(f's_mul_i32 s72, s{sR}, 18432\ns_lshl_b32 s73, s{sW}, 10\ns_add_u32 s72, s72, s73\ns_add_u32 s72, s72, {WS_YP}')
    k('s_add_u32 s73, s72, 4096\ns_add_u32 s74, s72, 8192\ns_add_u32 s75, s72, 12288')
    k(f's_cmp_lt_u32 s{sW}, 2\ns_cselect_b32 s76, 4096, 0\ns_add_u32 s76, s76, s75')
    k('s_waitcnt vmcnt(0)')
    if FBAR: k('s_barrier')
    gather('yp', [(wsld(BO + 4 * i, 6, 72 + i), BO + 4 * i, (lambda i=i: mfma(AC, FS if i < 4 else FS5, BO + 4 * i, False))) for i in range(5)] +
           [(wsld(XG, 22, sT1), XG, lambda: (unp(24, XG), unp(26, XG + 2)))], rm[3], rs[3])
    stamp(9)
    for e in range(4): k(f'v_add_f32_dpp v{AC+e}, v{AC+e}, v{AC+e} row_ror:8 {DPPALL}')
    k(f's_mov_b64 exec, 0xff\nds_write_b128 v18, {vr(AC,4)}\ns_waitcnt lgkmcnt(0)\ns_barrier')
    k(f's_cmp_lg_u32 s{sW}, 0\ns_cbranch_scc1 L_exit')
    for i in range(4): k(f'ds_read_b128 {vr(YA+4*i,4)}, v19 offset:{128*i}')
    k('s_waitcnt lgkmcnt(0)')
    sum4(YA)
    rnd4(YA, 8)
    for e in range(4): k(f'v_mul_f32 v{YA+e}, v{GB+e}, v{YA+e}')
    rnd4(YA, 8)
    for e in range(4): k(f'v_add_f32 v{YA+e}, v{24+e}, v{YA+e}')
    k(f'v_cvt_pk_bf16_f32 v8, v{YA}, v{YA+1}\nv_cvt_pk_bf16_f32 v9, v{YA+2}, v{YA+3}')
    k(f'buffer_store_dwordx2 v[8:9], v21, {sr(sD_,4)}, 0 offen')
    k(f's_cmp_lg_u32 s{sR}, 0\ns_cbranch_scc1 L_exit')
    k(f'v_mov_b32 v10, s{sEP}\nv_mov_b32 v11, 0\ns_mov_b64 exec, 1\nbuffer_store_dword v10, v11, {sr(sWS,4)}, 0 offen')
    k('s_branch L_exit')

    k.lab('L_wrole')
    WW, OG, MLG, BW, AB = 192, 160, 156, 140, 112
    GA, SEL, RAW, MG, MS, MC, MX, X2 = 160, 92, 76, 60, 64, 68, 72, 128
    sM9, sM10 = 28, 30
    if WHOLD: k(f's_cmp_eq_u32 s{sPRO}, 3\ns_cbranch_scc1 L_wst')
    wstage(WTH)
    k.lab('L_wst')
    k(f'v_lshrrev_b32 v8, 2, v3\nv_and_b32 v9, 3, v3\nv_lshl_add_u32 v10, v2, 3, v8\nv_lshlrev_b32 v10, 7, v10\nv_lshl_add_u32 v10, v9, 3, v10\nv_add_u32 v10, s{sST}, v10')
    k('s_waitcnt vmcnt(0)')
    for t_ in range(4):
        for tile in range(4):
            r = WW + (t_ * 4 + tile) * 4
            o = t_ * 4096 + tile * 32
            k(f'ds_read_b64_tr_b16 {vr(r,2)}, v10 offset:{o}\nds_read_b64_tr_b16 {vr(r+2,2)}, v10 offset:{o+512}')
        k('s_waitcnt lgkmcnt(0)')
    locality('w')
    k(f's_cmp_lt_u32 s{sCN}, 8\ns_cselect_b32 s76, 1, 0')
    k('v_mov_b32 v108, 0\nv_mov_b32 v109, 0\ns_cbranch_scc0 L_wnor')
    selmasks(10, 11)
    for r in range(SEL, SEL + 16): k(f'v_mov_b32 v{r}, 0')
    for v in range(4):
        k(f'v_mov_b32_dpp v{SEL+4*v}, v10 quad_perm:[0,1,2,3] row_mask:0xf bank_mask:{1<<v:#x}')
        k(f'v_mov_b32_dpp v{SEL+4*v+2}, v11 quad_perm:[0,1,2,3] row_mask:0xf bank_mask:{1<<v:#x}')
    mask64(sM9, 0x01ff); mask64(sM10, 0x03ff)
    k(f'v_min_u32 v8, 8, v3\ns_mul_i32 s{sT0}, s{sW}, 576')
    k(f'v_mul_u32_u24 v109, 144, v2\nv_lshl_add_u32 v109, v8, 4, v109\nv_add_u32 v4, s{sT0}, v109')
    k(f'v_mul_u32_u24 v108, 2304, v2\nv_lshl_add_u32 v108, v8, 4, v108\nv_add_u32 v108, s{sT0}, v108')
    k(f'v_lshlrev_b32 v9, 4, v2\nv_add_u32 v9, 576, v9\nv_cndmask_b32 v109, v9, v109, {sr(sM9,2)}')
    k(f's_mul_i32 s{sT0}, s{sCN}, 13824\ns_add_u32 s{sT0}, s{sT0}, {WS_MOD + 4608}\ns_add_u32 s{sT1}, s{sT0}, 4608')
    k(f's_mul_i32 s{sT2}, s{sCN}, 1152\nv_lshrrev_b32 v8, 1, v4')
    k(f'buffer_load_dwordx2 {vr(RAW+12,2)}, v8, {sr(sD_,4)}, s{sT2} offen')
    poll('rmod', [wsld(RAW, 4, sT0), wsld(RAW + 4, 4, sT0, 2304), wsld(RAW + 8, 4, sT1)], [RAW, RAW + 4, RAW + 8], 10, 11, 32)
    for j, d in enumerate((MG, MS, MC)):
        unp(d, RAW + 4 * j); unp(d + 2, RAW + 4 * j + 2)
    unp(MX, RAW + 12); unp(MX + 2, RAW + 13)
    for e in range(4): k(f'v_add_f32 v{MC+e}, 1.0, v{MC+e}')
    rnd4(MC, 8)
    k(f's_mul_i32 s74, s{sCN}, 18432\ns_add_u32 s74, s74, {WS_AP}\ns_add_u32 s75, s74, 9216')
    k(f's_mul_i32 s72, s{sCN}, 2560\ns_mul_i32 s73, s{sW}, 640\ns_add_u32 s72, s72, s73')
    k(f's_mul_i32 s73, s{sX}, 20480\ns_add_u32 s72, s72, s73\ns_add_u32 s73, s72, {WS_X2}\ns_add_u32 s72, s72, {WS_H2}')
    k(f's_lshl_b32 s{sT2}, s{sW}, 3\ns_add_u32 s{sT2}, s{sT2}, {L_STA}\nv_mov_b32 v22, s{sT2}\nv_mov_b32 v23, {L_STA}')
    for r in (25, 27, 29, 31): k(f'v_mov_b32 v{r}, s{sTAG}')
    for r in [28, 30] + list(range(X2, X2 + 4)): k(f'v_mov_b32 v{r}, 0')
    k('s_mov_b32 s33, 0x3be38e39')
    k.lab('L_wnor')
    redaddr(18432, 7, 17, 19)
    k(f's_and_b32 s{sT0}, s{sW}, 1\ns_lshl_b32 s{sT1}, s{sT0}, 9\ns_lshl_b32 s{sT0}, s{sT0}, 4\ns_add_u32 s{sT0}, s{sT0}, 1024')
    k('v_and_b32 v8, 7, v3\nv_lshrrev_b32 v9, 3, v3\nv_mul_u32_u24 v5, 2304, v8')
    k(f'v_lshl_add_u32 v4, v2, 5, v5\nv_lshl_add_u32 v4, v9, 4, v4\nv_add_u32 v4, s{sT1}, v4')
    k(f'v_mul_u32_u24 v9, 1152, v9\nv_add3_u32 v5, v5, v9, s{sT0}')
    k(f's_lshl_b32 s{sT0}, s{sX}, 1\ns_lshr_b32 s{sT1}, s{sW}, 1\ns_add_u32 s{sT0}, s{sT0}, s{sT1}\ns_mul_i32 s{sT0}, s{sT0}, {16*1152}\ns_add_u32 s{sT0}, s{sT0}, {WS_OP}')
    k(f's_mul_i32 s{sT1}, s{sX}, 2304\ns_lshl_b32 s{sT2}, s{sCN}, 8\ns_add_u32 s{sT1}, s{sT1}, s{sT2}\ns_add_u32 s{sT1}, s{sT1}, {WS_AP}')
    balance('w'); pace('w')
    for r in list(range(AC, AC + 16)) + list(range(AB, AB + 16)): k(f'v_mov_b32 v{r}, 0')
    stream_done('wpub')
    stamp(5)
    def wact(t_, sp):
        def f():
            b = OG + (2 * t_ + sp) * 4
            strip(b)
            for tile in range(4): mfma((AB if sp else AC) + 4 * tile, WW + (t_ * 4 + tile) * 4, b, False)
        return f
    def mlact():
        k(f'v_max_f32_dpp v20, v{MLG}, v{MLG} row_ror:8 {DPPALL}\nv_sub_f32 v20, v{MLG}, v20\nv_exp_f32 v20, v20')
        k(f'v_mul_f32 v21, v20, v{MLG+2}\nv_add_f32_dpp v21, v21, v21 row_ror:8 {DPPALL}\nv_rcp_f32 v21, v21\nv_mul_f32 v20, v20, v21')
        k(f'v_mov_b32_dpp v21, v20 row_ror:8 {DPPALL}')
    nop = lambda: None
    gather('op', [(wsld(OG + (2 * t_ + sp) * 4, 4, sT0, 1152 * sp + 128 * t_), OG + (2 * t_ + sp) * 4, nop if WMRG else wact(t_, sp)) for sp in range(2) for t_ in range(4)] +
           [(wsld(MLG, 5, sT0), MLG, nop if WMRG else mlact)], rm[0], rs[0])
    if WMRG:
        def wb(t_):
            A_, B_ = OG + 8 * t_, OG + 8 * t_ + 4
            return [f'v_mov_b32 v{A_+3}, v{B_+2}', f'v_mov_b32 v{A_+1}, v{A_+2}',
                    f'v_mov_b32_dpp v{B_+1}, v{A_} row_ror:8 {DPPALL}',
                    f'v_mov_b32_dpp v{A_+3}, v{A_+2} row_ror:8 row_mask:0xf bank_mask:0x3',
                    f'v_mov_b32_dpp v{A_+1}, v{B_+2} row_ror:8 row_mask:0xf bank_mask:0xc',
                    f'v_mov_b32_dpp v{A_}, v{B_} row_ror:8 row_mask:0xf bank_mask:0xc',
                    f'v_cndmask_b32 v{A_+2}, v{B_}, v{B_+1}, {sr(sM0,2)}']
        ml = [f'v_max_f32_dpp v20, v{MLG}, v{MLG} row_ror:8 {DPPALL}', f'v_sub_f32 v20, v{MLG}, v20', 'v_exp_f32 v20, v20', None,
              f'v_mul_f32 v21, v20, v{MLG+2}', None, f'v_add_f32_dpp v21, v21, v21 row_ror:8 {DPPALL}', 'v_rcp_f32 v21, v21']
        for l in wb(0): k(l)
        for t_ in range(4):
            fill = wb(t_ + 1) if t_ < 3 else ml
            cut = (3, 5, 7, 7) if t_ < 3 else (3, 5, 8, 8)
            p = 0
            for tile in range(4):
                mfma(AC + 4 * tile, WW + (t_ * 4 + tile) * 4, OG + 8 * t_, t_ == 0)
                for l in fill[p:cut[tile]]:
                    if l: k(l)
                p = cut[tile]
        k('v_mul_f32 v20, v20, v21')
        stamp(6)
        for r in range(16): k(f'v_mul_f32 v{AC+r}, v20, v{AC+r}')
        for r in range(16): k(f'v_add_f32_dpp v{AC+r}, v{AC+r}, v{AC+r} row_ror:8 {DPPALL}')
    else:
        stamp(6)
        for r in range(16): k(f'v_mul_f32 v{AC+r}, v20, v{AC+r}')
        for r in range(16): k(f'v_fmac_f32 v{AC+r}, v21, v{AB+r}')
    reduce_publish(BW, 16, 7, sT1)
    stamp(7)
    k('s_cmp_eq_u32 s76, 0\ns_cbranch_scc1 L_exit')
    k('s_waitcnt vmcnt(0)')
    gather('ap', [(wsld(GA + (u * 4 + v) * 4, 108, 74 + u, 144 * v), GA + (u * 4 + v) * 4,
                   (lambda u=u, v=v: mfma(X2, SEL + 4 * v, GA + (u * 4 + v) * 4, False))) for u in range(2) for v in range(4)], rm[1], rs[1])
    stamp(8)
    rnd4(X2, 8)
    for e in range(4): k(f'v_mul_f32 v{X2+e}, v{MG+e}, v{X2+e}')
    rnd4(X2, 8)
    for e in range(4): k(f'v_add_f32 v{X2+e}, v{MX+e}, v{X2+e}')
    k(f'v_cvt_pk_bf16_f32 v24, v{X2}, v{X2+1}\nv_cvt_pk_bf16_f32 v26, v{X2+2}, v{X2+3}')
    unp(X2, 24); unp(X2 + 2, 26)
    k(f'v_readfirstlane_b32 s{sT2}, v{X2}')
    for e in range(4): k(f'v_subrev_f32 v{12+e}, s{sT2}, v{X2+e}')
    k('v_add_f32 v8, v12, v13\nv_mul_f32 v9, v12, v12\nv_add_f32 v10, v14, v15\nv_fmac_f32 v9, v13, v13\nv_add_f32 v8, v8, v10\nv_fmac_f32 v9, v14, v14\nv_fmac_f32 v9, v15, v15')
    k(f'v_cndmask_b32 v8, 0, v8, {sr(sM9,2)}\nv_cndmask_b32 v9, 0, v9, {sr(sM9,2)}')
    for m in ('row_shr:1 row_mask:0xf', 'row_shr:2 row_mask:0xf', 'row_shr:4 row_mask:0xf', 'row_shr:8 row_mask:0xf', 'row_bcast:15 row_mask:0xa', 'row_bcast:31 row_mask:0xc'):
        bc = ' bound_ctrl:0' if 'shr' in m else ''
        k(f'v_add_f32_dpp v8, v8, v8 {m} bank_mask:0xf{bc}\nv_add_f32_dpp v9, v9, v9 {m} bank_mask:0xf{bc}')
    k(f'v_mul_f32 v10, s33, v8\nv_fma_f32 v9, -v10, v8, v9\nv_add_f32 v8, s{sT2}, v10')
    k('s_mov_b32 exec_lo, 0\ns_mov_b32 exec_hi, 0x80000000\nds_write_b64 v22, v[8:9]')
    k('s_mov_b64 exec, -1\ns_waitcnt lgkmcnt(0)\ns_barrier')
    k(f'ds_read_b128 {vr(AC,4)}, v23\nds_read_b128 {vr(AC+4,4)}, v23 offset:16\ns_waitcnt lgkmcnt(0)')
    k(f'v_add_f32 v8, v{AC}, v{AC+2}\nv_add_f32 v9, v{AC+4}, v{AC+6}\nv_add_f32 v10, v{AC+1}, v{AC+3}\nv_add_f32 v11, v{AC+5}, v{AC+7}')
    k('v_add_f32 v8, v8, v9\nv_add_f32 v10, v10, v11\nv_mul_f32 v8, 0x3e800000, v8')
    for i in range(4): k(f'v_sub_f32 v{AC+2*i}, v{AC+2*i}, v8')
    k(f'v_mul_f32 v9, v{AC}, v{AC}\nv_fmac_f32 v9, v{AC+2}, v{AC+2}\nv_fmac_f32 v9, v{AC+4}, v{AC+4}\nv_fmac_f32 v9, v{AC+6}, v{AC+6}')
    k('v_mul_f32 v10, 0x3ae38e39, v10\nv_fmac_f32 v10, 0x3e800000, v9\nv_max_f32 v10, 0, v10')
    rnd2(8, 10, 9)
    k('v_add_f32 v10, 0x3727c5ac, v10')
    for e in range(4): k(f'v_sub_f32 v{X2+e}, v{X2+e}, v8')
    rnd1(10, 9)
    k('v_sqrt_f32 v10, v10')
    rnd4(X2, 12)
    rnd1(10, 9)
    k('v_rcp_f32 v10, v10')
    for e in range(4): k(f'v_mul_f32 v{X2+e}, v{X2+e}, v10')
    rnd4(X2, 12)
    for e in range(4): k(f'v_mul_f32 v{X2+e}, v{X2+e}, v{MC+e}')
    rnd4(X2, 12)
    for e in range(4): k(f'v_add_f32 v{X2+e}, v{X2+e}, v{MS+e}')
    k(f's_mov_b64 exec, {sr(sM9,2)}')
    k(f'v_cvt_pk_bf16_f32 v28, v{X2}, v{X2+1}\nv_cvt_pk_bf16_f32 v30, v{X2+2}, v{X2+3}')
    k(f's_mov_b64 exec, {sr(sM10,2)}')
    st2(f'buffer_store_dwordx4 v[28:31], v109, {sr(sWS,4)}, s72 offen', 34, LH)
    st2(f'buffer_store_dwordx4 v[24:27], v109, {sr(sWS,4)}, s73 offen', 34, LH)
    stamp(9)
    k('s_branch L_exit')

    k.lab('L_nrole')
    locality('n')
    if WARM:
        k(f's_cmp_lg_u32 s{sW}, 0\ns_cbranch_scc1 L_nwarm\ns_cmp_lg_u32 s{sIP}, {[u for u, (r, _) in enumerate(TAIL) if r == 3][0]}\ns_cbranch_scc1 L_nwarm')
        ldswait('nw', F_POS, WARM - 32, 32)
        k(f'v_lshlrev_b32 v8, 7, v1\ns_mul_i32 s{sT0}, s{sX}, {32*1152}\ns_add_u32 s{sT0}, s{sT0}, {WS_OP}')
        for i in range(5):
            k(f'buffer_load_dword v{16+i}, v8, {sr(sWS,4)}, s{sT0} offen sc1\ns_add_u32 s{sT0}, s{sT0}, {8192 if i < 3 else 4096}')
        k('s_waitcnt vmcnt(0)')
        k.lab('L_nwarm')
    balance('n'); pace('n')

    k.lab('L_exit')
    if DIAG is not None:
        if DIAG == 10: stamp(10)
        if DG is not None: k(f's_cmp_lt_u32 s2, {DG[0]}\ns_cbranch_scc1 L_end\ns_cmp_gt_u32 s2, {DG[1]}\ns_cbranch_scc1 L_end')
        k(f's_cmp_lt_u32 s3, 4\ns_cbranch_scc1 L_end\ns_waitcnt lgkmcnt(0)\ns_add_u32 s62, s{STR[DIAG]}, 15000')
        k.lab('L_spin')
        k('s_sleep 2\ns_memrealtime s[64:65]\ns_waitcnt lgkmcnt(0)\ns_sub_u32 s64, s64, s62\ns_cmp_lt_i32 s64, 0\ns_cbranch_scc1 L_spin')
    if PROF:
        stamp(10)
        k(f's_waitcnt lgkmcnt(0)\ns_lshl_b32 s{sT0}, s2, 3\ns_add_u32 s{sT0}, s{sT0}, s3\ns_lshl_b32 s{sT0}, s{sT0}, 7\ns_add_u32 s{sT0}, s{sT0}, {WS_PROF}')
        k('s_mov_b64 exec, 1\nv_mov_b32 v8, 0')
        for i in range(0, 12, 2):
            for j in range(2):
                if i + j < 11: k(f'v_mov_b32 v{12+2*j}, s{STR[i+j]}\nv_mov_b32 v{13+2*j}, s{STR[i+j]+1}')
                else: k(f'v_mov_b32 v14, s{sTO}\nv_mov_b32 v15, s77\nv_lshl_add_u32 v15, s{28 if CP else 78}, 16, v15')
            k(f'buffer_store_dwordx4 v[12:15], v8, {sr(sWS,4)}, s{sT0} offen offset:{8*i}')
    k.lab('L_end')
    k('s_endpgm')
    k.lab('L_codeend')

    body = fix_hazards(k.L)
    hdr = open('cdna_kernels/' + NAME + '.s.ref').read().split('; Override launch')[0]
    out = [hdr.rstrip('\n'),
           f'; @launch grid=(256,1,1) block=(512,1,1) lds={LDS_BYTES}',
           '.amdgcn_target "amdgcn-amd-amdhsa--gfx950"', '.text', f'.globl {NAME}_kernel', '.p2align 8',
           f'.type {NAME}_kernel,@function', f'{NAME}_kernel:', 'L_start:']
    out += body
    out += ['.section .rodata,"a"', '.p2align 6', f'.amdhsa_kernel {NAME}_kernel',
            '  .amdhsa_next_free_vgpr 256', '  .amdhsa_next_free_sgpr 102', '  .amdhsa_accum_offset 256',
            '  .amdhsa_group_segment_fixed_size 0', '  .amdhsa_kernarg_size 112', '  .amdhsa_user_sgpr_count 2',
            '  .amdhsa_user_sgpr_kernarg_segment_ptr 1', '  .amdhsa_system_sgpr_workgroup_id_x 1', '.end_amdhsa_kernel']
    return '\n'.join(out) + '\n'

if __name__ == '__main__':
    kw = eval('dict(' + (sys.argv[2] if len(sys.argv) > 2 else '') + ')')
    open(sys.argv[1], 'w').write(gen(**kw))
```

```python
import sys, struct
from asmlib import K, fix_hazards, vr, sr

NAME = 'adaLN_cond__gqa_block_cached__glu_gated_geglu__decode'
WS_BAL, WS_XC, WS_MOD, WS_Q, WS_OP, WS_AP = 0x8000, 0x10000, 0x20000, 0x40000, 0x80000, 0x100000
WS_UNUSED, WS_UNUSED2, WS_H2, WS_YP, WS_PROF = 0x130000, 0x138000, 0x140000, 0x200000, 0x600000
WS_SIZE = 0x800000
WS_X2 = 0x1d0000
WS_ML = 0xd0000
REG = 29696
L_PT, L_RED, L_SP, L_Q, L_FLG, L_STA = 118784, 127744, 128768, 132928, 133440, 133696
L_SC = 133888
LDS_BYTES = L_SC + 16384
F_CNT, F_QRDY, F_LIM, F_BST, F_POS, F_PUB, F_PRE, F_LOC, F_KD, F_SCL, F_MX = 0, 4, 8, 12, 16, 20, 24, 28, 32, 48, 64
WS_PACE = 0x180000
LOG2E = 0x3FB8AA3B
SCALE = 0x3DB504F3
TIMEOUT = 200000
OOB = 0x7ff00000
f2u = lambda f: struct.unpack('<I', struct.pack('<f', f))[0]

def tables(kind):
    G, W, N = 0, 1, 3
    if kind == 1:
        roles = [G, W] * 9 + [G, N] * 5 + [G, G] * 2
        pro = [0, 2] * 6 + [0, 3] * 8 + [0, 2, 0, 0]
    elif kind == 2:
        roles = [N, W] * 5 + [G, W] * 4 + [G, G] * 7
        pro = [0, 3] * 8 + [0, 2] * 7 + [0, 0]
    elif kind == 3:
        roles = [G, W] * 9 + [G, N] * 5 + [G, G] * 2
        pro = [0, 3] * 8 + [0, 2] * 7 + [0, 0]
    cnt = {}; tail = []
    for r in roles:
        tail.append((r, cnt.get(r, 0))); cnt[r] = cnt.get(r, 0) + 1
    cnt = {}; pi = []
    for p in pro:
        pi.append(cnt.get(p, 0) if p else 0); cnt[p] = cnt.get(p, 0) + 1
    return tail, pro, pi
TAIL, PRO, PIX = tables(3)

def gen(PROF=False, TAB=3, PAIR=1, PFROW=192, PSL=1, QSL=2, SPLIT=2, FTH=5, WTH=4, WHOLD=True,
        QM=256, LA=8, LAG=None, LAW=None, CMIN=2, CMAX=4, CSH=2,
        RMODE='0030', RSL='0000', WST='pub', GST='pub', FBAR=False, DIAG=None, DG=None, MID=64, F0=True, QW=False, FQ=None, FB=(8, 56), CP=(140, 228), PD=1, PK=5.0, PW0=10, PSPAN=28, PN=16, PSTR=4352, POFF=(0, 0, 0), PDBG='', PCLK=12, PSLP=6, LQ=True, LO=True, LH=True, WARM=236, LP=(), TSC=1.0, H2L=2, WMRG=True, RND=False, UPE=0, WHN=16, GP='', GTE=10, PG2=0, NOD=True, EK=None, EN=5, EW=None, RACK=0, FACK=0, PUBS=1, OSC=False, CODE=30, EPB=True, PERM=(12, 13, 14, 16, 17, 18, 19, 20), AX=(), TBL=False, DIRS=(4, 1, 2, 0x10, 0x20, 0x40, 0x80, 0x100), BX=(0, 0, 0, 8, 0, 0, 0, 0), NS=7, BAL=16, XP=190, BSK=True, BH1=False, BPOS=4, BSP=False, BPOL='nt'):
    DIRS = [d << 12 for d in DIRS]; BX = [d << 12 for d in BX]; P0 = 4 * NS + 8
    if CP and FB is None: FB = (0, 0)
    if FB is not None: FQ = 0
    global TAIL, PRO, PIX
    TAIL, PRO, PIX = tables(TAB)
    k = K()
    sWS, sTAG, sEP, sHKV, sBB, sX, sIP, sR, sW = 4, 8, 9, 10, 11, 12, 13, 14, 15
    pX, pK, pV, pWQ, pWO, pGA, pUP, pDN, pC, pWM, pOUT, pWSP = 16, 18, 20, 22, 24, 28, 30, 32, 34, 36, 38, 42
    sA, sB_, sC_, sD_ = 44, 48, 52, 56
    sHI, sL2E, sT0, sT1, sT2, sT3, sTO, sSP = 60, 61, 62, 63, 64, 65, 66, 67
    sM0 = 68
    sROLE, sPRO, sPI, sST = 98, 99, 100, 101
    sCN = 77
    DPPALL = 'row_mask:0xf bank_mask:0xf'
    STR = [80 + 2 * i for i in range(9)] + [26, 40]
    def stamp(i):
        if PROF or (DIAG is not None and i in (0, DIAG)): k(f's_memrealtime {sr(STR[i], 2)}')
    def srd(d, p, size):
        k(f's_mov_b32 s{d}, s{p}\ns_mov_b32 s{d+1}, s{p+1}\ns_mov_b32 s{d+2}, {size}\ns_mov_b32 s{d+3}, 0x20000')
    def unp(d, s_):
        k(f'v_lshlrev_b32 v{d}, 16, v{s_}\nv_and_b32 v{d+1}, s{sHI}, v{s_}')
    def rnd2(a, b, t):
        k(f'v_cvt_pk_bf16_f32 v{t}, v{a}, v{b}\nv_lshlrev_b32 v{a}, 16, v{t}\nv_and_b32 v{b}, s{sHI}, v{t}')
    def rnd4(a, t):
        k(f'v_cvt_pk_bf16_f32 v{t}, v{a}, v{a+1}\nv_cvt_pk_bf16_f32 v{t+1}, v{a+2}, v{a+3}')
        unp(a, t); unp(a + 2, t + 1)
    def rnd1(a, t):
        k(f'v_cvt_pk_bf16_f32 v{t}, v{a}, v{a}\nv_and_b32 v{a}, s{sHI}, v{t}')
    def xrow(op, x, t, steps=(16, 32)):
        for st in steps:
            k(f'v_mov_b32 v{t}, v{x}\nv_permlane{st}_swap_b32 v{x}, v{t}\n{op} v{x}, v{x}, v{t}')
    def sum4(b):
        for e in range(4): k(f'v_add_f32 v{b+e}, v{b+e}, v{b+4+e}\nv_add_f32 v{b+8+e}, v{b+8+e}, v{b+12+e}')
        for e in range(4): k(f'v_add_f32 v{b+e}, v{b+e}, v{b+8+e}')
    def tagcheck(bases, acc, tmp):
        for i, b in enumerate(bases):
            d = acc if i == 0 else tmp + ((i - 1) & 1)
            k(f'v_bitop3_b32 v{d}, v{b+1}, v{b+3}, s{sTAG} bitop3:0x7e')
            if i > 0 and (i & 1) == 0: k(f'v_or3_b32 v{acc}, v{acc}, v{tmp}, v{tmp+1}')
        if len(bases) > 1 and (len(bases) & 1) == 0: k(f'v_or_b32 v{acc}, v{acc}, v{tmp}')
        k(f'v_cmp_ne_u32 vcc, 0, v{acc}')
    def retry(lab, sleep=0):
        if sleep: k(f's_sleep {sleep}')
        k(f's_sub_u32 s{sTO}, s{sTO}, 1\ns_cmp_lg_u32 s{sTO}, 0\ns_cbranch_scc1 {lab}\ns_branch L_exit')
    def wsld(dst, voff, soff, imm=0):
        return f'buffer_load_dwordx4 {vr(dst,4)}, v{voff}, {sr(sWS,4)}, s{soff} offen offset:{imm} sc1'
    def poll(name, loads, bases, acc, tmp, sleep=0, masked=False):
        k.lab(f'L_{name}')
        for l in loads: k(l)
        k('s_waitcnt vmcnt(0)')
        tagcheck(bases, acc, tmp)
        k(f's_cbranch_vccz L_{name}ok')
        if masked: k('s_mov_b64 exec, vcc')
        retry(f'L_{name}', sleep)
        k.lab(f'L_{name}ok')
        if masked: k('s_mov_b64 exec, -1')
    def gather(name, items, mode, sleep, issued=False):
        n = len(items)
        if mode == 3:
            if issued:
                k('s_waitcnt vmcnt(0)')
                tagcheck([b for _, b, _ in items], 12, 10)
                k(f's_cbranch_vccz L_{name}ok')
            poll(f'{name}w', [items[-1][0]], [items[-1][1]], 12, 10, sleep, True)
            for l, _, _ in items[:-1]: k(l)
            issued, mode, sleep = True, 0, 0
        if not issued:
            for l, _, _ in items: k(l)
        if mode == 0:
            k.lab(f'L_{name}')
            k('s_waitcnt vmcnt(0)')
            tagcheck([b for _, b, _ in items], 12, 10)
            k(f's_cbranch_vccz L_{name}ok\ns_mov_b64 exec, vcc')
            if sleep: k(f's_sleep {sleep}')
            for l, _, _ in items: k(l)
            retry(f'L_{name}')
            k.lab(f'L_{name}ok')
            k('s_mov_b64 exec, -1')
            for _, _, act in items: act()
            return
        k(f's_mov_b32 s22, 0\ns_mov_b32 s23, {OOB:#x}')
        k.lab(f'L_{name}')
        for i, (l, b, act) in enumerate(items):
            k(f's_bitcmp1_b32 s22, {i}\ns_cbranch_scc1 L_{name}n{i}')
            k(f's_waitcnt vmcnt({n-1-i})')
            k(f'v_bitop3_b32 v10, v{b+1}, v{b+3}, s{sTAG} bitop3:0x7e\nv_cmp_ne_u32 vcc, 0, v10\ns_cbranch_vccnz L_{name}n{i}')
            act()
            k(f's_bitset1_b32 s22, {i}')
            k.lab(f'L_{name}n{i}')
        k(f's_cmp_eq_u32 s22, {(1 << n) - 1}\ns_cbranch_scc1 L_{name}ok')
        if sleep: k(f's_sleep {sleep}')
        for i, (l, b, act) in enumerate(items):
            k(f's_bitcmp1_b32 s22, {i}\ns_cbranch_scc1 L_{name}d{i}')
            k(f'v_bitop3_b32 v10, v{b+1}, v{b+3}, s{sTAG} bitop3:0x7e\nv_cmp_ne_u32 vcc, 0, v10\ns_mov_b64 exec, vcc')
            k(l); k(f's_mov_b64 exec, -1\ns_branch L_{name}e{i}')
            k.lab(f'L_{name}d{i}')
            k(f'buffer_load_dword v0, off, {sr(sWS,4)}, s23')
            k.lab(f'L_{name}e{i}')
        retry(f'L_{name}')
        k.lab(f'L_{name}ok')
    def ldswait(name, flag, val, sleep):
        k(f'v_mov_b32 v12, {L_FLG}')
        k.lab(f'L_{name}')
        k(f'ds_read_b32 v13, v12 offset:{flag}\ns_waitcnt lgkmcnt(0)\nv_readfirstlane_b32 s22, v13\ns_cmp_ge_u32 s22, {val}\ns_cbranch_scc1 L_{name}ok')
        retry(f'L_{name}', sleep)
        k.lab(f'L_{name}ok')
    def mask64(d, lo16):
        m = lo16 | (lo16 << 16)
        k(f's_mov_b32 s{d}, {m:#x}\ns_mov_b32 s{d+1}, {m:#x}')
    def mfma(d, a, b, first):
        k(f'v_mfma_f32_16x16x32_bf16 {vr(d,4)}, {vr(a,4)}, {vr(b,4)}, {"0" if first else vr(d,4)}')
    def ror8pair(b):
        k(f'v_mov_b32_dpp v{b+2}, v{b} row_ror:8 {DPPALL}\nv_mov_b32_dpp v{b+3}, v{b+1} row_ror:8 {DPPALL}')
    def strip(b):
        k(f'v_mov_b32_dpp v{b+3}, v{b+2} row_ror:8 {DPPALL}\nv_mov_b32 v{b+1}, v{b+2}\nv_mov_b32_dpp v{b+2}, v{b} row_ror:8 {DPPALL}')
    def st2(st, flag, on):
        if not on:
            k(st + ' sc1'); return
        l = k.new('L_st')
        k(f's_cmp_eq_u32 s{flag}, 1\ns_cbranch_scc1 {l}a\n{st} sc1\ns_branch {l}b')
        k.lab(l + 'a'); k(st); k.lab(l + 'b')
    def xcld(dst, va):
        k(f'v_and_b32 v{va}, 31, v1\nv_lshlrev_b32 v{va}, 3, v{va}\ns_lshl_b32 s22, s{sX}, 8\ns_add_u32 s22, s22, {WS_XC}')
        k(f'buffer_load_dwordx2 {vr(dst,2)}, v{va}, {sr(sWS,4)}, s22 offen sc1')
    def xcchk(src, flag):
        k(f's_getreg_b32 s22, hwreg(HW_REG_XCC_ID)\nv_xor_b32 v{src}, s22, v{src}\nv_xor_b32 v{src+1}, s{sTAG}, v{src+1}\nv_or_b32 v{src}, v{src}, v{src+1}')
        k(f'v_cmp_ne_u32 vcc, 0, v{src}\ns_cmp_eq_u64 vcc, 0\ns_cselect_b32 s{flag}, 1, 0')
    def tag_from_epoch():
        k(f's_add_u32 s{sEP}, s{sEP}, 0x9e3779b9\ns_and_b32 s{sTAG}, s{sEP}, 0xbfffbfff')

    k('s_cmp_ge_u32 s2, 256\ns_cbranch_scc1 L_end')
    k('s_load_dwordx16 s[16:31], s[0:1], 0')
    k('s_load_dwordx8 s[32:39], s[0:1], 64')
    k('s_load_dwordx4 s[40:43], s[0:1], 96')
    stamp(0)
    if DIAG: stamp(DIAG)
    k('v_lshrrev_b32 v2, 6, v0\nv_and_b32 v1, 63, v0')
    k('v_readfirstlane_b32 s3, v2')
    k(f's_mov_b32 s{sHI}, 0xffff0000\ns_mov_b32 s{sL2E}, {LOG2E:#x}\ns_mov_b32 s{sTO}, {TIMEOUT}')
    k(f's_and_b32 s{sX}, s2, 7\ns_lshr_b32 s{sIP}, s2, 3\ns_and_b32 s{sSP}, s{sIP}, 1\ns_lshr_b32 s{sBB}, s{sIP}, 2\ns_bfe_u32 s{sHKV}, s{sIP}, 0x10001')
    k(f's_lshl_b32 s{sT0}, s{sX}, 1\ns_add_u32 s{sHKV}, s{sHKV}, s{sT0}\ns_lshl_b32 s{sT0}, s{sBB}, 4\ns_add_u32 s{sT0}, s{sT0}, s{sHKV}\ns_lshl_b32 s79, s{sT0}, 21\ns_and_b32 s{sW}, s3, 3')
    k('v_lshrrev_b32 v2, 4, v1\nv_and_b32 v3, 15, v1')
    pk = sum(p << (2 * u) for u, p in enumerate(PRO))
    k(f's_mov_b32 s62, {pk & 0xffffffff:#x}\ns_mov_b32 s63, {pk >> 32:#x}\ns_andn2_b32 s65, s{sIP}, 1\ns_lshl_b32 s65, s65, 1\ns_lshr_b64 s[62:63], s[62:63], s65')
    k(f's_lshr_b32 s68, s62, 2\ns_or_b32 s68, s68, s62\ns_and_b32 s68, s68, 3')
    k(f's_and_b32 s64, s{sIP}, 1\ns_lshl_b32 s64, s64, 1\ns_lshr_b32 s{sPRO}, s62, s64\ns_and_b32 s{sPRO}, s{sPRO}, 3')
    xk = sum(max(PIX[2 * m], PIX[2 * m + 1]) << (4 * m) for m in range(16))
    k(f's_mov_b32 s62, {xk & 0xffffffff:#x}\ns_mov_b32 s63, {xk >> 32:#x}\ns_lshr_b64 s[62:63], s[62:63], s65\ns_and_b32 s{sPI}, s62, 7')
    k(f's_lshl_b32 s62, s{sX}, 3\ns_add_u32 s62, s62, s{sPI}\ns_lshl_b32 s{sPI}, s{sPI}, 3\ns_add_u32 s{sPI}, s{sPI}, s{sX}\ns_cmp_eq_u32 s68, 3\ns_cselect_b32 s{sPI}, s62, s{sPI}')
    k(f's_cmp_lt_u32 s{sPI}, 54\ns_cselect_b32 s64, 3, 1\ns_and_b32 s65, s68, s64\ns_cmp_eq_u32 s65, 0\ns_cselect_b32 s{sPRO}, 0, s{sPRO}\ns_cselect_b32 s68, 0, s68')
    k(f's_mul_i32 s{sST}, s{sW}, {REG}')
    k('s_cmp_ge_u32 s3, 4\ns_cbranch_scc1 L_helper')

    vKO, vVO, vBAL, vM, S, Q, S2, T, vSC = 4, 5, 6, 7, 8, 12, 20, 28, 30
    P, O, vHALF, vFL, vONE, U = 32, 48, 52, 53, 54, 56
    sOFF, sI, sBASE, sSCL, sKND, sLD, sBO = 72, 76, 79, 69, 70, 24, 77
    SLOT = lambda j: 64 + 32 * j if j < 6 else 32
    R_, E = SLOT(2), SLOT(3)
    D0 = 's80' if TBL else hex(DIRS[0])
    k('s_getpc_b64 s[62:63]\nv_lshlrev_b32 v8, 7, v0\nv_min_u32 v8, L_codeend-L_start-512, v8')
    if CODE < 32:
        k(f's_cmp_lt_u32 s{sIP}, {CODE}\ns_cbranch_scc1 L_nocode')
        k('global_load_dword v9, v8, s[62:63]')
        k.lab('L_nocode')
    k(f'v_lshrrev_b32 v{vKO}, 1, v3\nv_lshlrev_b32 v{vKO}, 8, v{vKO}\nv_lshl_add_u32 v{vKO}, v2, 5, v{vKO}\nv_and_b32 v{vVO}, 1, v3\nv_lshl_add_u32 v{vKO}, v{vVO}, 4, v{vKO}')
    k(f's_mov_b32 s{sI}, s{sW}')
    if not TBL:
        for j in range(8):
            if BX[j]: k(f's_bitcmp1_b32 s2, {j}\ns_cselect_b32 s{sT2}, {BX[j]:#x}, 0\ns_xor_b32 s{sBASE}, s{sBASE}, s{sT2}')
    def nextoff(a):
        for j in range(7):
            k(f's_bitcmp1_b32 s{sI}, {j}\ns_cselect_b32 s{sT2}, {f"s{81+j}" if TBL else hex(DIRS[j+1])}, 0\ns_xor_b32 s{sOFF+a}, s{sT2}, s{sBASE if j == 0 else sOFF+a}')
        k(f's_lshr_b32 s{sKND+a}, s{sI}, 7\ns_and_b32 s{sLD+a}, s{sI}, 127\ns_lshl_b32 s{sLD+a}, s{sLD+a}, 7\ns_add_u32 s{sI}, s{sI}, 4')
    def ld(j, h, a, isv, bal):
        def ballast():
            l = k.new('L_nb')
            k(f's_cmp_lg_u32 s{sBO}, 0\ns_cbranch_scc1 {l}\nbuffer_load_dword v0, v{vBAL}, {sr(sB_ if isv else sA,4)}, s{sOFF+a} offen {BPOL}')
            k.lab(l)
        for i in range(4):
            if bal and BSK and i == BPOS: ballast()
            k(f'buffer_load_dwordx4 {vr(SLOT(j)+16*h+4*i,4)}, v{vVO if isv else vKO}, {sr(sB_ if isv else sA,4)}, s{sOFF+a} offen offset:{2048*(i>>1)+(256 if isv else 128)*(i&1)} nt')
        if bal and BSK:
            if BPOS == 4 and not (BH1 and h == 0): ballast()
        elif bal:
            k(f's_or_b32 s{sT2}, s{sOFF+a}, s{sBO}\nbuffer_load_dword v0, v{vBAL}, {sr(sB_ if isv else sA,4)}, s{sT2} offen nt')
        if h == 0: k(f's_xor_b32 s{sOFF+a}, s{sOFF+a}, {D0}')
    def fill(j):
        ld(j, 0, 0, False, False); ld(j, 1, 0, False, False)
    if not TBL: nextoff(0)
    k(f's_movk_i32 s74, 6912\ns_cmp_eq_u32 s68, 3\ns_cselect_b32 s74, 8192, s74')
    k('v_lshrrev_b32 v10, 3, v1\nv_and_b32 v11, 2, v10\nv_mul_lo_u32 v10, v10, s74\nv_xor_b32 v11, v11, v1\nv_and_b32 v11, 7, v11\nv_lshl_add_u32 v10, v11, 4, v10\nv_xor_b32 v12, 64, v10')
    k(f'v_add_u32 v11, {PFROW}, v0\nv_mul_lo_u32 v11, v11, s74')
    k(f's_mul_i32 s75, s74, s{sW}\ns_lshl_b32 s75, s75, 5\ns_lshl_b32 s69, s{sPI}, 7\ns_add_u32 s75, s75, s69')
    k(f's_mul_i32 s{sC_+2}, s74, 576\ns_mov_b32 s{sC_+3}, 0x20000\ns_mul_i32 s78, s74, 104\ns_lshl_b32 s74, s74, 3')
    k('s_waitcnt lgkmcnt(0)')
    k(f's_cmp_eq_u32 s68, 3\ns_cselect_b32 s{sC_}, s{pWQ}, s{pWM}\ns_cselect_b32 s{sC_+1}, s{pWQ+1}, s{pWM+1}')
    srd(sA, pK, 0x10000000); srd(sB_, pV, 0x10000000)
    if TBL:
        k(f's_lshl_b32 s88, s2, 2\ns_add_u32 s88, s88, 64\ns_load_dwordx8 s[80:87], s[26:27], 0\ns_load_dword s{sBASE}, s[26:27], s88\ns_waitcnt lgkmcnt(0)')
        nextoff(0)
    k(f's_cmp_eq_u32 s{sPRO}, 0\ns_cbranch_scc1 L_notile')
    for i in range(5):
        for j in range(4):
            k(f's_add_u32 m0, s{sST}, {4096*i+1024*j}')
            k(f'buffer_load_dwordx4 v{10 + 2 * (j & 1)}, {sr(sC_,4)}, s75 offen nt lds')
            if (i, j) != (4, 3): k(f's_add_u32 s75, s75, s{74 if j < 3 else 78}')
    k('s_waitcnt vmcnt(0)\ns_barrier\ns_barrier\ns_barrier')
    fill(0); nextoff(0); fill(1)
    k('s_branch L_second')
    k.lab('L_notile')
    k('s_cmp_eq_u32 s68, 0\ns_cbranch_scc1 L_nopf')
    k(f'buffer_load_dword v9, v11, {sr(sC_,4)}, s69 offen')
    if PFROW < 320: k(f's_mul_i32 s75, s74, 32\ns_add_u32 s69, s69, s75\nbuffer_load_dword v10, v11, {sr(sC_,4)}, s69 offen')
    k.lab('L_nopf')
    fill(0); nextoff(0); fill(1)
    k('s_barrier')
    k.lab('L_second')
    k(f's_load_dword s{sEP}, {sr(pWSP,2)}, 0')
    srd(sWS, pWSP, WS_SIZE)
    k(f'v_lshlrev_b32 v{vSC}, 3, v{vVO}\nv_lshl_add_u32 v{vSC}, v2, 4, v{vSC}\nv_add_u32 v{vSC}, {L_SC}, v{vSC}')
    k(f'v_lshlrev_b32 v31, 8, v{vVO}\nv_lshl_add_u32 v31, v2, 5, v31\nv_and_b32 v29, 2, v3\nv_lshl_add_u32 v31, v29, 3, v31\nv_add_u32 v31, {L_Q}, v31')
    k(f'v_lshlrev_b32 v{vVO}, 4, v3\nv_lshl_add_u32 v{vVO}, v2, 9, v{vVO}\nv_min_u32 v{vBAL}, {BAL-1}, v1\nv_lshlrev_b32 v{vBAL}, {7 if BAL > 16 else 8}, v{vBAL}')
    if BSP: k(f'v_mul_u32_u24 v{vBAL}, {BAL}, v1\nv_lshrrev_b32 v{vBAL}, 6, v{vBAL}\nv_lshlrev_b32 v{vBAL}, {BSP}, v{vBAL}')
    k(f'v_mov_b32 v{vM}, 0xff800000\nv_mov_b32 v28, {L_FLG}\nv_mov_b32 v29, 1\ns_mov_b32 s{sSCL}, {SCALE:#x}')
    mask64(26 if not (PROF or TBL) else 90, 0x0003)
    sM2 = 26 if not (PROF or TBL) else 90
    for j in range(2, NS):
        nextoff(0); fill(j)
    stamp(1)
    k(f's_mov_b64 exec, 1\nds_add_u32 v28, v29 offset:{F_PRE}\ns_mov_b64 exec, -1')
    k(f's_waitcnt vmcnt({8*NS}) lgkmcnt(0)')
    tag_from_epoch()
    k(f's_cmp_eq_u32 s{sPRO}, 3\ns_cselect_b32 s30, {FB[1]+P0+4}, 0\ns_cmp_eq_u32 s{sPRO}, 2\ns_cselect_b32 s30, {FB[0]+P0+4}, s30\ns_mov_b32 s{sBO}, 0x20000000')
    k.lab('L_qwait')
    k(f'ds_read_b32 v9, v28 offset:{F_QRDY}')
    for i in range(2): k(f'ds_read_b128 {vr(Q+4*i,4)}, v31 offset:{128*i}')
    k(f's_waitcnt lgkmcnt(0)\nv_readfirstlane_b32 s{sT0}, v9\ns_cmp_eq_u32 s{sT0}, 1\ns_cbranch_scc1 L_qok')
    retry('L_qwait', 2)
    k.lab('L_qok')
    stamp(2)
    def claim():
        k(f's_mov_b64 exec, 1\nds_add_rtn_u32 v{U}, v{vFL}, v{vONE} offset:{F_POS}\nds_read_b32 v{U+1}, v{vFL} offset:{F_BST}\ns_mov_b64 exec, -1')
    def claimed(a):
        k(f's_waitcnt lgkmcnt(0)\nv_readfirstlane_b32 s{sI}, v{U}\nv_readfirstlane_b32 s29, v{U+1}\ns_add_u32 s{sI}, s{sI}, {P0}\ns_max_u32 s28, s30, s29')
        nextoff(a)
        k(f's_cmp_lt_u32 s{sI}, s28\ns_cselect_b32 s{sBO}, 0x20000000, 0')
    def qk(b):
        mfma(S2, b, Q, True); mfma(S2 + 4, b + 8, Q, True); mfma(S2, b + 4, Q + 4, False); mfma(S2 + 4, b + 12, Q + 4, False)
    def scores(h):
        for i in range(4): k(f'v_mov_b32_dpp v{S+i}, v{S2+2*i} quad_perm:[0,1,0,1] {DPPALL}')
        for i in range(4): k(f'v_add_f32_dpp v{S+i}, v{S2+2*i+1}, v{S+i} quad_perm:[2,3,2,3] {DPPALL}')
        rnd4(S, T)
        for i in range(4): k(f'v_mul_f32 v{S+i}, s{sSCL}, v{S+i}')
        rnd4(S, T)
        k(f's_mov_b64 exec, {sr(sM2,2)}\nds_write_b64 v31, {vr(T,2)} offset:{64*h}\ns_mov_b64 exec, -1')
        k(f'v_max3_f32 v{vM}, v{S}, v{S+1}, v{vM}\nv_max3_f32 v{vM}, v{S+2}, v{S+3}, v{vM}')
    younger = 8 * NS
    k(f's_lshl_b32 s{sT0}, s{sW}, 7\nv_add_u32 v31, s{sT0}, v{vSC}')
    for j in range(NS):
        for h in range(2):
            younger -= 4
            k(f's_waitcnt vmcnt({younger})')
            qk(SLOT(j) + 16 * h)
            if j < 2:
                if h == 0: nextoff(j)
                ld(j, h, j, False, not BSK); younger += (4 if BSK else 5)
            scores(h)
        if j < NS - 1: k('v_add_u32 v31, 512, v31')
    stamp(3)
    k(f'v_mov_b32 v{vHALF}, 0xffff\nv_and_b32 v{U}, 2, v3\nv_lshlrev_b32 v{U}, 3, v{U}\nv_lshlrev_b32 v{vHALF}, v{U}, v{vHALF}\nv_mov_b32 v{vFL}, {L_FLG}\nv_mov_b32 v{vONE}, 1')
    for r in range(P, O + 4): k(f'v_mov_b32 v{r}, 0')
    k(f's_lshl_b32 s{sT1}, s{sW}, 10\ns_add_u32 s{sT1}, s{sT1}, {L_SP}')
    k(f'v_lshlrev_b32 v{E}, 5, v3\nv_lshl_add_u32 v{E}, v2, 3, v{E}\nv_add_u32 v{E}, s{sT1}, v{E}')
    k(f'v_lshlrev_b32 v{E+2}, 4, v1\nv_add_u32 v{E+3}, {L_SP}, v{E+2}')
    k(f'v_lshrrev_b32 v{E+4}, 5, v1\nv_lshlrev_b32 v{E+4}, 3, v{E+4}\nv_add_u32 v{E+4}, {L_FLG + F_SCL}, v{E+4}')
    k(f'v_and_b32 v{E+5}, 1, v3\nv_lshlrev_b32 v{E+5}, 4, v{E+5}\nv_add_u32 v{E+5}, {L_FLG + F_MX}, v{E+5}\nv_lshl_add_u32 v{E+1}, s{sW}, 2, v{E+5}')
    for r in (13, 15): k(f'v_mov_b32 v{E+r}, s{sTAG}')
    k(f's_lshl_b32 s74, s{sHKV}, 3\ns_add_u32 s74, s74, s{sBB}\ns_lshl_b32 s74, s74, 1\ns_add_u32 s74, s74, s{sSP}\ns_lshl_b32 s74, s74, 10\ns_add_u32 s74, s74, {WS_OP}')
    if PROF: k('s_mov_b32 s75, 0\ns_mov_b32 s78, 0')
    def profsteps(tg):
        if not PROF: return
        k(f's_lshr_b32 s{sT0}, s{sI}, 2')
        for n_, stp in enumerate((16, 28, 40, 52)):
            k(f's_cmp_lt_u32 s{sT0}, {stp}\ns_cbranch_scc1 L_ns{tg}{n_}\ns_cmp_gt_u32 s75, {n_}\ns_cbranch_scc1 L_ns{tg}{n_}\ns_mov_b32 s75, {n_+1}')
            stamp(6 + n_)
            k.lab(f'L_ns{tg}{n_}')
    def waits(tg, a, h):
        if h == 0: k(f's_cmp_lt_u32 s{sKND+1-a}, 2\ns_cbranch_scc1 L_w{tg}\ns_waitcnt vmcnt({4 if BSK else 6})')
        else: k(f's_cmp_lt_u32 s{sKND+a}, 2\ns_cbranch_scc1 L_w{tg}\ns_waitcnt vmcnt({8 if BSK else 11})\ns_cmp_lt_u32 s{sKND+1-a}, 2\ns_cbranch_scc1 L_w{tg}\ns_waitcnt vmcnt({0 if BSK else 1})')
        k.lab(f'L_w{tg}')
        k(f's_waitcnt vmcnt({12 if BSK else 16})')
    k.lab('L_ktop')
    profsteps('k')
    for a in range(2):
        k(f's_mov_b32 s31, {a}\ns_cmp_lg_u32 s{sKND+a}, 0\ns_cbranch_scc1 L_turn')
        k(f'v_add_u32 v31, s{sLD+a}, v{vSC}')
        for h in range(2):
            waits(f'k{a}{h}', a, h)
            if h == 0: claim()
            qk(SLOT(a) + 16 * h)
            if h == 0: claimed(a)
            k(f's_cmp_eq_u32 s{sKND+a}, 0\ns_cbranch_scc1 L_ik{a}{h}\ns_cmp_eq_u32 s{sKND+a}, 1\ns_cbranch_scc0 L_id{a}{h}')
            ld(a, h, a, True, True)
            k(f's_branch L_id{a}{h}')
            k.lab(f'L_ik{a}{h}')
            ld(a, h, a, False, True)
            k.lab(f'L_id{a}{h}')
            scores(h)
    k('s_branch L_ktop')
    k.lab('L_turn')
    xrow('v_max_f32', vM, U)
    k(f'ds_write_b32 v{E+1}, v{vM}\ns_mov_b64 exec, 1\nds_add_u32 v{vFL}, v{vONE} offset:{F_KD}\ns_mov_b64 exec, -1')
    k.lab('L_kdw')
    k(f'ds_read_b32 v{U}, v{vFL} offset:{F_KD}\nds_read_b128 {vr(S,4)}, v{E+5}\ns_waitcnt lgkmcnt(0)\nv_readfirstlane_b32 s{sT0}, v{U}\ns_cmp_eq_u32 s{sT0}, 4\ns_cbranch_scc1 L_kdok')
    retry('L_kdw', 1)
    k.lab('L_kdok')
    k(f'v_max3_f32 v{vM}, v{S}, v{S+1}, v{S+2}\nv_max_f32 v{vM}, v{vM}, v{S+3}\nv_mul_f32 v{vM}, s{sL2E}, v{vM}')
    k('s_cmp_eq_u32 s31, 1\ns_cbranch_scc1 L_v1')
    def probs(src):
        unp(S, src); unp(S + 2, src + 1)
        for i in range(4): k(f'v_fma_f32 v{S+i}, v{S+i}, s{sL2E}, -v{vM}')
        for i in range(4): k(f'v_exp_f32 v{S+i}, v{S+i}')
        for i in range(4): k(f'v_cvt_pk_bf16_f32 v{S+i}, v{S+i}, v{S+i}')
        for i in range(4):
            for r in range(4):
                k(f'v_and_b32_dpp v{P+4*i+r}, v{S+i}, v{vHALF} quad_perm:[0,1,2,3] row_mask:0xf bank_mask:{1<<r:#x}')
    k.lab('L_v0')
    profsteps('v')
    for a in range(2):
        if a: k.lab('L_v1')
        k(f's_cmp_lg_u32 s{sKND+a}, 1\ns_cbranch_scc1 L_send')
        k(f'v_add_u32 v31, s{sLD+a}, v{vSC}\nds_read2_b64 {vr(S2,4)}, v31 offset0:0 offset1:8\ns_waitcnt lgkmcnt(0)')
        for h in range(2):
            probs(S2 + 2 * h)
            waits(f'v{a}{h}', a, h)
            if h == 0: claim()
            for i in range(4): mfma(O, P + 4 * i, SLOT(a) + 16 * h + 4 * i, False)
            if h == 0: claimed(a)
            k(f's_cmp_eq_u32 s{sKND+a}, 1\ns_cbranch_scc0 L_vd{a}{h}')
            ld(a, h, a, True, True)
            k.lab(f'L_vd{a}{h}')
    k('s_branch L_v0')
    k.lab('L_send')
    stamp(4)
    k(f'ds_write2_b32 v{E}, v{O}, v{O+2} offset0:0 offset1:1')
    k(f'ds_write2_b32 v{E}, v{O+1}, v{O+3} offset0:128 offset1:129')
    k(f's_mov_b64 exec, 1\nds_add_rtn_u32 v{U}, v{vFL}, v{vONE} offset:{F_CNT}\ns_mov_b64 exec, -1')
    k(f'ds_read_b32 v{U+1}, v{vFL} offset:{F_LOC}\nds_read_b64 {vr(U+2,2)}, v{E+4}')
    for i in range(4): k(f'ds_read_b128 {vr(R_+4*i,4)}, v{E+3} offset:{1024*i}')
    k('s_waitcnt lgkmcnt(4)')
    k(f'v_readfirstlane_b32 s{sT1}, v{U}\nv_readfirstlane_b32 s{sT0}, v{U+1}\ns_cmp_lg_u32 s{sT1}, 3\ns_cbranch_scc1 L_exit')
    k.lab('L_scw')
    k(f'v_cmp_ne_u32 vcc, 1, v{U+3}\ns_cbranch_vccz L_scok\nds_read_b64 {vr(U+2,2)}, v{E+4}\ns_waitcnt lgkmcnt(0)')
    retry('L_scw', 1)
    k.lab('L_scok')
    k('s_waitcnt lgkmcnt(0)')
    sum4(R_)
    for e in range(4): k(f'v_mul_f32 v{R_+e}, v{U+2}, v{R_+e}')
    k(f'v_cvt_pk_bf16_f32 v{E+12}, v{R_}, v{R_+1}\nv_cvt_pk_bf16_f32 v{E+14}, v{R_+2}, v{R_+3}')
    st2(f'buffer_store_dwordx4 {vr(E+12,4)}, v{E+2}, {sr(sWS,4)}, s74 offen', sT0, LO)
    k(f'ds_write_b32 v{vFL}, v{vONE} offset:{F_PUB}')
    k('s_branch L_exit')

    k.lab('L_helper')
    k('s_setprio 2')
    CB, WT, AC, RR, TA = 16, 176, 40, 100, 168
    k(f'v_lshlrev_b32 v8, 2, v1\nv_add_u32 v8, {L_FLG}, v8\nv_mov_b32 v10, 0\nds_write_b32 v8, v10')
    k('v_and_b32 v7, 7, v3\nv_lshrrev_b32 v9, 3, v3\nv_mul_u32_u24 v11, 1152, v7')
    k('v_lshl_add_u32 v4, v2, 4, v11\nv_lshl_add_u32 v4, v9, 3, v4')
    k(f's_lshl_b32 s{sT0}, s{sW}, 6')
    k('s_waitcnt lgkmcnt(0)')
    srd(sA, pC, 9216); srd(sD_, pX, 9216)
    def epoch():
        srd(sWS, pWSP, WS_SIZE)
        k(f's_load_dword s{sEP}, {sr(pWSP,2)}, 0')
        gm = sum(1 << u for u, (r, _) in enumerate(TAIL) if r == 0); wm = sum(1 << u for u, (r, _) in enumerate(TAIL) if r == 1)
        k(f's_mov_b32 s62, {gm:#x}\ns_mov_b32 s63, {wm:#x}\ns_mov_b32 s{sROLE}, 3')
        k(f's_bitcmp1_b32 s62, s{sIP}\ns_cselect_b32 s{sROLE}, 0, s{sROLE}\ns_bitcmp1_b32 s63, s{sIP}\ns_cselect_b32 s{sROLE}, 1, s{sROLE}')
        k(f's_bfm_b32 s64, s{sIP}, 0\ns_and_b32 s63, s63, s64\ns_bcnt1_i32_b32 s{sCN}, s63\ns_and_b32 s62, s62, s64\ns_bcnt1_i32_b32 s62, s62')
        k(f's_mul_i32 s{sR}, s{sX}, 18\ns_add_u32 s{sR}, s{sR}, s62\ns_waitcnt lgkmcnt(0)')
        tag_from_epoch()
        l = k.new('L_xc')
        k(f's_mov_b32 s76, 0\ns_cmp_lg_u32 s{sW}, 3\ns_cbranch_scc1 {l}')
        k(f's_getreg_b32 s62, hwreg(HW_REG_XCC_ID)\ns_lshl_b32 s63, s{sX}, 5\ns_add_u32 s63, s63, s{sIP}\ns_lshl_b32 s63, s63, 3\ns_add_u32 s63, s63, {WS_XC}')
        k(f'v_mov_b32 v12, s62\nv_mov_b32 v13, s{sTAG}\ns_mov_b64 exec, 1\nbuffer_store_dwordx2 v[12:13], off, {sr(sWS,4)}, s63\ns_mov_b64 exec, -1')
        k.lab(l)
    def traddr():
        k('v_lshrrev_b32 v5, 2, v3\nv_lshl_add_u32 v6, v2, 3, v5\nv_lshlrev_b32 v6, 7, v6\nv_and_b32 v5, 3, v3\nv_lshl_add_u32 v6, v5, 3, v6')
        k('v_bfe_u32 v5, v1, 3, 2\nv_lshl_add_u32 v6, v5, 5, v6')
        for tile in range(4): k(f'v_xor_b32 v{TA+tile}, {32*tile}, v6\nv_add_u32 v{TA+tile}, s{sST}, v{TA+tile}')
    def trread(i):
        for tile in range(4):
            r = WT + (i * 4 + tile) * 4; o = 4096 * i
            k(f'ds_read_b64_tr_b16 {vr(r,2)}, v{TA+tile} offset:{o}\nds_read_b64_tr_b16 {vr(r+2,2)}, v{TA+tile} offset:{o+512}')
    def redaddr(rowstride, so, t0, t1):
        k(f'v_and_b32 v14, 7, v3\nv_mul_u32_u24 v14, 272, v14\nv_lshl_add_u32 v14, v2, 4, v14\ns_mul_i32 s{sT0}, s{sW}, 2176\ns_add_u32 s{sT0}, s{sT0}, {L_PT}\nv_add_u32 v14, s{sT0}, v14')
        k(f'v_and_b32 v{so}, 1, v2\nv_lshl_add_u32 v{so}, s{sW}, 1, v{so}\nv_mul_u32_u24 v15, 272, v{so}\nv_lshl_add_u32 v15, v3, 4, v15\nv_add_u32 v15, {L_PT}, v15')
        k(f'v_mul_u32_u24 v{so}, {rowstride}, v{so}\nv_lshl_add_u32 v{so}, v3, 4, v{so}\nv_mov_b32 v{t0}, s{sTAG}\nv_mov_b32 v{t1}, s{sTAG}')
        mask64(sM0, 0x00ff)
    def reduce_publish(rd, z, so, soff, flag=None):
        k(f's_mov_b64 exec, {sr(sM0,2)}')
        for tile in range(4): k(f'ds_write_b128 v14, {vr(AC+4*tile,4)} offset:{64*tile}')
        k('s_mov_b64 exec, -1\ns_waitcnt lgkmcnt(0)\ns_barrier')
        for i in range(4): k(f'ds_read_b128 {vr(rd+4*i,4)}, v15 offset:{2176*i}')
        k('s_waitcnt lgkmcnt(0)')
        sum4(rd)
        k(f'v_cvt_pk_bf16_f32 v{z}, v{rd}, v{rd+1}\nv_cvt_pk_bf16_f32 v{z+2}, v{rd+2}, v{rd+3}')
        k('s_mov_b32 exec_hi, 0')
        st2(f'buffer_store_dwordx4 {vr(z,4)}, v{so}, {sr(sWS,4)}, s{soff} offen', flag, flag is not None)
        k('s_mov_b64 exec, -1')
    def dma(voff, srd_, soff, lds_imm, idx, th, pol='nt'):
        if idx >= th: k(f's_waitcnt vmcnt({th-1})')
        k(f's_add_u32 m0, s{sST}, {lds_imm}')
        k(f'buffer_load_dwordx4 v{voff}, {sr(srd_,4)}, s{soff} offen {pol} lds')
    def wstage(th, lo=0, hi=16):
        srd(sB_, pWO, 4096 * 1152)
        k('v_lshrrev_b32 v8, 3, v1\nv_mul_u32_u24 v8, 1152, v8\nv_and_b32 v9, 7, v1\nv_lshl_add_u32 v8, v9, 4, v8')
        k(f's_lshl_b32 s72, s{sX}, 2\ns_add_u32 s72, s72, s{sW}\ns_mul_i32 s72, s72, {128*1152}\ns_lshl_b32 s73, s{sCN}, 7\ns_add_u32 s72, s72, s73')
        if lo: k(f's_add_u32 s72, s72, {8*1152*lo}')
        for i in range(lo, hi):
            dma(8, sB_, 72, 1024 * i, i - lo, th)
            if i < 15: k(f's_add_u32 s72, s72, {8*1152}')
    k(f's_cmp_eq_u32 s{sPRO}, 2\ns_cbranch_scc1 L_p1\ns_cmp_eq_u32 s{sPRO}, 3\ns_cbranch_scc1 L_p2')
    if not EPB: k('s_barrier')
    epoch()
    if EPB: k('s_barrier')
    k('s_branch L_pdone')

    k.lab('L_p1')
    for i in range(5):
        k(f'buffer_load_dwordx2 {vr(CB+4*i,2)}, v4, {sr(sA,4)}, s{sT0} offen offset:{256*i}')
    epoch()
    traddr(); redaddr(13824, 5, 37, 39)
    k(f's_lshl_b32 s78, s{sPI}, 8\ns_add_u32 s78, s78, {WS_MOD}\ns_mov_b32 s{sT0}, 0xbfb8aa3b')
    k('s_waitcnt vmcnt(0)')
    stamp(1)
    for i in range(5):
        b = CB + 4 * i
        unp(RR, b); unp(RR + 2, b + 1)
        for e in range(4): k(f'v_mul_f32 v{RR+4+e}, s{sT0}, v{RR+e}')
        for e in range(4): k(f'v_exp_f32 v{RR+4+e}, v{RR+4+e}')
        for e in range(4): k(f'v_add_f32 v{RR+4+e}, 1.0, v{RR+4+e}')
        for e in range(4): k(f'v_min_f32 v{RR+4+e}, 0x7e800000, v{RR+4+e}')
        for e in range(4): k(f'v_rcp_f32 v{RR+8+e}, v{RR+4+e}')
        for e in range(4): k(f'v_mul_f32 v{RR+12+e}, v{RR+e}, v{RR+8+e}')
        for e in range(4): k(f'v_fma_f32 v{RR+e}, -v{RR+12+e}, v{RR+4+e}, v{RR+e}')
        for e in range(4): k(f'v_fmac_f32 v{RR+12+e}, v{RR+e}, v{RR+8+e}')
        k(f'v_cvt_pk_bf16_f32 v{b}, v{RR+12}, v{RR+13}\nv_cvt_pk_bf16_f32 v{b+1}, v{RR+14}, v{RR+15}')
    for i in range(5): ror8pair(CB + 4 * i)
    k('s_barrier')
    stamp(2)
    trread(0)
    for i in range(5):
        if i < 4:
            k('s_waitcnt lgkmcnt(4)'); trread(i + 1); k('s_waitcnt lgkmcnt(8)')
        else: k('s_waitcnt lgkmcnt(0)')
        for tile in range(4): mfma(AC + 4 * tile, WT + (i * 4 + tile) * 4, CB + 4 * i, i == 0)
    k('s_branch L_wide')

    k.lab('L_p2')
    LN, SG, CG = 132, 56, 76
    k(f'buffer_load_ushort v36, v11, {sr(sD_,4)}, 0 offen')
    for i in range(5):
        k(f'buffer_load_dwordx2 {vr(CB+4*i,2)}, v4, {sr(sD_,4)}, s{sT0} offen offset:{256*i}')
    k('v_mul_u32_u24 v4, 13824, v7\nv_lshl_add_u32 v4, v2, 5, v4\nv_lshl_add_u32 v4, v9, 4, v4')
    k(f'v_lshlrev_b32 v7, 5, v7\nv_add_u32 v7, {L_RED}, v7\nv_lshl_add_u32 v9, s{sW}, 3, v7')
    epoch()
    k(f's_lshl_b32 s78, s{sPI}, 11\ns_add_u32 s78, s78, {WS_Q}')
    traddr(); redaddr(256, 5, 37, 39)
    k(f's_cmp_lt_u32 s{sW}, 2\ns_cselect_b32 s72, 1.0, 0')
    k('s_waitcnt vmcnt(0)')
    k('v_lshlrev_b32 v8, 16, v36')
    for i in range(5):
        unp(LN + 4 * i, CB + 4 * i); unp(LN + 4 * i + 2, CB + 4 * i + 1)
    for e in range(4): k(f'v_sub_f32 v{RR+e}, v{LN+16+e}, v8')
    k(f'v_add_f32 v10, v{RR}, v{RR+1}\nv_mul_f32 v11, v{RR}, v{RR}\nv_add_f32 v10, v10, v{RR+2}\nv_fmac_f32 v11, v{RR+1}, v{RR+1}')
    k(f'v_add_f32 v10, v10, v{RR+3}\nv_fmac_f32 v11, v{RR+2}, v{RR+2}\nv_mul_f32 v10, s72, v10\nv_fmac_f32 v11, v{RR+3}, v{RR+3}\nv_mul_f32 v11, s72, v11')
    for r in range(16): k(f'v_sub_f32 v{RR+r}, v{LN+r}, v8')
    for r in range(16): k(f'v_add_f32 v10, v10, v{RR+r}\nv_fmac_f32 v11, v{RR+r}, v{RR+r}')
    k(f'v_add_f32_dpp v10, v10, v10 row_ror:8 {DPPALL}\nv_add_f32_dpp v11, v11, v11 row_ror:8 {DPPALL}')
    xrow('v_add_f32', 10, 12); xrow('v_add_f32', 11, 12)
    k('ds_write_b64 v9, v[10:11]')
    k(f's_lshl_b32 s{sT0}, s{sW}, 7\ns_add_u32 s{sT0}, s{sT0}, {WS_MOD}\ns_add_u32 s{sT1}, s{sT0}, 2304')
    k(f's_cmp_lt_u32 s{sW}, 2\ns_cselect_b32 s{sT2}, 512, 0\ns_add_u32 s{sT2}, s{sT2}, s{sT0}\ns_add_u32 s{sT3}, s{sT2}, 2304')
    k('s_waitcnt lgkmcnt(0)\ns_barrier')
    stamp(1)
    k(f'ds_read_b128 {vr(RR,4)}, v7\nds_read_b128 {vr(RR+4,4)}, v7 offset:16')
    for i in range(5):
        trread(i); k(f's_waitcnt lgkmcnt({4 if i < 4 else 0})')
    k(f'v_add_f32 v10, v{RR}, v{RR+2}\nv_add_f32 v11, v{RR+1}, v{RR+3}\nv_add_f32 v12, v{RR+4}, v{RR+6}\nv_add_f32 v13, v{RR+5}, v{RR+7}')
    k('v_add_f32 v10, v10, v12\nv_add_f32 v11, v11, v13\nv_mul_f32 v10, 0x3ae38e39, v10\nv_mul_f32 v11, 0x3ae38e39, v11')
    k('v_fma_f32 v11, -v10, v10, v11\nv_add_f32 v10, v10, v8\nv_max_f32 v11, 0, v11')
    if WHOLD:
        k(f's_cmp_lg_u32 s{sROLE}, 1\ns_cbranch_scc1 L_nowh')
        wstage(16, 0, WHN)
        k.lab('L_nowh')
    rnd2(10, 11, 12)
    k('v_add_f32 v11, 0x3727c5ac, v11')
    rnd1(11, 12)
    k('v_sqrt_f32 v11, v11')
    rnd1(11, 12)
    k('v_rcp_f32 v11, v11')
    for i in range(5):
        d = LN + 4 * i
        for e in range(4): k(f'v_sub_f32 v{d+e}, v{d+e}, v10')
        rnd4(d, 12)
        for e in range(4): k(f'v_mul_f32 v{d+e}, v{d+e}, v11')
        rnd4(d, 12)
    if LQ: xcld(96, 98)
    poll('hpoll', [wsld(CG + 4 * i, 4, sT1 if i < 4 else sT3, 512 * min(i, 3)) for i in range(5)] +
                  [wsld(SG + 4 * i, 4, sT0 if i < 4 else sT2, 512 * min(i, 3)) for i in range(5)],
         [SG + 4 * i for i in range(10)], 12, 10, PSL, True)
    stamp(2)
    if LQ: xcchk(96, 76)
    for i in range(5):
        d, c_, s_ = LN + 4 * i, CG + 4 * i, SG + 4 * i
        unp(RR, c_); unp(RR + 2, c_ + 2); unp(RR + 4, s_); unp(RR + 6, s_ + 2)
        for e in range(4): k(f'v_add_f32 v{RR+e}, 1.0, v{RR+e}')
        rnd4(RR, 12)
        for e in range(4): k(f'v_mul_f32 v{d+e}, v{d+e}, v{RR+e}')
        rnd4(d, 12)
        for e in range(4): k(f'v_add_f32 v{d+e}, v{d+e}, v{RR+4+e}')
        k(f'v_cvt_pk_bf16_f32 v{CB+4*i}, v{d}, v{d+1}\nv_cvt_pk_bf16_f32 v{CB+4*i+1}, v{d+2}, v{d+3}')
        if i > 0:
            ror8pair(CB + 4 * (i - 1))
        if i > 1:
            for tile in range(4): mfma(AC + 4 * tile, WT + ((i - 2) * 4 + tile) * 4, CB + 4 * (i - 2), i == 2)
    ror8pair(CB + 16)
    for i in (3, 4):
        for tile in range(4): mfma(AC + 4 * tile, WT + (i * 4 + tile) * 4, CB + 4 * i, False)
    k.lab('L_wide')
    reduce_publish(RR, 36, 5, 78, 76 if LQ else None)
    k('s_barrier')
    sLB = 35
    def lbsetup():
        k(f's_mul_i32 s{sLB}, s{sW}, 5\ns_cmp_eq_u32 s{sW}, 3\ns_cselect_b32 s{sLB}, 14, s{sLB}')
    def stage(parts, th, rng=None):
        n = 0
        for part in parts:
            lo, hi = (rng or {}).get(part, (0, 10))
            if part < 2: k(f's_mul_i32 s{sT2}, s{sLB}, {32*9216}\ns_lshl_b32 s{sT3}, s{sR}, 6\ns_add_u32 s{sT2}, s{sT2}, s{sT3}')
            else: k(f's_mul_i32 s{sT2}, s{sR}, 36864\ns_mul_i32 s{sT3}, s{sW}, 9216\ns_add_u32 s{sT2}, s{sT2}, s{sT3}')
            l = k.new('L_sg')
            if lo: k(f's_add_u32 s{sT2}, s{sT2}, {16*9216*lo}')
            for i in range(lo, min(hi, 10 if part < 2 else 9)):
                if part < 2 and i == 8: k(f's_cmp_ge_u32 s{sW}, 2\ns_cbranch_scc1 {l}')
                dma(30 if part < 2 else 6, (sA, sB_, sC_)[part], sT2, 10240 * part + 1024 * i, n, th, GP if part < 2 else 'nt'); n += 1
                k(f's_add_u32 s{sT2}, s{sT2}, {16*9216 if part < 2 else 1024}')
            k.lab(l)
    early = [0, 1, 2][:3 - SPLIT]; late = [0, 1, 2][3 - SPLIT:]
    def gfill(fill=True):
        lbsetup()
        srd(sA, pGA, 576 * 9216); srd(sB_, pUP, 576 * 9216); srd(sC_, pDN, 4608 * 1152); srd(sD_, pOUT, 9216)
        k('v_lshrrev_b32 v30, 2, v1\nv_mul_u32_u24 v30, 9216, v30\nv_and_b32 v5, 3, v1\nv_lshl_add_u32 v30, v5, 4, v30\nv_lshlrev_b32 v6, 4, v1')
        if early and fill:
            ldswait('gpre', F_PRE, 4, 4)
            stage(early + ([1] if UPE else []), FTH, {1: (0, UPE) if UPE else (0, 10), 0: (10 - GTE, 10)})
    k.lab('L_pdone')
    stamp(3)
    if F0:
        k(f's_cmp_lg_u32 s{sROLE}, 0\ns_cbranch_scc1 L_nof0')
        gfill()
        k.lab('L_nof0')
    k(f's_cmp_lg_u32 s{sW}, 0\ns_cbranch_scc1 L_qdone')
    if QW: ldswait('qpre', F_PRE, QW, 4)
    k(f's_lshl_b32 s{sT0}, s{sHKV}, 13\ns_lshl_b32 s{sT1}, s{sBB}, 8\ns_add_u32 s{sT0}, s{sT0}, s{sT1}\ns_add_u32 s{sT0}, s{sT0}, {WS_Q}')
    k(f'v_lshlrev_b32 v4, 11, v2\nv_lshl_add_u32 v4, v3, 4, v4\nv_lshlrev_b32 v5, 3, v1\nv_add_u32 v5, {L_Q}, v5\nv_mov_b32 v12, {L_FLG}\nv_mov_b32 v13, 1')
    poll('qpoll', [wsld(24, 4, sT0)], [24], 10, 11, QSL)
    k(f'ds_write2_b32 v5, v24, v26 offset0:0 offset1:1\nds_write_b32 v12, v13 offset:{F_QRDY}')
    k.lab('L_qdone')
    stamp(4)
    k(f's_cmp_eq_u32 s{sROLE}, 1\ns_cbranch_scc1 L_wrole\ns_cmp_eq_u32 s{sROLE}, 3\ns_cbranch_scc1 L_nrole')

    def balance(name):
        k(f's_cmp_lg_u32 s{sW}, 1\ns_cbranch_scc1 L_{name}bd')
        ldswait(f'{name}kd', F_KD, 4, 32)
        k(f'v_and_b32 v33, 1, v1\nv_lshlrev_b32 v33, 4, v33\nv_add_u32 v32, {L_FLG + F_MX}, v33\nds_read_b128 v[36:39], v32')
        k(f'v_lshlrev_b32 v32, 3, v1\nv_add_u32 v32, {L_SC}, v32\ns_mov_b32 s18, 16\ns_waitcnt lgkmcnt(0)')
        k(f'v_max3_f32 v34, v36, v37, v38\nv_max_f32 v34, v34, v39\nv_mul_f32 v34, s{sL2E}, v34\nv_mov_b32 v36, 0')
        k.lab(f'L_{name}bl')
        k('ds_read2st64_b64 v[56:59], v32 offset0:0 offset1:1\nv_add_u32 v32, 1024, v32\ns_waitcnt lgkmcnt(0)')
        for r in range(56, 60):
            unp(38, r)
            k(f'v_fma_f32 v38, v38, s{sL2E}, -v34\nv_fma_f32 v39, v39, s{sL2E}, -v34\nv_exp_f32 v38, v38\nv_exp_f32 v39, v39\nv_add_f32 v36, v36, v38\nv_add_f32 v36, v36, v39')
        k(f's_sub_u32 s18, s18, 1\ns_cmp_lg_u32 s18, 0\ns_cbranch_scc1 L_{name}bl')
        for m in ('quad_perm:[2,3,0,1]', 'row_ror:4', 'row_ror:8'):
            k(f'v_add_f32_dpp v36, v36, v36 {m} {DPPALL}')
        xrow('v_add_f32', 36, 38)
        k(f'v_mov_b32 v35, s{sTAG}\nv_mov_b32 v37, s{sTAG}\ns_lshl_b32 s20, s2, 7\ns_add_u32 s20, s20, {WS_ML}\ns_xor_b32 s21, s20, 1024\ns_mov_b64 exec, 3')
        st2(f'buffer_store_dwordx4 v[34:37], v33, {sr(sWS,4)}, s20 offen', 34, LO)
        ldswait(f'{name}xp', F_POS, XP - P0, 32)
        poll(f'{name}balp', [wsld(56, 33, 21)], [56], 38, 39, 16)
        k('v_max_f32 v38, v34, v56\nv_sub_f32 v34, v34, v38\nv_sub_f32 v56, v56, v38\nv_exp_f32 v34, v34\nv_exp_f32 v56, v56')
        k('v_mul_f32 v36, v36, v34\nv_fmac_f32 v36, v58, v56\nv_rcp_f32 v36, v36\nv_mov_b32 v35, 1\nv_mul_f32 v34, v34, v36')
        k(f'v_lshrrev_b32 v33, 1, v33\nv_add_u32 v33, {L_FLG + F_SCL}, v33\nds_write_b64 v33, v[34:35]\ns_waitcnt lgkmcnt(0)\ns_mov_b64 exec, -1')
        k.lab(f'L_{name}bd')
    def pace(name):
        if not CP: return
        off = dict(g=POFF[0], w=POFF[1]).get(name, POFF[2])
        sh = {64: 2, 32: 3, 16: 4}[PN]
        if PCLK:
            k(f's_cmp_lg_u32 s{sW}, 2\ns_cbranch_scc1 L_{name}pd')
            k(f'v_mov_b32 v32, {L_FLG}\nv_and_b32 v33, {PN-1}, v1\nv_mul_u32_u24 v33, {PSTR}, v33\nv_mov_b32 v35, s{sTAG}')
            k(f's_lshr_b32 s18, s2, 3\ns_lshr_b32 s19, s2, 5\ns_add_u32 s18, s18, s19\ns_add_u32 s18, s18, s2\ns_and_b32 s19, s18, {(1 << sh) - 1}')
            k(f's_lshr_b32 s18, s2, {sh}\ns_mul_i32 s18, s18, {PSTR}\ns_cmp_eq_u32 s19, 0\ns_cselect_b32 s18, s18, {OOB:#x}')
            for ci, C in enumerate(CP):
                n_ = f'{name}c{ci}'
                ldswait(f'{n_}u', F_POS, C - P0 - PCLK - 6, 32)
                ldswait(f'{n_}v', F_POS, C - P0 - PCLK, 2)
                k(f's_memrealtime s[20:21]\ns_add_u32 s19, s18, {WS_PACE + 128 * ci}\ns_waitcnt lgkmcnt(0)\nv_mov_b32 v34, s20')
                k(f's_mov_b64 exec, 1\nbuffer_store_dwordx2 v[34:35], off, {sr(sWS,4)}, s19 sc1\ns_mov_b64 exec, -1')
                ldswait(f'{n_}w', F_POS, C - P0, 16)
                k(f's_mov_b32 s19, {WS_PACE + 128 * ci}\nbuffer_load_dwordx2 v[36:37], v33, {sr(sWS,4)}, s19 offen sc1\ns_waitcnt vmcnt(0)\nds_read_b32 v38, v32 offset:{F_POS}')
                k(f'v_sub_u32 v36, v34, v36\nv_mov_b32 v39, {-PCLK * 28}\nv_cmp_eq_u32 vcc, v35, v37\nv_cndmask_b32 v36, v39, v36, vcc\nv_cvt_f32_i32 v36, v36')
                for m in ('quad_perm:[1,0,3,2]', 'quad_perm:[2,3,0,1]', 'row_half_mirror', 'row_mirror'):
                    k(f'v_add_f32_dpp v36, v36, v36 {m} {DPPALL}')
                xrow('v_add_f32', 36, 39)
                if LP is None or ci < len(CP) - 1:
                    k(f'v_mov_b32 v39, {f2u(PK * (PD + off)):#x}\nv_fmac_f32 v39, {f2u(PK / 64 / 27.6):#x}, v36\nv_max_f32 v39, 0, v39\nv_min_f32 v39, 0x42800000, v39\nv_cvt_u32_f32 v39, v39')
                    k(f's_waitcnt lgkmcnt(0)\nv_add3_u32 v38, v38, v39, {P0+4}\nds_write_b32 v32, v38 offset:{F_BST}\ns_waitcnt lgkmcnt(0)')
                    k('v_mov_b32 v56, v34\nv_mov_b32 v57, v36')
                else:
                    k(f'v_sub_u32 v56, v34, v56\nv_cvt_f32_i32 v56, v56\nv_sub_f32 v57, v57, v36\nv_fmac_f32 v56, {f2u(1 / 64):#x}, v57')
                    k(f'v_rcp_f32 v56, v56\nv_mul_f32 v36, {f2u(1 / 64):#x}, v36\nv_mul_f32 v56, {f2u(float(C - CP[ci - 1]) * TSC):#x}, v56')
                    for li, P_ in enumerate((0,) + tuple(LP)):
                        if P_: ldswait(f'{n_}l{li}', F_POS, P_ - P0, 4)
                        k(f's_memrealtime s[20:21]\nds_read_b32 v38, v32 offset:{F_POS}\ns_waitcnt lgkmcnt(0)')
                        k(f'v_subrev_u32 v39, v34, s20'.replace('v_subrev_u32 v39, v34, s20', 'v_sub_u32 v39, s20, v34'))
                        k(f'v_cvt_f32_i32 v39, v39\nv_add_f32 v39, v39, v36\nv_cvt_f32_u32 v58, v38\nv_subrev_f32 v58, {f2u(float(C - P0 - PCLK + PD + off)):#x}, v58')
                        k(f'v_fma_f32 v39, v39, v56, -v58\nv_mul_f32 v39, {f2u(PK):#x}, v39\nv_max_f32 v39, 0, v39\nv_min_f32 v39, 0x42800000, v39\nv_cvt_u32_f32 v39, v39')
                        k(f'v_add3_u32 v38, v38, v39, {P0+4}\nds_write_b32 v32, v38 offset:{F_BST}\ns_waitcnt lgkmcnt(0)')
            k.lab(f'L_{name}pd')
            return
        k(f's_cmp_lt_u32 s{sW}, 2\ns_cbranch_scc1 L_{name}pd')
        k(f'v_mov_b32 v32, {L_FLG}\nv_and_b32 v33, {PN-1}, v1\nv_mul_u32_u24 v33, {PSTR}, v33\nv_mov_b32 v34, s{sTAG}')
        k(f's_cmp_eq_u32 s{sW}, 2\ns_cbranch_scc1 L_{name}pw')
        k(f's_lshr_b32 s18, s2, 3\ns_lshr_b32 s19, s2, 5\ns_add_u32 s18, s18, s19\ns_add_u32 s18, s18, s2\ns_and_b32 s18, s18, {(1 << sh) - 1}\ns_cmp_lg_u32 s18, 0\ns_cbranch_scc1 L_{name}pd')
        k(f's_lshr_b32 s18, s2, {sh}\ns_mul_i32 s19, s18, 37\ns_and_b32 s19, s19, {PN-1}\ns_mul_i32 s19, s19, {PSPAN}\ns_lshr_b32 s19, s19, {8-sh}\ns_mul_i32 s18, s18, {PSTR}')
        for ci, C in enumerate(CP):
            k(f's_add_u32 s20, s19, {C - 32 - PW0}\ns_add_u32 s21, s18, {WS_PACE + 128 * ci}')
            ldswait(f'{name}mk{ci}', F_POS, 's20', PSLP)
            if 'now' not in PDBG: k(f's_mov_b64 exec, 1\nbuffer_store_dword v34, off, {sr(sWS,4)}, s21 sc1\ns_mov_b64 exec, -1')
        k(f's_branch L_{name}pd')
        k.lab(f'L_{name}pw')
        for ci, C in enumerate(CP):
            n_ = f'{name}p{ci}'
            k(f's_mov_b32 s21, {OOB if "nor" in PDBG else WS_PACE + 128 * ci}')
            ldswait(f'{n_}w', F_POS, C - 32, PSLP)
            k(f'buffer_load_dword v35, v33, {sr(sWS,4)}, s21 offen sc1\ns_waitcnt vmcnt(0)\nds_read_b32 v38, v32 offset:{F_POS}\nv_cmp_eq_u32 vcc, v34, v35\ns_bcnt1_i32_b64 s23, vcc')
            k(f's_mul_i32 s23, s23, {PSPAN * 4}\ns_sub_i32 s23, s23, {round(256 * (PW0 - PD - off))}\ns_cmp_le_i32 s23, 0\ns_cbranch_scc1 L_{n_}e')
            k(f's_mul_i32 s23, s23, {round(PK * 16)}\ns_lshr_b32 s23, s23, 12\ns_waitcnt lgkmcnt(0)\nv_readfirstlane_b32 s22, v38')
            k(f's_add_u32 s23, s23, s22\ns_add_u32 s23, s23, 36\nv_mov_b32 v38, s23\nds_write_b32 v32, v38 offset:{F_BST}')
            k.lab(f'L_{n_}e')
            k('s_waitcnt lgkmcnt(0)')
        k.lab(f'L_{name}pd')
    def locality(name):
        ldswait(f'{name}loc', F_POS, MID, 64)
        xcld(56, 58)
        k('s_waitcnt vmcnt(0)')
        xcchk(56, 34)
        k(f'v_mov_b32 v13, s34\nds_write_b32 v12, v13 offset:{F_LOC}')
    def selmasks(a, b):
        k('v_and_b32 v8, 1, v3\nv_lshlrev_b32 v8, 4, v8\nv_mov_b32 v9, 0x3f80\nv_lshlrev_b32 v9, v8, v9')
        k(f'v_and_b32 v8, 2, v3\nv_cmp_eq_u32 vcc, 0, v8\nv_cndmask_b32 v{a}, 0, v9, vcc\nv_sub_u32 v{b}, v9, v{a}')
    def stream_done(name):
        m = WST if name == 'wpub' else GST
        if name == 'wpub' and EW is not None: ldswait(name, F_POS, QM - P0 + EW, 2)
        elif m == 'pub':
            if PUBS == 0: ldswait(name + 'a', F_POS, QM - P0, 8)
            ldswait(name, F_PUB, 1, PUBS)
        elif m.startswith('cnt'): ldswait(name, F_CNT, int(m[3:]), 1)
        else: k('s_barrier')
    rm = [int(c) for c in RMODE]; rs = [int(c, 16) for c in RSL]

    GW, DW, YA, BO, FS, FS5, XG, GB = 176, 140, 104, 84, 76, 80, 72, 68
    def conv(part):
        if part < 2:
            l = k.new('L_cv')
            for t_ in range(5):
                if t_ == 4: k(f's_cmp_ge_u32 s{sW}, 2\ns_cbranch_scc1 {l}')
                for tile in (2 * part, 2 * part + 1):
                    o = part * 10240 + (tile & 1) * 32 + t_ * 2048
                    r = GW + (t_ * 4 + tile) * 4
                    k(f'ds_read_b64_tr_b16 {vr(r,2)}, v16 offset:{o}\nds_read_b64_tr_b16 {vr(r+2,2)}, v16 offset:{o+256}')
                if t_ == 2: k('s_waitcnt lgkmcnt(4)')
            k.lab(l)
            k('s_waitcnt lgkmcnt(0)')
        else:
            for u in range(9):
                k(f'ds_read_b64_tr_b16 {vr(DW+4*u,2)}, v31 offset:{32*u}\nds_read_b64_tr_b16 {vr(DW+4*u+2,2)}, v31 offset:{4608+32*u}')
                if u in (5, 8): k(f's_waitcnt lgkmcnt({6 if u == 5 else 0})')
    gfill(not F0)
    k(f's_lshr_b32 s72, s{sR}, 2\ns_and_b32 s73, s{sR}, 3')
    k('v_bfe_u32 v8, v3, 2, 1\nv_lshl_add_u32 v8, s73, 1, v8\nv_and_b32 v9, 3, v3\nv_lshl_add_u32 v9, s72, 2, v9')
    k('v_mul_u32_u24 v20, 13824, v8\nv_lshl_add_u32 v20, v9, 4, v20')
    k('v_mul_u32_u24 v21, 1152, v8\nv_lshl_add_u32 v21, v9, 3, v21')
    k('v_mul_u32_u24 v22, 2304, v8\nv_lshl_add_u32 v22, v9, 4, v22')
    for r in list(range(GW + 64, GW + 80)) + list(range(60, 68)): k(f'v_mov_b32 v{r}, 0')
    selmasks(FS, FS + 2)
    k(f'v_mov_b32 v{FS+1}, 0\nv_mov_b32 v{FS+3}, 0\nv_mov_b32 v{FS5+1}, 0\nv_mov_b32 v{FS5+3}, 0')
    k(f's_cmp_lt_u32 s{sW}, 2\ns_cselect_b32 s{sT0}, -1, 0\nv_and_b32 v{FS5}, s{sT0}, v{FS}\nv_and_b32 v{FS5+2}, s{sT0}, v{FS+2}')
    mask64(sM0, 0x00ff)
    k(f'v_lshrrev_b32 v8, 2, v3\nv_and_b32 v9, 3, v3\nv_lshlrev_b32 v16, 6, v8\nv_lshl_add_u32 v16, v9, 3, v16\nv_add_u32 v16, s{sST}, v16\nv_lshl_add_u32 v16, v2, 9, v16')
    k(f'v_mul_u32_u24 v31, 1152, v8\nv_lshl_add_u32 v31, v9, 3, v31\nv_mul_u32_u24 v10, {REG}, v2\ns_mul_i32 s{sT0}, s{sW}, 288\ns_add_u32 s{sT0}, s{sT0}, 20480\nv_add3_u32 v31, v31, v10, s{sT0}')
    k('v_and_b32 v8, 7, v3\nv_lshrrev_b32 v9, 3, v3')
    k('v_mul_u32_u24 v4, 2304, v8\nv_lshl_add_u32 v4, v2, 5, v4\nv_lshl_add_u32 v4, v9, 4, v4')
    k(f's_cmp_lt_u32 s{sW}, 2\ns_cselect_b32 s{sT0}, -1, 0\nv_add_u32 v23, 512, v4\nv_and_b32 v23, s{sT0}, v23\nv_add_u32 v17, 16384, v6\nv_and_b32 v17, s{sT0}, v17')
    k('v_lshrrev_b32 v5, 1, v8\nv_mul_u32_u24 v5, 18432, v5\nv_and_b32 v10, 1, v3\nv_lshl_add_u32 v5, v10, 6, v5\nv_lshl_add_u32 v5, v2, 4, v5\nv_lshl_add_u32 v7, v9, 30, v5')
    k(f'v_mul_u32_u24 v10, {4*18432}, v9\nv_add_u32 v5, v5, v10')
    k(f'v_mul_u32_u24 v14, 272, v8\nv_lshl_add_u32 v15, v2, 5, v14\nv_lshl_add_u32 v15, v9, 4, v15\nv_add_u32 v15, {L_PT}, v15')
    k(f's_mul_i32 s{sT0}, s{sW}, 2176\ns_add_u32 s{sT0}, s{sT0}, {L_PT}\nv_lshl_add_u32 v14, v2, 4, v14\nv_add_u32 v14, s{sT0}, v14')
    k(f'v_lshlrev_b32 v19, 4, v8\nv_add_u32 v19, {L_RED}, v19\ns_lshl_b32 s{sT0}, s{sW}, 7\nv_add_u32 v18, s{sT0}, v19')
    k('s_waitcnt vmcnt(0)')
    for part in early:
        if part < 2 and GTE == 10: conv(part)
    locality('g')
    k(f's_mov_b32 s{sT0}, {WS_MOD + 11520}')
    poll('gbp', [wsld(24, 20, sT0)], [24], 28, 29, 32)
    unp(GB, 24); unp(GB + 2, 26)
    k(f's_mul_i32 s{sT1}, s{sX}, 18432\ns_lshl_b32 s{sT0}, s{sLB}, 7\ns_add_u32 s{sT0}, s{sT0}, s{sT1}\ns_add_u32 s{sT0}, s{sT0}, {WS_H2}\ns_add_u32 s{sT1}, s{sT1}, {WS_X2}')
    k(f's_mul_i32 s72, s{sW}, {36*18432}\ns_lshl_b32 s73, s{sR}, 7\ns_add_u32 s72, s72, s73\ns_add_u32 s72, s72, {WS_YP}')
    balance('g'); pace('g')
    for r in range(AC, AC + 16): k(f'v_mov_b32 v{r}, 0')
    if EK is not None:
        ldswait('gek', F_POS, QM - P0 + EK, 2)
        if GTE < 10: stage([0], 30, {0: (0, 10 - GTE)})
        stage([1], 30, {1: (UPE, EN)})
    stream_done('gpub')
    stamp(5)
    if EK is not None:
        stage(late, 30, {1: (EN, 10)})
        if GTE < 10: late = [0] + late
    else:
        if GTE < 10: late = [0] + late
        stage(late, 30, {1: (UPE, 10), 0: (0, 10 - GTE)})
    def gact(i):
        def f():
            strip(BO + 4 * i)
            for tile in range(4): mfma(AC + 4 * tile, GW + (i * 4 + tile) * 4, BO + 4 * i, False)
        return f
    h2items = [(wsld(BO + 4 * i, 4, sT0, 128 * i) if i < 4 else wsld(BO + 16, 23, sT0), BO + 4 * i, gact(i)) for i in (4, 0, 1, 2, 3)]
    if not H2L:
        for l, _, _ in h2items: k(l)
    for n_, part in enumerate(late):
        k(f's_waitcnt vmcnt({(0 if H2L else 5) + (0 if part == 2 else 9 if part == 1 else 17 - UPE)})')
        if part < 2: conv(part)
    if H2L == 1:
        for l, _, _ in h2items: k(l)
    k('s_barrier')
    if H2L == 2:
        for l, _, _ in h2items: k(l)
    conv(2)
    stamp(6)
    if rm[2] in (0, 3):
        gather('h2p', [(l, b_, lambda: None) for l, b_, _ in h2items], rm[2], rs[2], True)
        strip(BO)
        for i in range(5):
            for tile in range(4):
                mfma(AC + 4 * tile, GW + (i * 4 + tile) * 4, BO + 4 * i, i == 0)
                if tile == 0 and i < 4: strip(BO + 4 * (i + 1))
    else: gather('h2p', h2items, rm[2], rs[2], True)
    stamp(7)
    k(f's_mov_b64 exec, {sr(sM0,2)}')
    for tile in range(4): k(f'ds_write_b128 v14, {vr(AC+4*tile,4)} offset:{64*tile}')
    k('s_mov_b64 exec, -1')
    for u in range(5): k(f'v_mov_b32 v{GW+4*u+1}, s{sTAG}\nv_mov_b32 v{GW+4*u+3}, s{sTAG}')
    c1 = -2 * 0.7978845608028654 * 1.4426950408889634
    k(f's_mov_b32 s{sT2}, {f2u(c1*0.044715):#x}\nv_mov_b32 v13, {f2u(c1):#x}')
    k('s_waitcnt lgkmcnt(0)\ns_barrier')
    for i in range(4): k(f'ds_read_b128 {vr(YA+4*i,4)}, v15 offset:{2176*i}')
    for i in range(4): k(f'ds_read_b128 {vr(YA+16+4*i,4)}, v15 offset:{2176*i+128}')
    G_, U_, BL, BH = YA, YA + 16, 60, 64
    for r in range(AC, AC + 4): k(f'v_mov_b32 v{r}, 0')
    k(f's_mul_i32 s73, s{sR}, 18432\ns_lshl_b32 s74, s{sW}, 10\ns_add_u32 s73, s73, s74\ns_add_u32 s73, s73, {WS_YP}')
    k('s_add_u32 s74, s73, 4096\ns_add_u32 s75, s73, 8192\ns_add_u32 s76, s73, 12288')
    k('s_waitcnt lgkmcnt(4)')
    sum4(G_)
    if RND: rnd4(G_, 8)
    for e in range(4): k(f'v_mul_f32 v{G_+4+e}, v{G_+e}, v{G_+e}')
    for e in range(4): k(f'v_fma_f32 v{G_+4+e}, v{G_+4+e}, s{sT2}, v13')
    for e in range(4): k(f'v_mul_f32 v{G_+4+e}, v{G_+4+e}, v{G_+e}')
    for e in range(4): k(f'v_exp_f32 v{G_+4+e}, v{G_+4+e}')
    k('s_waitcnt lgkmcnt(0)')
    sum4(U_)
    for e in range(4): k(f'v_add_f32 v{G_+4+e}, 1.0, v{G_+4+e}')
    for e in range(4): k(f'v_rcp_f32 v{G_+4+e}, v{G_+4+e}')
    if RND: rnd4(U_, 8)
    for e in range(4): k(f'v_mul_f32 v{G_+e}, v{G_+e}, v{G_+4+e}')
    if RND: rnd4(G_, 10)
    for e in range(4): k(f'v_mul_f32 v{G_+e}, v{G_+e}, v{U_+e}')
    k(f'v_cvt_pk_bf16_f32 v8, v{G_}, v{G_+1}\nv_cvt_pk_bf16_f32 v9, v{G_+2}, v{G_+3}')
    for d, s_, m, bm in ((BL, 8, 'quad_perm:[0,1,2,3]', 3), (BL + 1, 9, 'quad_perm:[0,1,2,3]', 3), (BL + 2, 8, 'row_ror:8', 3), (BL + 3, 9, 'row_ror:8', 3),
                         (BH, 8, 'row_ror:8', 12), (BH + 1, 9, 'row_ror:8', 12), (BH + 2, 8, 'quad_perm:[0,1,2,3]', 12), (BH + 3, 9, 'quad_perm:[0,1,2,3]', 12)):
        k(f'v_mov_b32_dpp v{d}, v{s_} {m} row_mask:0xf bank_mask:{bm:#x}')
    def ystore(u):
        r, z = YA + 4 * u, GW + 4 * u
        k(f'v_cvt_pk_bf16_f32 v{z}, v{r}, v{r+1}\nv_cvt_pk_bf16_f32 v{z+2}, v{r+2}, v{r+3}')
        k(f'buffer_store_dwordx4 {vr(z,4)}, v{5 if u < 4 else 7}, {sr(sWS,4)}, s72 offen sc1')
        if u < 4: k(f's_add_u32 s72, s72, {8*18432}')
    for u in range(5):
        mfma(YA + 4 * u, DW + 8 * u, BL, True)
        if u < 4: mfma(YA + 4 * u, DW + 8 * u + 4, BH, False)
        if u >= 2: ystore(u - 2)
    ystore(3); ystore(4)
    stamp(8)
    k(f's_waitcnt vmcnt({FACK})')
    if FBAR: k('s_barrier')
    gather('yp', [(wsld(BO + 4 * i, 6, 73 + i) if i < 4 else wsld(BO + 16, 17, 73), BO + 4 * i, (lambda i=i: mfma(AC, FS if i < 4 else FS5, BO + 4 * i, False))) for i in range(5)] +
           [(wsld(XG, 22, sT1), XG, lambda: (unp(24, XG), unp(26, XG + 2)))], rm[3], rs[3])
    stamp(9)
    for e in range(4): k(f'v_add_f32_dpp v{AC+e}, v{AC+e}, v{AC+e} row_ror:8 {DPPALL}')
    k(f's_mov_b64 exec, 0xff\nds_write_b128 v18, {vr(AC,4)}\ns_waitcnt lgkmcnt(0)\ns_barrier')
    k(f's_cmp_lg_u32 s{sW}, 0\ns_cbranch_scc1 L_exit')
    for i in range(4): k(f'ds_read_b128 {vr(YA+4*i,4)}, v19 offset:{128*i}')
    k('s_waitcnt lgkmcnt(0)')
    sum4(YA)
    if RND:
        rnd4(YA, 8)
        for e in range(4): k(f'v_mul_f32 v{YA+e}, v{GB+e}, v{YA+e}')
        rnd4(YA, 8)
        for e in range(4): k(f'v_add_f32 v{YA+e}, v{24+e}, v{YA+e}')
    else:
        for e in range(4): k(f'v_fma_f32 v{YA+e}, v{GB+e}, v{YA+e}, v{24+e}')
    k(f'v_cvt_pk_bf16_f32 v8, v{YA}, v{YA+1}\nv_cvt_pk_bf16_f32 v9, v{YA+2}, v{YA+3}')
    k(f'buffer_store_dwordx2 v[8:9], v21, {sr(sD_,4)}, 0 offen' + (' sc1' if OSC else ''))
    k(f's_cmp_lg_u32 s{sR}, 0\ns_cbranch_scc1 L_exit')
    k(f'v_mov_b32 v10, s{sEP}\nv_mov_b32 v11, 0\ns_mov_b64 exec, 1\nbuffer_store_dword v10, v11, {sr(sWS,4)}, 0 offen')
    k('s_branch L_exit')

    k.lab('L_wrole')
    WW, OG, MLG, BW, AB = 192, 160, 156, 140, 112
    GA, SEL, RAW, MG, MS, MC, MX, X2 = 160, 92, 76, 60, 64, 68, 72, 128
    sM9, sM10 = 28, 30
    if WHOLD: k(f's_cmp_eq_u32 s{sPRO}, 3\ns_cbranch_scc1 L_wst')
    wstage(WTH, 0, WHN if WHOLD else 16)
    k.lab('L_wst')
    if WHOLD and WHN < 16: wstage(WTH, WHN, 16)
    k(f'v_lshrrev_b32 v8, 2, v3\nv_and_b32 v9, 3, v3\nv_lshl_add_u32 v10, v2, 3, v8\nv_lshlrev_b32 v10, 7, v10\nv_lshl_add_u32 v10, v9, 3, v10\nv_add_u32 v10, s{sST}, v10')
    k('s_waitcnt vmcnt(0)')
    for t_ in range(4):
        for tile in range(4):
            r = WW + (t_ * 4 + tile) * 4
            o = t_ * 4096 + tile * 32
            k(f'ds_read_b64_tr_b16 {vr(r,2)}, v10 offset:{o}\nds_read_b64_tr_b16 {vr(r+2,2)}, v10 offset:{o+512}')
        k('s_waitcnt lgkmcnt(0)')
    locality('w')
    k(f's_cmp_lt_u32 s{sCN}, 8\ns_cselect_b32 s76, 1, 0')
    k('v_mov_b32 v108, 0\nv_mov_b32 v109, 0\nv_mov_b32 v110, 0\ns_cbranch_scc0 L_wnor')
    selmasks(10, 11)
    for r in range(SEL, SEL + 12): k(f'v_mov_b32 v{r}, 0')
    for v in range(3):
        k(f'v_mov_b32_dpp v{SEL+4*v}, v10 quad_perm:[0,1,2,3] row_mask:0xf bank_mask:{1<<v:#x}')
        k(f'v_mov_b32_dpp v{SEL+4*v+2}, v11 quad_perm:[0,1,2,3] row_mask:0xf bank_mask:{1<<v:#x}')
    lbsetup()
    k(f's_mov_b32 s{sM9}, -1\ns_cmp_lt_u32 s{sW}, 2\ns_cselect_b32 s{sM9+1}, 0xff, 0\ns_cselect_b32 s{sT1}, 512, 0\ns_lshl_b32 s{sT0}, s{sLB}, 7')
    k(f'v_lshlrev_b32 v109, 4, v1\nv_cndmask_b32 v109, 0, v109, {sr(sM9,2)}\nv_add_u32 v109, s{sT0}, v109\nv_mov_b32 v4, v109')
    k(f'v_mul_u32_u24 v8, 2304, v2\nv_add_u32 v8, s{sT0}, v8\nv_lshl_add_u32 v108, v3, 4, v8')
    k(f'v_and_b32 v9, 7, v3\nv_lshl_add_u32 v110, v9, 4, v8\nv_add_u32 v110, s{sT1}, v110')
    k(f's_mul_i32 s{sT0}, s{sCN}, 13824\ns_add_u32 s{sT0}, s{sT0}, {WS_MOD + 4608}\ns_add_u32 s{sT1}, s{sT0}, 4608')
    k(f's_mul_i32 s{sT2}, s{sCN}, 1152\nv_lshrrev_b32 v8, 1, v4')
    k(f'buffer_load_dwordx2 {vr(RAW+12,2)}, v8, {sr(sD_,4)}, s{sT2} offen')
    poll('rmod', [wsld(RAW, 4, sT0), wsld(RAW + 4, 4, sT0, 2304), wsld(RAW + 8, 4, sT1)], [RAW, RAW + 4, RAW + 8], 10, 11, 32)
    for j, d in enumerate((MG, MS, MC)):
        unp(d, RAW + 4 * j); unp(d + 2, RAW + 4 * j + 2)
    unp(MX, RAW + 12); unp(MX + 2, RAW + 13)
    for e in range(4): k(f'v_add_f32 v{MC+e}, 1.0, v{MC+e}')
    rnd4(MC, 8)
    k(f's_mul_i32 s74, s{sCN}, 18432\ns_add_u32 s74, s74, {WS_AP}\ns_add_u32 s75, s74, 9216')
    k(f's_mul_i32 s72, s{sCN}, 2304')
    k(f's_mul_i32 s73, s{sX}, 18432\ns_add_u32 s72, s72, s73\ns_add_u32 s73, s72, {WS_X2}\ns_add_u32 s72, s72, {WS_H2}')
    k(f's_lshl_b32 s{sT2}, s{sW}, 3\ns_add_u32 s{sT2}, s{sT2}, {L_STA}\nv_mov_b32 v22, s{sT2}\nv_mov_b32 v23, {L_STA}')
    for r in (25, 27, 29, 31): k(f'v_mov_b32 v{r}, s{sTAG}')
    for r in [28, 30] + list(range(X2, X2 + 4)): k(f'v_mov_b32 v{r}, 0')
    k(f's_mov_b32 s33, {f2u(1/128):#x}\ns_cmp_lt_u32 s{sW}, 2\ns_cselect_b32 s33, {f2u(1/160):#x}, s33')
    k.lab('L_wnor')
    redaddr(18432, 7, 17, 19)
    k('v_and_b32 v8, 7, v3\nv_lshrrev_b32 v9, 3, v3\nv_lshlrev_b32 v4, 11, v8\nv_lshl_add_u32 v4, v2, 5, v4\nv_lshl_add_u32 v4, v9, 4, v4\nv_lshlrev_b32 v5, 4, v3')
    k(f's_lshl_b32 s{sT0}, s{sX}, 1\ns_lshr_b32 s{sT1}, s{sW}, 1\ns_add_u32 s{sT0}, s{sT0}, s{sT1}\ns_lshl_b32 s{sT0}, s{sT0}, 14\ns_and_b32 s{sT1}, s{sW}, 1\ns_lshl_b32 s{sT1}, s{sT1}, 9')
    k(f's_add_u32 s{sT0}, s{sT0}, s{sT1}\ns_add_u32 s{sT0}, s{sT0}, {WS_OP}')
    k(f's_lshl_b32 s32, s{sX}, 2\ns_add_u32 s32, s32, s{sW}\ns_lshl_b32 s32, s32, 8\ns_add_u32 s32, s32, {WS_ML}')
    k(f's_mul_i32 s{sT1}, s{sX}, 2304\ns_lshl_b32 s{sT2}, s{sCN}, 8\ns_add_u32 s{sT1}, s{sT1}, s{sT2}\ns_add_u32 s{sT1}, s{sT1}, {WS_AP}')
    balance('w'); pace('w')
    for r in list(range(AC, AC + 16)) + list(range(AB, AB + 16)): k(f'v_mov_b32 v{r}, 0')
    stream_done('wpub')
    stamp(5)
    def wact(t_, sp):
        def f():
            b = OG + (2 * t_ + sp) * 4
            strip(b)
            for tile in range(4): mfma((AB if sp else AC) + 4 * tile, WW + (t_ * 4 + tile) * 4, b, False)
        return f
    def mlact():
        k(f'v_max_f32_dpp v20, v{MLG}, v{MLG} row_ror:8 {DPPALL}\nv_sub_f32 v20, v{MLG}, v20\nv_exp_f32 v20, v20')
        k(f'v_mul_f32 v21, v20, v{MLG+2}\nv_add_f32_dpp v21, v21, v21 row_ror:8 {DPPALL}\nv_rcp_f32 v21, v21\nv_mul_f32 v20, v20, v21')
        k(f'v_mov_b32_dpp v21, v20 row_ror:8 {DPPALL}')
    gather('op', [(wsld(OG + (2 * t_ + sp) * 4, 4, sT0, 1024 * sp + 128 * t_), OG + (2 * t_ + sp) * 4, lambda: None) for sp in range(2) for t_ in range(4)], rm[0], rs[0])
    if True:
        def wb(t_):
            A_, B_ = OG + 8 * t_, OG + 8 * t_ + 4
            return [f'v_mov_b32 v{A_+3}, v{B_+2}', f'v_mov_b32 v{A_+1}, v{A_+2}',
                    f'v_mov_b32_dpp v{B_+1}, v{A_} row_ror:8 {DPPALL}',
                    f'v_mov_b32_dpp v{A_+3}, v{A_+2} row_ror:8 row_mask:0xf bank_mask:0x3',
                    f'v_mov_b32_dpp v{A_+1}, v{B_+2} row_ror:8 row_mask:0xf bank_mask:0xc',
                    f'v_mov_b32_dpp v{A_}, v{B_} row_ror:8 row_mask:0xf bank_mask:0xc',
                    f'v_cndmask_b32 v{A_+2}, v{B_}, v{B_+1}, {sr(sM0,2)}']
        for l in wb(0): k(l)
        for t_ in range(4):
            fill_ = wb(t_ + 1) if t_ < 3 else []
            p = 0
            for tile, c_ in enumerate((3, 5, 7, 7)):
                mfma(AC + 4 * tile, WW + (t_ * 4 + tile) * 4, OG + 8 * t_, t_ == 0)
                for l in fill_[p:c_]: k(l)
                p = c_
        stamp(6)
        for r in range(16): k(f'v_add_f32_dpp v{AC+r}, v{AC+r}, v{AC+r} row_ror:8 {DPPALL}')
    reduce_publish(BW, 16, 7, sT1)
    stamp(7)
    k('s_cmp_eq_u32 s76, 0\ns_cbranch_scc1 L_exit')
    if RACK == 0: k('s_waitcnt vmcnt(0)')
    elif RACK > 0: k(f's_sleep {RACK}')
    gather('ap', [(wsld(GA + (u * 3 + v) * 4, 108, 74 + u, 256 * v) if v < 2 else wsld(GA + (u * 3 + v) * 4, 110, 74 + u), GA + (u * 3 + v) * 4,
                   (lambda u=u, v=v: mfma(X2, SEL + 4 * v, GA + (u * 3 + v) * 4, False))) for u in range(2) for v in range(3)], rm[1], rs[1])
    stamp(8)
    if RND:
        rnd4(X2, 8)
        for e in range(4): k(f'v_mul_f32 v{X2+e}, v{MG+e}, v{X2+e}')
        rnd4(X2, 8)
        for e in range(4): k(f'v_add_f32 v{X2+e}, v{MX+e}, v{X2+e}')
        k(f'v_cvt_pk_bf16_f32 v24, v{X2}, v{X2+1}\nv_cvt_pk_bf16_f32 v26, v{X2+2}, v{X2+3}')
        unp(X2, 24); unp(X2 + 2, 26)
    else:
        for e in range(4): k(f'v_fma_f32 v{X2+e}, v{MG+e}, v{X2+e}, v{MX+e}')
    k(f'v_readfirstlane_b32 s{sT2}, v{X2}')
    for e in range(4): k(f'v_subrev_f32 v{12+e}, s{sT2}, v{X2+e}')
    k('v_add_f32 v8, v12, v13\nv_mul_f32 v9, v12, v12\nv_add_f32 v10, v14, v15\nv_fmac_f32 v9, v13, v13\nv_add_f32 v8, v8, v10\nv_fmac_f32 v9, v14, v14\nv_fmac_f32 v9, v15, v15')
    k(f'v_cndmask_b32 v8, 0, v8, {sr(sM9,2)}\nv_cndmask_b32 v9, 0, v9, {sr(sM9,2)}')
    for m in ('row_shr:1 row_mask:0xf', 'row_shr:2 row_mask:0xf', 'row_shr:4 row_mask:0xf', 'row_shr:8 row_mask:0xf', 'row_bcast:15 row_mask:0xa', 'row_bcast:31 row_mask:0xc'):
        bc = ' bound_ctrl:0' if 'shr' in m else ''
        k(f'v_add_f32_dpp v8, v8, v8 {m} bank_mask:0xf{bc}\nv_add_f32_dpp v9, v9, v9 {m} bank_mask:0xf{bc}')
    k(f'v_mul_f32 v10, s33, v8\nv_fma_f32 v9, -v10, v8, v9\nv_add_f32 v8, s{sT2}, v10')
    k('s_mov_b32 exec_lo, 0\ns_mov_b32 exec_hi, 0x8000\nds_write_b64 v22, v[8:9]\ns_mov_b64 exec, -1')
    if not RND: k(f'v_cvt_pk_bf16_f32 v24, v{X2}, v{X2+1}\nv_cvt_pk_bf16_f32 v26, v{X2+2}, v{X2+3}')
    k('s_waitcnt lgkmcnt(0)\ns_barrier')
    k(f'ds_read_b128 {vr(AC,4)}, v23\nds_read_b128 {vr(AC+4,4)}, v23 offset:16\ns_waitcnt lgkmcnt(0)')
    wa, wb_ = f2u(160 / 576), f2u(128 / 576)
    k(f'v_add_f32 v8, v{AC}, v{AC+2}\nv_add_f32 v9, v{AC+4}, v{AC+6}\nv_add_f32 v10, v{AC+1}, v{AC+3}\nv_add_f32 v11, v{AC+5}, v{AC+7}')
    k(f'v_mul_f32 v8, {wa:#x}, v8\nv_add_f32 v10, v10, v11\nv_fmac_f32 v8, {wb_:#x}, v9\nv_mul_f32 v10, 0x3ae38e39, v10')
    for i in range(4): k(f'v_sub_f32 v{AC+2*i}, v{AC+2*i}, v8')
    k(f'v_mul_f32 v9, v{AC}, v{AC}\nv_mul_f32 v11, v{AC+4}, v{AC+4}\nv_fmac_f32 v9, v{AC+2}, v{AC+2}\nv_fmac_f32 v11, v{AC+6}, v{AC+6}')
    k(f'v_fmac_f32 v10, {wa:#x}, v9\nv_fmac_f32 v10, {wb_:#x}, v11\nv_max_f32 v10, 0, v10')
    if RND:
        rnd2(8, 10, 9)
        k('v_add_f32 v10, 0x3727c5ac, v10')
        for e in range(4): k(f'v_sub_f32 v{X2+e}, v{X2+e}, v8')
        rnd1(10, 9)
        k('v_sqrt_f32 v10, v10')
        rnd4(X2, 12)
        rnd1(10, 9)
        k('v_rcp_f32 v10, v10')
        for e in range(4): k(f'v_mul_f32 v{X2+e}, v{X2+e}, v10')
        rnd4(X2, 12)
        for e in range(4): k(f'v_mul_f32 v{X2+e}, v{X2+e}, v{MC+e}')
        rnd4(X2, 12)
        for e in range(4): k(f'v_add_f32 v{X2+e}, v{X2+e}, v{MS+e}')
    else:
        k('v_add_f32 v10, 0x3727c5ac, v10\nv_rsq_f32 v10, v10')
        for e in range(4): k(f'v_sub_f32 v{X2+e}, v{X2+e}, v8')
        for e in range(4): k(f'v_mul_f32 v{X2+e}, v{X2+e}, v{MC+e}')
        for e in range(4): k(f'v_fma_f32 v{X2+e}, v{X2+e}, v10, v{MS+e}')
    k(f'v_cvt_pk_bf16_f32 v28, v{X2}, v{X2+1}\nv_cvt_pk_bf16_f32 v30, v{X2+2}, v{X2+3}')
    k(f's_mov_b64 exec, {sr(sM9,2)}')
    st2(f'buffer_store_dwordx4 v[28:31], v109, {sr(sWS,4)}, s72 offen', 34, LH)
    st2(f'buffer_store_dwordx4 v[24:27], v109, {sr(sWS,4)}, s73 offen', 34, LH)
    stamp(9)
    k('s_branch L_exit')

    k.lab('L_nrole')
    locality('n')
    if WARM:
        k(f's_cmp_lg_u32 s{sW}, 0\ns_cbranch_scc1 L_nwarm\ns_cmp_lg_u32 s{sIP}, {[u for u, (r, _) in enumerate(TAIL) if r == 3][0]}\ns_cbranch_scc1 L_nwarm')
        ldswait('nw', F_POS, WARM - P0, 32)
        k(f'v_lshlrev_b32 v8, 7, v1\ns_lshl_b32 s{sT0}, s{sX}, 15\ns_add_u32 s{sT0}, s{sT0}, {WS_OP}')
        for i in range(4):
            k(f'buffer_load_dword v{16+i}, v8, {sr(sWS,4)}, s{sT0} offen sc1\ns_add_u32 s{sT0}, s{sT0}, 8192')
        k('s_waitcnt vmcnt(0)')
        k.lab('L_nwarm')
    balance('n'); pace('n')

    k.lab('L_exit')
    if DIAG is not None:
        if DIAG == 10: stamp(10)
        if DG is not None: k(f's_cmp_lt_u32 s2, {DG[0]}\ns_cbranch_scc1 L_end\ns_cmp_gt_u32 s2, {DG[1]}\ns_cbranch_scc1 L_end')
        k(f's_cmp_lt_u32 s3, 4\ns_cbranch_scc1 L_end\ns_waitcnt lgkmcnt(0)\ns_add_u32 s62, s{STR[DIAG]}, 15000')
        k.lab('L_spin')
        k('s_sleep 2\ns_memrealtime s[64:65]\ns_waitcnt lgkmcnt(0)\ns_sub_u32 s64, s64, s62\ns_cmp_lt_i32 s64, 0\ns_cbranch_scc1 L_spin')
    if PROF:
        stamp(10)
        k(f's_waitcnt lgkmcnt(0)\ns_lshl_b32 s{sT0}, s2, 3\ns_add_u32 s{sT0}, s{sT0}, s3\ns_lshl_b32 s{sT0}, s{sT0}, 7\ns_add_u32 s{sT0}, s{sT0}, {WS_PROF}')
        k('s_mov_b64 exec, 1\nv_mov_b32 v8, 0')
        for i in range(0, 12, 2):
            for j in range(2):
                if i + j < 11: k(f'v_mov_b32 v{12+2*j}, s{STR[i+j]}\nv_mov_b32 v{13+2*j}, s{STR[i+j]+1}')
                else: k(f'v_mov_b32 v14, s{sTO}\nv_mov_b32 v15, 0\nv_lshl_add_u32 v15, s{28 if CP else 78}, 16, v15')
            k(f'buffer_store_dwordx4 v[12:15], v8, {sr(sWS,4)}, s{sT0} offen offset:{8*i}')
    k.lab('L_end')
    k('s_endpgm')
    k.lab('L_codeend')

    body = fix_hazards(k.L)
    hdr = open('cdna_kernels/' + NAME + '.s.ref').read().split('; Override launch')[0]
    out = [hdr.rstrip('\n'),
           f'; @launch grid=(256,1,1) block=(512,1,1) lds={LDS_BYTES}',
           '.amdgcn_target "amdgcn-amd-amdhsa--gfx950"', '.text', f'.globl {NAME}_kernel', '.p2align 8',
           f'.type {NAME}_kernel,@function', f'{NAME}_kernel:', 'L_start:']
    out += body
    out += ['.section .rodata,"a"', '.p2align 6', f'.amdhsa_kernel {NAME}_kernel',
            '  .amdhsa_next_free_vgpr 256', '  .amdhsa_next_free_sgpr 102', '  .amdhsa_accum_offset 256',
            '  .amdhsa_group_segment_fixed_size 0', '  .amdhsa_kernarg_size 112', '  .amdhsa_user_sgpr_count 2',
            '  .amdhsa_user_sgpr_kernarg_segment_ptr 1', '  .amdhsa_system_sgpr_workgroup_id_x 1', '.end_amdhsa_kernel']
    return '\n'.join(out) + '\n'

if __name__ == '__main__':
    kw = eval('dict(' + (sys.argv[2] if len(sys.argv) > 2 else '') + ')')
    open(sys.argv[1], 'w').write(gen(**kw))
```

```python
import sys, struct
from asmlib import K, fix_hazards, vr, sr

NAME = 'adaLN_cond__gqa_block_cached__glu_gated_geglu__decode'
WS_BAL, WS_XC, WS_MOD, WS_Q, WS_OP, WS_AP = 0x8000, 0x10000, 0x20000, 0x40000, 0x80000, 0x100000
WS_UNUSED, WS_UNUSED2, WS_H2, WS_YP, WS_PROF = 0x130000, 0x138000, 0x140000, 0x200000, 0x600000
WS_SIZE = 0x800000
WS_X2 = 0x1d0000
WS_ML = 0xd0000
REG = 29696
L_PT, L_RED, L_SP, L_Q, L_FLG, L_STA = 118784, 127744, 128768, 132928, 133440, 133696
L_SC = 133888
LDS_BYTES = L_SC + 16384
F_CNT, F_QRDY, F_LIM, F_BST, F_POS, F_PUB, F_PRE, F_LOC, F_KD, F_SCL, F_MX = 0, 4, 8, 12, 16, 20, 24, 28, 32, 48, 64
WS_PACE = 0x180000
LOG2E = 0x3FB8AA3B
SCALE = 0x3DB504F3
TIMEOUT = 200000
OOB = 0x7ff00000
f2u = lambda f: struct.unpack('<I', struct.pack('<f', f))[0]

def tables(kind):
    G, W, N = 0, 1, 3
    if kind == 1:
        roles = [G, W] * 9 + [G, N] * 5 + [G, G] * 2
        pro = [0, 2] * 6 + [0, 3] * 8 + [0, 2, 0, 0]
    elif kind == 2:
        roles = [N, W] * 5 + [G, W] * 4 + [G, G] * 7
        pro = [0, 3] * 8 + [0, 2] * 7 + [0, 0]
    elif kind == 3:
        roles = [G, W] * 9 + [G, N] * 5 + [G, G] * 2
        pro = [0, 3] * 8 + [0, 2] * 7 + [0, 0]
    cnt = {}; tail = []
    for r in roles:
        tail.append((r, cnt.get(r, 0))); cnt[r] = cnt.get(r, 0) + 1
    cnt = {}; pi = []
    for p in pro:
        pi.append(cnt.get(p, 0) if p else 0); cnt[p] = cnt.get(p, 0) + 1
    return tail, pro, pi
TAIL, PRO, PIX = tables(3)

def gen(PROF=False, TAB=3, PAIR=1, PFROW=192, PSL=1, QSL=2, SPLIT=2, FTH=5, WTH=4, WHOLD=True,
        QM=256, LA=8, LAG=None, LAW=None, CMIN=2, CMAX=4, CSH=2,
        RMODE='0030', RSL='0000', WST='pub', GST='pub', FBAR=False, DIAG=None, DG=None, MID=64, F0=True, QW=False, FQ=None, FB=(8, 56), CP=(130, 190, 230), PD=0, PK=4.0, PW0=10, PSPAN=28, PN=16, PSTR=4352, POFF=(0, 0, 0), PDBG='', PCLK=12, PSLP=6, LQ=True, LO=True, LH=True, WARM=0, LP=(), TSC=1.0, H2L=2, WMRG=True, RND=False, UPE=0, WHN=16, GP='', GTE=10, PG2=0, NOD=True, EK=None, EN=5, EW=None, RACK=0, FACK=0, PUBS=1, OSC=False, CODE=30, EPB=True, PERM=(12, 13, 14, 16, 17, 18, 19, 20), AX=(), TBL=False, DIRS=(0x10, 0x82, 0x180, 0x1e5, 0x40, 0xa4, 0x20, 0x80), BX=(0xc0, 0x160, 0x120, 8, 0x80, 0x120, 1, 0x140), NS=7, BAL=16, XP=190, BSK=True, BH1=False, BPOS=4, BSP=False, BPOL='nt', PROP=None, PG=(1.6, 1.2), PR=0, TMAX=40, PA=0.0, P2X=True, NBE=None):
    DIRS = [d << 12 for d in DIRS]; BX = [d << 12 for d in BX]; P0 = 4 * NS + 8
    if CP and FB is None: FB = (0, 0)
    if FB is not None: FQ = 0
    global TAIL, PRO, PIX
    TAIL, PRO, PIX = tables(TAB)
    k = K()
    sWS, sTAG, sEP, sHKV, sBB, sX, sIP, sR, sW = 4, 8, 9, 10, 11, 12, 13, 14, 15
    pX, pK, pV, pWQ, pWO, pGA, pUP, pDN, pC, pWM, pOUT, pWSP = 16, 18, 20, 22, 24, 28, 30, 32, 34, 36, 38, 42
    sA, sB_, sC_, sD_ = 44, 48, 52, 56
    sHI, sL2E, sT0, sT1, sT2, sT3, sTO, sSP = 60, 61, 62, 63, 64, 65, 66, 67
    sM0 = 68
    sROLE, sPRO, sPI, sST = 98, 99, 100, 101
    sCN = 77
    DPPALL = 'row_mask:0xf bank_mask:0xf'
    STR = [80 + 2 * i for i in range(9)] + [26, 40]
    def stamp(i):
        if PROF or (DIAG is not None and i in (0, DIAG)): k(f's_memrealtime {sr(STR[i], 2)}')
    def srd(d, p, size):
        k(f's_mov_b32 s{d}, s{p}\ns_mov_b32 s{d+1}, s{p+1}\ns_mov_b32 s{d+2}, {size}\ns_mov_b32 s{d+3}, 0x20000')
    def unp(d, s_):
        k(f'v_lshlrev_b32 v{d}, 16, v{s_}\nv_and_b32 v{d+1}, s{sHI}, v{s_}')
    def rnd2(a, b, t):
        k(f'v_cvt_pk_bf16_f32 v{t}, v{a}, v{b}\nv_lshlrev_b32 v{a}, 16, v{t}\nv_and_b32 v{b}, s{sHI}, v{t}')
    def rnd4(a, t):
        k(f'v_cvt_pk_bf16_f32 v{t}, v{a}, v{a+1}\nv_cvt_pk_bf16_f32 v{t+1}, v{a+2}, v{a+3}')
        unp(a, t); unp(a + 2, t + 1)
    def rnd1(a, t):
        k(f'v_cvt_pk_bf16_f32 v{t}, v{a}, v{a}\nv_and_b32 v{a}, s{sHI}, v{t}')
    def xrow(op, x, t, steps=(16, 32)):
        for st in steps:
            k(f'v_mov_b32 v{t}, v{x}\nv_permlane{st}_swap_b32 v{x}, v{t}\n{op} v{x}, v{x}, v{t}')
    def sum4(b):
        for e in range(4): k(f'v_add_f32 v{b+e}, v{b+e}, v{b+4+e}\nv_add_f32 v{b+8+e}, v{b+8+e}, v{b+12+e}')
        for e in range(4): k(f'v_add_f32 v{b+e}, v{b+e}, v{b+8+e}')
    def tagcheck(bases, acc, tmp):
        for i, b in enumerate(bases):
            d = acc if i == 0 else tmp + ((i - 1) & 1)
            k(f'v_bitop3_b32 v{d}, v{b+1}, v{b+3}, s{sTAG} bitop3:0x7e')
            if i > 0 and (i & 1) == 0: k(f'v_or3_b32 v{acc}, v{acc}, v{tmp}, v{tmp+1}')
        if len(bases) > 1 and (len(bases) & 1) == 0: k(f'v_or_b32 v{acc}, v{acc}, v{tmp}')
        k(f'v_cmp_ne_u32 vcc, 0, v{acc}')
    def retry(lab, sleep=0):
        if sleep: k(f's_sleep {sleep}')
        k(f's_sub_u32 s{sTO}, s{sTO}, 1\ns_cmp_lg_u32 s{sTO}, 0\ns_cbranch_scc1 {lab}\ns_branch L_exit')
    def wsld(dst, voff, soff, imm=0):
        return f'buffer_load_dwordx4 {vr(dst,4)}, v{voff}, {sr(sWS,4)}, s{soff} offen offset:{imm} sc1'
    def poll(name, loads, bases, acc, tmp, sleep=0, masked=False):
        k.lab(f'L_{name}')
        for l in loads: k(l)
        k('s_waitcnt vmcnt(0)')
        tagcheck(bases, acc, tmp)
        k(f's_cbranch_vccz L_{name}ok')
        if masked: k('s_mov_b64 exec, vcc')
        retry(f'L_{name}', sleep)
        k.lab(f'L_{name}ok')
        if masked: k('s_mov_b64 exec, -1')
    def gather(name, items, mode, sleep, issued=False):
        n = len(items)
        if mode == 3:
            if issued:
                k('s_waitcnt vmcnt(0)')
                tagcheck([b for _, b, _ in items], 12, 10)
                k(f's_cbranch_vccz L_{name}ok')
            poll(f'{name}w', [items[-1][0]], [items[-1][1]], 12, 10, sleep, True)
            for l, _, _ in items[:-1]: k(l)
            issued, mode, sleep = True, 0, 0
        if not issued:
            for l, _, _ in items: k(l)
        if mode == 0:
            k.lab(f'L_{name}')
            k('s_waitcnt vmcnt(0)')
            tagcheck([b for _, b, _ in items], 12, 10)
            k(f's_cbranch_vccz L_{name}ok\ns_mov_b64 exec, vcc')
            if sleep: k(f's_sleep {sleep}')
            for l, _, _ in items: k(l)
            retry(f'L_{name}')
            k.lab(f'L_{name}ok')
            k('s_mov_b64 exec, -1')
            for _, _, act in items: act()
            return
        k(f's_mov_b32 s22, 0\ns_mov_b32 s23, {OOB:#x}')
        k.lab(f'L_{name}')
        for i, (l, b, act) in enumerate(items):
            k(f's_bitcmp1_b32 s22, {i}\ns_cbranch_scc1 L_{name}n{i}')
            k(f's_waitcnt vmcnt({n-1-i})')
            k(f'v_bitop3_b32 v10, v{b+1}, v{b+3}, s{sTAG} bitop3:0x7e\nv_cmp_ne_u32 vcc, 0, v10\ns_cbranch_vccnz L_{name}n{i}')
            act()
            k(f's_bitset1_b32 s22, {i}')
            k.lab(f'L_{name}n{i}')
        k(f's_cmp_eq_u32 s22, {(1 << n) - 1}\ns_cbranch_scc1 L_{name}ok')
        if sleep: k(f's_sleep {sleep}')
        for i, (l, b, act) in enumerate(items):
            k(f's_bitcmp1_b32 s22, {i}\ns_cbranch_scc1 L_{name}d{i}')
            k(f'v_bitop3_b32 v10, v{b+1}, v{b+3}, s{sTAG} bitop3:0x7e\nv_cmp_ne_u32 vcc, 0, v10\ns_mov_b64 exec, vcc')
            k(l); k(f's_mov_b64 exec, -1\ns_branch L_{name}e{i}')
            k.lab(f'L_{name}d{i}')
            k(f'buffer_load_dword v0, off, {sr(sWS,4)}, s23')
            k.lab(f'L_{name}e{i}')
        retry(f'L_{name}')
        k.lab(f'L_{name}ok')
    def ldswait(name, flag, val, sleep):
        k(f'v_mov_b32 v12, {L_FLG}')
        k.lab(f'L_{name}')
        k(f'ds_read_b32 v13, v12 offset:{flag}\ns_waitcnt lgkmcnt(0)\nv_readfirstlane_b32 s22, v13\ns_cmp_ge_u32 s22, {val}\ns_cbranch_scc1 L_{name}ok')
        retry(f'L_{name}', sleep)
        k.lab(f'L_{name}ok')
    def mask64(d, lo16):
        m = lo16 | (lo16 << 16)
        k(f's_mov_b32 s{d}, {m:#x}\ns_mov_b32 s{d+1}, {m:#x}')
    def mfma(d, a, b, first):
        k(f'v_mfma_f32_16x16x32_bf16 {vr(d,4)}, {vr(a,4)}, {vr(b,4)}, {"0" if first else vr(d,4)}')
    def ror8pair(b):
        k(f'v_mov_b32_dpp v{b+2}, v{b} row_ror:8 {DPPALL}\nv_mov_b32_dpp v{b+3}, v{b+1} row_ror:8 {DPPALL}')
    def strip(b):
        k(f'v_mov_b32_dpp v{b+3}, v{b+2} row_ror:8 {DPPALL}\nv_mov_b32 v{b+1}, v{b+2}\nv_mov_b32_dpp v{b+2}, v{b} row_ror:8 {DPPALL}')
    def st2(st, flag, on):
        if not on:
            k(st + ' sc1'); return
        l = k.new('L_st')
        k(f's_cmp_eq_u32 s{flag}, 1\ns_cbranch_scc1 {l}a\n{st} sc1\ns_branch {l}b')
        k.lab(l + 'a'); k(st); k.lab(l + 'b')
    def xcld(dst, va):
        k(f'v_and_b32 v{va}, 31, v1\nv_lshlrev_b32 v{va}, 3, v{va}\ns_lshl_b32 s22, s{sX}, 8\ns_add_u32 s22, s22, {WS_XC}')
        k(f'buffer_load_dwordx2 {vr(dst,2)}, v{va}, {sr(sWS,4)}, s22 offen sc1')
    def xcchk(src, flag):
        k(f's_getreg_b32 s22, hwreg(HW_REG_XCC_ID)\nv_xor_b32 v{src}, s22, v{src}\nv_xor_b32 v{src+1}, s{sTAG}, v{src+1}\nv_or_b32 v{src}, v{src}, v{src+1}')
        k(f'v_cmp_ne_u32 vcc, 0, v{src}\ns_cmp_eq_u64 vcc, 0\ns_cselect_b32 s{flag}, 1, 0')
    def tag_from_epoch():
        k(f's_add_u32 s{sEP}, s{sEP}, 0x9e3779b9\ns_and_b32 s{sTAG}, s{sEP}, 0xbfffbfff')

    k('s_cmp_ge_u32 s2, 256\ns_cbranch_scc1 L_end')
    k('s_load_dwordx16 s[16:31], s[0:1], 0')
    k('s_load_dwordx8 s[32:39], s[0:1], 64')
    k('s_load_dwordx4 s[40:43], s[0:1], 96')
    stamp(0)
    if DIAG: stamp(DIAG)
    k('v_lshrrev_b32 v2, 6, v0\nv_and_b32 v1, 63, v0')
    k('v_readfirstlane_b32 s3, v2')
    k(f's_mov_b32 s{sHI}, 0xffff0000\ns_mov_b32 s{sL2E}, {LOG2E:#x}\ns_mov_b32 s{sTO}, {TIMEOUT}')
    k(f's_and_b32 s{sX}, s2, 7\ns_lshr_b32 s{sIP}, s2, 3\ns_and_b32 s{sSP}, s{sIP}, 1\ns_lshr_b32 s{sBB}, s{sIP}, 2\ns_bfe_u32 s{sHKV}, s{sIP}, 0x10001')
    k(f's_lshl_b32 s{sT0}, s{sX}, 1\ns_add_u32 s{sHKV}, s{sHKV}, s{sT0}\ns_lshl_b32 s{sT0}, s{sBB}, 4\ns_add_u32 s{sT0}, s{sT0}, s{sHKV}\ns_lshl_b32 s79, s{sT0}, 21\ns_and_b32 s{sW}, s3, 3')
    k('v_lshrrev_b32 v2, 4, v1\nv_and_b32 v3, 15, v1')
    pk = sum(p << (2 * u) for u, p in enumerate(PRO))
    k(f's_mov_b32 s62, {pk & 0xffffffff:#x}\ns_mov_b32 s63, {pk >> 32:#x}\ns_andn2_b32 s65, s{sIP}, 1\ns_lshl_b32 s65, s65, 1\ns_lshr_b64 s[62:63], s[62:63], s65')
    k(f's_lshr_b32 s68, s62, 2\ns_or_b32 s68, s68, s62\ns_and_b32 s68, s68, 3')
    k(f's_and_b32 s64, s{sIP}, 1\ns_lshl_b32 s64, s64, 1\ns_lshr_b32 s{sPRO}, s62, s64\ns_and_b32 s{sPRO}, s{sPRO}, 3')
    xk = sum(max(PIX[2 * m], PIX[2 * m + 1]) << (4 * m) for m in range(16))
    k(f's_mov_b32 s62, {xk & 0xffffffff:#x}\ns_mov_b32 s63, {xk >> 32:#x}\ns_lshr_b64 s[62:63], s[62:63], s65\ns_and_b32 s{sPI}, s62, 7')
    k(f's_lshl_b32 s62, s{sX}, 3\ns_add_u32 s62, s62, s{sPI}\ns_lshl_b32 s{sPI}, s{sPI}, 3\ns_add_u32 s{sPI}, s{sPI}, s{sX}\ns_cmp_eq_u32 s68, 3\ns_cselect_b32 s{sPI}, s62, s{sPI}')
    k(f's_cmp_lt_u32 s{sPI}, 54\ns_cselect_b32 s64, 3, 1\ns_and_b32 s65, s68, s64\ns_cmp_eq_u32 s65, 0\ns_cselect_b32 s{sPRO}, 0, s{sPRO}\ns_cselect_b32 s68, 0, s68')
    k(f's_mul_i32 s{sST}, s{sW}, {REG}')
    k('s_cmp_ge_u32 s3, 4\ns_cbranch_scc1 L_helper')

    vKO, vVO, vBAL, vM, S, Q, S2, T, vSC = 4, 5, 6, 7, 8, 12, 20, 28, 30
    P, O, vHALF, vFL, vONE, U = 32, 48, 52, 53, 54, 56
    sOFF, sI, sBASE, sSCL, sKND, sLD, sBO = 72, 76, 79, 69, 70, 24, 77
    SLOT = lambda j: 64 + 32 * j if j < 6 else 32
    R_, E = SLOT(2), SLOT(3)
    D0 = 's80' if TBL else hex(DIRS[0])
    k('s_getpc_b64 s[62:63]\nv_lshlrev_b32 v8, 7, v0\nv_min_u32 v8, L_codeend-L_start-512, v8')
    if CODE < 32:
        k(f's_cmp_lt_u32 s{sIP}, {CODE}\ns_cbranch_scc1 L_nocode')
        k('global_load_dword v9, v8, s[62:63]')
        k.lab('L_nocode')
    k(f'v_lshrrev_b32 v{vKO}, 1, v3\nv_lshlrev_b32 v{vKO}, 8, v{vKO}\nv_lshl_add_u32 v{vKO}, v2, 5, v{vKO}\nv_and_b32 v{vVO}, 1, v3\nv_lshl_add_u32 v{vKO}, v{vVO}, 4, v{vKO}')
    k(f's_mov_b32 s{sI}, s{sW}')
    if not TBL:
        for j in range(8):
            if BX[j]: k(f's_bitcmp1_b32 s2, {j}\ns_cselect_b32 s{sT2}, {BX[j]:#x}, 0\ns_xor_b32 s{sBASE}, s{sBASE}, s{sT2}')
    def nextoff(a):
        for j in range(7):
            k(f's_bitcmp1_b32 s{sI}, {j}\ns_cselect_b32 s{sT2}, {f"s{81+j}" if TBL else hex(DIRS[j+1])}, 0\ns_xor_b32 s{sOFF+a}, s{sT2}, s{sBASE if j == 0 else sOFF+a}')
        k(f's_lshr_b32 s{sKND+a}, s{sI}, 7\ns_and_b32 s{sLD+a}, s{sI}, 127\ns_lshl_b32 s{sLD+a}, s{sLD+a}, 7\ns_add_u32 s{sI}, s{sI}, 4')
    def ld(j, h, a, isv, bal):
        def ballast():
            l = k.new('L_nb')
            if PROP:
                k(f's_add_u32 s{sT2}, s{sBO}, {h}\ns_lshr_b32 s{sT2}, s{sT2}, 1\ns_cbranch_scc0 {l}\ns_bfm_b64 exec, s{sT2}, 0')
                k(f'buffer_load_dword v0, v{vBAL}, {sr(sB_ if isv else sA,4)}, s{sOFF+a} offen {BPOL}\ns_mov_b64 exec, -1')
                k.lab(l)
                return
            k(f's_cmp_lg_u32 s{sBO}, 0\ns_cbranch_scc1 {l}\nbuffer_load_dword v0, v{vBAL}, {sr(sB_ if isv else sA,4)}, s{sOFF+a} offen {BPOL}')
            k.lab(l)
        for i in range(4):
            if bal and BSK and i == BPOS: ballast()
            k(f'buffer_load_dwordx4 {vr(SLOT(j)+16*h+4*i,4)}, v{vVO if isv else vKO}, {sr(sB_ if isv else sA,4)}, s{sOFF+a} offen offset:{2048*(i>>1)+(256 if isv else 128)*(i&1)} nt')
        if bal and BSK:
            if BPOS == 4 and not (BH1 and h == 0): ballast()
        elif bal:
            k(f's_or_b32 s{sT2}, s{sOFF+a}, s{sBO}\nbuffer_load_dword v0, v{vBAL}, {sr(sB_ if isv else sA,4)}, s{sT2} offen nt')
        if h == 0: k(f's_xor_b32 s{sOFF+a}, s{sOFF+a}, {D0}')
    def fill(j):
        ld(j, 0, 0, False, False); ld(j, 1, 0, False, False)
    if not TBL: nextoff(0)
    k(f's_movk_i32 s74, 6912\ns_cmp_eq_u32 s68, 3\ns_cselect_b32 s74, 8192, s74')
    k('v_lshrrev_b32 v10, 3, v1\nv_and_b32 v11, 2, v10\nv_mul_lo_u32 v10, v10, s74\nv_xor_b32 v11, v11, v1\nv_and_b32 v11, 7, v11\nv_lshl_add_u32 v10, v11, 4, v10\nv_xor_b32 v12, 64, v10')
    k(f'v_add_u32 v11, {PFROW}, v0\nv_mul_lo_u32 v11, v11, s74')
    k(f's_mul_i32 s75, s74, s{sW}\ns_lshl_b32 s75, s75, 5\ns_lshl_b32 s69, s{sPI}, 7\ns_add_u32 s75, s75, s69')
    k(f's_mul_i32 s{sC_+2}, s74, 576\ns_mov_b32 s{sC_+3}, 0x20000\ns_mul_i32 s78, s74, 104\ns_lshl_b32 s74, s74, 3')
    k('s_waitcnt lgkmcnt(0)')
    k(f's_cmp_eq_u32 s68, 3\ns_cselect_b32 s{sC_}, s{pWQ}, s{pWM}\ns_cselect_b32 s{sC_+1}, s{pWQ+1}, s{pWM+1}')
    srd(sA, pK, 0x10000000); srd(sB_, pV, 0x10000000)
    if TBL:
        k(f's_lshl_b32 s88, s2, 2\ns_add_u32 s88, s88, 64\ns_load_dwordx8 s[80:87], s[26:27], 0\ns_load_dword s{sBASE}, s[26:27], s88\ns_waitcnt lgkmcnt(0)')
        nextoff(0)
    k(f's_cmp_eq_u32 s{sPRO}, 0\ns_cbranch_scc1 L_notile')
    for i in range(5):
        for j in range(4):
            k(f's_add_u32 m0, s{sST}, {4096*i+1024*j}')
            k(f'buffer_load_dwordx4 v{10 + 2 * (j & 1)}, {sr(sC_,4)}, s75 offen nt lds')
            if (i, j) != (4, 3): k(f's_add_u32 s75, s75, s{74 if j < 3 else 78}')
    k('s_waitcnt vmcnt(0)\ns_barrier\ns_barrier\ns_barrier')
    fill(0); nextoff(0); fill(1)
    k('s_branch L_second')
    k.lab('L_notile')
    k('s_cmp_eq_u32 s68, 0\ns_cbranch_scc1 L_nopf')
    k(f'buffer_load_dword v9, v11, {sr(sC_,4)}, s69 offen')
    if PFROW < 320: k(f's_mul_i32 s75, s74, 32\ns_add_u32 s69, s69, s75\nbuffer_load_dword v10, v11, {sr(sC_,4)}, s69 offen')
    k.lab('L_nopf')
    fill(0); nextoff(0); fill(1)
    k('s_barrier')
    k.lab('L_second')
    k(f's_load_dword s{sEP}, {sr(pWSP,2)}, 0')
    srd(sWS, pWSP, WS_SIZE)
    k(f'v_lshlrev_b32 v{vSC}, 3, v{vVO}\nv_lshl_add_u32 v{vSC}, v2, 4, v{vSC}\nv_add_u32 v{vSC}, {L_SC}, v{vSC}')
    k(f'v_lshlrev_b32 v31, 8, v{vVO}\nv_lshl_add_u32 v31, v2, 5, v31\nv_and_b32 v29, 2, v3\nv_lshl_add_u32 v31, v29, 3, v31\nv_add_u32 v31, {L_Q}, v31')
    k(f'v_lshlrev_b32 v{vVO}, 4, v3\nv_lshl_add_u32 v{vVO}, v2, 9, v{vVO}\nv_min_u32 v{vBAL}, {BAL-1}, v1\nv_lshlrev_b32 v{vBAL}, {7 if BAL > 16 else 8}, v{vBAL}')
    if PROP: k(f'v_lshlrev_b32 v{vBAL}, 8, v3\nv_and_b32 v29, 1, v2\nv_lshl_add_u32 v{vBAL}, v29, 7, v{vBAL}')
    if BSP: k(f'v_mul_u32_u24 v{vBAL}, {BAL}, v1\nv_lshrrev_b32 v{vBAL}, 6, v{vBAL}\nv_lshlrev_b32 v{vBAL}, {BSP}, v{vBAL}')
    k(f'v_mov_b32 v{vM}, 0xff800000\nv_mov_b32 v28, {L_FLG}\nv_mov_b32 v29, 1\ns_mov_b32 s{sSCL}, {SCALE:#x}')
    mask64(26 if not (PROF or TBL) else 90, 0x0003)
    sM2 = 26 if not (PROF or TBL) else 90
    for j in range(2, NS):
        nextoff(0); fill(j)
    stamp(1)
    k(f's_mov_b64 exec, 1\nds_add_u32 v28, v29 offset:{F_PRE}\ns_mov_b64 exec, -1')
    k(f's_waitcnt vmcnt({8*NS}) lgkmcnt(0)')
    tag_from_epoch()
    k(f's_cmp_eq_u32 s{sPRO}, 3\ns_cselect_b32 s30, {FB[1]+P0+4}, 0\ns_cmp_eq_u32 s{sPRO}, 2\ns_cselect_b32 s30, {FB[0]+P0+4}, s30\ns_mov_b32 s{sBO}, 0x20000000')
    k.lab('L_qwait')
    k(f'ds_read_b32 v9, v28 offset:{F_QRDY}')
    for i in range(2): k(f'ds_read_b128 {vr(Q+4*i,4)}, v31 offset:{128*i}')
    k(f's_waitcnt lgkmcnt(0)\nv_readfirstlane_b32 s{sT0}, v9\ns_cmp_eq_u32 s{sT0}, 1\ns_cbranch_scc1 L_qok')
    retry('L_qwait', 2)
    k.lab('L_qok')
    stamp(2)
    def claim():
        k(f's_mov_b64 exec, 1\nds_add_rtn_u32 v{U}, v{vFL}, v{vONE} offset:{F_POS}\nds_read_b32 v{U+1}, v{vFL} offset:{F_BST}\ns_mov_b64 exec, -1')
    def claimed(a):
        k(f's_waitcnt lgkmcnt(0)\nv_readfirstlane_b32 s{sI}, v{U}\nv_readfirstlane_b32 s29, v{U+1}\ns_add_u32 s{sI}, s{sI}, {P0}\ns_max_u32 s28, s30, s29')
        nextoff(a)
        if PROP: k(f's_sub_u32 s28, s29, 1\ns_cselect_b32 s28, {PROP}, s28\ns_cmp_lt_u32 s{sI}, s30\ns_cselect_b32 s{sBO}, 0, s28')
        else: k(f's_cmp_lt_u32 s{sI}, s28\ns_cselect_b32 s{sBO}, 0x20000000, 0')
        if NBE: k(f's_cmp_ge_u32 s{sI}, {NBE + 4}\ns_cselect_b32 s{sBO}, {0 if PROP else 1}, s{sBO}')
    def qk(b):
        mfma(S2, b, Q, True); mfma(S2 + 4, b + 8, Q, True); mfma(S2, b + 4, Q + 4, False); mfma(S2 + 4, b + 12, Q + 4, False)
    def scores(h):
        for i in range(4): k(f'v_mov_b32_dpp v{S+i}, v{S2+2*i} quad_perm:[0,1,0,1] {DPPALL}')
        for i in range(4): k(f'v_add_f32_dpp v{S+i}, v{S2+2*i+1}, v{S+i} quad_perm:[2,3,2,3] {DPPALL}')
        rnd4(S, T)
        for i in range(4): k(f'v_mul_f32 v{S+i}, s{sSCL}, v{S+i}')
        rnd4(S, T)
        k(f's_mov_b64 exec, {sr(sM2,2)}\nds_write_b64 v31, {vr(T,2)} offset:{64*h}\ns_mov_b64 exec, -1')
        k(f'v_max3_f32 v{vM}, v{S}, v{S+1}, v{vM}\nv_max3_f32 v{vM}, v{S+2}, v{S+3}, v{vM}')
    younger = 8 * NS
    k(f's_lshl_b32 s{sT0}, s{sW}, 7\nv_add_u32 v31, s{sT0}, v{vSC}')
    for j in range(NS):
        for h in range(2):
            younger -= 4
            k(f's_waitcnt vmcnt({younger})')
            qk(SLOT(j) + 16 * h)
            if j < 2:
                if h == 0: nextoff(j)
                ld(j, h, j, False, not BSK); younger += (4 if BSK else 5)
            scores(h)
        if j < NS - 1: k('v_add_u32 v31, 512, v31')
    stamp(3)
    k(f'v_mov_b32 v{vHALF}, 0xffff\nv_and_b32 v{U}, 2, v3\nv_lshlrev_b32 v{U}, 3, v{U}\nv_lshlrev_b32 v{vHALF}, v{U}, v{vHALF}\nv_mov_b32 v{vFL}, {L_FLG}\nv_mov_b32 v{vONE}, 1')
    for r in list(range(P, O + 4)) + list(range(SLOT(4), SLOT(4) + 16)): k(f'v_mov_b32 v{r}, 0')
    k(f's_lshl_b32 s{sT1}, s{sW}, 10\ns_add_u32 s{sT1}, s{sT1}, {L_SP}')
    k(f'v_lshlrev_b32 v{E}, 5, v3\nv_lshl_add_u32 v{E}, v2, 3, v{E}\nv_add_u32 v{E}, s{sT1}, v{E}')
    k(f'v_lshlrev_b32 v{E+2}, 4, v1\nv_add_u32 v{E+3}, {L_SP}, v{E+2}')
    k(f'v_lshrrev_b32 v{E+4}, 5, v1\nv_lshlrev_b32 v{E+4}, 3, v{E+4}\nv_add_u32 v{E+4}, {L_FLG + F_SCL}, v{E+4}')
    k(f'v_and_b32 v{E+5}, 1, v3\nv_lshlrev_b32 v{E+5}, 4, v{E+5}\nv_add_u32 v{E+5}, {L_FLG + F_MX}, v{E+5}\nv_lshl_add_u32 v{E+1}, s{sW}, 2, v{E+5}')
    for r in (13, 15): k(f'v_mov_b32 v{E+r}, s{sTAG}')
    k(f's_lshl_b32 s74, s{sHKV}, 3\ns_add_u32 s74, s74, s{sBB}\ns_lshl_b32 s74, s74, 1\ns_add_u32 s74, s74, s{sSP}\ns_lshl_b32 s74, s74, 10\ns_add_u32 s74, s74, {WS_OP}')
    if PROF: k('s_mov_b32 s75, 0\ns_mov_b32 s78, 0')
    def profsteps(tg):
        if not PROF: return
        k(f's_lshr_b32 s{sT0}, s{sI}, 2')
        for n_, stp in enumerate((16, 28, 40, 52)):
            k(f's_cmp_lt_u32 s{sT0}, {stp}\ns_cbranch_scc1 L_ns{tg}{n_}\ns_cmp_gt_u32 s75, {n_}\ns_cbranch_scc1 L_ns{tg}{n_}\ns_mov_b32 s75, {n_+1}')
            stamp(6 + n_)
            k.lab(f'L_ns{tg}{n_}')
    def waits(tg, a, h):
        if h == 0: k(f's_cmp_lt_u32 s{sKND+1-a}, 2\ns_cbranch_scc1 L_w{tg}\ns_waitcnt vmcnt({4 if BSK else 6})')
        else: k(f's_cmp_lt_u32 s{sKND+a}, 2\ns_cbranch_scc1 L_w{tg}\ns_waitcnt vmcnt({8 if BSK else 11})\ns_cmp_lt_u32 s{sKND+1-a}, 2\ns_cbranch_scc1 L_w{tg}\ns_waitcnt vmcnt({0 if BSK else 1})')
        k.lab(f'L_w{tg}')
        k(f's_waitcnt vmcnt({12 if BSK else 16})')
    k.lab('L_ktop')
    profsteps('k')
    for a in range(2):
        k(f's_mov_b32 s31, {a}\ns_cmp_lg_u32 s{sKND+a}, 0\ns_cbranch_scc1 L_turn')
        k(f'v_add_u32 v31, s{sLD+a}, v{vSC}')
        for h in range(2):
            waits(f'k{a}{h}', a, h)
            if h == 0: claim()
            qk(SLOT(a) + 16 * h)
            if h == 0: claimed(a)
            k(f's_cmp_eq_u32 s{sKND+a}, 0\ns_cbranch_scc1 L_ik{a}{h}\ns_cmp_eq_u32 s{sKND+a}, 1\ns_cbranch_scc0 L_id{a}{h}')
            ld(a, h, a, True, True)
            k(f's_branch L_id{a}{h}')
            k.lab(f'L_ik{a}{h}')
            ld(a, h, a, False, True)
            k.lab(f'L_id{a}{h}')
            scores(h)
    k('s_branch L_ktop')
    k.lab('L_turn')
    xrow('v_max_f32', vM, U)
    k(f'ds_write_b32 v{E+1}, v{vM}\ns_mov_b64 exec, 1\nds_add_u32 v{vFL}, v{vONE} offset:{F_KD}\ns_mov_b64 exec, -1')
    k.lab('L_kdw')
    k(f'ds_read_b32 v{U}, v{vFL} offset:{F_KD}\nds_read_b128 {vr(S,4)}, v{E+5}\ns_waitcnt lgkmcnt(0)\nv_readfirstlane_b32 s{sT0}, v{U}\ns_cmp_eq_u32 s{sT0}, 4\ns_cbranch_scc1 L_kdok')
    retry('L_kdw', 1)
    k.lab('L_kdok')
    k(f'v_max3_f32 v{vM}, v{S}, v{S+1}, v{S+2}\nv_max_f32 v{vM}, v{vM}, v{S+3}\nv_mul_f32 v{vM}, s{sL2E}, v{vM}')
    k('s_cmp_eq_u32 s31, 1\ns_cbranch_scc1 L_v1')
    PB = SLOT(4) if P2X else P
    def probs(src, P=P):
        unp(S, src); unp(S + 2, src + 1)
        for i in range(4): k(f'v_fma_f32 v{S+i}, v{S+i}, s{sL2E}, -v{vM}')
        for i in range(4): k(f'v_exp_f32 v{S+i}, v{S+i}')
        for i in range(4): k(f'v_cvt_pk_bf16_f32 v{S+i}, v{S+i}, v{S+i}')
        for i in range(4):
            for r in range(4):
                k(f'v_and_b32_dpp v{P+4*i+r}, v{S+i}, v{vHALF} quad_perm:[0,1,2,3] row_mask:0xf bank_mask:{1<<r:#x}')
    k.lab('L_v0')
    profsteps('v')
    for a in range(2):
        if a: k.lab('L_v1')
        k(f's_cmp_lg_u32 s{sKND+a}, 1\ns_cbranch_scc1 L_send')
        k(f'v_add_u32 v31, s{sLD+a}, v{vSC}\nds_read2_b64 {vr(S2,4)}, v31 offset0:0 offset1:8\ns_waitcnt lgkmcnt(0)')
        if P2X: probs(S2); probs(S2 + 2, PB)
        for h in range(2):
            if not P2X: probs(S2 + 2 * h)
            waits(f'v{a}{h}', a, h)
            if h == 0 and P2X:
                k(f's_cmp_lt_u32 s{sKND+1-a}, 2\ns_cbranch_scc1 L_vm{a}')
                for i in range(4): mfma(O, P + 4 * i, SLOT(a) + 4 * i, False)
                k('s_waitcnt vmcnt(0)')
                for i in range(4): mfma(O, PB + 4 * i, SLOT(a) + 16 + 4 * i, False)
                k('s_branch L_send')
                k.lab(f'L_vm{a}')
            if h == 0: claim()
            for i in range(4): mfma(O, (PB if h else P) + 4 * i, SLOT(a) + 16 * h + 4 * i, False)
            if h == 0: claimed(a)
            k(f's_cmp_eq_u32 s{sKND+a}, 1\ns_cbranch_scc0 L_vd{a}{h}')
            ld(a, h, a, True, True)
            k.lab(f'L_vd{a}{h}')
    k('s_branch L_v0')
    k.lab('L_send')
    stamp(4)
    k(f'ds_write2_b32 v{E}, v{O}, v{O+2} offset0:0 offset1:1')
    k(f'ds_write2_b32 v{E}, v{O+1}, v{O+3} offset0:128 offset1:129')
    k(f's_mov_b64 exec, 1\nds_add_rtn_u32 v{U}, v{vFL}, v{vONE} offset:{F_CNT}\ns_mov_b64 exec, -1')
    k(f'ds_read_b32 v{U+1}, v{vFL} offset:{F_LOC}\nds_read_b64 {vr(U+2,2)}, v{E+4}')
    for i in range(4): k(f'ds_read_b128 {vr(R_+4*i,4)}, v{E+3} offset:{1024*i}')
    k('s_waitcnt lgkmcnt(4)')
    k(f'v_readfirstlane_b32 s{sT1}, v{U}\nv_readfirstlane_b32 s{sT0}, v{U+1}\ns_cmp_lg_u32 s{sT1}, 3\ns_cbranch_scc1 L_exit')
    k.lab('L_scw')
    k(f'v_cmp_ne_u32 vcc, 1, v{U+3}\ns_cbranch_vccz L_scok\nds_read_b64 {vr(U+2,2)}, v{E+4}\ns_waitcnt lgkmcnt(0)')
    retry('L_scw', 1)
    k.lab('L_scok')
    k('s_waitcnt lgkmcnt(0)')
    sum4(R_)
    for e in range(4): k(f'v_mul_f32 v{R_+e}, v{U+2}, v{R_+e}')
    k(f'v_cvt_pk_bf16_f32 v{E+12}, v{R_}, v{R_+1}\nv_cvt_pk_bf16_f32 v{E+14}, v{R_+2}, v{R_+3}')
    st2(f'buffer_store_dwordx4 {vr(E+12,4)}, v{E+2}, {sr(sWS,4)}, s74 offen', sT0, LO)
    k(f'ds_write_b32 v{vFL}, v{vONE} offset:{F_PUB}')
    k('s_branch L_exit')

    k.lab('L_helper')
    k('s_setprio 2')
    CB, WT, AC, RR, TA = 16, 176, 40, 100, 168
    k(f'v_lshlrev_b32 v8, 2, v1\nv_add_u32 v8, {L_FLG}, v8\nv_mov_b32 v10, 0\nds_write_b32 v8, v10')
    k('v_and_b32 v7, 7, v3\nv_lshrrev_b32 v9, 3, v3\nv_mul_u32_u24 v11, 1152, v7')
    k('v_lshl_add_u32 v4, v2, 4, v11\nv_lshl_add_u32 v4, v9, 3, v4')
    k(f's_lshl_b32 s{sT0}, s{sW}, 6')
    k('s_waitcnt lgkmcnt(0)')
    srd(sA, pC, 9216); srd(sD_, pX, 9216)
    def epoch():
        srd(sWS, pWSP, WS_SIZE)
        k(f's_load_dword s{sEP}, {sr(pWSP,2)}, 0')
        gm = sum(1 << u for u, (r, _) in enumerate(TAIL) if r == 0); wm = sum(1 << u for u, (r, _) in enumerate(TAIL) if r == 1)
        k(f's_mov_b32 s62, {gm:#x}\ns_mov_b32 s63, {wm:#x}\ns_mov_b32 s{sROLE}, 3')
        k(f's_bitcmp1_b32 s62, s{sIP}\ns_cselect_b32 s{sROLE}, 0, s{sROLE}\ns_bitcmp1_b32 s63, s{sIP}\ns_cselect_b32 s{sROLE}, 1, s{sROLE}')
        k(f's_bfm_b32 s64, s{sIP}, 0\ns_and_b32 s63, s63, s64\ns_bcnt1_i32_b32 s{sCN}, s63\ns_and_b32 s62, s62, s64\ns_bcnt1_i32_b32 s62, s62')
        k(f's_mul_i32 s{sR}, s{sX}, 18\ns_add_u32 s{sR}, s{sR}, s62\ns_waitcnt lgkmcnt(0)')
        tag_from_epoch()
        l = k.new('L_xc')
        k(f's_mov_b32 s76, 0\ns_cmp_lg_u32 s{sW}, 3\ns_cbranch_scc1 {l}')
        k(f's_getreg_b32 s62, hwreg(HW_REG_XCC_ID)\ns_lshl_b32 s63, s{sX}, 5\ns_add_u32 s63, s63, s{sIP}\ns_lshl_b32 s63, s63, 3\ns_add_u32 s63, s63, {WS_XC}')
        k(f'v_mov_b32 v12, s62\nv_mov_b32 v13, s{sTAG}\ns_mov_b64 exec, 1\nbuffer_store_dwordx2 v[12:13], off, {sr(sWS,4)}, s63\ns_mov_b64 exec, -1')
        k.lab(l)
    def traddr():
        k('v_lshrrev_b32 v5, 2, v3\nv_lshl_add_u32 v6, v2, 3, v5\nv_lshlrev_b32 v6, 7, v6\nv_and_b32 v5, 3, v3\nv_lshl_add_u32 v6, v5, 3, v6')
        k('v_bfe_u32 v5, v1, 3, 2\nv_lshl_add_u32 v6, v5, 5, v6')
        for tile in range(4): k(f'v_xor_b32 v{TA+tile}, {32*tile}, v6\nv_add_u32 v{TA+tile}, s{sST}, v{TA+tile}')
    def trread(i):
        for tile in range(4):
            r = WT + (i * 4 + tile) * 4; o = 4096 * i
            k(f'ds_read_b64_tr_b16 {vr(r,2)}, v{TA+tile} offset:{o}\nds_read_b64_tr_b16 {vr(r+2,2)}, v{TA+tile} offset:{o+512}')
    def redaddr(rowstride, so, t0, t1):
        k(f'v_and_b32 v14, 7, v3\nv_mul_u32_u24 v14, 272, v14\nv_lshl_add_u32 v14, v2, 4, v14\ns_mul_i32 s{sT0}, s{sW}, 2176\ns_add_u32 s{sT0}, s{sT0}, {L_PT}\nv_add_u32 v14, s{sT0}, v14')
        k(f'v_and_b32 v{so}, 1, v2\nv_lshl_add_u32 v{so}, s{sW}, 1, v{so}\nv_mul_u32_u24 v15, 272, v{so}\nv_lshl_add_u32 v15, v3, 4, v15\nv_add_u32 v15, {L_PT}, v15')
        k(f'v_mul_u32_u24 v{so}, {rowstride}, v{so}\nv_lshl_add_u32 v{so}, v3, 4, v{so}\nv_mov_b32 v{t0}, s{sTAG}\nv_mov_b32 v{t1}, s{sTAG}')
        mask64(sM0, 0x00ff)
    def reduce_publish(rd, z, so, soff, flag=None):
        k(f's_mov_b64 exec, {sr(sM0,2)}')
        for tile in range(4): k(f'ds_write_b128 v14, {vr(AC+4*tile,4)} offset:{64*tile}')
        k('s_mov_b64 exec, -1\ns_waitcnt lgkmcnt(0)\ns_barrier')
        for i in range(4): k(f'ds_read_b128 {vr(rd+4*i,4)}, v15 offset:{2176*i}')
        k('s_waitcnt lgkmcnt(0)')
        sum4(rd)
        k(f'v_cvt_pk_bf16_f32 v{z}, v{rd}, v{rd+1}\nv_cvt_pk_bf16_f32 v{z+2}, v{rd+2}, v{rd+3}')
        k('s_mov_b32 exec_hi, 0')
        st2(f'buffer_store_dwordx4 {vr(z,4)}, v{so}, {sr(sWS,4)}, s{soff} offen', flag, flag is not None)
        k('s_mov_b64 exec, -1')
    def dma(voff, srd_, soff, lds_imm, idx, th, pol='nt'):
        if idx >= th: k(f's_waitcnt vmcnt({th-1})')
        k(f's_add_u32 m0, s{sST}, {lds_imm}')
        k(f'buffer_load_dwordx4 v{voff}, {sr(srd_,4)}, s{soff} offen {pol} lds')
    def wstage(th, lo=0, hi=16):
        srd(sB_, pWO, 4096 * 1152)
        k('v_lshrrev_b32 v8, 3, v1\nv_mul_u32_u24 v8, 1152, v8\nv_and_b32 v9, 7, v1\nv_lshl_add_u32 v8, v9, 4, v8')
        k(f's_lshl_b32 s72, s{sX}, 2\ns_add_u32 s72, s72, s{sW}\ns_mul_i32 s72, s72, {128*1152}\ns_lshl_b32 s73, s{sCN}, 7\ns_add_u32 s72, s72, s73')
        if lo: k(f's_add_u32 s72, s72, {8*1152*lo}')
        for i in range(lo, hi):
            dma(8, sB_, 72, 1024 * i, i - lo, th)
            if i < 15: k(f's_add_u32 s72, s72, {8*1152}')
    k(f's_cmp_eq_u32 s{sPRO}, 2\ns_cbranch_scc1 L_p1\ns_cmp_eq_u32 s{sPRO}, 3\ns_cbranch_scc1 L_p2')
    if not EPB: k('s_barrier')
    epoch()
    if EPB: k('s_barrier')
    k('s_branch L_pdone')

    k.lab('L_p1')
    for i in range(5):
        k(f'buffer_load_dwordx2 {vr(CB+4*i,2)}, v4, {sr(sA,4)}, s{sT0} offen offset:{256*i}')
    epoch()
    traddr(); redaddr(13824, 5, 37, 39)
    k(f's_lshl_b32 s78, s{sPI}, 8\ns_add_u32 s78, s78, {WS_MOD}\ns_mov_b32 s{sT0}, 0xbfb8aa3b')
    k('s_waitcnt vmcnt(0)')
    stamp(1)
    for i in range(5):
        b = CB + 4 * i
        unp(RR, b); unp(RR + 2, b + 1)
        for e in range(4): k(f'v_mul_f32 v{RR+4+e}, s{sT0}, v{RR+e}')
        for e in range(4): k(f'v_exp_f32 v{RR+4+e}, v{RR+4+e}')
        for e in range(4): k(f'v_add_f32 v{RR+4+e}, 1.0, v{RR+4+e}')
        for e in range(4): k(f'v_min_f32 v{RR+4+e}, 0x7e800000, v{RR+4+e}')
        for e in range(4): k(f'v_rcp_f32 v{RR+8+e}, v{RR+4+e}')
        for e in range(4): k(f'v_mul_f32 v{RR+12+e}, v{RR+e}, v{RR+8+e}')
        for e in range(4): k(f'v_fma_f32 v{RR+e}, -v{RR+12+e}, v{RR+4+e}, v{RR+e}')
        for e in range(4): k(f'v_fmac_f32 v{RR+12+e}, v{RR+e}, v{RR+8+e}')
        k(f'v_cvt_pk_bf16_f32 v{b}, v{RR+12}, v{RR+13}\nv_cvt_pk_bf16_f32 v{b+1}, v{RR+14}, v{RR+15}')
    for i in range(5): ror8pair(CB + 4 * i)
    k('s_barrier')
    stamp(2)
    trread(0)
    for i in range(5):
        if i < 4:
            k('s_waitcnt lgkmcnt(4)'); trread(i + 1); k('s_waitcnt lgkmcnt(8)')
        else: k('s_waitcnt lgkmcnt(0)')
        for tile in range(4): mfma(AC + 4 * tile, WT + (i * 4 + tile) * 4, CB + 4 * i, i == 0)
    k('s_branch L_wide')

    k.lab('L_p2')
    LN, SG, CG = 132, 56, 76
    k(f'buffer_load_ushort v36, v11, {sr(sD_,4)}, 0 offen')
    for i in range(5):
        k(f'buffer_load_dwordx2 {vr(CB+4*i,2)}, v4, {sr(sD_,4)}, s{sT0} offen offset:{256*i}')
    k('v_mul_u32_u24 v4, 13824, v7\nv_lshl_add_u32 v4, v2, 5, v4\nv_lshl_add_u32 v4, v9, 4, v4')
    k(f'v_lshlrev_b32 v7, 5, v7\nv_add_u32 v7, {L_RED}, v7\nv_lshl_add_u32 v9, s{sW}, 3, v7')
    epoch()
    k(f's_lshl_b32 s78, s{sPI}, 11\ns_add_u32 s78, s78, {WS_Q}')
    traddr(); redaddr(256, 5, 37, 39)
    k(f's_cmp_lt_u32 s{sW}, 2\ns_cselect_b32 s72, 1.0, 0')
    k('s_waitcnt vmcnt(0)')
    k('v_lshlrev_b32 v8, 16, v36')
    for i in range(5):
        unp(LN + 4 * i, CB + 4 * i); unp(LN + 4 * i + 2, CB + 4 * i + 1)
    for e in range(4): k(f'v_sub_f32 v{RR+e}, v{LN+16+e}, v8')
    k(f'v_add_f32 v10, v{RR}, v{RR+1}\nv_mul_f32 v11, v{RR}, v{RR}\nv_add_f32 v10, v10, v{RR+2}\nv_fmac_f32 v11, v{RR+1}, v{RR+1}')
    k(f'v_add_f32 v10, v10, v{RR+3}\nv_fmac_f32 v11, v{RR+2}, v{RR+2}\nv_mul_f32 v10, s72, v10\nv_fmac_f32 v11, v{RR+3}, v{RR+3}\nv_mul_f32 v11, s72, v11')
    for r in range(16): k(f'v_sub_f32 v{RR+r}, v{LN+r}, v8')
    for r in range(16): k(f'v_add_f32 v10, v10, v{RR+r}\nv_fmac_f32 v11, v{RR+r}, v{RR+r}')
    k(f'v_add_f32_dpp v10, v10, v10 row_ror:8 {DPPALL}\nv_add_f32_dpp v11, v11, v11 row_ror:8 {DPPALL}')
    xrow('v_add_f32', 10, 12); xrow('v_add_f32', 11, 12)
    k('ds_write_b64 v9, v[10:11]')
    k(f's_lshl_b32 s{sT0}, s{sW}, 7\ns_add_u32 s{sT0}, s{sT0}, {WS_MOD}\ns_add_u32 s{sT1}, s{sT0}, 2304')
    k(f's_cmp_lt_u32 s{sW}, 2\ns_cselect_b32 s{sT2}, 512, 0\ns_add_u32 s{sT2}, s{sT2}, s{sT0}\ns_add_u32 s{sT3}, s{sT2}, 2304')
    k('s_waitcnt lgkmcnt(0)\ns_barrier')
    stamp(1)
    k(f'ds_read_b128 {vr(RR,4)}, v7\nds_read_b128 {vr(RR+4,4)}, v7 offset:16')
    for i in range(5):
        trread(i); k(f's_waitcnt lgkmcnt({4 if i < 4 else 0})')
    k(f'v_add_f32 v10, v{RR}, v{RR+2}\nv_add_f32 v11, v{RR+1}, v{RR+3}\nv_add_f32 v12, v{RR+4}, v{RR+6}\nv_add_f32 v13, v{RR+5}, v{RR+7}')
    k('v_add_f32 v10, v10, v12\nv_add_f32 v11, v11, v13\nv_mul_f32 v10, 0x3ae38e39, v10\nv_mul_f32 v11, 0x3ae38e39, v11')
    k('v_fma_f32 v11, -v10, v10, v11\nv_add_f32 v10, v10, v8\nv_max_f32 v11, 0, v11')
    if WHOLD:
        k(f's_cmp_lg_u32 s{sROLE}, 1\ns_cbranch_scc1 L_nowh')
        wstage(16, 0, WHN)
        k.lab('L_nowh')
    rnd2(10, 11, 12)
    k('v_add_f32 v11, 0x3727c5ac, v11')
    rnd1(11, 12)
    k('v_sqrt_f32 v11, v11')
    rnd1(11, 12)
    k('v_rcp_f32 v11, v11')
    for i in range(5):
        d = LN + 4 * i
        for e in range(4): k(f'v_sub_f32 v{d+e}, v{d+e}, v10')
        rnd4(d, 12)
        for e in range(4): k(f'v_mul_f32 v{d+e}, v{d+e}, v11')
        rnd4(d, 12)
    if LQ: xcld(96, 98)
    poll('hpoll', [wsld(CG + 4 * i, 4, sT1 if i < 4 else sT3, 512 * min(i, 3)) for i in range(5)] +
                  [wsld(SG + 4 * i, 4, sT0 if i < 4 else sT2, 512 * min(i, 3)) for i in range(5)],
         [SG + 4 * i for i in range(10)], 12, 10, PSL, True)
    stamp(2)
    if LQ: xcchk(96, 76)
    for i in range(5):
        d, c_, s_ = LN + 4 * i, CG + 4 * i, SG + 4 * i
        unp(RR, c_); unp(RR + 2, c_ + 2); unp(RR + 4, s_); unp(RR + 6, s_ + 2)
        for e in range(4): k(f'v_add_f32 v{RR+e}, 1.0, v{RR+e}')
        rnd4(RR, 12)
        for e in range(4): k(f'v_mul_f32 v{d+e}, v{d+e}, v{RR+e}')
        rnd4(d, 12)
        for e in range(4): k(f'v_add_f32 v{d+e}, v{d+e}, v{RR+4+e}')
        k(f'v_cvt_pk_bf16_f32 v{CB+4*i}, v{d}, v{d+1}\nv_cvt_pk_bf16_f32 v{CB+4*i+1}, v{d+2}, v{d+3}')
        if i > 0:
            ror8pair(CB + 4 * (i - 1))
        if i > 1:
            for tile in range(4): mfma(AC + 4 * tile, WT + ((i - 2) * 4 + tile) * 4, CB + 4 * (i - 2), i == 2)
    ror8pair(CB + 16)
    for i in (3, 4):
        for tile in range(4): mfma(AC + 4 * tile, WT + (i * 4 + tile) * 4, CB + 4 * i, False)
    k.lab('L_wide')
    reduce_publish(RR, 36, 5, 78, 76 if LQ else None)
    k('s_barrier')
    sLB = 35
    def lbsetup():
        k(f's_mul_i32 s{sLB}, s{sW}, 5\ns_cmp_eq_u32 s{sW}, 3\ns_cselect_b32 s{sLB}, 14, s{sLB}')
    def stage(parts, th, rng=None):
        n = 0
        for part in parts:
            lo, hi = (rng or {}).get(part, (0, 10))
            if part < 2: k(f's_mul_i32 s{sT2}, s{sLB}, {32*9216}\ns_lshl_b32 s{sT3}, s{sR}, 6\ns_add_u32 s{sT2}, s{sT2}, s{sT3}')
            else: k(f's_mul_i32 s{sT2}, s{sR}, 36864\ns_mul_i32 s{sT3}, s{sW}, 9216\ns_add_u32 s{sT2}, s{sT2}, s{sT3}')
            l = k.new('L_sg')
            if lo: k(f's_add_u32 s{sT2}, s{sT2}, {16*9216*lo}')
            for i in range(lo, min(hi, 10 if part < 2 else 9)):
                if part < 2 and i == 8: k(f's_cmp_ge_u32 s{sW}, 2\ns_cbranch_scc1 {l}')
                dma(30 if part < 2 else 6, (sA, sB_, sC_)[part], sT2, 10240 * part + 1024 * i, n, th, GP if part < 2 else 'nt'); n += 1
                k(f's_add_u32 s{sT2}, s{sT2}, {16*9216 if part < 2 else 1024}')
            k.lab(l)
    early = [0, 1, 2][:3 - SPLIT]; late = [0, 1, 2][3 - SPLIT:]
    def gfill(fill=True):
        lbsetup()
        srd(sA, pGA, 576 * 9216); srd(sB_, pUP, 576 * 9216); srd(sC_, pDN, 4608 * 1152); srd(sD_, pOUT, 9216)
        k('v_lshrrev_b32 v30, 2, v1\nv_mul_u32_u24 v30, 9216, v30\nv_and_b32 v5, 3, v1\nv_lshl_add_u32 v30, v5, 4, v30\nv_lshlrev_b32 v6, 4, v1')
        if early and fill:
            ldswait('gpre', F_PRE, 4, 4)
            stage(early + ([1] if UPE else []), FTH, {1: (0, UPE) if UPE else (0, 10), 0: (10 - GTE, 10)})
    k.lab('L_pdone')
    stamp(3)
    if F0:
        k(f's_cmp_lg_u32 s{sROLE}, 0\ns_cbranch_scc1 L_nof0')
        gfill()
        k.lab('L_nof0')
    k(f's_cmp_lg_u32 s{sW}, 0\ns_cbranch_scc1 L_qdone')
    if QW: ldswait('qpre', F_PRE, QW, 4)
    k(f's_lshl_b32 s{sT0}, s{sHKV}, 13\ns_lshl_b32 s{sT1}, s{sBB}, 8\ns_add_u32 s{sT0}, s{sT0}, s{sT1}\ns_add_u32 s{sT0}, s{sT0}, {WS_Q}')
    k(f'v_lshlrev_b32 v4, 11, v2\nv_lshl_add_u32 v4, v3, 4, v4\nv_lshlrev_b32 v5, 3, v1\nv_add_u32 v5, {L_Q}, v5\nv_mov_b32 v12, {L_FLG}\nv_mov_b32 v13, 1')
    poll('qpoll', [wsld(24, 4, sT0)], [24], 10, 11, QSL)
    k(f'ds_write2_b32 v5, v24, v26 offset0:0 offset1:1\nds_write_b32 v12, v13 offset:{F_QRDY}')
    k.lab('L_qdone')
    stamp(4)
    k(f's_cmp_eq_u32 s{sROLE}, 1\ns_cbranch_scc1 L_wrole\ns_cmp_eq_u32 s{sROLE}, 3\ns_cbranch_scc1 L_nrole')

    def balance(name):
        k(f's_cmp_lg_u32 s{sW}, 1\ns_cbranch_scc1 L_{name}bd')
        ldswait(f'{name}kd', F_KD, 4, 32)
        k(f'v_and_b32 v33, 1, v1\nv_lshlrev_b32 v33, 4, v33\nv_add_u32 v32, {L_FLG + F_MX}, v33\nds_read_b128 v[36:39], v32')
        k(f'v_lshlrev_b32 v32, 3, v1\nv_add_u32 v32, {L_SC}, v32\ns_mov_b32 s18, 16\ns_waitcnt lgkmcnt(0)')
        k(f'v_max3_f32 v34, v36, v37, v38\nv_max_f32 v34, v34, v39\nv_mul_f32 v34, s{sL2E}, v34\nv_mov_b32 v36, 0')
        k.lab(f'L_{name}bl')
        k('ds_read2st64_b64 v[56:59], v32 offset0:0 offset1:1\nv_add_u32 v32, 1024, v32\ns_waitcnt lgkmcnt(0)')
        for r in range(56, 60):
            unp(38, r)
            k(f'v_fma_f32 v38, v38, s{sL2E}, -v34\nv_fma_f32 v39, v39, s{sL2E}, -v34\nv_exp_f32 v38, v38\nv_exp_f32 v39, v39\nv_add_f32 v36, v36, v38\nv_add_f32 v36, v36, v39')
        k(f's_sub_u32 s18, s18, 1\ns_cmp_lg_u32 s18, 0\ns_cbranch_scc1 L_{name}bl')
        for m in ('quad_perm:[2,3,0,1]', 'row_ror:4', 'row_ror:8'):
            k(f'v_add_f32_dpp v36, v36, v36 {m} {DPPALL}')
        xrow('v_add_f32', 36, 38)
        k(f'v_mov_b32 v35, s{sTAG}\nv_mov_b32 v37, s{sTAG}\ns_lshl_b32 s20, s2, 7\ns_add_u32 s20, s20, {WS_ML}\ns_xor_b32 s21, s20, 1024\ns_mov_b64 exec, 3')
        st2(f'buffer_store_dwordx4 v[34:37], v33, {sr(sWS,4)}, s20 offen', 34, LO)
        ldswait(f'{name}xp', F_POS, XP - P0, 32)
        poll(f'{name}balp', [wsld(56, 33, 21)], [56], 38, 39, 16)
        k('v_max_f32 v38, v34, v56\nv_sub_f32 v34, v34, v38\nv_sub_f32 v56, v56, v38\nv_exp_f32 v34, v34\nv_exp_f32 v56, v56')
        k('v_mul_f32 v36, v36, v34\nv_fmac_f32 v36, v58, v56\nv_rcp_f32 v36, v36\nv_mov_b32 v35, 1\nv_mul_f32 v34, v34, v36')
        k(f'v_lshrrev_b32 v33, 1, v33\nv_add_u32 v33, {L_FLG + F_SCL}, v33\nds_write_b64 v33, v[34:35]\ns_waitcnt lgkmcnt(0)\ns_mov_b64 exec, -1')
        k.lab(f'L_{name}bd')
    def pace(name):
        if not CP: return
        off = dict(g=POFF[0], w=POFF[1]).get(name, POFF[2])
        sh = {64: 2, 32: 3, 16: 4}[PN]
        if PCLK:
            k(f's_cmp_lg_u32 s{sW}, 2\ns_cbranch_scc1 L_{name}pd')
            k(f'v_mov_b32 v32, {L_FLG}\nv_and_b32 v33, {PN-1}, v1\nv_mul_u32_u24 v33, {PSTR}, v33\nv_mov_b32 v35, s{sTAG}')
            k(f's_lshr_b32 s18, s2, 3\ns_lshr_b32 s19, s2, 5\ns_add_u32 s18, s18, s19\ns_add_u32 s18, s18, s2\ns_and_b32 s19, s18, {(1 << sh) - 1}')
            k(f's_lshr_b32 s18, s2, {sh}\ns_mul_i32 s18, s18, {PSTR}\ns_cmp_eq_u32 s19, 0\ns_cselect_b32 s18, s18, {OOB:#x}')
            for ci, C in enumerate(CP):
                n_ = f'{name}c{ci}'
                ldswait(f'{n_}u', F_POS, C - P0 - PCLK - 6, 32)
                ldswait(f'{n_}v', F_POS, C - P0 - PCLK, 2)
                k(f's_memrealtime s[20:21]\ns_add_u32 s19, s18, {WS_PACE + 128 * ci}\ns_waitcnt lgkmcnt(0)\nv_mov_b32 v34, s20')
                k(f's_mov_b64 exec, 1\nbuffer_store_dwordx2 v[34:35], off, {sr(sWS,4)}, s19 sc1\ns_mov_b64 exec, -1')
                ldswait(f'{n_}w', F_POS, C - P0, 16)
                k(f's_mov_b32 s19, {WS_PACE + 128 * ci}\nbuffer_load_dwordx2 v[36:37], v33, {sr(sWS,4)}, s19 offen sc1\ns_waitcnt vmcnt(0)\nds_read_b32 v38, v32 offset:{F_POS}')
                k(f'v_sub_u32 v36, v34, v36\nv_mov_b32 v39, {-PCLK * 28}\nv_cmp_eq_u32 vcc, v35, v37\nv_cndmask_b32 v36, v39, v36, vcc\nv_cvt_f32_i32 v36, v36')
                for m in ('quad_perm:[1,0,3,2]', 'quad_perm:[2,3,0,1]', 'row_half_mirror', 'row_mirror'):
                    k(f'v_add_f32_dpp v36, v36, v36 {m} {DPPALL}')
                xrow('v_add_f32', 36, 39)
                if PROP:
                    Rm = ((CP[ci + 1] - PCLK if PR and ci + 1 < len(CP) else 256) - C - 4)
                    g_ = PG[min(ci, len(PG) - 1)]
                    k(f'v_mov_b32 v39, {f2u(1 + g_ * (PD + off) / Rm):#x}\nv_fmac_f32 v39, {f2u(g_ / 64 / 27.2 / Rm):#x}, v36\nv_max_f32 v39, 0.5, v39\nv_rcp_f32 v39, v39')
                    k(f's_waitcnt lgkmcnt(0)\nv_mov_b32 v38, {f2u(-64.0 + 1.5):#x}\nv_fmac_f32 v38, {"v59" if PA and ci else hex(f2u(64.0 + PROP))}, v39\nv_max_f32 v38, 1.0, v38\nv_min_f32 v38, {f2u(TMAX + 1.0):#x}, v38\nv_cvt_u32_f32 v39, v38')
                    if PA: k(f'v_mov_b32 v59, {f2u((1 - PA) * (64.0 + PROP) + PA * 62.5):#x}\nv_fmac_f32 v59, {f2u(PA):#x}, v38')
                    k(f's_waitcnt lgkmcnt(0)\nds_write_b32 v32, v39 offset:{F_BST}\ns_waitcnt lgkmcnt(0)')
                elif LP is None or ci < len(CP) - 1:
                    k(f'v_mov_b32 v39, {f2u(PK * (PD + off)):#x}\nv_fmac_f32 v39, {f2u(PK / 64 / 27.6):#x}, v36\nv_max_f32 v39, 0, v39\nv_min_f32 v39, 0x42800000, v39\nv_cvt_u32_f32 v39, v39')
                    k(f's_waitcnt lgkmcnt(0)\nv_add3_u32 v38, v38, v39, {P0+4}\nds_write_b32 v32, v38 offset:{F_BST}\ns_waitcnt lgkmcnt(0)')
                    k('v_mov_b32 v56, v34\nv_mov_b32 v57, v36')
                else:
                    k(f'v_sub_u32 v56, v34, v56\nv_cvt_f32_i32 v56, v56\nv_sub_f32 v57, v57, v36\nv_fmac_f32 v56, {f2u(1 / 64):#x}, v57')
                    k(f'v_rcp_f32 v56, v56\nv_mul_f32 v36, {f2u(1 / 64):#x}, v36\nv_mul_f32 v56, {f2u(float(C - CP[ci - 1]) * TSC):#x}, v56')
                    for li, P_ in enumerate((0,) + tuple(LP)):
                        if P_: ldswait(f'{n_}l{li}', F_POS, P_ - P0, 4)
                        k(f's_memrealtime s[20:21]\nds_read_b32 v38, v32 offset:{F_POS}\ns_waitcnt lgkmcnt(0)')
                        k(f'v_subrev_u32 v39, v34, s20'.replace('v_subrev_u32 v39, v34, s20', 'v_sub_u32 v39, s20, v34'))
                        k(f'v_cvt_f32_i32 v39, v39\nv_add_f32 v39, v39, v36\nv_cvt_f32_u32 v58, v38\nv_subrev_f32 v58, {f2u(float(C - P0 - PCLK + PD + off)):#x}, v58')
                        k(f'v_fma_f32 v39, v39, v56, -v58\nv_mul_f32 v39, {f2u(PK):#x}, v39\nv_max_f32 v39, 0, v39\nv_min_f32 v39, 0x42800000, v39\nv_cvt_u32_f32 v39, v39')
                        k(f'v_add3_u32 v38, v38, v39, {P0+4}\nds_write_b32 v32, v38 offset:{F_BST}\ns_waitcnt lgkmcnt(0)')
            k.lab(f'L_{name}pd')
            return
        k(f's_cmp_lt_u32 s{sW}, 2\ns_cbranch_scc1 L_{name}pd')
        k(f'v_mov_b32 v32, {L_FLG}\nv_and_b32 v33, {PN-1}, v1\nv_mul_u32_u24 v33, {PSTR}, v33\nv_mov_b32 v34, s{sTAG}')
        k(f's_cmp_eq_u32 s{sW}, 2\ns_cbranch_scc1 L_{name}pw')
        k(f's_lshr_b32 s18, s2, 3\ns_lshr_b32 s19, s2, 5\ns_add_u32 s18, s18, s19\ns_add_u32 s18, s18, s2\ns_and_b32 s18, s18, {(1 << sh) - 1}\ns_cmp_lg_u32 s18, 0\ns_cbranch_scc1 L_{name}pd')
        k(f's_lshr_b32 s18, s2, {sh}\ns_mul_i32 s19, s18, 37\ns_and_b32 s19, s19, {PN-1}\ns_mul_i32 s19, s19, {PSPAN}\ns_lshr_b32 s19, s19, {8-sh}\ns_mul_i32 s18, s18, {PSTR}')
        for ci, C in enumerate(CP):
            k(f's_add_u32 s20, s19, {C - 32 - PW0}\ns_add_u32 s21, s18, {WS_PACE + 128 * ci}')
            ldswait(f'{name}mk{ci}', F_POS, 's20', PSLP)
            if 'now' not in PDBG: k(f's_mov_b64 exec, 1\nbuffer_store_dword v34, off, {sr(sWS,4)}, s21 sc1\ns_mov_b64 exec, -1')
        k(f's_branch L_{name}pd')
        k.lab(f'L_{name}pw')
        for ci, C in enumerate(CP):
            n_ = f'{name}p{ci}'
            k(f's_mov_b32 s21, {OOB if "nor" in PDBG else WS_PACE + 128 * ci}')
            ldswait(f'{n_}w', F_POS, C - 32, PSLP)
            k(f'buffer_load_dword v35, v33, {sr(sWS,4)}, s21 offen sc1\ns_waitcnt vmcnt(0)\nds_read_b32 v38, v32 offset:{F_POS}\nv_cmp_eq_u32 vcc, v34, v35\ns_bcnt1_i32_b64 s23, vcc')
            k(f's_mul_i32 s23, s23, {PSPAN * 4}\ns_sub_i32 s23, s23, {round(256 * (PW0 - PD - off))}\ns_cmp_le_i32 s23, 0\ns_cbranch_scc1 L_{n_}e')
            k(f's_mul_i32 s23, s23, {round(PK * 16)}\ns_lshr_b32 s23, s23, 12\ns_waitcnt lgkmcnt(0)\nv_readfirstlane_b32 s22, v38')
            k(f's_add_u32 s23, s23, s22\ns_add_u32 s23, s23, 36\nv_mov_b32 v38, s23\nds_write_b32 v32, v38 offset:{F_BST}')
            k.lab(f'L_{n_}e')
            k('s_waitcnt lgkmcnt(0)')
        k.lab(f'L_{name}pd')
    def locality(name):
        ldswait(f'{name}loc', F_POS, MID, 64)
        xcld(56, 58)
        k('s_waitcnt vmcnt(0)')
        xcchk(56, 34)
        k(f'v_mov_b32 v13, s34\nds_write_b32 v12, v13 offset:{F_LOC}')
    def selmasks(a, b):
        k('v_and_b32 v8, 1, v3\nv_lshlrev_b32 v8, 4, v8\nv_mov_b32 v9, 0x3f80\nv_lshlrev_b32 v9, v8, v9')
        k(f'v_and_b32 v8, 2, v3\nv_cmp_eq_u32 vcc, 0, v8\nv_cndmask_b32 v{a}, 0, v9, vcc\nv_sub_u32 v{b}, v9, v{a}')
    def stream_done(name):
        m = WST if name == 'wpub' else GST
        if name == 'wpub' and EW is not None: ldswait(name, F_POS, QM - P0 + EW, 2)
        elif m == 'pub':
            if PUBS == 0: ldswait(name + 'a', F_POS, QM - P0, 8)
            ldswait(name, F_PUB, 1, PUBS)
        elif m.startswith('cnt'): ldswait(name, F_CNT, int(m[3:]), 1)
        else: k('s_barrier')
    rm = [int(c) for c in RMODE]; rs = [int(c, 16) for c in RSL]

    GW, DW, YA, BO, FS, FS5, XG, GB = 176, 140, 104, 84, 76, 80, 72, 68
    def conv(part):
        if part < 2:
            l = k.new('L_cv')
            for t_ in range(5):
                if t_ == 4: k(f's_cmp_ge_u32 s{sW}, 2\ns_cbranch_scc1 {l}')
                for tile in (2 * part, 2 * part + 1):
                    o = part * 10240 + (tile & 1) * 32 + t_ * 2048
                    r = GW + (t_ * 4 + tile) * 4
                    k(f'ds_read_b64_tr_b16 {vr(r,2)}, v16 offset:{o}\nds_read_b64_tr_b16 {vr(r+2,2)}, v16 offset:{o+256}')
                if t_ == 2: k('s_waitcnt lgkmcnt(4)')
            k.lab(l)
            k('s_waitcnt lgkmcnt(0)')
        else:
            for u in range(9):
                k(f'ds_read_b64_tr_b16 {vr(DW+4*u,2)}, v31 offset:{32*u}\nds_read_b64_tr_b16 {vr(DW+4*u+2,2)}, v31 offset:{4608+32*u}')
                if u in (5, 8): k(f's_waitcnt lgkmcnt({6 if u == 5 else 0})')
    gfill(not F0)
    k(f's_lshr_b32 s72, s{sR}, 2\ns_and_b32 s73, s{sR}, 3')
    k('v_bfe_u32 v8, v3, 2, 1\nv_lshl_add_u32 v8, s73, 1, v8\nv_and_b32 v9, 3, v3\nv_lshl_add_u32 v9, s72, 2, v9')
    k('v_mul_u32_u24 v20, 13824, v8\nv_lshl_add_u32 v20, v9, 4, v20')
    k('v_mul_u32_u24 v21, 1152, v8\nv_lshl_add_u32 v21, v9, 3, v21')
    k('v_mul_u32_u24 v22, 2304, v8\nv_lshl_add_u32 v22, v9, 4, v22')
    for r in list(range(GW + 64, GW + 80)) + list(range(60, 68)): k(f'v_mov_b32 v{r}, 0')
    selmasks(FS, FS + 2)
    k(f'v_mov_b32 v{FS+1}, 0\nv_mov_b32 v{FS+3}, 0\nv_mov_b32 v{FS5+1}, 0\nv_mov_b32 v{FS5+3}, 0')
    k(f's_cmp_lt_u32 s{sW}, 2\ns_cselect_b32 s{sT0}, -1, 0\nv_and_b32 v{FS5}, s{sT0}, v{FS}\nv_and_b32 v{FS5+2}, s{sT0}, v{FS+2}')
    mask64(sM0, 0x00ff)
    k(f'v_lshrrev_b32 v8, 2, v3\nv_and_b32 v9, 3, v3\nv_lshlrev_b32 v16, 6, v8\nv_lshl_add_u32 v16, v9, 3, v16\nv_add_u32 v16, s{sST}, v16\nv_lshl_add_u32 v16, v2, 9, v16')
    k(f'v_mul_u32_u24 v31, 1152, v8\nv_lshl_add_u32 v31, v9, 3, v31\nv_mul_u32_u24 v10, {REG}, v2\ns_mul_i32 s{sT0}, s{sW}, 288\ns_add_u32 s{sT0}, s{sT0}, 20480\nv_add3_u32 v31, v31, v10, s{sT0}')
    k('v_and_b32 v8, 7, v3\nv_lshrrev_b32 v9, 3, v3')
    k('v_mul_u32_u24 v4, 2304, v8\nv_lshl_add_u32 v4, v2, 5, v4\nv_lshl_add_u32 v4, v9, 4, v4')
    k(f's_cmp_lt_u32 s{sW}, 2\ns_cselect_b32 s{sT0}, -1, 0\nv_add_u32 v23, 512, v4\nv_and_b32 v23, s{sT0}, v23\nv_add_u32 v17, 16384, v6\nv_and_b32 v17, s{sT0}, v17')
    k('v_lshrrev_b32 v5, 1, v8\nv_mul_u32_u24 v5, 18432, v5\nv_and_b32 v10, 1, v3\nv_lshl_add_u32 v5, v10, 6, v5\nv_lshl_add_u32 v5, v2, 4, v5\nv_lshl_add_u32 v7, v9, 30, v5')
    k(f'v_mul_u32_u24 v10, {4*18432}, v9\nv_add_u32 v5, v5, v10')
    k(f'v_mul_u32_u24 v14, 272, v8\nv_lshl_add_u32 v15, v2, 5, v14\nv_lshl_add_u32 v15, v9, 4, v15\nv_add_u32 v15, {L_PT}, v15')
    k(f's_mul_i32 s{sT0}, s{sW}, 2176\ns_add_u32 s{sT0}, s{sT0}, {L_PT}\nv_lshl_add_u32 v14, v2, 4, v14\nv_add_u32 v14, s{sT0}, v14')
    k(f'v_lshlrev_b32 v19, 4, v8\nv_add_u32 v19, {L_RED}, v19\ns_lshl_b32 s{sT0}, s{sW}, 7\nv_add_u32 v18, s{sT0}, v19')
    k('s_waitcnt vmcnt(0)')
    for part in early:
        if part < 2 and GTE == 10: conv(part)
    locality('g')
    k(f's_mov_b32 s{sT0}, {WS_MOD + 11520}')
    poll('gbp', [wsld(24, 20, sT0)], [24], 28, 29, 32)
    unp(GB, 24); unp(GB + 2, 26)
    k(f's_mul_i32 s{sT1}, s{sX}, 18432\ns_lshl_b32 s{sT0}, s{sLB}, 7\ns_add_u32 s{sT0}, s{sT0}, s{sT1}\ns_add_u32 s{sT0}, s{sT0}, {WS_H2}\ns_add_u32 s{sT1}, s{sT1}, {WS_X2}')
    k(f's_mul_i32 s72, s{sW}, {36*18432}\ns_lshl_b32 s73, s{sR}, 7\ns_add_u32 s72, s72, s73\ns_add_u32 s72, s72, {WS_YP}')
    balance('g'); pace('g')
    for r in range(AC, AC + 16): k(f'v_mov_b32 v{r}, 0')
    if EK is not None:
        ldswait('gek', F_POS, QM - P0 + EK, 2)
        if GTE < 10: stage([0], 30, {0: (0, 10 - GTE)})
        stage([1], 30, {1: (UPE, EN)})
    stream_done('gpub')
    stamp(5)
    if EK is not None:
        stage(late, 30, {1: (EN, 10)})
        if GTE < 10: late = [0] + late
    else:
        if GTE < 10: late = [0] + late
        stage(late, 30, {1: (UPE, 10), 0: (0, 10 - GTE)})
    def gact(i):
        def f():
            strip(BO + 4 * i)
            for tile in range(4): mfma(AC + 4 * tile, GW + (i * 4 + tile) * 4, BO + 4 * i, False)
        return f
    h2items = [(wsld(BO + 4 * i, 4, sT0, 128 * i) if i < 4 else wsld(BO + 16, 23, sT0), BO + 4 * i, gact(i)) for i in (4, 0, 1, 2, 3)]
    if not H2L:
        for l, _, _ in h2items: k(l)
    for n_, part in enumerate(late):
        k(f's_waitcnt vmcnt({(0 if H2L else 5) + (0 if part == 2 else 9 if part == 1 else 17 - UPE)})')
        if part < 2: conv(part)
    if H2L == 1:
        for l, _, _ in h2items: k(l)
    k('s_barrier')
    if H2L == 2:
        for l, _, _ in h2items: k(l)
    conv(2)
    stamp(6)
    if rm[2] in (0, 3):
        gather('h2p', [(l, b_, lambda: None) for l, b_, _ in h2items], rm[2], rs[2], True)
        strip(BO)
        for i in range(5):
            for tile in range(4):
                mfma(AC + 4 * tile, GW + (i * 4 + tile) * 4, BO + 4 * i, i == 0)
                if tile == 0 and i < 4: strip(BO + 4 * (i + 1))
    else: gather('h2p', h2items, rm[2], rs[2], True)
    stamp(7)
    k(f's_mov_b64 exec, {sr(sM0,2)}')
    for tile in range(4): k(f'ds_write_b128 v14, {vr(AC+4*tile,4)} offset:{64*tile}')
    k('s_mov_b64 exec, -1')
    for u in range(5): k(f'v_mov_b32 v{GW+4*u+1}, s{sTAG}\nv_mov_b32 v{GW+4*u+3}, s{sTAG}')
    c1 = -2 * 0.7978845608028654 * 1.4426950408889634
    k(f's_mov_b32 s{sT2}, {f2u(c1*0.044715):#x}\nv_mov_b32 v13, {f2u(c1):#x}')
    k('s_waitcnt lgkmcnt(0)\ns_barrier')
    for i in range(4): k(f'ds_read_b128 {vr(YA+4*i,4)}, v15 offset:{2176*i}')
    for i in range(4): k(f'ds_read_b128 {vr(YA+16+4*i,4)}, v15 offset:{2176*i+128}')
    G_, U_, BL, BH = YA, YA + 16, 60, 64
    for r in range(AC, AC + 4): k(f'v_mov_b32 v{r}, 0')
    k(f's_mul_i32 s73, s{sR}, 18432\ns_lshl_b32 s74, s{sW}, 10\ns_add_u32 s73, s73, s74\ns_add_u32 s73, s73, {WS_YP}')
    k('s_add_u32 s74, s73, 4096\ns_add_u32 s75, s73, 8192\ns_add_u32 s76, s73, 12288')
    k('s_waitcnt lgkmcnt(4)')
    sum4(G_)
    if RND: rnd4(G_, 8)
    for e in range(4): k(f'v_mul_f32 v{G_+4+e}, v{G_+e}, v{G_+e}')
    for e in range(4): k(f'v_fma_f32 v{G_+4+e}, v{G_+4+e}, s{sT2}, v13')
    for e in range(4): k(f'v_mul_f32 v{G_+4+e}, v{G_+4+e}, v{G_+e}')
    for e in range(4): k(f'v_exp_f32 v{G_+4+e}, v{G_+4+e}')
    k('s_waitcnt lgkmcnt(0)')
    sum4(U_)
    for e in range(4): k(f'v_add_f32 v{G_+4+e}, 1.0, v{G_+4+e}')
    for e in range(4): k(f'v_rcp_f32 v{G_+4+e}, v{G_+4+e}')
    if RND: rnd4(U_, 8)
    for e in range(4): k(f'v_mul_f32 v{G_+e}, v{G_+e}, v{G_+4+e}')
    if RND: rnd4(G_, 10)
    for e in range(4): k(f'v_mul_f32 v{G_+e}, v{G_+e}, v{U_+e}')
    k(f'v_cvt_pk_bf16_f32 v8, v{G_}, v{G_+1}\nv_cvt_pk_bf16_f32 v9, v{G_+2}, v{G_+3}')
    for d, s_, m, bm in ((BL, 8, 'quad_perm:[0,1,2,3]', 3), (BL + 1, 9, 'quad_perm:[0,1,2,3]', 3), (BL + 2, 8, 'row_ror:8', 3), (BL + 3, 9, 'row_ror:8', 3),
                         (BH, 8, 'row_ror:8', 12), (BH + 1, 9, 'row_ror:8', 12), (BH + 2, 8, 'quad_perm:[0,1,2,3]', 12), (BH + 3, 9, 'quad_perm:[0,1,2,3]', 12)):
        k(f'v_mov_b32_dpp v{d}, v{s_} {m} row_mask:0xf bank_mask:{bm:#x}')
    def ystore(u):
        r, z = YA + 4 * u, GW + 4 * u
        k(f'v_cvt_pk_bf16_f32 v{z}, v{r}, v{r+1}\nv_cvt_pk_bf16_f32 v{z+2}, v{r+2}, v{r+3}')
        k(f'buffer_store_dwordx4 {vr(z,4)}, v{5 if u < 4 else 7}, {sr(sWS,4)}, s72 offen sc1')
        if u < 4: k(f's_add_u32 s72, s72, {8*18432}')
    for u in range(5):
        mfma(YA + 4 * u, DW + 8 * u, BL, True)
        if u < 4: mfma(YA + 4 * u, DW + 8 * u + 4, BH, False)
        if u >= 2: ystore(u - 2)
    ystore(3); ystore(4)
    stamp(8)
    k(f's_waitcnt vmcnt({FACK})')
    if FBAR: k('s_barrier')
    gather('yp', [(wsld(BO + 4 * i, 6, 73 + i) if i < 4 else wsld(BO + 16, 17, 73), BO + 4 * i, (lambda i=i: mfma(AC, FS if i < 4 else FS5, BO + 4 * i, False))) for i in range(5)] +
           [(wsld(XG, 22, sT1), XG, lambda: (unp(24, XG), unp(26, XG + 2)))], rm[3], rs[3])
    stamp(9)
    for e in range(4): k(f'v_add_f32_dpp v{AC+e}, v{AC+e}, v{AC+e} row_ror:8 {DPPALL}')
    k(f's_mov_b64 exec, 0xff\nds_write_b128 v18, {vr(AC,4)}\ns_waitcnt lgkmcnt(0)\ns_barrier')
    k(f's_cmp_lg_u32 s{sW}, 0\ns_cbranch_scc1 L_exit')
    for i in range(4): k(f'ds_read_b128 {vr(YA+4*i,4)}, v19 offset:{128*i}')
    k('s_waitcnt lgkmcnt(0)')
    sum4(YA)
    if RND:
        rnd4(YA, 8)
        for e in range(4): k(f'v_mul_f32 v{YA+e}, v{GB+e}, v{YA+e}')
        rnd4(YA, 8)
        for e in range(4): k(f'v_add_f32 v{YA+e}, v{24+e}, v{YA+e}')
    else:
        for e in range(4): k(f'v_fma_f32 v{YA+e}, v{GB+e}, v{YA+e}, v{24+e}')
    k(f'v_cvt_pk_bf16_f32 v8, v{YA}, v{YA+1}\nv_cvt_pk_bf16_f32 v9, v{YA+2}, v{YA+3}')
    k(f'buffer_store_dwordx2 v[8:9], v21, {sr(sD_,4)}, 0 offen' + (' sc1' if OSC else ''))
    k(f's_cmp_lg_u32 s{sR}, 0\ns_cbranch_scc1 L_exit')
    k(f'v_mov_b32 v10, s{sEP}\nv_mov_b32 v11, 0\ns_mov_b64 exec, 1\nbuffer_store_dword v10, v11, {sr(sWS,4)}, 0 offen')
    k('s_branch L_exit')

    k.lab('L_wrole')
    WW, OG, MLG, BW, AB = 192, 160, 156, 140, 112
    GA, SEL, RAW, MG, MS, MC, MX, X2 = 160, 92, 76, 60, 64, 68, 72, 128
    sM9, sM10 = 28, 30
    if WHOLD: k(f's_cmp_eq_u32 s{sPRO}, 3\ns_cbranch_scc1 L_wst')
    wstage(WTH, 0, WHN if WHOLD else 16)
    k.lab('L_wst')
    if WHOLD and WHN < 16: wstage(WTH, WHN, 16)
    k(f'v_lshrrev_b32 v8, 2, v3\nv_and_b32 v9, 3, v3\nv_lshl_add_u32 v10, v2, 3, v8\nv_lshlrev_b32 v10, 7, v10\nv_lshl_add_u32 v10, v9, 3, v10\nv_add_u32 v10, s{sST}, v10')
    k('s_waitcnt vmcnt(0)')
    for t_ in range(4):
        for tile in range(4):
            r = WW + (t_ * 4 + tile) * 4
            o = t_ * 4096 + tile * 32
            k(f'ds_read_b64_tr_b16 {vr(r,2)}, v10 offset:{o}\nds_read_b64_tr_b16 {vr(r+2,2)}, v10 offset:{o+512}')
        k('s_waitcnt lgkmcnt(0)')
    locality('w')
    k(f's_cmp_lt_u32 s{sCN}, 8\ns_cselect_b32 s76, 1, 0')
    k('v_mov_b32 v108, 0\nv_mov_b32 v109, 0\nv_mov_b32 v110, 0\ns_cbranch_scc0 L_wnor')
    selmasks(10, 11)
    for r in range(SEL, SEL + 12): k(f'v_mov_b32 v{r}, 0')
    for v in range(3):
        k(f'v_mov_b32_dpp v{SEL+4*v}, v10 quad_perm:[0,1,2,3] row_mask:0xf bank_mask:{1<<v:#x}')
        k(f'v_mov_b32_dpp v{SEL+4*v+2}, v11 quad_perm:[0,1,2,3] row_mask:0xf bank_mask:{1<<v:#x}')
    lbsetup()
    k(f's_mov_b32 s{sM9}, -1\ns_cmp_lt_u32 s{sW}, 2\ns_cselect_b32 s{sM9+1}, 0xff, 0\ns_cselect_b32 s{sT1}, 512, 0\ns_lshl_b32 s{sT0}, s{sLB}, 7')
    k(f'v_lshlrev_b32 v109, 4, v1\nv_cndmask_b32 v109, 0, v109, {sr(sM9,2)}\nv_add_u32 v109, s{sT0}, v109\nv_mov_b32 v4, v109')
    k(f'v_mul_u32_u24 v8, 2304, v2\nv_add_u32 v8, s{sT0}, v8\nv_lshl_add_u32 v108, v3, 4, v8')
    k(f'v_and_b32 v9, 7, v3\nv_lshl_add_u32 v110, v9, 4, v8\nv_add_u32 v110, s{sT1}, v110')
    k(f's_mul_i32 s{sT0}, s{sCN}, 13824\ns_add_u32 s{sT0}, s{sT0}, {WS_MOD + 4608}\ns_add_u32 s{sT1}, s{sT0}, 4608')
    k(f's_mul_i32 s{sT2}, s{sCN}, 1152\nv_lshrrev_b32 v8, 1, v4')
    k(f'buffer_load_dwordx2 {vr(RAW+12,2)}, v8, {sr(sD_,4)}, s{sT2} offen')
    poll('rmod', [wsld(RAW, 4, sT0), wsld(RAW + 4, 4, sT0, 2304), wsld(RAW + 8, 4, sT1)], [RAW, RAW + 4, RAW + 8], 10, 11, 32)
    for j, d in enumerate((MG, MS, MC)):
        unp(d, RAW + 4 * j); unp(d + 2, RAW + 4 * j + 2)
    unp(MX, RAW + 12); unp(MX + 2, RAW + 13)
    for e in range(4): k(f'v_add_f32 v{MC+e}, 1.0, v{MC+e}')
    rnd4(MC, 8)
    k(f's_mul_i32 s74, s{sCN}, 18432\ns_add_u32 s74, s74, {WS_AP}\ns_add_u32 s75, s74, 9216')
    k(f's_mul_i32 s72, s{sCN}, 2304')
    k(f's_mul_i32 s73, s{sX}, 18432\ns_add_u32 s72, s72, s73\ns_add_u32 s73, s72, {WS_X2}\ns_add_u32 s72, s72, {WS_H2}')
    k(f's_lshl_b32 s{sT2}, s{sW}, 3\ns_add_u32 s{sT2}, s{sT2}, {L_STA}\nv_mov_b32 v22, s{sT2}\nv_mov_b32 v23, {L_STA}')
    for r in (25, 27, 29, 31): k(f'v_mov_b32 v{r}, s{sTAG}')
    for r in [28, 30] + list(range(X2, X2 + 4)): k(f'v_mov_b32 v{r}, 0')
    k(f's_mov_b32 s33, {f2u(1/128):#x}\ns_cmp_lt_u32 s{sW}, 2\ns_cselect_b32 s33, {f2u(1/160):#x}, s33')
    k.lab('L_wnor')
    redaddr(18432, 7, 17, 19)
    k('v_and_b32 v8, 7, v3\nv_lshrrev_b32 v9, 3, v3\nv_lshlrev_b32 v4, 11, v8\nv_lshl_add_u32 v4, v2, 5, v4\nv_lshl_add_u32 v4, v9, 4, v4\nv_lshlrev_b32 v5, 4, v3')
    k(f's_lshl_b32 s{sT0}, s{sX}, 1\ns_lshr_b32 s{sT1}, s{sW}, 1\ns_add_u32 s{sT0}, s{sT0}, s{sT1}\ns_lshl_b32 s{sT0}, s{sT0}, 14\ns_and_b32 s{sT1}, s{sW}, 1\ns_lshl_b32 s{sT1}, s{sT1}, 9')
    k(f's_add_u32 s{sT0}, s{sT0}, s{sT1}\ns_add_u32 s{sT0}, s{sT0}, {WS_OP}')
    k(f's_lshl_b32 s32, s{sX}, 2\ns_add_u32 s32, s32, s{sW}\ns_lshl_b32 s32, s32, 8\ns_add_u32 s32, s32, {WS_ML}')
    k(f's_mul_i32 s{sT1}, s{sX}, 2304\ns_lshl_b32 s{sT2}, s{sCN}, 8\ns_add_u32 s{sT1}, s{sT1}, s{sT2}\ns_add_u32 s{sT1}, s{sT1}, {WS_AP}')
    balance('w'); pace('w')
    for r in list(range(AC, AC + 16)) + list(range(AB, AB + 16)): k(f'v_mov_b32 v{r}, 0')
    stream_done('wpub')
    stamp(5)
    def wact(t_, sp):
        def f():
            b = OG + (2 * t_ + sp) * 4
            strip(b)
            for tile in range(4): mfma((AB if sp else AC) + 4 * tile, WW + (t_ * 4 + tile) * 4, b, False)
        return f
    def mlact():
        k(f'v_max_f32_dpp v20, v{MLG}, v{MLG} row_ror:8 {DPPALL}\nv_sub_f32 v20, v{MLG}, v20\nv_exp_f32 v20, v20')
        k(f'v_mul_f32 v21, v20, v{MLG+2}\nv_add_f32_dpp v21, v21, v21 row_ror:8 {DPPALL}\nv_rcp_f32 v21, v21\nv_mul_f32 v20, v20, v21')
        k(f'v_mov_b32_dpp v21, v20 row_ror:8 {DPPALL}')
    gather('op', [(wsld(OG + (2 * t_ + sp) * 4, 4, sT0, 1024 * sp + 128 * t_), OG + (2 * t_ + sp) * 4, lambda: None) for sp in range(2) for t_ in range(4)], rm[0], rs[0])
    if True:
        def wb(t_):
            A_, B_ = OG + 8 * t_, OG + 8 * t_ + 4
            return [f'v_mov_b32 v{A_+3}, v{B_+2}', f'v_mov_b32 v{A_+1}, v{A_+2}',
                    f'v_mov_b32_dpp v{B_+1}, v{A_} row_ror:8 {DPPALL}',
                    f'v_mov_b32_dpp v{A_+3}, v{A_+2} row_ror:8 row_mask:0xf bank_mask:0x3',
                    f'v_mov_b32_dpp v{A_+1}, v{B_+2} row_ror:8 row_mask:0xf bank_mask:0xc',
                    f'v_mov_b32_dpp v{A_}, v{B_} row_ror:8 row_mask:0xf bank_mask:0xc',
                    f'v_cndmask_b32 v{A_+2}, v{B_}, v{B_+1}, {sr(sM0,2)}']
        for l in wb(0): k(l)
        for t_ in range(4):
            fill_ = wb(t_ + 1) if t_ < 3 else []
            p = 0
            for tile, c_ in enumerate((3, 5, 7, 7)):
                mfma(AC + 4 * tile, WW + (t_ * 4 + tile) * 4, OG + 8 * t_, t_ == 0)
                for l in fill_[p:c_]: k(l)
                p = c_
        stamp(6)
        for r in range(16): k(f'v_add_f32_dpp v{AC+r}, v{AC+r}, v{AC+r} row_ror:8 {DPPALL}')
    reduce_publish(BW, 16, 7, sT1)
    stamp(7)
    k('s_cmp_eq_u32 s76, 0\ns_cbranch_scc1 L_exit')
    if RACK == 0: k('s_waitcnt vmcnt(0)')
    elif RACK > 0: k(f's_sleep {RACK}')
    gather('ap', [(wsld(GA + (u * 3 + v) * 4, 108, 74 + u, 256 * v) if v < 2 else wsld(GA + (u * 3 + v) * 4, 110, 74 + u), GA + (u * 3 + v) * 4,
                   (lambda u=u, v=v: mfma(X2, SEL + 4 * v, GA + (u * 3 + v) * 4, False))) for u in range(2) for v in range(3)], rm[1], rs[1])
    stamp(8)
    if RND:
        rnd4(X2, 8)
        for e in range(4): k(f'v_mul_f32 v{X2+e}, v{MG+e}, v{X2+e}')
        rnd4(X2, 8)
        for e in range(4): k(f'v_add_f32 v{X2+e}, v{MX+e}, v{X2+e}')
        k(f'v_cvt_pk_bf16_f32 v24, v{X2}, v{X2+1}\nv_cvt_pk_bf16_f32 v26, v{X2+2}, v{X2+3}')
        unp(X2, 24); unp(X2 + 2, 26)
    else:
        for e in range(4): k(f'v_fma_f32 v{X2+e}, v{MG+e}, v{X2+e}, v{MX+e}')
    k(f'v_readfirstlane_b32 s{sT2}, v{X2}')
    for e in range(4): k(f'v_subrev_f32 v{12+e}, s{sT2}, v{X2+e}')
    k('v_add_f32 v8, v12, v13\nv_mul_f32 v9, v12, v12\nv_add_f32 v10, v14, v15\nv_fmac_f32 v9, v13, v13\nv_add_f32 v8, v8, v10\nv_fmac_f32 v9, v14, v14\nv_fmac_f32 v9, v15, v15')
    k(f'v_cndmask_b32 v8, 0, v8, {sr(sM9,2)}\nv_cndmask_b32 v9, 0, v9, {sr(sM9,2)}')
    for m in ('row_shr:1 row_mask:0xf', 'row_shr:2 row_mask:0xf', 'row_shr:4 row_mask:0xf', 'row_shr:8 row_mask:0xf', 'row_bcast:15 row_mask:0xa', 'row_bcast:31 row_mask:0xc'):
        bc = ' bound_ctrl:0' if 'shr' in m else ''
        k(f'v_add_f32_dpp v8, v8, v8 {m} bank_mask:0xf{bc}\nv_add_f32_dpp v9, v9, v9 {m} bank_mask:0xf{bc}')
    k(f'v_mul_f32 v10, s33, v8\nv_fma_f32 v9, -v10, v8, v9\nv_add_f32 v8, s{sT2}, v10')
    k('s_mov_b32 exec_lo, 0\ns_mov_b32 exec_hi, 0x8000\nds_write_b64 v22, v[8:9]\ns_mov_b64 exec, -1')
    if not RND: k(f'v_cvt_pk_bf16_f32 v24, v{X2}, v{X2+1}\nv_cvt_pk_bf16_f32 v26, v{X2+2}, v{X2+3}')
    k('s_waitcnt lgkmcnt(0)\ns_barrier')
    k(f'ds_read_b128 {vr(AC,4)}, v23\nds_read_b128 {vr(AC+4,4)}, v23 offset:16\ns_waitcnt lgkmcnt(0)')
    wa, wb_ = f2u(160 / 576), f2u(128 / 576)
    k(f'v_add_f32 v8, v{AC}, v{AC+2}\nv_add_f32 v9, v{AC+4}, v{AC+6}\nv_add_f32 v10, v{AC+1}, v{AC+3}\nv_add_f32 v11, v{AC+5}, v{AC+7}')
    k(f'v_mul_f32 v8, {wa:#x}, v8\nv_add_f32 v10, v10, v11\nv_fmac_f32 v8, {wb_:#x}, v9\nv_mul_f32 v10, 0x3ae38e39, v10')
    for i in range(4): k(f'v_sub_f32 v{AC+2*i}, v{AC+2*i}, v8')
    k(f'v_mul_f32 v9, v{AC}, v{AC}\nv_mul_f32 v11, v{AC+4}, v{AC+4}\nv_fmac_f32 v9, v{AC+2}, v{AC+2}\nv_fmac_f32 v11, v{AC+6}, v{AC+6}')
    k(f'v_fmac_f32 v10, {wa:#x}, v9\nv_fmac_f32 v10, {wb_:#x}, v11\nv_max_f32 v10, 0, v10')
    if RND:
        rnd2(8, 10, 9)
        k('v_add_f32 v10, 0x3727c5ac, v10')
        for e in range(4): k(f'v_sub_f32 v{X2+e}, v{X2+e}, v8')
        rnd1(10, 9)
        k('v_sqrt_f32 v10, v10')
        rnd4(X2, 12)
        rnd1(10, 9)
        k('v_rcp_f32 v10, v10')
        for e in range(4): k(f'v_mul_f32 v{X2+e}, v{X2+e}, v10')
        rnd4(X2, 12)
        for e in range(4): k(f'v_mul_f32 v{X2+e}, v{X2+e}, v{MC+e}')
        rnd4(X2, 12)
        for e in range(4): k(f'v_add_f32 v{X2+e}, v{X2+e}, v{MS+e}')
    else:
        k('v_add_f32 v10, 0x3727c5ac, v10\nv_rsq_f32 v10, v10')
        for e in range(4): k(f'v_sub_f32 v{X2+e}, v{X2+e}, v8')
        for e in range(4): k(f'v_mul_f32 v{X2+e}, v{X2+e}, v{MC+e}')
        for e in range(4): k(f'v_fma_f32 v{X2+e}, v{X2+e}, v10, v{MS+e}')
    k(f'v_cvt_pk_bf16_f32 v28, v{X2}, v{X2+1}\nv_cvt_pk_bf16_f32 v30, v{X2+2}, v{X2+3}')
    k(f's_mov_b64 exec, {sr(sM9,2)}')
    st2(f'buffer_store_dwordx4 v[28:31], v109, {sr(sWS,4)}, s72 offen', 34, LH)
    st2(f'buffer_store_dwordx4 v[24:27], v109, {sr(sWS,4)}, s73 offen', 34, LH)
    stamp(9)
    k('s_branch L_exit')

    k.lab('L_nrole')
    locality('n')
    if WARM:
        k(f's_cmp_lg_u32 s{sW}, 0\ns_cbranch_scc1 L_nwarm\ns_cmp_lg_u32 s{sIP}, {[u for u, (r, _) in enumerate(TAIL) if r == 3][0]}\ns_cbranch_scc1 L_nwarm')
        ldswait('nw', F_POS, WARM - P0, 32)
        k(f'v_lshlrev_b32 v8, 7, v1\ns_lshl_b32 s{sT0}, s{sX}, 15\ns_add_u32 s{sT0}, s{sT0}, {WS_OP}')
        for i in range(4):
            k(f'buffer_load_dword v{16+i}, v8, {sr(sWS,4)}, s{sT0} offen sc1\ns_add_u32 s{sT0}, s{sT0}, 8192')
        k('s_waitcnt vmcnt(0)')
        k.lab('L_nwarm')
    balance('n'); pace('n')

    k.lab('L_exit')
    if DIAG is not None:
        if DIAG == 10: stamp(10)
        if DG is not None: k(f's_cmp_lt_u32 s2, {DG[0]}\ns_cbranch_scc1 L_end\ns_cmp_gt_u32 s2, {DG[1]}\ns_cbranch_scc1 L_end')
        k(f's_cmp_lt_u32 s3, 4\ns_cbranch_scc1 L_end\ns_waitcnt lgkmcnt(0)\ns_add_u32 s62, s{STR[DIAG]}, 15000')
        k.lab('L_spin')
        k('s_sleep 2\ns_memrealtime s[64:65]\ns_waitcnt lgkmcnt(0)\ns_sub_u32 s64, s64, s62\ns_cmp_lt_i32 s64, 0\ns_cbranch_scc1 L_spin')
    if PROF:
        stamp(10)
        k(f's_waitcnt lgkmcnt(0)\ns_lshl_b32 s{sT0}, s2, 3\ns_add_u32 s{sT0}, s{sT0}, s3\ns_lshl_b32 s{sT0}, s{sT0}, 7\ns_add_u32 s{sT0}, s{sT0}, {WS_PROF}')
        k('s_mov_b64 exec, 1\nv_mov_b32 v8, 0')
        for i in range(0, 12, 2):
            for j in range(2):
                if i + j < 11: k(f'v_mov_b32 v{12+2*j}, s{STR[i+j]}\nv_mov_b32 v{13+2*j}, s{STR[i+j]+1}')
                else: k(f'v_mov_b32 v14, s{sTO}\nv_mov_b32 v15, 0\nv_lshl_add_u32 v15, s{28 if CP else 78}, 16, v15')
            k(f'buffer_store_dwordx4 v[12:15], v8, {sr(sWS,4)}, s{sT0} offen offset:{8*i}')
    k.lab('L_end')
    k('s_endpgm')
    k.lab('L_codeend')

    body = fix_hazards(k.L)
    hdr = open('cdna_kernels/' + NAME + '.s.ref').read().split('; Override launch')[0]
    out = [hdr.rstrip('\n'),
           f'; @launch grid=(256,1,1) block=(512,1,1) lds={LDS_BYTES}',
           '.amdgcn_target "amdgcn-amd-amdhsa--gfx950"', '.text', f'.globl {NAME}_kernel', '.p2align 8',
           f'.type {NAME}_kernel,@function', f'{NAME}_kernel:', 'L_start:']
    out += body
    out += ['.section .rodata,"a"', '.p2align 6', f'.amdhsa_kernel {NAME}_kernel',
            '  .amdhsa_next_free_vgpr 256', '  .amdhsa_next_free_sgpr 102', '  .amdhsa_accum_offset 256',
            '  .amdhsa_group_segment_fixed_size 0', '  .amdhsa_kernarg_size 112', '  .amdhsa_user_sgpr_count 2',
            '  .amdhsa_user_sgpr_kernarg_segment_ptr 1', '  .amdhsa_system_sgpr_workgroup_id_x 1', '.end_amdhsa_kernel']
    return '\n'.join(out) + '\n'

if __name__ == '__main__':
    kw = eval('dict(' + (sys.argv[2] if len(sys.argv) > 2 else '') + ')')
    open(sys.argv[1], 'w').write(gen(**kw))
```

```python
import sys, struct
from asmlib import K, fix_hazards, vr, sr

NAME = 'adaLN_cond__gqa_block_cached__glu_gated_geglu__decode'
WS_BAL, WS_XC, WS_MOD, WS_Q, WS_OP, WS_AP = 0x8000, 0x10000, 0x20000, 0x40000, 0x80000, 0x100000
WS_UNUSED, WS_UNUSED2, WS_H2, WS_YP, WS_PROF = 0x130000, 0x138000, 0x140000, 0x200000, 0x600000
WS_SIZE = 0x800000
WS_X2 = 0x1d0000
WS_ML = 0xd0000
REG = 29696
L_PT, L_RED, L_SP, L_Q, L_FLG, L_STA = 118784, 127744, 128768, 132928, 133440, 133696
L_SC = 133888
LDS_BYTES = L_SC + 16384
F_CNT, F_QRDY, F_LIM, F_BST, F_POS, F_PUB, F_PRE, F_LOC, F_KD, F_SCL, F_MX = 0, 4, 8, 12, 16, 20, 24, 28, 32, 48, 64
WS_PACE = 0x180000
LOG2E = 0x3FB8AA3B
SCALE = 0x3DB504F3
TIMEOUT = 1000000
OOB = 0x7ff00000
f2u = lambda f: struct.unpack('<I', struct.pack('<f', f))[0]

DOC = '; One persistent launch, one 512-thread workgroup per CU: waves 0-3 stream K then V of half a (batch, kv head) slab,\n; waves 4-7 do everything else. Workgroups hand data over through d_ws as {4 bytes data, 4 bytes tag} granules; the tag is\n'

def tables(kind):
    G, W, N = 0, 1, 3
    if kind == 1:
        roles = [G, W] * 9 + [G, N] * 5 + [G, G] * 2
        pro = [0, 2] * 6 + [0, 3] * 8 + [0, 2, 0, 0]
    elif kind == 2:
        roles = [N, W] * 5 + [G, W] * 4 + [G, G] * 7
        pro = [0, 3] * 8 + [0, 2] * 7 + [0, 0]
    elif kind == 3:
        roles = [G, W] * 9 + [G, N] * 5 + [G, G] * 2
        pro = [0, 3] * 8 + [0, 2] * 7 + [0, 0]
    cnt = {}; tail = []
    for r in roles:
        tail.append((r, cnt.get(r, 0))); cnt[r] = cnt.get(r, 0) + 1
    cnt = {}; pi = []
    for p in pro:
        pi.append(cnt.get(p, 0) if p else 0); cnt[p] = cnt.get(p, 0) + 1
    return tail, pro, pi
TAIL, PRO, PIX = tables(3)

def gen(PROF=False, TAB=3, PAIR=1, PFROW=192, PSL=1, QSL=2, SPLIT=2, FTH=5, WTH=4, WHOLD=True,
        QM=256, LA=8, LAG=None, LAW=None, CMIN=2, CMAX=4, CSH=2,
        RMODE='0000', RSL='0000', WST='pub', GST='pub', FBAR=False, DIAG=None, DG=None, MID=30, F0=True, QW=False, FQ=None, FB=(16, 48), CP=(100, 160, 205, 232), PD=2, PK=4.0, PW0=10, PSPAN=28, PN=8, PSTR=4352, POFF=(0, 0, 0), PDBG='', PCLK=12, PSLP=6, LQ=True, LO=True, LH=True, WARM=0, LP=(), TSC=1.0, H2L=2, WMRG=True, RND=False, UPE=0, WHN=16, GP='', GTE=10, PG2=0, NOD=True, EK=None, EN=5, EW=None, RACK=0, FACK=0, PUBS=1, OSC=False, CODE=30, EPB=True, PERM=(12, 13, 14, 16, 17, 18, 19, 20), AX=(), TBL=False, DIRS=(0x10, 0x82, 0x180, 0x1e5, 0x40, 0xa4, 0x20, 0x80), BX=(0xc0, 0x160, 0x120, 8, 0x80, 0x120, 1, 0x140), NS=7, BAL=16, XP=190, BSK=True, BH1=False, BPOS=4, BSP=False, BPOL='nt', PROP=None, PG=(1.6, 1.2), PR=0, TMAX=40, PA=0.0, P2X=True, NBE=None, NAT=True, NZ=0, FREE=True, FWD=False, STUB=True, SW=None, REV=False, BPM=True, NPF=5, YPOL='sc1', APOL='sc1', FSL=0, YST='sc1', CPF=None):
    DIRS = [d << 12 for d in DIRS]; BX = [d << 12 for d in BX]; P0 = 4 * NS + 8
    if CP and FB is None: FB = (0, 0)
    if FB is not None: FQ = 0
    global TAIL, PRO, PIX
    TAIL, PRO, PIX = tables(TAB)
    k = K()
    sWS, sTAG, sEP, sHKV, sBB, sX, sIP, sR, sW = 4, 8, 9, 10, 11, 12, 13, 14, 15
    pX, pK, pV, pWQ, pWO, pGA, pUP, pDN, pC, pWM, pOUT, pWSP = 16, 18, 20, 22, 24, 28, 30, 32, 34, 36, 38, 42
    sA, sB_, sC_, sD_ = 44, 48, 52, 56
    sHI, sL2E, sT0, sT1, sT2, sT3, sTO, sSP = 60, 61, 62, 63, 64, 65, 66, 67
    sM0 = 68
    sROLE, sPRO, sPI, sST = 98, 99, 100, 101
    sCN = 77
    DPPALL = 'row_mask:0xf bank_mask:0xf'
    STR = [80 + 2 * i for i in range(9)] + [26, 40]
    def stamp(i):
        if PROF or (DIAG is not None and i in (0, DIAG)): k(f's_memrealtime {sr(STR[i], 2)}')
    def srd(d, p, size):
        k(f's_mov_b32 s{d}, s{p}\ns_mov_b32 s{d+1}, s{p+1}\ns_mov_b32 s{d+2}, {size}\ns_mov_b32 s{d+3}, 0x20000')
    def unp(d, s_):
        k(f'v_lshlrev_b32 v{d}, 16, v{s_}\nv_and_b32 v{d+1}, s{sHI}, v{s_}')
    def rnd2(a, b, t):
        k(f'v_cvt_pk_bf16_f32 v{t}, v{a}, v{b}\nv_lshlrev_b32 v{a}, 16, v{t}\nv_and_b32 v{b}, s{sHI}, v{t}')
    def rnd4(a, t):
        k(f'v_cvt_pk_bf16_f32 v{t}, v{a}, v{a+1}\nv_cvt_pk_bf16_f32 v{t+1}, v{a+2}, v{a+3}')
        unp(a, t); unp(a + 2, t + 1)
    def rnd1(a, t):
        k(f'v_cvt_pk_bf16_f32 v{t}, v{a}, v{a}\nv_and_b32 v{a}, s{sHI}, v{t}')
    def xrow(op, x, t, steps=(16, 32)):
        for st in steps:
            k(f'v_mov_b32 v{t}, v{x}\nv_permlane{st}_swap_b32 v{x}, v{t}\n{op} v{x}, v{x}, v{t}')
    def sum4(b):
        for e in range(4): k(f'v_add_f32 v{b+e}, v{b+e}, v{b+4+e}\nv_add_f32 v{b+8+e}, v{b+8+e}, v{b+12+e}')
        for e in range(4): k(f'v_add_f32 v{b+e}, v{b+e}, v{b+8+e}')
    def tagcheck(bases, acc, tmp):
        for i, b in enumerate(bases):
            d = acc if i == 0 else tmp + ((i - 1) & 1)
            k(f'v_bitop3_b32 v{d}, v{b+1}, v{b+3}, s{sTAG} bitop3:0x7e')
            if i > 0 and (i & 1) == 0: k(f'v_or3_b32 v{acc}, v{acc}, v{tmp}, v{tmp+1}')
        if len(bases) > 1 and (len(bases) & 1) == 0: k(f'v_or_b32 v{acc}, v{acc}, v{tmp}')
        k(f'v_cmp_ne_u32 vcc, 0, v{acc}')
    def retry(lab, sleep=0):
        if sleep: k(f's_sleep {sleep}')
        k(f's_sub_u32 s{sTO}, s{sTO}, 1\ns_cmp_lg_u32 s{sTO}, 0\ns_cbranch_scc1 {lab}\ns_branch L_exit')
    def wsld(dst, voff, soff, imm=0, pol='sc1'):
        return f'buffer_load_dwordx4 {vr(dst,4)}, v{voff}, {sr(sWS,4)}, s{soff} offen offset:{imm} {pol}'
    def poll(name, loads, bases, acc, tmp, sleep=0, masked=False):
        k.lab(f'L_{name}')
        for l in loads: k(l)
        k('s_waitcnt vmcnt(0)')
        tagcheck(bases, acc, tmp)
        k(f's_cbranch_vccz L_{name}ok')
        if masked: k('s_mov_b64 exec, vcc')
        retry(f'L_{name}', sleep)
        k.lab(f'L_{name}ok')
        if masked: k('s_mov_b64 exec, -1')
    def gather(name, items, mode, sleep, issued=False):
        n = len(items)
        if mode == 3:
            if issued:
                k('s_waitcnt vmcnt(0)')
                tagcheck([b for _, b, _ in items], 12, 10)
                k(f's_cbranch_vccz L_{name}ok')
            poll(f'{name}w', [items[-1][0]], [items[-1][1]], 12, 10, sleep, True)
            for l, _, _ in items[:-1]: k(l)
            issued, mode, sleep = True, 0, 0
        if not issued:
            for l, _, _ in items: k(l)
        if mode == 0:
            if SW == name:
                stamp(1); k('s_waitcnt vmcnt(0)'); stamp(2); k(f's_mov_b32 s78, s{sTO}')
            k.lab(f'L_{name}')
            k('s_waitcnt vmcnt(0)')
            tagcheck([b for _, b, _ in items], 12, 10)
            k(f's_cbranch_vccz L_{name}ok\ns_mov_b64 exec, vcc')
            if sleep: k(f's_sleep {sleep}')
            for l, _, _ in items: k(l)
            retry(f'L_{name}')
            k.lab(f'L_{name}ok')
            if SW == name: stamp(3); k(f's_sub_u32 s78, s78, s{sTO}')
            k('s_mov_b64 exec, -1')
            for _, _, act in items: act()
            return
        k(f's_mov_b32 s22, 0\ns_mov_b32 s23, {OOB:#x}')
        k.lab(f'L_{name}')
        for i, (l, b, act) in enumerate(items):
            k(f's_bitcmp1_b32 s22, {i}\ns_cbranch_scc1 L_{name}n{i}')
            k(f's_waitcnt vmcnt({n-1-i})')
            k(f'v_bitop3_b32 v10, v{b+1}, v{b+3}, s{sTAG} bitop3:0x7e\nv_cmp_ne_u32 vcc, 0, v10\ns_cbranch_vccnz L_{name}n{i}')
            act()
            k(f's_bitset1_b32 s22, {i}')
            k.lab(f'L_{name}n{i}')
        k(f's_cmp_eq_u32 s22, {(1 << n) - 1}\ns_cbranch_scc1 L_{name}ok')
        if sleep: k(f's_sleep {sleep}')
        for i, (l, b, act) in enumerate(items):
            k(f's_bitcmp1_b32 s22, {i}\ns_cbranch_scc1 L_{name}d{i}')
            k(f'v_bitop3_b32 v10, v{b+1}, v{b+3}, s{sTAG} bitop3:0x7e\nv_cmp_ne_u32 vcc, 0, v10\ns_mov_b64 exec, vcc')
            k(l); k(f's_mov_b64 exec, -1\ns_branch L_{name}e{i}')
            k.lab(f'L_{name}d{i}')
            k(f'buffer_load_dword v0, off, {sr(sWS,4)}, s23')
            k.lab(f'L_{name}e{i}')
        retry(f'L_{name}')
        k.lab(f'L_{name}ok')
    def ldswait(name, flag, val, sleep):
        k(f'v_mov_b32 v12, {L_FLG}')
        k.lab(f'L_{name}')
        k(f'ds_read_b32 v13, v12 offset:{flag}\ns_waitcnt lgkmcnt(0)\nv_readfirstlane_b32 s22, v13\ns_cmp_ge_u32 s22, {val}\ns_cbranch_scc1 L_{name}ok')
        retry(f'L_{name}', sleep)
        k.lab(f'L_{name}ok')
    def mask64(d, lo16):
        m = lo16 | (lo16 << 16)
        k(f's_mov_b32 s{d}, {m:#x}\ns_mov_b32 s{d+1}, {m:#x}')
    def mfma(d, a, b, first):
        k(f'v_mfma_f32_16x16x32_bf16 {vr(d,4)}, {vr(a,4)}, {vr(b,4)}, {"0" if first else vr(d,4)}')
    def ror8pair(b):
        k(f'v_mov_b32_dpp v{b+2}, v{b} row_ror:8 {DPPALL}\nv_mov_b32_dpp v{b+3}, v{b+1} row_ror:8 {DPPALL}')
    def strip(b):
        k(f'v_mov_b32_dpp v{b+3}, v{b+2} row_ror:8 {DPPALL}\nv_mov_b32 v{b+1}, v{b+2}\nv_mov_b32_dpp v{b+2}, v{b} row_ror:8 {DPPALL}')
    def st2(st, flag, on):
        if not on:
            k(st + ' sc1'); return
        l = k.new('L_st')
        k(f's_cmp_eq_u32 s{flag}, 1\ns_cbranch_scc1 {l}a\n{st} sc1\ns_branch {l}b')
        k.lab(l + 'a'); k(st); k.lab(l + 'b')
    def xcld(dst, va):
        k(f'v_and_b32 v{va}, 31, v1\nv_lshlrev_b32 v{va}, 3, v{va}\ns_lshl_b32 s22, s{sX}, 8\ns_add_u32 s22, s22, {WS_XC}')
        k(f'buffer_load_dwordx2 {vr(dst,2)}, v{va}, {sr(sWS,4)}, s22 offen sc1')
    def xcchk(src, flag):
        k(f's_getreg_b32 s22, hwreg(HW_REG_XCC_ID)\nv_xor_b32 v{src}, s22, v{src}\nv_xor_b32 v{src+1}, s{sTAG}, v{src+1}\nv_or_b32 v{src}, v{src}, v{src+1}')
        k(f'v_cmp_ne_u32 vcc, 0, v{src}\ns_cmp_eq_u64 vcc, 0\ns_cselect_b32 s{flag}, 1, 0')
    def tag_from_epoch():
        k(f's_add_u32 s{sEP}, s{sEP}, 0x9e3779b9\ns_and_b32 s{sTAG}, s{sEP}, 0xbfffbfff')

    k.c('=' * 100); k.c('entry'); k.c('=' * 100)
    k('s_cmp_ge_u32 s2, 256\ns_cbranch_scc1 L_end')
    k('s_load_dwordx16 s[16:31], s[0:1], 0')
    k('s_load_dwordx8 s[32:39], s[0:1], 64')
    k('s_load_dwordx4 s[40:43], s[0:1], 96')
    stamp(0)
    if DIAG: stamp(DIAG)
    k('v_lshrrev_b32 v2, 6, v0\nv_and_b32 v1, 63, v0')
    k('v_readfirstlane_b32 s3, v2')
    k(f's_mov_b32 s{sHI}, 0xffff0000\ns_mov_b32 s{sL2E}, {LOG2E:#x}\ns_mov_b32 s{sTO}, {TIMEOUT}')
    k(f's_and_b32 s{sX}, s2, 7\ns_lshr_b32 s{sIP}, s2, 3\ns_and_b32 s{sSP}, s{sIP}, 1\ns_lshr_b32 s{sBB}, s{sIP}, 2\ns_bfe_u32 s{sHKV}, s{sIP}, 0x10001')
    k(f's_lshl_b32 s{sT0}, s{sX}, 1\ns_add_u32 s{sHKV}, s{sHKV}, s{sT0}\ns_lshl_b32 s{sT0}, s{sBB}, 4\ns_add_u32 s{sT0}, s{sT0}, s{sHKV}\ns_lshl_b32 s79, s{sT0}, 21\ns_and_b32 s{sW}, s3, 3')
    k('v_lshrrev_b32 v2, 4, v1\nv_and_b32 v3, 15, v1')
    pk = sum(p << (2 * u) for u, p in enumerate(PRO))
    k(f's_mov_b32 s62, {pk & 0xffffffff:#x}\ns_mov_b32 s63, {pk >> 32:#x}\ns_andn2_b32 s65, s{sIP}, 1\ns_lshl_b32 s65, s65, 1\ns_lshr_b64 s[62:63], s[62:63], s65')
    k(f's_lshr_b32 s68, s62, 2\ns_or_b32 s68, s68, s62\ns_and_b32 s68, s68, 3')
    k(f's_and_b32 s64, s{sIP}, 1\ns_lshl_b32 s64, s64, 1\ns_lshr_b32 s{sPRO}, s62, s64\ns_and_b32 s{sPRO}, s{sPRO}, 3')
    xk = sum(max(PIX[2 * m], PIX[2 * m + 1]) << (4 * m) for m in range(16))
    k(f's_mov_b32 s62, {xk & 0xffffffff:#x}\ns_mov_b32 s63, {xk >> 32:#x}\ns_lshr_b64 s[62:63], s[62:63], s65\ns_and_b32 s{sPI}, s62, 7')
    k(f's_lshl_b32 s62, s{sX}, 3\ns_add_u32 s62, s62, s{sPI}\ns_lshl_b32 s{sPI}, s{sPI}, 3\ns_add_u32 s{sPI}, s{sPI}, s{sX}\ns_cmp_eq_u32 s68, 3\ns_cselect_b32 s{sPI}, s62, s{sPI}')
    k(f's_cmp_lt_u32 s{sPI}, 54\ns_cselect_b32 s64, 3, 1\ns_and_b32 s65, s68, s64\ns_cmp_eq_u32 s65, 0\ns_cselect_b32 s{sPRO}, 0, s{sPRO}\ns_cselect_b32 s68, 0, s68')
    k(f's_mul_i32 s{sST}, s{sW}, {REG}')
    if STUB:
        k('s_cmp_lt_u32 s3, 4\ns_cbranch_scc1 L_stream\ns_setprio 2')
        k('v_and_b32 v7, 7, v3\nv_lshrrev_b32 v9, 3, v3\nv_mul_u32_u24 v11, 1152, v7')
        if BPM: k('v_lshrrev_b32 v4, 3, v1\nv_mul_u32_u24 v11, 1152, v4\nv_lshl_add_u32 v4, v7, 3, v11')
        else: k('v_lshl_add_u32 v4, v2, 4, v11\nv_lshl_add_u32 v4, v9, 3, v4')
        k(f's_lshl_b32 s{sT0}, s{sW}, 6\ns_movk_i32 s{sA+2}, 9216\ns_mov_b32 s{sA+3}, 0x20000\ns_cmp_eq_u32 s{sPRO}, 3\ns_waitcnt lgkmcnt(0)')
        k(f's_cselect_b32 s{sA}, s{pX}, s{pC}\ns_cselect_b32 s{sA+1}, s{pX+1}, s{pC+1}\ns_cmp_eq_u32 s{sPRO}, 0\ns_cbranch_scc1 L_helper')
        for i in range(5):
            k(f'buffer_load_dwordx2 {vr(16+4*i,2)}, v4, {sr(sA,4)}, s{sT0} offen offset:{256*i}')
        k(f'buffer_load_ushort v36, v11, {sr(sA,4)}, 0 offen')
        k('s_branch L_helper')
        k.lab('L_stream')
    else: k('s_cmp_ge_u32 s3, 4\ns_cbranch_scc1 L_helper')

    k.c('=' * 100); k.c('streamer waves'); k.c('=' * 100)
    vKO, vVO, vBAL, vM, S, Q, S2, T, vSC = 4, 5, 6, 7, 8, 12, 20, 28, 30
    P, O, vHALF, vFL, vONE, U = 32, 48, 52, 53, 54, 56
    sOFF, sI, sBASE, sSCL, sKND, sLD, sBO = 72, 76, 79, 69, 70, 24, 77
    SLOT = lambda j: 64 + 32 * j if j < 6 else 32
    R_, E = SLOT(2), SLOT(3)
    D0 = 's80' if TBL else hex(DIRS[0])
    k('s_getpc_b64 s[62:63]\nv_lshlrev_b32 v8, 7, v0\nv_min_u32 v8, L_codeend-L_start-512, v8')
    if CODE < 32:
        k(f's_cmp_lt_u32 s{sIP}, {CODE}\ns_cbranch_scc1 L_nocode')
        k('global_load_dword v9, v8, s[62:63]')
        k.lab('L_nocode')
    k(f'v_lshrrev_b32 v{vKO}, 1, v3\nv_lshlrev_b32 v{vKO}, 8, v{vKO}\nv_lshl_add_u32 v{vKO}, v2, 5, v{vKO}\nv_and_b32 v{vVO}, 1, v3\nv_lshl_add_u32 v{vKO}, v{vVO}, 4, v{vKO}')
    k(f's_mov_b32 s{sI}, s{sW}')
    if not TBL:
        for j in range(8):
            if BX[j]: k(f's_bitcmp1_b32 s2, {j}\ns_cselect_b32 s{sT2}, {BX[j]:#x}, 0\ns_xor_b32 s{sBASE}, s{sBASE}, s{sT2}')
    def nextoff(a):
        for j in range(7):
            k(f's_bitcmp1_b32 s{sI}, {j}\ns_cselect_b32 s{sT2}, {f"s{81+j}" if TBL else hex(DIRS[j+1])}, 0\ns_xor_b32 s{sOFF+a}, s{sT2}, s{sBASE if j == 0 else sOFF+a}')
        k(f's_lshr_b32 s{sKND+a}, s{sI}, 7\ns_and_b32 s{sLD+a}, s{sI}, 127\ns_lshl_b32 s{sLD+a}, s{sLD+a}, 7\ns_add_u32 s{sI}, s{sI}, 4')
    QS, OE, vKS, vVA, vVB, sMD, sMC = SLOT(5), SLOT(5) + 8, SLOT(5) + 16, SLOT(5) + 17, SLOT(5) + 18, 56, 58
    def ld(j, h, a, isv, bal):
        if NAT:
            def one(i, va, o): k(f'buffer_load_dwordx4 {vr(SLOT(j)+16*h+4*i,4)}, v{va}, {sr(sB_ if isv else sA,4)}, s{sOFF+a} offen offset:{o} nt')
            for z in range(2):
                if bal and z == NZ:
                    l = k.new('L_sp')
                    k(f's_cmp_eq_u32 s{sMD+a}, 0\ns_cbranch_scc1 {l}a')
                    if isv: one(2 * z, vVA, 2048 * z); one(2 * z + 1, vVB, 2048 * z)
                    else: one(2 * z, vKS, 2048 * z); one(2 * z + 1, vKS, 2048 * z + 64)
                    k(f's_branch {l}b')
                    k.lab(l + 'a')
                for i in range(2): one(2 * z + i, vVO if isv else vKO, 2048 * z + (256 if isv else 128) * i)
                if bal and z == NZ: k.lab(l + 'b')
            if h == 0: k(f's_xor_b32 s{sOFF+a}, s{sOFF+a}, {D0}')
            return
        def ballast():
            l = k.new('L_nb')
            if PROP:
                k(f's_add_u32 s{sT2}, s{sBO}, {h}\ns_lshr_b32 s{sT2}, s{sT2}, 1\ns_cbranch_scc0 {l}\ns_bfm_b64 exec, s{sT2}, 0')
                k(f'buffer_load_dword v0, v{vBAL}, {sr(sB_ if isv else sA,4)}, s{sOFF+a} offen {BPOL}\ns_mov_b64 exec, -1')
                k.lab(l)
                return
            k(f's_cmp_lg_u32 s{sBO}, 0\ns_cbranch_scc1 {l}\nbuffer_load_dword v0, v{vBAL}, {sr(sB_ if isv else sA,4)}, s{sOFF+a} offen {BPOL}')
            k.lab(l)
        for i in range(4):
            if bal and BSK and i == BPOS: ballast()
            k(f'buffer_load_dwordx4 {vr(SLOT(j)+16*h+4*i,4)}, v{vVO if isv else vKO}, {sr(sB_ if isv else sA,4)}, s{sOFF+a} offen offset:{2048*(i>>1)+(256 if isv else 128)*(i&1)} nt')
        if bal and BSK:
            if BPOS == 4 and not (BH1 and h == 0): ballast()
        elif bal:
            k(f's_or_b32 s{sT2}, s{sOFF+a}, s{sBO}\nbuffer_load_dword v0, v{vBAL}, {sr(sB_ if isv else sA,4)}, s{sT2} offen nt')
        if h == 0: k(f's_xor_b32 s{sOFF+a}, s{sOFF+a}, {D0}')
    def fill(j):
        ld(j, 0, 0, False, False); ld(j, 1, 0, False, False)
    if not TBL: nextoff(0)
    k(f's_movk_i32 s74, 6912\ns_cmp_eq_u32 s68, 3\ns_cselect_b32 s74, 8192, s74')
    k('v_lshrrev_b32 v10, 3, v1\nv_and_b32 v11, 2, v10\nv_mul_lo_u32 v10, v10, s74\nv_xor_b32 v11, v11, v1\nv_and_b32 v11, 7, v11\nv_lshl_add_u32 v10, v11, 4, v10\nv_xor_b32 v12, 64, v10')
    k(f'v_add_u32 v11, {PFROW}, v0\nv_mul_lo_u32 v11, v11, s74')
    k(f's_mul_i32 s75, s74, s{sW}\ns_lshl_b32 s75, s75, 5\ns_lshl_b32 s69, s{sPI}, 7\ns_add_u32 s75, s75, s69')
    k(f's_mul_i32 s{sC_+2}, s74, 576\ns_mov_b32 s{sC_+3}, 0x20000\ns_mul_i32 s78, s74, 104\ns_lshl_b32 s74, s74, 3')
    k('s_waitcnt lgkmcnt(0)')
    k(f's_cmp_eq_u32 s68, 3\ns_cselect_b32 s{sC_}, s{pWQ}, s{pWM}\ns_cselect_b32 s{sC_+1}, s{pWQ+1}, s{pWM+1}')
    srd(sA, pK, 0x10000000); srd(sB_, pV, 0x10000000)
    if TBL:
        k(f's_lshl_b32 s88, s2, 2\ns_add_u32 s88, s88, 64\ns_load_dwordx8 s[80:87], s[26:27], 0\ns_load_dword s{sBASE}, s[26:27], s88\ns_waitcnt lgkmcnt(0)')
        nextoff(0)
    k(f's_cmp_eq_u32 s{sPRO}, 0\ns_cbranch_scc1 L_notile')
    for i in range(5):
        for j in range(4):
            k(f's_add_u32 m0, s{sST}, {4096*i+1024*j}')
            k(f'buffer_load_dwordx4 v{10 + 2 * (j & 1)}, {sr(sC_,4)}, s75 offen nt lds')
            if (i, j) != (4, 3): k(f's_add_u32 s75, s75, s{74 if j < 3 else 78}')
    if FREE:
        k(f's_cmp_eq_u32 s{sPRO}, 3\ns_cbranch_scc1 L_hold\ns_cmp_lt_u32 s{sPI}, 18\ns_cbranch_scc1 L_hold\ns_mov_b32 s{sPRO}, 1\ns_branch L_nohold')
        k.lab('L_hold')
    k('s_waitcnt vmcnt(0)\ns_barrier\ns_barrier\ns_barrier')
    k.lab('L_nohold')
    fill(0); nextoff(0); fill(1)
    k('s_branch L_second')
    k.lab('L_notile')
    k('s_cmp_eq_u32 s68, 0\ns_cbranch_scc1 L_nopf')
    if FREE: k(f's_cmp_eq_u32 s68, 3\ns_cbranch_scc1 L_dopf\ns_cmp_ge_u32 s{sPI}, 18\ns_cbranch_scc1 L_nopf\nL_dopf:')
    k(f'buffer_load_dword v9, v11, {sr(sC_,4)}, s69 offen')
    if PFROW < 320: k(f's_mul_i32 s75, s74, 32\ns_add_u32 s69, s69, s75\nbuffer_load_dword v10, v11, {sr(sC_,4)}, s69 offen')
    k.lab('L_nopf')
    fill(0); nextoff(0); fill(1)
    k('s_barrier')
    k.lab('L_second')
    k(f's_load_dword s{sEP}, {sr(pWSP,2)}, 0')
    srd(sWS, pWSP, WS_SIZE)
    k(f'v_lshlrev_b32 v{vSC}, 3, v{vVO}\nv_lshl_add_u32 v{vSC}, v2, 4, v{vSC}\nv_add_u32 v{vSC}, {L_SC}, v{vSC}')
    k(f'v_lshlrev_b32 v31, 8, v{vVO}\nv_lshl_add_u32 v31, v2, 5, v31\nv_and_b32 v29, 2, v3\nv_lshl_add_u32 v31, v29, 3, v31\nv_add_u32 v31, {L_Q}, v31')
    k(f'v_lshlrev_b32 v{vVO}, 4, v3\nv_lshl_add_u32 v{vVO}, v2, 9, v{vVO}\nv_min_u32 v{vBAL}, {BAL-1}, v1\nv_lshlrev_b32 v{vBAL}, {7 if BAL > 16 else 8}, v{vBAL}')
    if PROP: k(f'v_lshlrev_b32 v{vBAL}, 8, v3\nv_and_b32 v29, 1, v2\nv_lshl_add_u32 v{vBAL}, v29, 7, v{vBAL}')
    if BSP: k(f'v_mul_u32_u24 v{vBAL}, {BAL}, v1\nv_lshrrev_b32 v{vBAL}, 6, v{vBAL}\nv_lshlrev_b32 v{vBAL}, {BSP}, v{vBAL}')
    k(f'v_mov_b32 v{vM}, 0xff800000\nv_mov_b32 v28, {L_FLG}\nv_mov_b32 v29, 1\ns_mov_b32 s{sSCL}, {SCALE:#x}')
    mask64(26 if not (PROF or TBL) else 90, 0x0003)
    sM2 = 26 if not (PROF or TBL) else 90
    for j in range(2, NS):
        nextoff(0); fill(j)
    stamp(1)
    if FREE:
        k(f's_cmp_lg_u32 s{sPRO}, 1\ns_cbranch_scc1 L_nolb\ns_waitcnt vmcnt({8*NS})\ns_barrier\ns_barrier\ns_barrier')
        k.lab('L_nolb')
    k(f's_mov_b64 exec, 1\nds_add_u32 v28, v29 offset:{F_PRE}\ns_mov_b64 exec, -1')
    k(f's_waitcnt vmcnt({8*NS}) lgkmcnt(0)')
    tag_from_epoch()
    k(f's_cmp_eq_u32 s{sPRO}, 3\ns_cselect_b32 s30, {FB[1]+P0+4}, 0\ns_cmp_eq_u32 s{sPRO}, 2\ns_cselect_b32 s30, {FB[0]+P0+4}, s30\ns_mov_b32 s{sBO}, 0x20000000')
    k.lab('L_qwait')
    k(f'ds_read_b32 v9, v28 offset:{F_QRDY}')
    for i in range(2): k(f'ds_read_b128 {vr(Q+4*i,4)}, v31 offset:{128*i}')
    k(f's_waitcnt lgkmcnt(0)\nv_readfirstlane_b32 s{sT0}, v9\ns_cmp_eq_u32 s{sT0}, 1\ns_cbranch_scc1 L_qok')
    retry('L_qwait', 2)
    k.lab('L_qok')
    stamp(2)
    def claim():
        k(f's_mov_b64 exec, 1\nds_add_rtn_u32 v{U}, v{vFL}, v{vONE} offset:{F_POS}\nds_read_b32 v{U+1}, v{vFL} offset:{F_BST}\ns_mov_b64 exec, -1')
    def claimed(a):
        k(f's_waitcnt lgkmcnt(0)\nv_readfirstlane_b32 s{sI}, v{U}\nv_readfirstlane_b32 s29, v{U+1}\ns_add_u32 s{sI}, s{sI}, {P0}\ns_max_u32 s28, s30, s29')
        nextoff(a)
        if PROP: k(f's_sub_u32 s28, s29, 1\ns_cselect_b32 s28, {PROP}, s28\ns_cmp_lt_u32 s{sI}, s30\ns_cselect_b32 s{sBO}, 0, s28')
        else: k(f's_cmp_lt_u32 s{sI}, s28\ns_cselect_b32 s{sBO}, 0x20000000, 0')
        if NAT: k(f's_cselect_b32 s{sMD+a}, 0, 1')
        if NBE: k(f's_cmp_ge_u32 s{sI}, {NBE + 4}\ns_cselect_b32 s{sBO}, {0 if PROP else 1}, s{sBO}')
    def qk(b, tg=None):
        if NAT and tg:
            z, y = NZ, 1 - NZ
            mfma(S2 + 4 * y, b + 8 * y, Q, True)
            k(f's_cmp_eq_u32 s{sMC}, 0\ns_cbranch_scc1 L_qa{tg}')
            mfma(S2 + 4 * z, b + 8 * z, QS, True); mfma(S2 + 4 * z, b + 8 * z + 4, QS + 4, False)
            k(f's_branch L_qb{tg}')
            k.lab(f'L_qa{tg}')
            mfma(S2 + 4 * z, b + 8 * z, Q, True); mfma(S2 + 4 * z, b + 8 * z + 4, Q + 4, False)
            k.lab(f'L_qb{tg}')
            mfma(S2 + 4 * y, b + 8 * y + 4, Q + 4, False)
            return
        mfma(S2, b, Q, True); mfma(S2 + 4, b + 8, Q, True); mfma(S2, b + 4, Q + 4, False); mfma(S2 + 4, b + 12, Q + 4, False)
    def scores(h):
        for i in range(4): k(f'v_mov_b32_dpp v{S+i}, v{S2+2*i} quad_perm:[0,1,0,1] {DPPALL}')
        for i in range(4): k(f'v_add_f32_dpp v{S+i}, v{S2+2*i+1}, v{S+i} quad_perm:[2,3,2,3] {DPPALL}')
        rnd4(S, T)
        for i in range(4): k(f'v_mul_f32 v{S+i}, s{sSCL}, v{S+i}')
        rnd4(S, T)
        k(f's_mov_b64 exec, {sr(sM2,2)}\nds_write_b64 v31, {vr(T,2)} offset:{64*h}\ns_mov_b64 exec, -1')
        k(f'v_max3_f32 v{vM}, v{S}, v{S+1}, v{vM}\nv_max3_f32 v{vM}, v{S+2}, v{S+3}, v{vM}')
    younger = 8 * NS
    k(f's_lshl_b32 s{sT0}, s{sW}, 7\nv_add_u32 v31, s{sT0}, v{vSC}')
    for j in range(NS):
        for h in range(2):
            younger -= 4
            k(f's_waitcnt vmcnt({younger})')
            qk(SLOT(j) + 16 * h)
            if j < 2:
                if h == 0: nextoff(j)
                ld(j, h, j, False, not BSK); younger += (4 if BSK else 5)
            scores(h)
        if j < NS - 1: k('v_add_u32 v31, 512, v31')
    stamp(3)
    k(f'v_mov_b32 v{vHALF}, 0xffff\nv_and_b32 v{U}, 2, v3\nv_lshlrev_b32 v{U}, 3, v{U}\nv_lshlrev_b32 v{vHALF}, v{U}, v{vHALF}\nv_mov_b32 v{vFL}, {L_FLG}\nv_mov_b32 v{vONE}, 1')
    for r in list(range(P, O + 4)) + list(range(SLOT(4), SLOT(4) + 16)): k(f'v_mov_b32 v{r}, 0')
    if NAT:
        k(f'v_and_b32 v{U}, 1, v2\nv_lshlrev_b32 v{U}, 5, v{U}\nv_lshrrev_b32 v{U+1}, 1, v2\nv_lshl_add_u32 v{U}, v{U+1}, 7, v{U}')
        k(f'v_lshrrev_b32 v{vKS}, 1, v3\nv_lshl_add_u32 v{vKS}, v{vKS}, 8, v{U}\nv_and_b32 v{U+1}, 1, v3\nv_lshl_add_u32 v{vKS}, v{U+1}, 4, v{vKS}')
        k(f'v_lshl_add_u32 v{U}, v{U+1}, 8, v{U}\nv_and_b32 v{U+1}, 2, v3\nv_lshl_add_u32 v{U}, v{U+1}, 3, v{U}\nv_add_u32 v{U}, {L_Q}, v{U}')
        k(f'ds_read_b128 {vr(QS,4)}, v{U}\nds_read_b128 {vr(QS+4,4)}, v{U} offset:64')
        k(f'v_and_b32 v{U+1}, 4, v3\nv_lshl_add_u32 v{vVA}, v{U+1}, 6, v{vVO}\nv_xor_b32 v{vVB}, 256, v{vVA}\ns_mov_b32 s{sMD}, 0\ns_mov_b32 s{sMD+1}, 0')
        for r in range(OE, OE + 8): k(f'v_mov_b32 v{r}, 0')
        k('s_waitcnt lgkmcnt(0)')
    k(f's_lshl_b32 s{sT1}, s{sW}, 10\ns_add_u32 s{sT1}, s{sT1}, {L_SP}')
    k(f'v_lshlrev_b32 v{E}, 5, v3\nv_lshl_add_u32 v{E}, v2, 3, v{E}\nv_add_u32 v{E}, s{sT1}, v{E}')
    k(f'v_lshlrev_b32 v{E+3}, 4, v1\nv_add_u32 v{E+3}, {L_SP}, v{E+3}')
    k(f'v_lshrrev_b32 v{E+2}, 3, v1\nv_lshlrev_b32 v{E+2}, 11, v{E+2}\nv_and_b32 v{U}, 1, v1\nv_lshl_add_u32 v{E+2}, v{U}, 10, v{E+2}\nv_bfe_u32 v{U}, v1, 1, 2\nv_lshl_add_u32 v{E+2}, v{U}, 8, v{E+2}')
    k(f'v_lshrrev_b32 v{E+4}, 5, v1\nv_lshlrev_b32 v{E+4}, 3, v{E+4}\nv_add_u32 v{E+4}, {L_FLG + F_SCL}, v{E+4}')
    k(f'v_and_b32 v{E+5}, 1, v3\nv_lshlrev_b32 v{E+5}, 4, v{E+5}\nv_add_u32 v{E+5}, {L_FLG + F_MX}, v{E+5}\nv_lshl_add_u32 v{E+1}, s{sW}, 2, v{E+5}')
    for r in (13, 15): k(f'v_mov_b32 v{E+r}, s{sTAG}')
    k(f's_lshl_b32 s74, s{sHKV}, 7\ns_add_u32 s74, s74, s{sSP}\ns_lshl_b32 s74, s74, 3\ns_add_u32 s74, s74, s{sBB}\ns_lshl_b32 s74, s74, 4\ns_add_u32 s74, s74, {WS_OP}')
    if PROF: k('s_mov_b32 s75, 0\ns_mov_b32 s78, 0')
    def profsteps(tg):
        if not PROF: return
        k(f's_lshr_b32 s{sT0}, s{sI}, 2')
        for n_, stp in enumerate((16, 28, 40, 52)):
            k(f's_cmp_lt_u32 s{sT0}, {stp}\ns_cbranch_scc1 L_ns{tg}{n_}\ns_cmp_gt_u32 s75, {n_}\ns_cbranch_scc1 L_ns{tg}{n_}\ns_mov_b32 s75, {n_+1}')
            stamp(6 + n_)
            k.lab(f'L_ns{tg}{n_}')
    def waits(tg, a, h):
        if h == 0: k(f's_cmp_lt_u32 s{sKND+1-a}, 2\ns_cbranch_scc1 L_w{tg}\ns_waitcnt vmcnt({4 if BSK else 6})')
        else: k(f's_cmp_lt_u32 s{sKND+a}, 2\ns_cbranch_scc1 L_w{tg}\ns_waitcnt vmcnt({8 if BSK else 11})\ns_cmp_lt_u32 s{sKND+1-a}, 2\ns_cbranch_scc1 L_w{tg}\ns_waitcnt vmcnt({0 if BSK else 1})')
        k.lab(f'L_w{tg}')
        k(f's_waitcnt vmcnt({12 if BSK else 16})')
    k.c('---- K items: scores into LDS, running maximum per lane')
    k.lab('L_ktop')
    profsteps('k')
    for a in range(2):
        k(f's_mov_b32 s31, {a}\ns_cmp_lg_u32 s{sKND+a}, 0\ns_cbranch_scc1 L_turn')
        k(f'v_add_u32 v31, s{sLD+a}, v{vSC}')
        if NAT: k(f's_mov_b32 s{sMC}, s{sMD+a}')
        for h in range(2):
            waits(f'k{a}{h}', a, h)
            if h == 0: claim()
            qk(SLOT(a) + 16 * h, f'{a}{h}')
            if h == 0: claimed(a)
            k(f's_cmp_eq_u32 s{sKND+a}, 0\ns_cbranch_scc1 L_ik{a}{h}\ns_cmp_eq_u32 s{sKND+a}, 1\ns_cbranch_scc0 L_id{a}{h}')
            ld(a, h, a, True, True)
            k(f's_branch L_id{a}{h}')
            k.lab(f'L_ik{a}{h}')
            ld(a, h, a, False, True)
            k.lab(f'L_id{a}{h}')
            scores(h)
    k('s_branch L_ktop')
    k.c("---- all K items of this wave are done: maximum over the workgroup's keys")
    k.lab('L_turn')
    xrow('v_max_f32', vM, U)
    k(f'ds_write_b32 v{E+1}, v{vM}\ns_mov_b64 exec, 1\nds_add_u32 v{vFL}, v{vONE} offset:{F_KD}\ns_mov_b64 exec, -1')
    k.lab('L_kdw')
    k(f'ds_read_b32 v{U}, v{vFL} offset:{F_KD}\nds_read_b128 {vr(S,4)}, v{E+5}\ns_waitcnt lgkmcnt(0)\nv_readfirstlane_b32 s{sT0}, v{U}\ns_cmp_eq_u32 s{sT0}, 4\ns_cbranch_scc1 L_kdok')
    retry('L_kdw', 1)
    k.lab('L_kdok')
    k(f'v_max3_f32 v{vM}, v{S}, v{S+1}, v{S+2}\nv_max_f32 v{vM}, v{vM}, v{S+3}\nv_mul_f32 v{vM}, s{sL2E}, v{vM}')
    k('s_cmp_eq_u32 s31, 1\ns_cbranch_scc1 L_v1')
    k.c('---- V items')
    PB = SLOT(4) if P2X else P
    def probs(src, P=P):
        unp(S, src); unp(S + 2, src + 1)
        for i in range(4): k(f'v_fma_f32 v{S+i}, v{S+i}, s{sL2E}, -v{vM}')
        for i in range(4): k(f'v_exp_f32 v{S+i}, v{S+i}')
        for i in range(4): k(f'v_cvt_pk_bf16_f32 v{S+i}, v{S+i}, v{S+i}')
        for i in range(4):
            for r in range(4):
                k(f'v_and_b32_dpp v{P+4*i+r}, v{S+i}, v{vHALF} quad_perm:[0,1,2,3] row_mask:0xf bank_mask:{1<<r:#x}')
    def pv(p, b, tg):
        if NAT:
            z, y = NZ, 1 - NZ
            for i in range(2): mfma(O, p + 8 * y + 4 * i, b + 8 * y + 4 * i, False)
            k(f's_cmp_eq_u32 s{sMC}, 0\ns_cbranch_scc1 L_pa{tg}')
            p0, p1, b0, b1 = p + 8 * z, p + 8 * z + 4, b + 8 * z, b + 8 * z + 4
            mfma(OE, p0, b0, False); mfma(OE + 4, p1, b0, False); mfma(OE, p1, b1, False); mfma(OE + 4, p0, b1, False)
            k(f's_branch L_pb{tg}')
            k.lab(f'L_pa{tg}')
            for i in range(2): mfma(O, p + 8 * z + 4 * i, b + 8 * z + 4 * i, False)
            k.lab(f'L_pb{tg}')
            return
        for i in range(4): mfma(O, p + 4 * i, b + 4 * i, False)
    k.lab('L_v0')
    profsteps('v')
    for a in range(2):
        if a: k.lab('L_v1')
        k(f's_cmp_lg_u32 s{sKND+a}, 1\ns_cbranch_scc1 L_send')
        k(f'v_add_u32 v31, s{sLD+a}, v{vSC}\nds_read2_b64 {vr(S2,4)}, v31 offset0:0 offset1:8\ns_waitcnt lgkmcnt(0)')
        if NAT: k(f's_mov_b32 s{sMC}, s{sMD+a}')
        if P2X: probs(S2); probs(S2 + 2, PB)
        for h in range(2):
            if not P2X: probs(S2 + 2 * h)
            waits(f'v{a}{h}', a, h)
            if h == 0 and P2X:
                k(f's_cmp_lt_u32 s{sKND+1-a}, 2\ns_cbranch_scc1 L_vm{a}')
                pv(P, SLOT(a), f'e{a}0')
                k('s_waitcnt vmcnt(0)')
                pv(PB, SLOT(a) + 16, f'e{a}1')
                k('s_branch L_send')
                k.lab(f'L_vm{a}')
            if h == 0: claim()
            pv(PB if h else P, SLOT(a) + 16 * h, f'{a}{h}')
            if h == 0: claimed(a)
            k(f's_cmp_eq_u32 s{sKND+a}, 1\ns_cbranch_scc0 L_vd{a}{h}')
            ld(a, h, a, True, True)
            k.lab(f'L_vd{a}{h}')
    k('s_branch L_v0')
    k.lab('L_send')
    k.c("---- hand the wave's partial to LDS; the last of the four waves adds them up, scales and publishes")
    stamp(4)
    if NAT:
        for r in range(4):
            k(f'v_add_f32_dpp v{O+r}, v{OE+r}, v{O+r} quad_perm:[0,1,2,3] row_mask:0xf bank_mask:0x5')
        for r in range(4):
            k(f'v_add_f32_dpp v{O+r}, v{OE+4+r}, v{O+r} quad_perm:[0,1,2,3] row_mask:0xf bank_mask:0xa')
    k(f'ds_write2_b32 v{E}, v{O}, v{O+2} offset0:0 offset1:1')
    k(f'ds_write2_b32 v{E}, v{O+1}, v{O+3} offset0:128 offset1:129')
    k(f's_mov_b64 exec, 1\nds_add_rtn_u32 v{U}, v{vFL}, v{vONE} offset:{F_CNT}\ns_mov_b64 exec, -1')
    k(f'ds_read_b32 v{U+1}, v{vFL} offset:{F_LOC}\nds_read_b64 {vr(U+2,2)}, v{E+4}')
    for i in range(4): k(f'ds_read_b128 {vr(R_+4*i,4)}, v{E+3} offset:{1024*i}')
    k('s_waitcnt lgkmcnt(4)')
    k(f'v_readfirstlane_b32 s{sT1}, v{U}\nv_readfirstlane_b32 s{sT0}, v{U+1}\ns_cmp_lg_u32 s{sT1}, 3\ns_cbranch_scc1 L_exit')
    k.lab('L_scw')
    k(f'v_cmp_ne_u32 vcc, 1, v{U+3}\ns_cbranch_vccz L_scok\nds_read_b64 {vr(U+2,2)}, v{E+4}\ns_waitcnt lgkmcnt(0)')
    retry('L_scw', 1)
    k.lab('L_scok')
    k('s_waitcnt lgkmcnt(0)')
    sum4(R_)
    for e in range(4): k(f'v_mul_f32 v{R_+e}, v{U+2}, v{R_+e}')
    k(f'v_cvt_pk_bf16_f32 v{E+12}, v{R_}, v{R_+1}\nv_cvt_pk_bf16_f32 v{E+14}, v{R_+2}, v{R_+3}')
    st2(f'buffer_store_dwordx4 {vr(E+12,4)}, v{E+2}, {sr(sWS,4)}, s74 offen', sT0, LO)
    k(f'ds_write_b32 v{vFL}, v{vONE} offset:{F_PUB}')
    k('s_branch L_exit')

    k.c('=' * 100); k.c('helper waves'); k.c('=' * 100)
    k.lab('L_helper')
    k('s_setprio 2')
    CB, WT, AC, RR, TA = 16, 176, 40, 100, 168
    k(f'v_lshlrev_b32 v8, 2, v1\nv_add_u32 v8, {L_FLG}, v8\nv_mov_b32 v10, 0\nds_write_b32 v8, v10')
    if not STUB:
        k('v_and_b32 v7, 7, v3\nv_lshrrev_b32 v9, 3, v3\nv_mul_u32_u24 v11, 1152, v7')
        k('v_lshl_add_u32 v4, v2, 4, v11\nv_lshl_add_u32 v4, v9, 3, v4')
        k(f's_lshl_b32 s{sT0}, s{sW}, 6')
        k('s_waitcnt lgkmcnt(0)')
        srd(sA, pC, 9216)
    srd(sD_, pX, 9216)
    def epoch():
        srd(sWS, pWSP, WS_SIZE)
        k(f's_load_dword s{sEP}, {sr(pWSP,2)}, 0')
        gm = sum(1 << u for u, (r, _) in enumerate(TAIL) if r == 0); wm = sum(1 << u for u, (r, _) in enumerate(TAIL) if r == 1)
        k(f's_mov_b32 s62, {gm:#x}\ns_mov_b32 s63, {wm:#x}\ns_mov_b32 s{sROLE}, 3')
        k(f's_bitcmp1_b32 s62, s{sIP}\ns_cselect_b32 s{sROLE}, 0, s{sROLE}\ns_bitcmp1_b32 s63, s{sIP}\ns_cselect_b32 s{sROLE}, 1, s{sROLE}')
        k(f's_bfm_b32 s64, s{sIP}, 0\ns_and_b32 s63, s63, s64\ns_bcnt1_i32_b32 s{sCN}, s63\ns_and_b32 s62, s62, s64\ns_bcnt1_i32_b32 s62, s62')
        k(f's_mul_i32 s{sR}, s{sX}, 18\ns_add_u32 s{sR}, s{sR}, s62\ns_waitcnt lgkmcnt(0)')
        tag_from_epoch()
        l = k.new('L_xc')
        k(f's_mov_b32 s76, 0\ns_cmp_lg_u32 s{sW}, 3\ns_cbranch_scc1 {l}')
        k(f's_getreg_b32 s62, hwreg(HW_REG_XCC_ID)\ns_lshl_b32 s63, s{sX}, 5\ns_add_u32 s63, s63, s{sIP}\ns_lshl_b32 s63, s63, 3\ns_add_u32 s63, s63, {WS_XC}')
        k(f'v_mov_b32 v12, s62\nv_mov_b32 v13, s{sTAG}\ns_mov_b64 exec, 1\nbuffer_store_dwordx2 v[12:13], off, {sr(sWS,4)}, s63\ns_mov_b64 exec, -1')
        k.lab(l)
    def unshuffle(extra=()):
        if not BPM: return
        k('v_and_b32 v6, 7, v1\nv_lshlrev_b32 v6, 5, v6\nv_lshrrev_b32 v8, 3, v1\nv_lshl_add_u32 v6, v8, 2, v6')
        for r in [CB + 4 * i + j for i in range(5) for j in range(2)] + list(extra): k(f'ds_bpermute_b32 v{r}, v6, v{r}')
        k('s_waitcnt lgkmcnt(0)')
    def traddr():
        k('v_lshrrev_b32 v5, 2, v3\nv_lshl_add_u32 v6, v2, 3, v5\nv_lshlrev_b32 v6, 7, v6\nv_and_b32 v5, 3, v3\nv_lshl_add_u32 v6, v5, 3, v6')
        k('v_bfe_u32 v5, v1, 3, 2\nv_lshl_add_u32 v6, v5, 5, v6')
        for tile in range(4): k(f'v_xor_b32 v{TA+tile}, {32*tile}, v6\nv_add_u32 v{TA+tile}, s{sST}, v{TA+tile}')
    def trread(i):
        for tile in range(4):
            r = WT + (i * 4 + tile) * 4; o = 4096 * i
            k(f'ds_read_b64_tr_b16 {vr(r,2)}, v{TA+tile} offset:{o}\nds_read_b64_tr_b16 {vr(r+2,2)}, v{TA+tile} offset:{o+512}')
    def redaddr(rowstride, so, t0, t1):
        k(f'v_and_b32 v14, 7, v3\nv_mul_u32_u24 v14, 272, v14\nv_lshl_add_u32 v14, v2, 4, v14\ns_mul_i32 s{sT0}, s{sW}, 2176\ns_add_u32 s{sT0}, s{sT0}, {L_PT}\nv_add_u32 v14, s{sT0}, v14')
        k(f'v_and_b32 v{so}, 1, v2\nv_lshl_add_u32 v{so}, s{sW}, 1, v{so}\nv_mul_u32_u24 v15, 272, v{so}\nv_lshl_add_u32 v15, v3, 4, v15\nv_add_u32 v15, {L_PT}, v15')
        k(f'v_mul_u32_u24 v{so}, {rowstride}, v{so}\nv_lshl_add_u32 v{so}, v3, 4, v{so}\nv_mov_b32 v{t0}, s{sTAG}\nv_mov_b32 v{t1}, s{sTAG}')
        mask64(sM0, 0x00ff)
    def reduce_publish(rd, z, so, soff, flag=None):
        k(f's_mov_b64 exec, {sr(sM0,2)}')
        for tile in range(4): k(f'ds_write_b128 v14, {vr(AC+4*tile,4)} offset:{64*tile}')
        k('s_mov_b64 exec, -1\ns_waitcnt lgkmcnt(0)\ns_barrier')
        for i in range(4): k(f'ds_read_b128 {vr(rd+4*i,4)}, v15 offset:{2176*i}')
        k('s_waitcnt lgkmcnt(0)')
        sum4(rd)
        k(f'v_cvt_pk_bf16_f32 v{z}, v{rd}, v{rd+1}\nv_cvt_pk_bf16_f32 v{z+2}, v{rd+2}, v{rd+3}')
        k('s_mov_b32 exec_hi, 0')
        st2(f'buffer_store_dwordx4 {vr(z,4)}, v{so}, {sr(sWS,4)}, s{soff} offen', flag, flag is not None)
        k('s_mov_b64 exec, -1')
    def dma(voff, srd_, soff, lds_imm, idx, th, pol='nt'):
        if idx >= th: k(f's_waitcnt vmcnt({th-1})')
        k(f's_add_u32 m0, s{sST}, {lds_imm}')
        k(f'buffer_load_dwordx4 v{voff}, {sr(srd_,4)}, s{soff} offen {pol} lds')
    def wstage(th, lo=0, hi=16):
        srd(sB_, pWO, 4096 * 1152)
        k('v_lshrrev_b32 v8, 3, v1\nv_mul_u32_u24 v8, 1152, v8\nv_and_b32 v9, 7, v1\nv_lshl_add_u32 v8, v9, 4, v8')
        k(f's_lshl_b32 s72, s{sX}, 2\ns_add_u32 s72, s72, s{sW}\ns_mul_i32 s72, s72, {128*1152}\ns_lshl_b32 s73, s{sCN}, 7\ns_add_u32 s72, s72, s73')
        if lo: k(f's_add_u32 s72, s72, {8*1152*lo}')
        for i in range(lo, hi):
            dma(8, sB_, 72, 1024 * i, i - lo, th)
            if i < 15: k(f's_add_u32 s72, s72, {8*1152}')
    k(f's_cmp_eq_u32 s{sPRO}, 2\ns_cbranch_scc1 L_p1\ns_cmp_eq_u32 s{sPRO}, 3\ns_cbranch_scc1 L_p2')
    if not EPB: k('s_barrier')
    epoch()
    if EPB: k('s_barrier')
    k('s_branch L_pdone')

    k.c('---- 64 columns of mod = silu(c) @ w_mod')
    k.lab('L_p1')
    for i in range(0 if STUB else 5):
        k(f'buffer_load_dwordx2 {vr(CB+4*i,2)}, v4, {sr(sA,4)}, s{sT0} offen offset:{256*i}')
    epoch()
    traddr(); redaddr(0, 5, 37, 39)
    k(f'v_and_b32 v15, 7, v1\nv_mul_u32_u24 v15, 272, v15\nv_bfe_u32 v5, v1, 3, 2\nv_lshl_add_u32 v5, s{sW}, 2, v5\nv_lshl_add_u32 v15, v5, 4, v15\nv_add_u32 v15, {L_PT}, v15')
    k(f'v_lshlrev_b32 v5, 4, v1\nv_lshl_add_u32 v5, s{sW}, 9, v5')
    k(f's_lshl_b32 s78, s{sPI}, 11\ns_add_u32 s78, s78, {WS_MOD}\ns_mov_b32 s{sT0}, 0xbfb8aa3b')
    k('s_waitcnt vmcnt(0)')
    stamp(1)
    unshuffle()
    for i in range(5):
        b = CB + 4 * i
        unp(RR, b); unp(RR + 2, b + 1)
        for e in range(4): k(f'v_mul_f32 v{RR+4+e}, s{sT0}, v{RR+e}')
        for e in range(4): k(f'v_exp_f32 v{RR+4+e}, v{RR+4+e}')
        for e in range(4): k(f'v_add_f32 v{RR+4+e}, 1.0, v{RR+4+e}')
        for e in range(4): k(f'v_min_f32 v{RR+4+e}, 0x7e800000, v{RR+4+e}')
        for e in range(4): k(f'v_rcp_f32 v{RR+8+e}, v{RR+4+e}')
        for e in range(4): k(f'v_mul_f32 v{RR+12+e}, v{RR+e}, v{RR+8+e}')
        for e in range(4): k(f'v_fma_f32 v{RR+e}, -v{RR+12+e}, v{RR+4+e}, v{RR+e}')
        for e in range(4): k(f'v_fmac_f32 v{RR+12+e}, v{RR+e}, v{RR+8+e}')
        k(f'v_cvt_pk_bf16_f32 v{b}, v{RR+12}, v{RR+13}\nv_cvt_pk_bf16_f32 v{b+1}, v{RR+14}, v{RR+15}')
    for i in range(5): ror8pair(CB + 4 * i)
    k('s_barrier')
    stamp(2)
    trread(0)
    for i in range(5):
        if i < 4:
            k('s_waitcnt lgkmcnt(4)'); trread(i + 1); k('s_waitcnt lgkmcnt(8)')
        else: k('s_waitcnt lgkmcnt(0)')
        for tile in range(4): mfma(AC + 4 * tile, WT + (i * 4 + tile) * 4, CB + 4 * i, i == 0)
    k('s_branch L_wide')

    k.c('---- 64 columns of q = h @ wq')
    k.lab('L_p2')
    LN, SG, CG = 132, 56, 76
    if not STUB: k(f'buffer_load_ushort v36, v11, {sr(sD_,4)}, 0 offen')
    for i in range(0 if STUB else 5):
        k(f'buffer_load_dwordx2 {vr(CB+4*i,2)}, v4, {sr(sD_,4)}, s{sT0} offen offset:{256*i}')
    k(f'v_lshlrev_b32 v152, 4, v1\nv_lshl_add_u32 v152, s{sW}, 10, v152\nv_add_u32 v153, 4096, v152\nv_add_u32 v154, 8192, v152\nv_add_u32 v155, 12288, v152')
    k(f's_cmp_lt_u32 s{sW}, 2\ns_cselect_b32 s72, -1, 0\nv_add_u32 v156, 16384, v152\nv_and_b32 v156, s72, v156')
    k(f'v_lshlrev_b32 v7, 5, v7\nv_add_u32 v7, {L_RED}, v7\nv_lshl_add_u32 v9, s{sW}, 3, v7')
    epoch()
    k(f's_lshl_b32 s78, s{sPI}, 11\ns_add_u32 s78, s78, {WS_Q}')
    traddr(); redaddr(256, 5, 37, 39)
    k(f's_cmp_lt_u32 s{sW}, 2\ns_cselect_b32 s72, 1.0, 0')
    k('s_waitcnt vmcnt(0)')
    unshuffle((36,))
    k('v_lshlrev_b32 v8, 16, v36')
    for i in range(5):
        unp(LN + 4 * i, CB + 4 * i); unp(LN + 4 * i + 2, CB + 4 * i + 1)
    for e in range(4): k(f'v_sub_f32 v{RR+e}, v{LN+16+e}, v8')
    k(f'v_add_f32 v10, v{RR}, v{RR+1}\nv_mul_f32 v11, v{RR}, v{RR}\nv_add_f32 v10, v10, v{RR+2}\nv_fmac_f32 v11, v{RR+1}, v{RR+1}')
    k(f'v_add_f32 v10, v10, v{RR+3}\nv_fmac_f32 v11, v{RR+2}, v{RR+2}\nv_mul_f32 v10, s72, v10\nv_fmac_f32 v11, v{RR+3}, v{RR+3}\nv_mul_f32 v11, s72, v11')
    for r in range(16): k(f'v_sub_f32 v{RR+r}, v{LN+r}, v8')
    for r in range(16): k(f'v_add_f32 v10, v10, v{RR+r}\nv_fmac_f32 v11, v{RR+r}, v{RR+r}')
    k(f'v_add_f32_dpp v10, v10, v10 row_ror:8 {DPPALL}\nv_add_f32_dpp v11, v11, v11 row_ror:8 {DPPALL}')
    xrow('v_add_f32', 10, 12); xrow('v_add_f32', 11, 12)
    k('ds_write_b64 v9, v[10:11]')
    k(f's_mov_b32 s{sT0}, {WS_MOD}\ns_mov_b32 s{sT1}, {WS_MOD + 18432}')
    k('s_waitcnt lgkmcnt(0)\ns_barrier')
    stamp(1)
    k(f'ds_read_b128 {vr(RR,4)}, v7\nds_read_b128 {vr(RR+4,4)}, v7 offset:16')
    for i in range(5):
        trread(i); k(f's_waitcnt lgkmcnt({4 if i < 4 else 0})')
    k(f'v_add_f32 v10, v{RR}, v{RR+2}\nv_add_f32 v11, v{RR+1}, v{RR+3}\nv_add_f32 v12, v{RR+4}, v{RR+6}\nv_add_f32 v13, v{RR+5}, v{RR+7}')
    k('v_add_f32 v10, v10, v12\nv_add_f32 v11, v11, v13\nv_mul_f32 v10, 0x3ae38e39, v10\nv_mul_f32 v11, 0x3ae38e39, v11')
    k('v_fma_f32 v11, -v10, v10, v11\nv_add_f32 v10, v10, v8\nv_max_f32 v11, 0, v11')
    if WHOLD:
        k(f's_cmp_lg_u32 s{sROLE}, 1\ns_cbranch_scc1 L_nowh')
        wstage(16, 0, WHN)
        k.lab('L_nowh')
    rnd2(10, 11, 12)
    k('v_add_f32 v11, 0x3727c5ac, v11')
    rnd1(11, 12)
    k('v_sqrt_f32 v11, v11')
    rnd1(11, 12)
    k('v_rcp_f32 v11, v11')
    for i in range(5):
        d = LN + 4 * i
        for e in range(4): k(f'v_sub_f32 v{d+e}, v{d+e}, v10')
        rnd4(d, 12)
        for e in range(4): k(f'v_mul_f32 v{d+e}, v{d+e}, v11')
        rnd4(d, 12)
    if LQ: xcld(96, 98)
    poll('hpoll', [wsld(CG + 4 * i, 152 + i, sT1) for i in range(5)] + [wsld(SG + 4 * i, 152 + i, sT0) for i in range(5)],
         [SG + 4 * i for i in range(10)], 12, 10, PSL, True)
    stamp(2)
    if LQ: xcchk(96, 76)
    for i in range(5):
        d, c_, s_ = LN + 4 * i, CG + 4 * i, SG + 4 * i
        unp(RR, c_); unp(RR + 2, c_ + 2); unp(RR + 4, s_); unp(RR + 6, s_ + 2)
        for e in range(4): k(f'v_add_f32 v{RR+e}, 1.0, v{RR+e}')
        rnd4(RR, 12)
        for e in range(4): k(f'v_mul_f32 v{d+e}, v{d+e}, v{RR+e}')
        rnd4(d, 12)
        for e in range(4): k(f'v_add_f32 v{d+e}, v{d+e}, v{RR+4+e}')
        k(f'v_cvt_pk_bf16_f32 v{CB+4*i}, v{d}, v{d+1}\nv_cvt_pk_bf16_f32 v{CB+4*i+1}, v{d+2}, v{d+3}')
        if i > 0:
            ror8pair(CB + 4 * (i - 1))
        if i > 1:
            for tile in range(4): mfma(AC + 4 * tile, WT + ((i - 2) * 4 + tile) * 4, CB + 4 * (i - 2), i == 2)
    ror8pair(CB + 16)
    for i in (3, 4):
        for tile in range(4): mfma(AC + 4 * tile, WT + (i * 4 + tile) * 4, CB + 4 * i, False)
    k.lab('L_wide')
    reduce_publish(RR, 36, 5, 78, 76 if LQ else None)
    if FWD:
        k(f's_cmp_lg_u32 s{sPRO}, 2\ns_cbranch_scc1 L_nofw\ns_cmp_ge_u32 s{sPI}, 8\ns_cbranch_scc1 L_nofw')
        k(f'v_and_b32 v6, 1, v1\nv_lshl_add_u32 v6, s{sW}, 1, v6\nv_mul_u32_u24 v6, 13824, v6\nv_lshrrev_b32 v7, 1, v1\nv_lshl_add_u32 v6, v7, 7, v6\ns_mov_b32 s{sT0}, {WS_MOD}')
        k('s_waitcnt vmcnt(0)')
        poll('fwd', [wsld(24, 6, sT0), wsld(28, 6, sT0, 512)], [24, 28], 12, 10, FWD, True)
        k.lab('L_nofw')
    k('s_barrier')
    sLB = 35
    def lbsetup():
        k(f's_mul_i32 s{sLB}, s{sW}, 5\ns_cmp_eq_u32 s{sW}, 3\ns_cselect_b32 s{sLB}, 14, s{sLB}')
    def stage(parts, th, rng=None):
        n = 0
        for part in parts:
            lo, hi = (rng or {}).get(part, (0, 10))
            if part < 2: k(f's_mul_i32 s{sT2}, s{sLB}, {32*9216}\ns_lshl_b32 s{sT3}, s{sR}, 6\ns_add_u32 s{sT2}, s{sT2}, s{sT3}')
            else: k(f's_mul_i32 s{sT2}, s{sR}, 36864\ns_mul_i32 s{sT3}, s{sW}, 9216\ns_add_u32 s{sT2}, s{sT2}, s{sT3}')
            l = k.new('L_sg')
            if part < 2 and REV and (lo, hi) == (0, 10):
                k(f's_cmp_lt_u32 s{sW}, 2\ns_cselect_b32 s18, 9, 7\ns_bitcmp1_b32 s{sR}, 0\ns_cselect_b32 s18, s18, 0\ns_cselect_b32 s19, -1, 1')
                k(f's_mul_i32 s20, s18, {16*9216}\ns_add_u32 s{sT2}, s{sT2}, s20\ns_mul_i32 s20, s19, {16*9216}\ns_lshl_b32 s18, s18, 10\ns_add_u32 s18, s18, s{sST}\ns_lshl_b32 s19, s19, 10')
                for i in range(10):
                    if i == 8: k(f's_cmp_ge_u32 s{sW}, 2\ns_cbranch_scc1 {l}')
                    if n >= th: k(f's_waitcnt vmcnt({th-1})')
                    k(f's_add_u32 m0, s18, {10240 * part}\ns_add_u32 s18, s18, s19')
                    k(f'buffer_load_dwordx4 v30, {sr((sA, sB_)[part],4)}, s{sT2} offen {GP} lds\ns_add_u32 s{sT2}, s{sT2}, s20'); n += 1
                k.lab(l)
                continue
            if lo: k(f's_add_u32 s{sT2}, s{sT2}, {16*9216*lo}')
            for i in range(lo, min(hi, 10 if part < 2 else 9)):
                if part < 2 and i == 8: k(f's_cmp_ge_u32 s{sW}, 2\ns_cbranch_scc1 {l}')
                dma(30 if part < 2 else 6, (sA, sB_, sC_)[part], sT2, 10240 * part + 1024 * i, n, th, GP if part < 2 else 'nt'); n += 1
                k(f's_add_u32 s{sT2}, s{sT2}, {16*9216 if part < 2 else 1024}')
            k.lab(l)
    early = [0, 1, 2][:3 - SPLIT]; late = [0, 1, 2][3 - SPLIT:]
    def gfill(fill=True):
        lbsetup()
        srd(sA, pGA, 576 * 9216); srd(sB_, pUP, 576 * 9216); srd(sC_, pDN, 4608 * 1152); srd(sD_, pOUT, 9216)
        k('v_lshrrev_b32 v30, 2, v1\nv_mul_u32_u24 v30, 9216, v30\nv_and_b32 v5, 3, v1\nv_lshl_add_u32 v30, v5, 4, v30\nv_lshlrev_b32 v6, 4, v1')
        if early and fill:
            ldswait('gpre', F_PRE, 4, 4)
            stage(early + ([1] if UPE else []), FTH, {1: (0, UPE) if UPE else (0, 10), 0: (10 - GTE, 10)})
    k.lab('L_pdone')
    stamp(3)
    if F0:
        k(f's_cmp_lg_u32 s{sROLE}, 0\ns_cbranch_scc1 L_nof0')
        gfill()
        k.lab('L_nof0')
    k.c('---- q of this (batch, kv head) into LDS')
    k(f's_cmp_lg_u32 s{sW}, 0\ns_cbranch_scc1 L_qdone')
    if QW: ldswait('qpre', F_PRE, QW, 4)
    k(f's_lshl_b32 s{sT0}, s{sHKV}, 13\ns_lshl_b32 s{sT1}, s{sBB}, 8\ns_add_u32 s{sT0}, s{sT0}, s{sT1}\ns_add_u32 s{sT0}, s{sT0}, {WS_Q}')
    k(f'v_lshlrev_b32 v4, 11, v2\nv_lshl_add_u32 v4, v3, 4, v4\nv_lshlrev_b32 v5, 3, v1\nv_add_u32 v5, {L_Q}, v5\nv_mov_b32 v12, {L_FLG}\nv_mov_b32 v13, 1')
    poll('qpoll', [wsld(24, 4, sT0)], [24], 10, 11, QSL)
    k(f'ds_write2_b32 v5, v24, v26 offset0:0 offset1:1\nds_write_b32 v12, v13 offset:{F_QRDY}')
    k.lab('L_qdone')
    stamp(4)
    k(f's_cmp_eq_u32 s{sROLE}, 1\ns_cbranch_scc1 L_wrole\ns_cmp_eq_u32 s{sROLE}, 3\ns_cbranch_scc1 L_nrole')

    def balance(name):
        k.c('helper wave 1: softmax denominator of this workgroup keys, exchanged with the other half of the slab -> scale of the partial output')
        k(f's_cmp_lg_u32 s{sW}, 1\ns_cbranch_scc1 L_{name}bd')
        ldswait(f'{name}kd', F_KD, 4, 32)
        k(f'v_and_b32 v33, 1, v1\nv_lshlrev_b32 v33, 4, v33\nv_add_u32 v32, {L_FLG + F_MX}, v33\nds_read_b128 v[36:39], v32')
        k(f'v_lshlrev_b32 v32, 3, v1\nv_add_u32 v32, {L_SC}, v32\ns_mov_b32 s18, 16\ns_waitcnt lgkmcnt(0)')
        k(f'v_max3_f32 v34, v36, v37, v38\nv_max_f32 v34, v34, v39\nv_mul_f32 v34, s{sL2E}, v34\nv_mov_b32 v36, 0')
        k.lab(f'L_{name}bl')
        k('ds_read2st64_b64 v[56:59], v32 offset0:0 offset1:1\nv_add_u32 v32, 1024, v32\ns_waitcnt lgkmcnt(0)')
        for r in range(56, 60):
            unp(38, r)
            k(f'v_fma_f32 v38, v38, s{sL2E}, -v34\nv_fma_f32 v39, v39, s{sL2E}, -v34\nv_exp_f32 v38, v38\nv_exp_f32 v39, v39\nv_add_f32 v36, v36, v38\nv_add_f32 v36, v36, v39')
        k(f's_sub_u32 s18, s18, 1\ns_cmp_lg_u32 s18, 0\ns_cbranch_scc1 L_{name}bl')
        for m in ('quad_perm:[2,3,0,1]', 'row_ror:4', 'row_ror:8'):
            k(f'v_add_f32_dpp v36, v36, v36 {m} {DPPALL}')
        xrow('v_add_f32', 36, 38)
        k(f'v_mov_b32 v35, s{sTAG}\nv_mov_b32 v37, s{sTAG}\ns_lshl_b32 s20, s2, 7\ns_add_u32 s20, s20, {WS_ML}\ns_xor_b32 s21, s20, 1024\ns_mov_b64 exec, 3')
        st2(f'buffer_store_dwordx4 v[34:37], v33, {sr(sWS,4)}, s20 offen', 34, LO)
        ldswait(f'{name}xp', F_POS, XP - P0, 32)
        poll(f'{name}balp', [wsld(56, 33, 21)], [56], 38, 39, 16)
        k('v_max_f32 v38, v34, v56\nv_sub_f32 v34, v34, v38\nv_sub_f32 v56, v56, v38\nv_exp_f32 v34, v34\nv_exp_f32 v56, v56')
        k('v_mul_f32 v36, v36, v34\nv_fmac_f32 v36, v58, v56\nv_rcp_f32 v36, v36\nv_mov_b32 v35, 1\nv_mul_f32 v34, v34, v36')
        k(f'v_lshrrev_b32 v33, 1, v33\nv_add_u32 v33, {L_FLG + F_SCL}, v33\nds_write_b64 v33, v[34:35]\ns_waitcnt lgkmcnt(0)\ns_mov_b64 exec, -1')
        k.lab(f'L_{name}bd')
    def pace(name):
        if not CP: return
        k.c('helper wave 2: load balancing. At a few positions the arrival time is compared with that of 8 reference workgroups;')
        k.c('a workgroup that is behind fetches whole lines for a while (fewer requests per byte = larger share of the HBM bandwidth)')
        off = dict(g=POFF[0], w=POFF[1]).get(name, POFF[2])
        sh = {64: 2, 32: 3, 16: 4, 8: 5}[PN]
        if PCLK:
            k(f's_cmp_lg_u32 s{sW}, 2\ns_cbranch_scc1 L_{name}pd')
            k(f'v_mov_b32 v32, {L_FLG}\nv_and_b32 v33, {PN-1}, v1\nv_mul_u32_u24 v33, {PSTR}, v33\nv_mov_b32 v35, s{sTAG}')
            k(f's_lshr_b32 s18, s2, {sh}\ns_mul_i32 s18, s18, 5\ns_add_u32 s18, s18, s2\ns_and_b32 s19, s18, {(1 << sh) - 1}')
            k(f's_lshr_b32 s18, s2, {sh}\ns_mul_i32 s18, s18, {PSTR}\ns_cmp_eq_u32 s19, 0\ns_cselect_b32 s18, s18, {OOB:#x}')
            for ci, C in enumerate(CP):
                n_ = f'{name}c{ci}'
                ldswait(f'{n_}u', F_POS, C - P0 - PCLK - 6, 32)
                ldswait(f'{n_}v', F_POS, C - P0 - PCLK, 2)
                k(f's_memrealtime s[20:21]\ns_add_u32 s19, s18, {WS_PACE + 128 * ci}\ns_waitcnt lgkmcnt(0)\nv_mov_b32 v34, s20')
                k(f's_mov_b64 exec, 1\nbuffer_store_dwordx2 v[34:35], off, {sr(sWS,4)}, s19 sc1\ns_mov_b64 exec, -1')
                ldswait(f'{n_}w', F_POS, C - P0, 16)
                k(f's_mov_b32 s19, {WS_PACE + 128 * ci}\nbuffer_load_dwordx2 v[36:37], v33, {sr(sWS,4)}, s19 offen sc1\ns_waitcnt vmcnt(0)\nds_read_b32 v38, v32 offset:{F_POS}')
                k(f'v_sub_u32 v36, v34, v36\nv_mov_b32 v39, {-PCLK * 28}\nv_cmp_eq_u32 vcc, v35, v37\nv_cndmask_b32 v36, v39, v36, vcc\nv_cvt_f32_i32 v36, v36')
                for m in ('quad_perm:[1,0,3,2]', 'quad_perm:[2,3,0,1]', 'row_half_mirror', 'row_mirror'):
                    k(f'v_add_f32_dpp v36, v36, v36 {m} {DPPALL}')
                xrow('v_add_f32', 36, 39)
                if PROP:
                    Rm = ((CP[ci + 1] - PCLK if PR and ci + 1 < len(CP) else 256) - C - 4)
                    g_ = PG[min(ci, len(PG) - 1)]
                    k(f'v_mov_b32 v39, {f2u(1 + g_ * (PD + off) / Rm):#x}\nv_fmac_f32 v39, {f2u(g_ / 64 / 27.2 / Rm):#x}, v36\nv_max_f32 v39, 0.5, v39\nv_rcp_f32 v39, v39')
                    k(f's_waitcnt lgkmcnt(0)\nv_mov_b32 v38, {f2u(-64.0 + 1.5):#x}\nv_fmac_f32 v38, {"v59" if PA and ci else hex(f2u(64.0 + PROP))}, v39\nv_max_f32 v38, 1.0, v38\nv_min_f32 v38, {f2u(TMAX + 1.0):#x}, v38\nv_cvt_u32_f32 v39, v38')
                    if PA: k(f'v_mov_b32 v59, {f2u((1 - PA) * (64.0 + PROP) + PA * 62.5):#x}\nv_fmac_f32 v59, {f2u(PA):#x}, v38')
                    k(f's_waitcnt lgkmcnt(0)\nds_write_b32 v32, v39 offset:{F_BST}\ns_waitcnt lgkmcnt(0)')
                elif LP is None or ci < len(CP) - 1:
                    k(f'v_mov_b32 v39, {f2u(PK * (PD + off)):#x}\nv_fmac_f32 v39, {f2u(PK / 64 / 27.6):#x}, v36\nv_max_f32 v39, 0, v39\nv_min_f32 v39, 0x42800000, v39\nv_cvt_u32_f32 v39, v39')
                    k(f's_waitcnt lgkmcnt(0)\nv_add3_u32 v38, v38, v39, {P0+4}\nds_write_b32 v32, v38 offset:{F_BST}\ns_waitcnt lgkmcnt(0)')
                    k('v_mov_b32 v56, v34\nv_mov_b32 v57, v36')
                else:
                    k(f'v_sub_u32 v56, v34, v56\nv_cvt_f32_i32 v56, v56\nv_sub_f32 v57, v57, v36\nv_fmac_f32 v56, {f2u(1 / 64):#x}, v57')
                    k(f'v_rcp_f32 v56, v56\nv_mul_f32 v36, {f2u(1 / 64):#x}, v36\nv_mul_f32 v56, {f2u(float(C - CP[ci - 1]) * TSC):#x}, v56')
                    for li, P_ in enumerate((0,) + tuple(LP)):
                        if P_: ldswait(f'{n_}l{li}', F_POS, P_ - P0, 4)
                        k(f's_memrealtime s[20:21]\nds_read_b32 v38, v32 offset:{F_POS}\ns_waitcnt lgkmcnt(0)')
                        k(f'v_subrev_u32 v39, v34, s20'.replace('v_subrev_u32 v39, v34, s20', 'v_sub_u32 v39, s20, v34'))
                        k(f'v_cvt_f32_i32 v39, v39\nv_add_f32 v39, v39, v36\nv_cvt_f32_u32 v58, v38\nv_subrev_f32 v58, {f2u(float(C - P0 - PCLK + PD + off)):#x}, v58')
                        k(f'v_fma_f32 v39, v39, v56, -v58\nv_mul_f32 v39, {f2u(PK):#x}, v39\nv_max_f32 v39, 0, v39\nv_min_f32 v39, 0x42800000, v39\nv_cvt_u32_f32 v39, v39')
                        k(f'v_add3_u32 v38, v38, v39, {P0+4}\nds_write_b32 v32, v38 offset:{F_BST}\ns_waitcnt lgkmcnt(0)')
            k.lab(f'L_{name}pd')
            return
        k(f's_cmp_lt_u32 s{sW}, 2\ns_cbranch_scc1 L_{name}pd')
        k(f'v_mov_b32 v32, {L_FLG}\nv_and_b32 v33, {PN-1}, v1\nv_mul_u32_u24 v33, {PSTR}, v33\nv_mov_b32 v34, s{sTAG}')
        k(f's_cmp_eq_u32 s{sW}, 2\ns_cbranch_scc1 L_{name}pw')
        k(f's_lshr_b32 s18, s2, {sh}\ns_mul_i32 s18, s18, 5\ns_add_u32 s18, s18, s2\ns_and_b32 s18, s18, {(1 << sh) - 1}\ns_cmp_lg_u32 s18, 0\ns_cbranch_scc1 L_{name}pd')
        k(f's_lshr_b32 s18, s2, {sh}\ns_mul_i32 s19, s18, 37\ns_and_b32 s19, s19, {PN-1}\ns_mul_i32 s19, s19, {PSPAN}\ns_lshr_b32 s19, s19, {8-sh}\ns_mul_i32 s18, s18, {PSTR}')
        for ci, C in enumerate(CP):
            k(f's_add_u32 s20, s19, {C - P0 - PW0}\ns_add_u32 s21, s18, {WS_PACE + 128 * ci}')
            ldswait(f'{name}mk{ci}', F_POS, 's20', PSLP)
            if 'now' not in PDBG: k(f's_mov_b64 exec, 1\nbuffer_store_dword v34, off, {sr(sWS,4)}, s21 sc1\ns_mov_b64 exec, -1')
        k(f's_branch L_{name}pd')
        k.lab(f'L_{name}pw')
        for ci, C in enumerate(CP):
            n_ = f'{name}p{ci}'
            k(f's_mov_b32 s21, {OOB if "nor" in PDBG else WS_PACE + 128 * ci}')
            ldswait(f'{n_}w', F_POS, C - P0, PSLP)
            k(f'buffer_load_dword v35, v33, {sr(sWS,4)}, s21 offen sc1\ns_waitcnt vmcnt(0)\nds_read_b32 v38, v32 offset:{F_POS}\nv_cmp_eq_u32 vcc, v34, v35\ns_bcnt1_i32_b64 s23, vcc')
            k(f's_mul_i32 s23, s23, {PSPAN * 4}\ns_sub_i32 s23, s23, {round(256 * (PW0 - PD - off))}\ns_cmp_le_i32 s23, 0\ns_cbranch_scc1 L_{n_}e')
            k(f's_mul_i32 s23, s23, {round(PK * 16)}\ns_lshr_b32 s23, s23, 12\ns_waitcnt lgkmcnt(0)\nv_readfirstlane_b32 s22, v38')
            k(f's_add_u32 s23, s23, s22\ns_add_u32 s23, s23, {P0+4}\nv_mov_b32 v38, s23\nds_write_b32 v32, v38 offset:{F_BST}')
            k.lab(f'L_{n_}e')
            k('s_waitcnt lgkmcnt(0)')
        k.lab(f'L_{name}pd')
    def locality(name):
        k.c('do all 32 workgroups of this group run on this XCD? (then hand-offs inside the group may stay in its L2)')
        ldswait(f'{name}loc', F_POS, MID, 64)
        xcld(56, 58)
        k('s_waitcnt vmcnt(0)')
        xcchk(56, 34)
        k(f'v_mov_b32 v13, s34\nds_write_b32 v12, v13 offset:{F_LOC}')
    def selmasks(a, b):
        k('v_and_b32 v8, 1, v3\nv_lshlrev_b32 v8, 4, v8\nv_mov_b32 v9, 0x3f80\nv_lshlrev_b32 v9, v8, v9')
        k(f'v_and_b32 v8, 2, v3\nv_cmp_eq_u32 vcc, 0, v8\nv_cndmask_b32 v{a}, 0, v9, vcc\nv_sub_u32 v{b}, v9, v{a}')
    def stream_done(name):
        m = WST if name == 'wpub' else GST
        if name == 'wpub' and EW is not None: ldswait(name, F_POS, QM - P0 + EW, 2)
        elif m == 'pub':
            if PUBS == 0: ldswait(name + 'a', F_POS, QM - P0, 8)
            ldswait(name, F_PUB, 1, PUBS)
        elif m.startswith('cnt'): ldswait(name, F_CNT, int(m[3:]), 1)
        else: k('s_barrier')
    rm = [int(c) for c in RMODE]; rs = [int(c, 16) for c in RSL]

    k.c('=' * 100); k.c('G role: gate/up, GEGLU, down, final reduction'); k.c('=' * 100)
    GW, DW, YA, BO, FS, FS5, XG, GB = 176, 140, 104, 84, 76, 80, 72, 68
    def conv(part):
        if part < 2:
            l = k.new('L_cv')
            for t_ in range(5):
                if t_ == 4: k(f's_cmp_ge_u32 s{sW}, 2\ns_cbranch_scc1 {l}')
                for tile in (2 * part, 2 * part + 1):
                    o = part * 10240 + (tile & 1) * 32 + t_ * 2048
                    r = GW + (t_ * 4 + tile) * 4
                    k(f'ds_read_b64_tr_b16 {vr(r,2)}, v16 offset:{o}\nds_read_b64_tr_b16 {vr(r+2,2)}, v16 offset:{o+256}')
                if t_ == 2: k('s_waitcnt lgkmcnt(4)')
            k.lab(l)
            k('s_waitcnt lgkmcnt(0)')
        else:
            for u in range(9):
                k(f'ds_read_b64_tr_b16 {vr(DW+4*u,2)}, v31 offset:{32*u}\nds_read_b64_tr_b16 {vr(DW+4*u+2,2)}, v31 offset:{4608+32*u}')
                if u in (5, 8): k(f's_waitcnt lgkmcnt({6 if u == 5 else 0})')
    gfill(not F0)
    k(f'v_and_b32 v8, 7, v3\nv_lshlrev_b32 v20, 4, v8\nv_lshl_add_u32 v20, s{sR}, 7, v20')
    k(f'v_mul_u32_u24 v21, 1152, v8\nv_lshl_add_u32 v21, s{sR}, 3, v21')
    for r in list(range(GW + 64, GW + 80)) + list(range(60, 68)): k(f'v_mov_b32 v{r}, 0')
    selmasks(FS, FS + 2)
    k(f'v_mov_b32 v{FS+1}, 0\nv_mov_b32 v{FS+3}, 0\nv_mov_b32 v{FS5+1}, 0\nv_mov_b32 v{FS5+3}, 0')
    k(f's_cmp_lt_u32 s{sW}, 2\ns_cselect_b32 s{sT0}, -1, 0\nv_and_b32 v{FS5}, s{sT0}, v{FS}\nv_and_b32 v{FS5+2}, s{sT0}, v{FS+2}')
    mask64(sM0, 0x00ff)
    k(f'v_lshrrev_b32 v8, 2, v3\nv_and_b32 v9, 3, v3\nv_lshlrev_b32 v16, 6, v8\nv_lshl_add_u32 v16, v9, 3, v16\nv_add_u32 v16, s{sST}, v16\nv_lshl_add_u32 v16, v2, 9, v16')
    k(f'v_mul_u32_u24 v31, 1152, v8\nv_lshl_add_u32 v31, v9, 3, v31\nv_mul_u32_u24 v10, {REG}, v2\ns_mul_i32 s{sT0}, s{sW}, 288\ns_add_u32 s{sT0}, s{sT0}, 20480\nv_add3_u32 v31, v31, v10, s{sT0}')
    k('v_and_b32 v8, 7, v3\nv_lshrrev_b32 v9, 3, v3')
    k(f's_cmp_lt_u32 s{sW}, 2\ns_cselect_b32 s{sT0}, -1, 0\nv_add_u32 v23, 4096, v6\nv_and_b32 v23, s{sT0}, v23\nv_add_u32 v17, 16384, v6\nv_and_b32 v17, s{sT0}, v17')
    k('v_mul_u32_u24 v5, 18432, v2\nv_lshl_add_u32 v5, v8, 4, v5\nv_lshl_add_u32 v7, v9, 30, v5')
    k(f'v_mul_u32_u24 v10, {4*18432}, v9\nv_add_u32 v5, v5, v10')
    k(f'v_mul_u32_u24 v14, 272, v8\nv_lshl_add_u32 v15, v2, 5, v14\nv_lshl_add_u32 v15, v9, 4, v15\nv_add_u32 v15, {L_PT}, v15')
    k(f's_mul_i32 s{sT0}, s{sW}, 2176\ns_add_u32 s{sT0}, s{sT0}, {L_PT}\nv_lshl_add_u32 v14, v2, 4, v14\nv_add_u32 v14, s{sT0}, v14')
    k(f'v_lshlrev_b32 v19, 4, v8\nv_add_u32 v19, {L_RED}, v19\ns_lshl_b32 s{sT0}, s{sW}, 7\nv_add_u32 v18, s{sT0}, v19')
    k('s_waitcnt vmcnt(0)')
    for part in early:
        if part < 2 and GTE == 10: conv(part)
    locality('g')
    k(f's_mov_b32 s{sT0}, {WS_MOD + 92160}')
    poll('gbp', [wsld(24, 20, sT0)], [24], 28, 29, 32)
    unp(GB, 24); unp(GB + 2, 26)
    k(f's_mul_i32 s{sT1}, s{sX}, 18432\ns_lshl_b32 s{sT0}, s{sLB}, 10\ns_add_u32 s{sT0}, s{sT0}, s{sT1}\ns_add_u32 s{sT0}, s{sT0}, {WS_H2}\ns_add_u32 s{sT1}, s{sT1}, {WS_X2}')
    k(f's_mul_i32 s72, s{sW}, {36*18432}\ns_lshl_b32 s73, s{sR}, 7\ns_add_u32 s72, s72, s73\ns_add_u32 s72, s72, {WS_YP}')
    balance('g'); pace('g')
    for r in range(AC, AC + 16): k(f'v_mov_b32 v{r}, 0')
    if EK is not None:
        ldswait('gek', F_POS, QM - P0 + EK, 2)
        if GTE < 10: stage([0], 30, {0: (0, 10 - GTE)})
        stage([1], 30, {1: (UPE, EN)})
    stream_done('gpub')
    stamp(5)
    if EK is not None:
        stage(late, 30, {1: (EN, 10)})
        if GTE < 10: late = [0] + late
    else:
        if GTE < 10: late = [0] + late
        stage(late, 30, {1: (UPE, 10), 0: (0, 10 - GTE)})
    def gact(i):
        def f():
            strip(BO + 4 * i)
            for tile in range(4): mfma(AC + 4 * tile, GW + (i * 4 + tile) * 4, BO + 4 * i, False)
        return f
    h2items = [(wsld(BO + 4 * i, 6, sT0, 1024 * i) if i < 4 else wsld(BO + 16, 23, sT0), BO + 4 * i, gact(i)) for i in (4, 0, 1, 2, 3)]
    if not H2L:
        for l, _, _ in h2items: k(l)
    if SW == 'stg': stamp(1)
    for n_, part in enumerate(late):
        k(f's_waitcnt vmcnt({(0 if H2L else 5) + (0 if part == 2 else 9 if part == 1 else 17 - UPE)})')
        if SW == 'stg': stamp(1 + part)
        if part < 2: conv(part)
    if H2L == 1:
        for l, _, _ in h2items: k(l)
    k('s_barrier')
    if H2L == 2:
        for l, _, _ in h2items: k(l)
    conv(2)
    stamp(6)
    if rm[2] in (0, 3):
        gather('h2p', [(l, b_, lambda: None) for l, b_, _ in h2items], rm[2], rs[2], True)
        strip(BO)
        for i in range(5):
            for tile in range(4):
                mfma(AC + 4 * tile, GW + (i * 4 + tile) * 4, BO + 4 * i, i == 0)
                if tile == 0 and i < 4: strip(BO + 4 * (i + 1))
    else: gather('h2p', h2items, rm[2], rs[2], True)
    stamp(7)
    k(f's_mov_b64 exec, {sr(sM0,2)}')
    for tile in range(4): k(f'ds_write_b128 v14, {vr(AC+4*tile,4)} offset:{64*tile}')
    k('s_mov_b64 exec, -1')
    for u in range(5): k(f'v_mov_b32 v{GW+4*u+1}, s{sTAG}\nv_mov_b32 v{GW+4*u+3}, s{sTAG}')
    c1 = -2 * 0.7978845608028654 * 1.4426950408889634
    k(f's_mov_b32 s{sT2}, {f2u(c1*0.044715):#x}\nv_mov_b32 v13, {f2u(c1):#x}')
    k('s_waitcnt lgkmcnt(0)\ns_barrier')
    for i in range(4): k(f'ds_read_b128 {vr(YA+4*i,4)}, v15 offset:{2176*i}')
    for i in range(4): k(f'ds_read_b128 {vr(YA+16+4*i,4)}, v15 offset:{2176*i+128}')
    G_, U_, BL, BH = YA, YA + 16, 60, 64
    for r in range(AC, AC + 4): k(f'v_mov_b32 v{r}, 0')
    k(f's_mul_i32 s73, s{sR}, 18432\ns_lshl_b32 s74, s{sW}, 10\ns_add_u32 s73, s73, s74\ns_add_u32 s73, s73, {WS_YP}')
    k('s_add_u32 s74, s73, 4096\ns_add_u32 s75, s73, 8192\ns_add_u32 s76, s73, 12288')
    k('s_waitcnt lgkmcnt(4)')
    sum4(G_)
    if RND: rnd4(G_, 8)
    for e in range(4): k(f'v_mul_f32 v{G_+4+e}, v{G_+e}, v{G_+e}')
    for e in range(4): k(f'v_fma_f32 v{G_+4+e}, v{G_+4+e}, s{sT2}, v13')
    for e in range(4): k(f'v_mul_f32 v{G_+4+e}, v{G_+4+e}, v{G_+e}')
    for e in range(4): k(f'v_exp_f32 v{G_+4+e}, v{G_+4+e}')
    k('s_waitcnt lgkmcnt(0)')
    sum4(U_)
    for e in range(4): k(f'v_add_f32 v{G_+4+e}, 1.0, v{G_+4+e}')
    for e in range(4): k(f'v_rcp_f32 v{G_+4+e}, v{G_+4+e}')
    if RND: rnd4(U_, 8)
    for e in range(4): k(f'v_mul_f32 v{G_+e}, v{G_+e}, v{G_+4+e}')
    if RND: rnd4(G_, 10)
    for e in range(4): k(f'v_mul_f32 v{G_+e}, v{G_+e}, v{U_+e}')
    k(f'v_cvt_pk_bf16_f32 v8, v{G_}, v{G_+1}\nv_cvt_pk_bf16_f32 v9, v{G_+2}, v{G_+3}')
    for d, s_, m, bm in ((BL, 8, 'quad_perm:[0,1,2,3]', 3), (BL + 1, 9, 'quad_perm:[0,1,2,3]', 3), (BL + 2, 8, 'row_ror:8', 3), (BL + 3, 9, 'row_ror:8', 3),
                         (BH, 8, 'row_ror:8', 12), (BH + 1, 9, 'row_ror:8', 12), (BH + 2, 8, 'quad_perm:[0,1,2,3]', 12), (BH + 3, 9, 'quad_perm:[0,1,2,3]', 12)):
        k(f'v_mov_b32_dpp v{d}, v{s_} {m} row_mask:0xf bank_mask:{bm:#x}')
    def ystore(u):
        r, z = YA + 4 * u, GW + 4 * u
        k(f'v_cvt_pk_bf16_f32 v{z}, v{r}, v{r+1}\nv_cvt_pk_bf16_f32 v{z+2}, v{r+2}, v{r+3}')
        k(f'buffer_store_dwordx4 {vr(z,4)}, v{5 if u < 4 else 7}, {sr(sWS,4)}, s72 offen {YST}')
        if u < 4: k(f's_add_u32 s72, s72, {8*18432}')
    for u in range(5):
        mfma(YA + 4 * u, DW + 8 * u, BL, True)
        if u < 4: mfma(YA + 4 * u, DW + 8 * u + 4, BH, False)
        if u >= 2: ystore(u - 2)
    ystore(3); ystore(4)
    stamp(8)
    k(f's_waitcnt vmcnt({FACK})')
    if FSL: k(f's_sleep {FSL}')
    if FBAR: k('s_barrier')
    gather('yp', [(wsld(BO + 4 * i, 6, 73 + i, 0, YPOL) if i < 4 else wsld(BO + 16, 17, 73, 0, YPOL), BO + 4 * i, (lambda i=i: mfma(AC, FS if i < 4 else FS5, BO + 4 * i, False))) for i in range(5)] +
           [(wsld(XG, 20, sT1), XG, lambda: (unp(24, XG), unp(26, XG + 2)))], rm[3], rs[3])
    stamp(9)
    for e in range(4): k(f'v_add_f32_dpp v{AC+e}, v{AC+e}, v{AC+e} row_ror:8 {DPPALL}')
    k(f's_mov_b64 exec, 0xff\nds_write_b128 v18, {vr(AC,4)}\ns_waitcnt lgkmcnt(0)\ns_barrier')
    k(f's_cmp_lg_u32 s{sW}, 0\ns_cbranch_scc1 L_exit')
    for i in range(4): k(f'ds_read_b128 {vr(YA+4*i,4)}, v19 offset:{128*i}')
    k('s_waitcnt lgkmcnt(0)')
    sum4(YA)
    if RND:
        rnd4(YA, 8)
        for e in range(4): k(f'v_mul_f32 v{YA+e}, v{GB+e}, v{YA+e}')
        rnd4(YA, 8)
        for e in range(4): k(f'v_add_f32 v{YA+e}, v{24+e}, v{YA+e}')
    else:
        for e in range(4): k(f'v_fma_f32 v{YA+e}, v{GB+e}, v{YA+e}, v{24+e}')
    k(f'v_cvt_pk_bf16_f32 v8, v{YA}, v{YA+1}\nv_cvt_pk_bf16_f32 v9, v{YA+2}, v{YA+3}')
    k(f'buffer_store_dwordx2 v[8:9], v21, {sr(sD_,4)}, 0 offen' + (' sc1' if OSC else ''))
    k(f's_cmp_lg_u32 s{sR}, 0\ns_cbranch_scc1 L_exit')
    k(f'v_mov_b32 v10, s{sEP}\nv_mov_b32 v11, 0\ns_mov_b64 exec, 1\nbuffer_store_dword v10, v11, {sr(sWS,4)}, 0 offen')
    k('s_branch L_exit')

    k.c('=' * 100); k.c('W role: o @ wo slice (4 heads x 64 columns, 8 batches x 2 splits), then row cn'); k.c('=' * 100)
    k.lab('L_wrole')
    WW, OG, MLG, BW, AB = 192, 160, 156, 140, 112
    GA, SEL, RAW, MG, MS, MC, MX, X2 = 160, 92, 76, 60, 64, 68, 72, 128
    sM9, sM10 = 28, 30
    if WHOLD: k(f's_cmp_eq_u32 s{sPRO}, 3\ns_cbranch_scc1 L_wst')
    wstage(WTH, 0, WHN if WHOLD else 16)
    k.lab('L_wst')
    if WHOLD and WHN < 16: wstage(WTH, WHN, 16)
    k(f'v_lshrrev_b32 v8, 2, v3\nv_and_b32 v9, 3, v3\nv_lshl_add_u32 v10, v2, 3, v8\nv_lshlrev_b32 v10, 7, v10\nv_lshl_add_u32 v10, v9, 3, v10\nv_add_u32 v10, s{sST}, v10')
    k('s_waitcnt vmcnt(0)')
    for t_ in range(4):
        for tile in range(4):
            r = WW + (t_ * 4 + tile) * 4
            o = t_ * 4096 + tile * 32
            k(f'ds_read_b64_tr_b16 {vr(r,2)}, v10 offset:{o}\nds_read_b64_tr_b16 {vr(r+2,2)}, v10 offset:{o+512}')
        k('s_waitcnt lgkmcnt(0)')
    locality('w')
    k(f's_cmp_lt_u32 s{sCN}, 8\ns_cselect_b32 s76, 1, 0')
    k('v_mov_b32 v108, 0\nv_mov_b32 v109, 0\nv_mov_b32 v110, 0\nv_mov_b32 v111, 0\ns_cbranch_scc0 L_wnor')
    selmasks(10, 11)
    for r in range(SEL, SEL + 12): k(f'v_mov_b32 v{r}, 0')
    for v in range(3):
        k(f'v_mov_b32_dpp v{SEL+4*v}, v10 quad_perm:[0,1,2,3] row_mask:0xf bank_mask:{1<<v:#x}')
        k(f'v_mov_b32_dpp v{SEL+4*v+2}, v11 quad_perm:[0,1,2,3] row_mask:0xf bank_mask:{1<<v:#x}')
    lbsetup()
    k(f's_mov_b32 s{sM9}, -1\ns_cmp_lt_u32 s{sW}, 2\ns_cselect_b32 s{sM9+1}, 0xff, 0\ns_cselect_b32 s{sT1}, 512, 0\ns_lshl_b32 s{sT0}, s{sLB}, 7')
    k(f'v_lshlrev_b32 v109, 4, v1\nv_cndmask_b32 v109, 0, v109, {sr(sM9,2)}\nv_add_u32 v109, s{sT0}, v109\nv_lshlrev_b32 v111, 3, v109')
    k(f'v_mul_u32_u24 v8, 2304, v2\nv_add_u32 v8, s{sT0}, v8\nv_lshl_add_u32 v108, v3, 4, v8')
    k(f'v_and_b32 v9, 7, v3\nv_lshl_add_u32 v110, v9, 4, v8\nv_add_u32 v110, s{sT1}, v110')
    k(f's_lshl_b32 s{sT0}, s{sCN}, 4\ns_add_u32 s{sT0}, s{sT0}, {WS_MOD + 36864}\ns_add_u32 s{sT1}, s{sT0}, 18432\ns_add_u32 s{sT3}, s{sT0}, 36864')
    k(f's_mul_i32 s{sT2}, s{sCN}, 1152\nv_lshrrev_b32 v8, 1, v109')
    k(f'buffer_load_dwordx2 {vr(RAW+12,2)}, v8, {sr(sD_,4)}, s{sT2} offen')
    poll('rmod', [wsld(RAW, 111, sT0), wsld(RAW + 4, 111, sT1), wsld(RAW + 8, 111, sT3)], [RAW, RAW + 4, RAW + 8], 10, 11, 32)
    for j, d in enumerate((MG, MS, MC)):
        unp(d, RAW + 4 * j); unp(d + 2, RAW + 4 * j + 2)
    unp(MX, RAW + 12); unp(MX + 2, RAW + 13)
    for e in range(4): k(f'v_add_f32 v{MC+e}, 1.0, v{MC+e}')
    rnd4(MC, 8)
    k(f's_mul_i32 s74, s{sCN}, 18432\ns_add_u32 s74, s74, {WS_AP}\ns_add_u32 s75, s74, 9216')
    k(f's_mul_i32 s{sT0}, s{sX}, 18432\ns_lshl_b32 s72, s{sCN}, 4\ns_add_u32 s72, s72, s{sT0}\ns_add_u32 s72, s72, {WS_H2}')
    k(f's_add_u32 s73, s72, {WS_X2 - WS_H2}')
    k(f's_lshl_b32 s{sT2}, s{sW}, 3\ns_add_u32 s{sT2}, s{sT2}, {L_STA}\nv_mov_b32 v22, s{sT2}\nv_mov_b32 v23, {L_STA}')
    for r in (25, 27, 29, 31): k(f'v_mov_b32 v{r}, s{sTAG}')
    for r in [28, 30] + list(range(X2, X2 + 4)): k(f'v_mov_b32 v{r}, 0')
    k(f's_mov_b32 s33, {f2u(1/128):#x}\ns_cmp_lt_u32 s{sW}, 2\ns_cselect_b32 s33, {f2u(1/160):#x}, s33')
    k.lab('L_wnor')
    redaddr(18432, 7, 17, 19)
    k(f'v_lshlrev_b32 v4, 4, v1\ns_lshl_b32 s{sT0}, s{sX}, 2\ns_add_u32 s{sT0}, s{sT0}, s{sW}\ns_lshl_b32 s{sT0}, s{sT0}, 13\ns_add_u32 s{sT0}, s{sT0}, {WS_OP}\ns_add_u32 s32, s{sT0}, 4096')
    k(f's_mul_i32 s{sT1}, s{sX}, 2304\ns_lshl_b32 s{sT2}, s{sCN}, 8\ns_add_u32 s{sT1}, s{sT1}, s{sT2}\ns_add_u32 s{sT1}, s{sT1}, {WS_AP}')
    balance('w'); pace('w')
    for r in list(range(AC, AC + 16)) + list(range(AB, AB + 16)): k(f'v_mov_b32 v{r}, 0')
    stream_done('wpub')
    stamp(5)
    def wact(t_, sp):
        def f():
            b = OG + (2 * t_ + sp) * 4
            strip(b)
            for tile in range(4): mfma((AB if sp else AC) + 4 * tile, WW + (t_ * 4 + tile) * 4, b, False)
        return f
    def mlact():
        k(f'v_max_f32_dpp v20, v{MLG}, v{MLG} row_ror:8 {DPPALL}\nv_sub_f32 v20, v{MLG}, v20\nv_exp_f32 v20, v20')
        k(f'v_mul_f32 v21, v20, v{MLG+2}\nv_add_f32_dpp v21, v21, v21 row_ror:8 {DPPALL}\nv_rcp_f32 v21, v21\nv_mul_f32 v20, v20, v21')
        k(f'v_mov_b32_dpp v21, v20 row_ror:8 {DPPALL}')
    gather('op', [(wsld(OG + 4 * i, 4, sT0 if i < 4 else 32, 1024 * (i & 3)), OG + 4 * i, lambda: None) for i in range(8)], rm[0], rs[0])
    if True:
        def wb(t_):
            A_, B_ = OG + 8 * t_, OG + 8 * t_ + 4
            k(f'v_mov_b32 v{A_+1}, v{A_+2}\nv_mov_b32 v{A_+2}, v{B_}\nv_mov_b32 v{A_+3}, v{B_+2}')
        wb(0)
        for t_ in range(4):
            for tile in range(4):
                mfma(AC + 4 * tile, WW + (t_ * 4 + tile) * 4, OG + 8 * t_, t_ == 0)
                if tile == 0 and t_ < 3: wb(t_ + 1)
        stamp(6)
        for r in range(16): k(f'v_add_f32_dpp v{AC+r}, v{AC+r}, v{AC+r} row_ror:8 {DPPALL}')
    reduce_publish(BW, 16, 7, sT1)
    stamp(7)
    k('s_cmp_eq_u32 s76, 0\ns_cbranch_scc1 L_exit')
    k.c('---- row cn: x2 = x + ga * attn, h2 = LayerNorm(x2) * (1 + cb) + sb')
    if RACK == 0: k('s_waitcnt vmcnt(0)')
    elif RACK > 0: k(f's_sleep {RACK}')
    gather('ap', [(wsld(GA + (u * 3 + v) * 4, 108, 74 + u, 256 * v, APOL) if v < 2 else wsld(GA + (u * 3 + v) * 4, 110, 74 + u, 0, APOL), GA + (u * 3 + v) * 4,
                   (lambda u=u, v=v: mfma(X2, SEL + 4 * v, GA + (u * 3 + v) * 4, False))) for u in range(2) for v in range(3)], rm[1], rs[1])
    stamp(8)
    if RND:
        rnd4(X2, 8)
        for e in range(4): k(f'v_mul_f32 v{X2+e}, v{MG+e}, v{X2+e}')
        rnd4(X2, 8)
        for e in range(4): k(f'v_add_f32 v{X2+e}, v{MX+e}, v{X2+e}')
        k(f'v_cvt_pk_bf16_f32 v24, v{X2}, v{X2+1}\nv_cvt_pk_bf16_f32 v26, v{X2+2}, v{X2+3}')
        unp(X2, 24); unp(X2 + 2, 26)
    else:
        for e in range(4): k(f'v_fma_f32 v{X2+e}, v{MG+e}, v{X2+e}, v{MX+e}')
    k(f'v_readfirstlane_b32 s{sT2}, v{X2}')
    for e in range(4): k(f'v_subrev_f32 v{12+e}, s{sT2}, v{X2+e}')
    k('v_add_f32 v8, v12, v13\nv_mul_f32 v9, v12, v12\nv_add_f32 v10, v14, v15\nv_fmac_f32 v9, v13, v13\nv_add_f32 v8, v8, v10\nv_fmac_f32 v9, v14, v14\nv_fmac_f32 v9, v15, v15')
    k(f'v_cndmask_b32 v8, 0, v8, {sr(sM9,2)}\nv_cndmask_b32 v9, 0, v9, {sr(sM9,2)}')
    for m in ('row_shr:1 row_mask:0xf', 'row_shr:2 row_mask:0xf', 'row_shr:4 row_mask:0xf', 'row_shr:8 row_mask:0xf', 'row_bcast:15 row_mask:0xa', 'row_bcast:31 row_mask:0xc'):
        bc = ' bound_ctrl:0' if 'shr' in m else ''
        k(f'v_add_f32_dpp v8, v8, v8 {m} bank_mask:0xf{bc}\nv_add_f32_dpp v9, v9, v9 {m} bank_mask:0xf{bc}')
    k(f'v_mul_f32 v10, s33, v8\nv_fma_f32 v9, -v10, v8, v9\nv_add_f32 v8, s{sT2}, v10')
    k('s_mov_b32 exec_lo, 0\ns_mov_b32 exec_hi, 0x8000\nds_write_b64 v22, v[8:9]\ns_mov_b64 exec, -1')
    if not RND: k(f'v_cvt_pk_bf16_f32 v24, v{X2}, v{X2+1}\nv_cvt_pk_bf16_f32 v26, v{X2+2}, v{X2+3}')
    k('s_waitcnt lgkmcnt(0)\ns_barrier')
    k(f'ds_read_b128 {vr(AC,4)}, v23\nds_read_b128 {vr(AC+4,4)}, v23 offset:16\ns_waitcnt lgkmcnt(0)')
    wa, wb_ = f2u(160 / 576), f2u(128 / 576)
    k(f'v_add_f32 v8, v{AC}, v{AC+2}\nv_add_f32 v9, v{AC+4}, v{AC+6}\nv_add_f32 v10, v{AC+1}, v{AC+3}\nv_add_f32 v11, v{AC+5}, v{AC+7}')
    k(f'v_mul_f32 v8, {wa:#x}, v8\nv_add_f32 v10, v10, v11\nv_fmac_f32 v8, {wb_:#x}, v9\nv_mul_f32 v10, 0x3ae38e39, v10')
    for i in range(4): k(f'v_sub_f32 v{AC+2*i}, v{AC+2*i}, v8')
    k(f'v_mul_f32 v9, v{AC}, v{AC}\nv_mul_f32 v11, v{AC+4}, v{AC+4}\nv_fmac_f32 v9, v{AC+2}, v{AC+2}\nv_fmac_f32 v11, v{AC+6}, v{AC+6}')
    k(f'v_fmac_f32 v10, {wa:#x}, v9\nv_fmac_f32 v10, {wb_:#x}, v11\nv_max_f32 v10, 0, v10')
    if RND:
        rnd2(8, 10, 9)
        k('v_add_f32 v10, 0x3727c5ac, v10')
        for e in range(4): k(f'v_sub_f32 v{X2+e}, v{X2+e}, v8')
        rnd1(10, 9)
        k('v_sqrt_f32 v10, v10')
        rnd4(X2, 12)
        rnd1(10, 9)
        k('v_rcp_f32 v10, v10')
        for e in range(4): k(f'v_mul_f32 v{X2+e}, v{X2+e}, v10')
        rnd4(X2, 12)
        for e in range(4): k(f'v_mul_f32 v{X2+e}, v{X2+e}, v{MC+e}')
        rnd4(X2, 12)
        for e in range(4): k(f'v_add_f32 v{X2+e}, v{X2+e}, v{MS+e}')
    else:
        k('v_add_f32 v10, 0x3727c5ac, v10\nv_rsq_f32 v10, v10')
        for e in range(4): k(f'v_sub_f32 v{X2+e}, v{X2+e}, v8')
        for e in range(4): k(f'v_mul_f32 v{X2+e}, v{X2+e}, v{MC+e}')
        for e in range(4): k(f'v_fma_f32 v{X2+e}, v{X2+e}, v10, v{MS+e}')
    k(f'v_cvt_pk_bf16_f32 v28, v{X2}, v{X2+1}\nv_cvt_pk_bf16_f32 v30, v{X2+2}, v{X2+3}')
    k(f's_mov_b64 exec, {sr(sM9,2)}')
    st2(f'buffer_store_dwordx4 v[28:31], v111, {sr(sWS,4)}, s72 offen', 34, LH)
    st2(f'buffer_store_dwordx4 v[24:27], v111, {sr(sWS,4)}, s73 offen', 34, LH)
    stamp(9)
    k('s_branch L_exit')

    k.lab('L_nrole')
    locality('n')
    if WARM:
        k(f's_cmp_lg_u32 s{sW}, 0\ns_cbranch_scc1 L_nwarm\ns_cmp_lg_u32 s{sIP}, {[u for u, (r, _) in enumerate(TAIL) if r == 3][0]}\ns_cbranch_scc1 L_nwarm')
        ldswait('nw', F_POS, WARM - P0, 32)
        k(f'v_lshlrev_b32 v8, 7, v1\ns_lshl_b32 s{sT0}, s{sX}, 15\ns_add_u32 s{sT0}, s{sT0}, {WS_OP}')
        for i in range(4):
            k(f'buffer_load_dword v{16+i}, v8, {sr(sWS,4)}, s{sT0} offen sc1\ns_add_u32 s{sT0}, s{sT0}, 8192')
        k('s_waitcnt vmcnt(0)')
        k.lab('L_nwarm')
    if CPF:
        k(f's_cmp_lg_u32 s{sW}, 3\ns_cbranch_scc1 L_ncpf\ns_cmp_lg_u32 s{sIP}, {[u for u, (r, _) in enumerate(TAIL) if r == 3][1]}\ns_cbranch_scc1 L_ncpf')
        ldswait('cpf', F_POS, CPF - P0, 32)
        k('s_getpc_b64 s[18:19]')
        k.lab('L_cpc')
        k('s_sub_u32 s18, s18, L_cpc-L_send\ns_subb_u32 s19, s19, 0\nv_lshlrev_b32 v8, 7, v1')
        for i in range(3):
            k(f'v_min_u32 v9, L_cpc-L_send, v8\nglobal_load_dword v{16+i}, v9, s[18:19]\nv_add_u32 v8, 8192, v8')
        k('s_waitcnt vmcnt(0)')
        k.lab('L_ncpf')
    balance('n'); pace('n')
    if NPF:
        nn = [u for u, (r, _) in enumerate(TAIL) if r == 3]
        nm = sum(1 << u for u in nn)
        srd(sC_, pDN, 4608 * 1152)
        k(f's_bfm_b32 s18, s{sIP}, 0\ns_and_b32 s18, s18, {nm:#x}\ns_bcnt1_i32_b32 s18, s18\ns_lshl_b32 s18, s18, 2\ns_add_u32 s18, s18, s{sW}')
        k(f'v_min_u32 v8, {NPF*8-1}, v1\nv_lshlrev_b32 v8, 7, v8\ns_mul_i32 s19, s{sX}, {18*36864}\ns_add_u32 s19, s19, {9216 - NPF*1024}')
        k(f's_mul_i32 s20, s18, 9216\ns_add_u32 s19, s19, s20')
        ldswait('npf', F_PUB, 1, 2)
        for i in range(4):
            if i == 3: k('s_cmp_ge_u32 s18, 12\ns_cbranch_scc1 L_exit')
            k(f'buffer_load_dword v{16+i}, v8, {sr(sC_,4)}, s19 offen\ns_add_u32 s19, s19, {20*9216}')

    k.lab('L_exit')
    if DIAG is not None:
        if DIAG == 10: stamp(10)
        if DG is not None: k(f's_cmp_lt_u32 s2, {DG[0]}\ns_cbranch_scc1 L_end\ns_cmp_gt_u32 s2, {DG[1]}\ns_cbranch_scc1 L_end')
        k(f's_cmp_lt_u32 s3, 4\ns_cbranch_scc1 L_end\ns_waitcnt lgkmcnt(0)\ns_add_u32 s62, s{STR[DIAG]}, 15000')
        k.lab('L_spin')
        k('s_sleep 2\ns_memrealtime s[64:65]\ns_waitcnt lgkmcnt(0)\ns_sub_u32 s64, s64, s62\ns_cmp_lt_i32 s64, 0\ns_cbranch_scc1 L_spin')
    if PROF:
        stamp(10)
        k(f's_waitcnt lgkmcnt(0)\ns_lshl_b32 s{sT0}, s2, 3\ns_add_u32 s{sT0}, s{sT0}, s3\ns_lshl_b32 s{sT0}, s{sT0}, 7\ns_add_u32 s{sT0}, s{sT0}, {WS_PROF}')
        k('s_mov_b64 exec, 1\nv_mov_b32 v8, 0')
        for i in range(0, 12, 2):
            for j in range(2):
                if i + j < 11: k(f'v_mov_b32 v{12+2*j}, s{STR[i+j]}\nv_mov_b32 v{13+2*j}, s{STR[i+j]+1}')
                else: k(f'v_mov_b32 v14, s{sTO}\nv_mov_b32 v15, 0\nv_lshl_add_u32 v15, s{78 if SW else 28}, 16, v15')
            k(f'buffer_store_dwordx4 v[12:15], v8, {sr(sWS,4)}, s{sT0} offen offset:{8*i}')
    k.lab('L_end')
    k('s_endpgm')
    k.lab('L_codeend')

    body = fix_hazards(k.L)
    hdr = open('cdna_kernels/' + NAME + '.s.ref').read().split('; Override launch')[0]
    out = [hdr.rstrip('\n'),
           f'; @launch grid=(256,1,1) block=(512,1,1) lds={LDS_BYTES}',
           DOC.rstrip(), '.amdgcn_target "amdgcn-amd-amdhsa--gfx950"', '.text', f'.globl {NAME}_kernel', '.p2align 8',
           f'.type {NAME}_kernel,@function', f'{NAME}_kernel:', 'L_start:']
    out += body
    out += ['.section .rodata,"a"', '.p2align 6', f'.amdhsa_kernel {NAME}_kernel',
            '  .amdhsa_next_free_vgpr 256', '  .amdhsa_next_free_sgpr 102', '  .amdhsa_accum_offset 256',
            '  .amdhsa_group_segment_fixed_size 0', '  .amdhsa_kernarg_size 112', '  .amdhsa_user_sgpr_count 2',
            '  .amdhsa_user_sgpr_kernarg_segment_ptr 1', '  .amdhsa_system_sgpr_workgroup_id_x 1', '.end_amdhsa_kernel']
    return '\n'.join(out) + '\n'

if __name__ == '__main__':
    kw = eval('dict(' + (sys.argv[2] if len(sys.argv) > 2 else '') + ')')
    open(sys.argv[1], 'w').write(gen(**kw))
```

```python
import sys, struct
from asmlib import K, fix_hazards, vr, sr

NAME = 'adaLN_cond__gqa_block_cached__glu_gated_geglu__decode'
WS_BAL, WS_XC, WS_MOD, WS_Q, WS_OP, WS_AP = 0x8000, 0x10000, 0x20000, 0x40000, 0x80000, 0x100000
WS_UNUSED, WS_UNUSED2, WS_H2, WS_YP, WS_PROF = 0x130000, 0x138000, 0x140000, 0x200000, 0x600000
WS_SIZE = 0x800000
WS_X2 = 0x1d0000
WS_ML = 0xd0000
WS_HH = 0x500000
REG = 29696
L_PT, L_RED, L_SP, L_Q, L_FLG, L_STA = 118784, 127744, 128768, 132928, 133440, 133696
L_SC = 133888
LDS_BYTES = L_SC + 16384
F_CNT, F_QRDY, F_LIM, F_BST, F_POS, F_PUB, F_PRE, F_LOC, F_KD, F_SCL, F_MX = 0, 4, 8, 12, 16, 20, 24, 28, 32, 48, 64
WS_PACE = 0x180000
LOG2E = 0x3FB8AA3B
SCALE = 0x3DB504F3
TIMEOUT = 1000000
OOB = 0x7ff00000
f2u = lambda f: struct.unpack('<I', struct.pack('<f', f))[0]

DOC = '; One persistent launch, one 512-thread workgroup per CU: waves 0-3 stream K then V of half a (batch, kv head) slab,\n; waves 4-7 do everything else. Workgroups hand data over through d_ws as {4 bytes data, 4 bytes tag} granules; the tag is\n'

def tables(kind):
    G, W, N = 0, 1, 3
    if kind == 1:
        roles = [G, W] * 9 + [G, N] * 5 + [G, G] * 2
        pro = [0, 2] * 6 + [0, 3] * 8 + [0, 2, 0, 0]
    elif kind == 2:
        roles = [N, W] * 5 + [G, W] * 4 + [G, G] * 7
        pro = [0, 3] * 8 + [0, 2] * 7 + [0, 0]
    elif kind == 3:
        roles = [G, W] * 9 + [G, N] * 5 + [G, G] * 2
        pro = [0, 3] * 8 + [0, 2] * 7 + [0, 0]
    cnt = {}; tail = []
    for r in roles:
        tail.append((r, cnt.get(r, 0))); cnt[r] = cnt.get(r, 0) + 1
    cnt = {}; pi = []
    for p in pro:
        pi.append(cnt.get(p, 0) if p else 0); cnt[p] = cnt.get(p, 0) + 1
    return tail, pro, pi
TAIL, PRO, PIX = tables(3)

def gen(PROF=False, TAB=3, PAIR=1, PFROW=192, PSL=1, QSL=2, SPLIT=2, FTH=5, WTH=4, WHOLD=True,
        QM=256, LA=8, LAG=None, LAW=None, CMIN=2, CMAX=4, CSH=2,
        RMODE='0000', RSL='0000', WST='pub', GST='pub', FBAR=False, DIAG=None, DG=None, MID=30, F0=True, QW=False, FQ=None, FB=(16, 48), CP=(100, 160, 205, 232), PD=1, PK=4.0, PW0=10, PSPAN=28, PN=8, PSTR=4352, POFF=(0, 0, 0), PDBG='', PCLK=12, PSLP=6, LQ=True, LO=True, LH=True, WARM=0, LP=(), TSC=1.0, H2L=2, WMRG=True, RND=False, UPE=0, WHN=16, GP='', GTE=10, PG2=0, NOD=True, EK=None, EN=5, EW=None, RACK=0, FACK=0, PUBS=1, OSC=False, CODE=30, EPB=True, PERM=(12, 13, 14, 16, 17, 18, 19, 20), AX=(), TBL=False, DIRS=(0x10, 0x6, 0x15, 0x4, 0x98, 0xcc, 0x151, 0x28), BX=(0x3, 0x18, 0xa, 8, 0x4, 0x4, 0x10, 0x9c), NS=7, BAL=16, XP=190, BSK=True, BH1=False, BPOS=4, BSP=False, BPOL='nt', PROP=None, PG=(1.6, 1.2), PR=0, TMAX=40, PA=0.0, P2X=True, NBE=None, NAT=True, NZ=0, FREE=True, FWD=False, STUB=True, SW=None, REV=False, BPM=True, NPF=5, YPOL='sc1', APOL='sc1', FSL=0, YST='sc1', CPF=None, HX=False, HACK=0, NPU=1, QUAD=True):
    DIRS = [d << 12 for d in DIRS]; BX = [d << 12 for d in BX]; P0 = 4 * NS + 8
    if CP and FB is None: FB = (0, 0)
    if FB is not None: FQ = 0
    global TAIL, PRO, PIX
    TAIL, PRO, PIX = tables(TAB)
    k = K()
    sWS, sTAG, sEP, sHKV, sBB, sX, sIP, sR, sW = 4, 8, 9, 10, 11, 12, 13, 14, 15
    pX, pK, pV, pWQ, pWO, pGA, pUP, pDN, pC, pWM, pOUT, pWSP = 16, 18, 20, 22, 24, 28, 30, 32, 34, 36, 38, 42
    sA, sB_, sC_, sD_ = 44, 48, 52, 56
    sHI, sL2E, sT0, sT1, sT2, sT3, sTO, sSP = 60, 61, 62, 63, 64, 65, 66, 67
    sM0 = 68
    sROLE, sPRO, sPI, sST = 98, 99, 100, 101
    sCN = 77
    DPPALL = 'row_mask:0xf bank_mask:0xf'
    STR = [80 + 2 * i for i in range(9)] + [26, 40]
    def stamp(i):
        if PROF or (DIAG is not None and i in (0, DIAG)): k(f's_memrealtime {sr(STR[i], 2)}')
    def srd(d, p, size):
        k(f's_mov_b32 s{d}, s{p}\ns_mov_b32 s{d+1}, s{p+1}\ns_mov_b32 s{d+2}, {size}\ns_mov_b32 s{d+3}, 0x20000')
    def unp(d, s_):
        k(f'v_lshlrev_b32 v{d}, 16, v{s_}\nv_and_b32 v{d+1}, s{sHI}, v{s_}')
    def rnd2(a, b, t):
        k(f'v_cvt_pk_bf16_f32 v{t}, v{a}, v{b}\nv_lshlrev_b32 v{a}, 16, v{t}\nv_and_b32 v{b}, s{sHI}, v{t}')
    def rnd4(a, t):
        k(f'v_cvt_pk_bf16_f32 v{t}, v{a}, v{a+1}\nv_cvt_pk_bf16_f32 v{t+1}, v{a+2}, v{a+3}')
        unp(a, t); unp(a + 2, t + 1)
    def rnd1(a, t):
        k(f'v_cvt_pk_bf16_f32 v{t}, v{a}, v{a}\nv_and_b32 v{a}, s{sHI}, v{t}')
    def xrow(op, x, t, steps=(16, 32)):
        for st in steps:
            k(f'v_mov_b32 v{t}, v{x}\nv_permlane{st}_swap_b32 v{x}, v{t}\n{op} v{x}, v{x}, v{t}')
    def sum4(b):
        for e in range(4): k(f'v_add_f32 v{b+e}, v{b+e}, v{b+4+e}\nv_add_f32 v{b+8+e}, v{b+8+e}, v{b+12+e}')
        for e in range(4): k(f'v_add_f32 v{b+e}, v{b+e}, v{b+8+e}')
    def tagcheck(bases, acc, tmp):
        for i, b in enumerate(bases):
            d = acc if i == 0 else tmp + ((i - 1) & 1)
            k(f'v_bitop3_b32 v{d}, v{b+1}, v{b+3}, s{sTAG} bitop3:0x7e')
            if i > 0 and (i & 1) == 0: k(f'v_or3_b32 v{acc}, v{acc}, v{tmp}, v{tmp+1}')
        if len(bases) > 1 and (len(bases) & 1) == 0: k(f'v_or_b32 v{acc}, v{acc}, v{tmp}')
        k(f'v_cmp_ne_u32 vcc, 0, v{acc}')
    def retry(lab, sleep=0):
        if sleep: k(f's_sleep {sleep}')
        k(f's_sub_u32 s{sTO}, s{sTO}, 1\ns_cmp_lg_u32 s{sTO}, 0\ns_cbranch_scc1 {lab}\ns_branch L_exit')
    def wsld(dst, voff, soff, imm=0, pol='sc1'):
        return f'buffer_load_dwordx4 {vr(dst,4)}, v{voff}, {sr(sWS,4)}, s{soff} offen offset:{imm} {pol}'
    def poll(name, loads, bases, acc, tmp, sleep=0, masked=False):
        k.lab(f'L_{name}')
        for l in loads: k(l)
        k('s_waitcnt vmcnt(0)')
        tagcheck(bases, acc, tmp)
        k(f's_cbranch_vccz L_{name}ok')
        if masked: k('s_mov_b64 exec, vcc')
        retry(f'L_{name}', sleep)
        k.lab(f'L_{name}ok')
        if masked: k('s_mov_b64 exec, -1')
    def gather(name, items, mode, sleep, issued=False):
        n = len(items)
        if mode == 3:
            if issued:
                k('s_waitcnt vmcnt(0)')
                tagcheck([b for _, b, _ in items], 12, 10)
                k(f's_cbranch_vccz L_{name}ok')
            poll(f'{name}w', [items[-1][0]], [items[-1][1]], 12, 10, sleep, True)
            for l, _, _ in items[:-1]: k(l)
            issued, mode, sleep = True, 0, 0
        if not issued:
            for l, _, _ in items: k(l)
        if mode == 0:
            if SW == name:
                stamp(1); k('s_waitcnt vmcnt(0)'); stamp(2); k(f's_mov_b32 s78, s{sTO}')
            k.lab(f'L_{name}')
            k('s_waitcnt vmcnt(0)')
            tagcheck([b for _, b, _ in items], 12, 10)
            k(f's_cbranch_vccz L_{name}ok\ns_mov_b64 exec, vcc')
            if sleep: k(f's_sleep {sleep}')
            for l, _, _ in items: k(l)
            retry(f'L_{name}')
            k.lab(f'L_{name}ok')
            if SW == name: stamp(3); k(f's_sub_u32 s78, s78, s{sTO}')
            k('s_mov_b64 exec, -1')
            for _, _, act in items: act()
            return
        k(f's_mov_b32 s22, 0\ns_mov_b32 s23, {OOB:#x}')
        k.lab(f'L_{name}')
        for i, (l, b, act) in enumerate(items):
            k(f's_bitcmp1_b32 s22, {i}\ns_cbranch_scc1 L_{name}n{i}')
            k(f's_waitcnt vmcnt({n-1-i})')
            k(f'v_bitop3_b32 v10, v{b+1}, v{b+3}, s{sTAG} bitop3:0x7e\nv_cmp_ne_u32 vcc, 0, v10\ns_cbranch_vccnz L_{name}n{i}')
            act()
            k(f's_bitset1_b32 s22, {i}')
            k.lab(f'L_{name}n{i}')
        k(f's_cmp_eq_u32 s22, {(1 << n) - 1}\ns_cbranch_scc1 L_{name}ok')
        if sleep: k(f's_sleep {sleep}')
        for i, (l, b, act) in enumerate(items):
            k(f's_bitcmp1_b32 s22, {i}\ns_cbranch_scc1 L_{name}d{i}')
            k(f'v_bitop3_b32 v10, v{b+1}, v{b+3}, s{sTAG} bitop3:0x7e\nv_cmp_ne_u32 vcc, 0, v10\ns_mov_b64 exec, vcc')
            k(l); k(f's_mov_b64 exec, -1\ns_branch L_{name}e{i}')
            k.lab(f'L_{name}d{i}')
            k(f'buffer_load_dword v0, off, {sr(sWS,4)}, s23')
            k.lab(f'L_{name}e{i}')
        retry(f'L_{name}')
        k.lab(f'L_{name}ok')
    def ldswait(name, flag, val, sleep):
        k(f'v_mov_b32 v12, {L_FLG}')
        k.lab(f'L_{name}')
        k(f'ds_read_b32 v13, v12 offset:{flag}\ns_waitcnt lgkmcnt(0)\nv_readfirstlane_b32 s22, v13\ns_cmp_ge_u32 s22, {val}\ns_cbranch_scc1 L_{name}ok')
        retry(f'L_{name}', sleep)
        k.lab(f'L_{name}ok')
    def mask64(d, lo16):
        m = lo16 | (lo16 << 16)
        k(f's_mov_b32 s{d}, {m:#x}\ns_mov_b32 s{d+1}, {m:#x}')
    def mfma(d, a, b, first):
        k(f'v_mfma_f32_16x16x32_bf16 {vr(d,4)}, {vr(a,4)}, {vr(b,4)}, {"0" if first else vr(d,4)}')
    def ror8pair(b):
        k(f'v_mov_b32_dpp v{b+2}, v{b} row_ror:8 {DPPALL}\nv_mov_b32_dpp v{b+3}, v{b+1} row_ror:8 {DPPALL}')
    def strip(b):
        k(f'v_mov_b32_dpp v{b+3}, v{b+2} row_ror:8 {DPPALL}\nv_mov_b32 v{b+1}, v{b+2}\nv_mov_b32_dpp v{b+2}, v{b} row_ror:8 {DPPALL}')
    def st2(st, flag, on):
        if not on:
            k(st + ' sc1'); return
        l = k.new('L_st')
        k(f's_cmp_eq_u32 s{flag}, 1\ns_cbranch_scc1 {l}a\n{st} sc1\ns_branch {l}b')
        k.lab(l + 'a'); k(st); k.lab(l + 'b')
    def xcld(dst, va):
        k(f'v_and_b32 v{va}, 31, v1\nv_lshlrev_b32 v{va}, 3, v{va}\ns_lshl_b32 s22, s{sX}, 8\ns_add_u32 s22, s22, {WS_XC}')
        k(f'buffer_load_dwordx2 {vr(dst,2)}, v{va}, {sr(sWS,4)}, s22 offen sc1')
    def xcchk(src, flag):
        k(f's_getreg_b32 s22, hwreg(HW_REG_XCC_ID)\nv_xor_b32 v{src}, s22, v{src}\nv_xor_b32 v{src+1}, s{sTAG}, v{src+1}\nv_or_b32 v{src}, v{src}, v{src+1}')
        k(f'v_cmp_ne_u32 vcc, 0, v{src}\ns_cmp_eq_u64 vcc, 0\ns_cselect_b32 s{flag}, 1, 0')
    def tag_from_epoch():
        k(f's_add_u32 s{sEP}, s{sEP}, 0x9e3779b9\ns_and_b32 s{sTAG}, s{sEP}, 0xbfffbfff')

    k.c('=' * 100); k.c('entry'); k.c('=' * 100)
    k('s_cmp_ge_u32 s2, 256\ns_cbranch_scc1 L_end')
    k('s_load_dwordx16 s[16:31], s[0:1], 0')
    k('s_load_dwordx8 s[32:39], s[0:1], 64')
    k('s_load_dwordx4 s[40:43], s[0:1], 96')
    stamp(0)
    if DIAG: stamp(DIAG)
    k('v_lshrrev_b32 v2, 6, v0\nv_and_b32 v1, 63, v0')
    k('v_readfirstlane_b32 s3, v2')
    k(f's_mov_b32 s{sHI}, 0xffff0000\ns_mov_b32 s{sL2E}, {LOG2E:#x}\ns_mov_b32 s{sTO}, {TIMEOUT}')
    k(f's_and_b32 s{sX}, s2, 7\ns_lshr_b32 s{sIP}, s2, 3\ns_and_b32 s{sSP}, s{sIP}, 1\ns_lshr_b32 s{sBB}, s{sIP}, 2\ns_bfe_u32 s{sHKV}, s{sIP}, 0x10001')
    k(f's_lshl_b32 s{sT0}, s{sX}, 1\ns_add_u32 s{sHKV}, s{sHKV}, s{sT0}\ns_lshl_b32 s{sT0}, s{sBB}, 4\ns_add_u32 s{sT0}, s{sT0}, s{sHKV}\ns_lshl_b32 s79, s{sT0}, 21\ns_and_b32 s{sW}, s3, 3')
    k('v_lshrrev_b32 v2, 4, v1\nv_and_b32 v3, 15, v1')
    if QUAD:
        k(f's_bfe_u32 s62, s{sIP}, 0x10003\ns_and_b32 s63, s{sIP}, 7\ns_lshl_b32 s63, s63, 1\ns_and_b32 s{sIP}, s{sIP}, 16\ns_or_b32 s{sIP}, s{sIP}, s62\ns_or_b32 s{sIP}, s{sIP}, s63')
    pk = sum(p << (2 * u) for u, p in enumerate(PRO))
    k(f's_mov_b32 s62, {pk & 0xffffffff:#x}\ns_mov_b32 s63, {pk >> 32:#x}\ns_andn2_b32 s65, s{sIP}, 1\ns_lshl_b32 s65, s65, 1\ns_lshr_b64 s[62:63], s[62:63], s65')
    k(f's_lshr_b32 s68, s62, 2\ns_or_b32 s68, s68, s62\ns_and_b32 s68, s68, 3')
    k(f's_and_b32 s64, s{sIP}, 1\ns_lshl_b32 s64, s64, 1\ns_lshr_b32 s{sPRO}, s62, s64\ns_and_b32 s{sPRO}, s{sPRO}, 3')
    xk = sum(max(PIX[2 * m], PIX[2 * m + 1]) << (4 * m) for m in range(16))
    k(f's_mov_b32 s62, {xk & 0xffffffff:#x}\ns_mov_b32 s63, {xk >> 32:#x}\ns_lshr_b64 s[62:63], s[62:63], s65\ns_and_b32 s{sPI}, s62, 7')
    k(f's_lshl_b32 s62, s{sX}, 3\ns_add_u32 s62, s62, s{sPI}\ns_lshl_b32 s{sPI}, s{sPI}, 3\ns_add_u32 s{sPI}, s{sPI}, s{sX}\ns_cmp_eq_u32 s68, 3\ns_cselect_b32 s{sPI}, s62, s{sPI}')
    k(f's_cmp_lt_u32 s{sPI}, 54\ns_cselect_b32 s64, 3, 1\ns_and_b32 s65, s68, s64\ns_cmp_eq_u32 s65, 0\ns_cselect_b32 s{sPRO}, 0, s{sPRO}\ns_cselect_b32 s68, 0, s68')
    k(f's_mul_i32 s{sST}, s{sW}, {REG}')
    if STUB:
        k('s_cmp_lt_u32 s3, 4\ns_cbranch_scc1 L_stream\ns_setprio 2')
        k('v_and_b32 v7, 7, v3\nv_lshrrev_b32 v9, 3, v3\nv_mul_u32_u24 v11, 1152, v7')
        if BPM: k('v_lshrrev_b32 v4, 3, v1\nv_mul_u32_u24 v11, 1152, v4\nv_lshl_add_u32 v4, v7, 3, v11')
        else: k('v_lshl_add_u32 v4, v2, 4, v11\nv_lshl_add_u32 v4, v9, 3, v4')
        k(f's_lshl_b32 s{sT0}, s{sW}, 6\ns_movk_i32 s{sA+2}, 9216\ns_mov_b32 s{sA+3}, 0x20000\ns_cmp_eq_u32 s{sPRO}, 3\ns_waitcnt lgkmcnt(0)')
        k(f's_cselect_b32 s{sA}, s{pX}, s{pC}\ns_cselect_b32 s{sA+1}, s{pX+1}, s{pC+1}\ns_cmp_eq_u32 s{sPRO}, 0\ns_cbranch_scc1 L_helper')
        for i in range(5):
            k(f'buffer_load_dwordx2 {vr(16+4*i,2)}, v4, {sr(sA,4)}, s{sT0} offen offset:{256*i}')
        k(f'buffer_load_ushort v36, v11, {sr(sA,4)}, 0 offen')
        k('s_branch L_helper')
        k.lab('L_stream')
    else: k('s_cmp_ge_u32 s3, 4\ns_cbranch_scc1 L_helper')

    k.c('=' * 100); k.c('streamer waves'); k.c('=' * 100)
    vKO, vVO, vBAL, vM, S, Q, S2, T, vSC = 4, 5, 6, 7, 8, 12, 20, 28, 30
    P, O, vHALF, vFL, vONE, U = 32, 48, 52, 53, 54, 56
    sOFF, sI, sBASE, sSCL, sKND, sLD, sBO = 72, 76, 79, 69, 70, 24, 77
    SLOT = lambda j: 64 + 32 * j if j < 6 else 32
    R_, E = SLOT(2), SLOT(3)
    D0 = 's80' if TBL else hex(DIRS[0])
    k('s_getpc_b64 s[62:63]\nv_lshlrev_b32 v8, 7, v0\nv_min_u32 v8, L_codeend-L_start-512, v8')
    if CODE < 32:
        k(f's_cmp_lt_u32 s{sIP}, {CODE}\ns_cbranch_scc1 L_nocode')
        k('global_load_dword v9, v8, s[62:63]')
        k.lab('L_nocode')
    k(f'v_lshrrev_b32 v{vKO}, 1, v3\nv_lshlrev_b32 v{vKO}, 8, v{vKO}\nv_lshl_add_u32 v{vKO}, v2, 5, v{vKO}\nv_and_b32 v{vVO}, 1, v3\nv_lshl_add_u32 v{vKO}, v{vVO}, 4, v{vKO}')
    k(f's_mov_b32 s{sI}, s{sW}')
    if not TBL:
        for j in range(8):
            if BX[j]: k(f's_bitcmp1_b32 s2, {j}\ns_cselect_b32 s{sT2}, {BX[j]:#x}, 0\ns_xor_b32 s{sBASE}, s{sBASE}, s{sT2}')
    def nextoff(a):
        for j in range(7):
            k(f's_bitcmp1_b32 s{sI}, {j}\ns_cselect_b32 s{sT2}, {f"s{81+j}" if TBL else hex(DIRS[j+1])}, 0\ns_xor_b32 s{sOFF+a}, s{sT2}, s{sBASE if j == 0 else sOFF+a}')
        k(f's_lshr_b32 s{sKND+a}, s{sI}, 7\ns_and_b32 s{sLD+a}, s{sI}, 127\ns_lshl_b32 s{sLD+a}, s{sLD+a}, 7\ns_add_u32 s{sI}, s{sI}, 4')
    QS, OE, vKS, vVA, vVB, sMD, sMC = SLOT(5), SLOT(5) + 8, SLOT(5) + 16, SLOT(5) + 17, SLOT(5) + 18, 56, 58
    def ld(j, h, a, isv, bal):
        if NAT:
            def one(i, va, o): k(f'buffer_load_dwordx4 {vr(SLOT(j)+16*h+4*i,4)}, v{va}, {sr(sB_ if isv else sA,4)}, s{sOFF+a} offen offset:{o} nt')
            for z in range(2):
                if bal and z == NZ:
                    l = k.new('L_sp')
                    k(f's_cmp_eq_u32 s{sMD+a}, 0\ns_cbranch_scc1 {l}a')
                    if isv: one(2 * z, vVA, 2048 * z); one(2 * z + 1, vVB, 2048 * z)
                    else: one(2 * z, vKS, 2048 * z); one(2 * z + 1, vKS, 2048 * z + 64)
                    k(f's_branch {l}b')
                    k.lab(l + 'a')
                for i in range(2): one(2 * z + i, vVO if isv else vKO, 2048 * z + (256 if isv else 128) * i)
                if bal and z == NZ: k.lab(l + 'b')
            if h == 0: k(f's_xor_b32 s{sOFF+a}, s{sOFF+a}, {D0}')
            return
        def ballast():
            l = k.new('L_nb')
            if PROP:
                k(f's_add_u32 s{sT2}, s{sBO}, {h}\ns_lshr_b32 s{sT2}, s{sT2}, 1\ns_cbranch_scc0 {l}\ns_bfm_b64 exec, s{sT2}, 0')
                k(f'buffer_load_dword v0, v{vBAL}, {sr(sB_ if isv else sA,4)}, s{sOFF+a} offen {BPOL}\ns_mov_b64 exec, -1')
                k.lab(l)
                return
            k(f's_cmp_lg_u32 s{sBO}, 0\ns_cbranch_scc1 {l}\nbuffer_load_dword v0, v{vBAL}, {sr(sB_ if isv else sA,4)}, s{sOFF+a} offen {BPOL}')
            k.lab(l)
        for i in range(4):
            if bal and BSK and i == BPOS: ballast()
            k(f'buffer_load_dwordx4 {vr(SLOT(j)+16*h+4*i,4)}, v{vVO if isv else vKO}, {sr(sB_ if isv else sA,4)}, s{sOFF+a} offen offset:{2048*(i>>1)+(256 if isv else 128)*(i&1)} nt')
        if bal and BSK:
            if BPOS == 4 and not (BH1 and h == 0): ballast()
        elif bal:
            k(f's_or_b32 s{sT2}, s{sOFF+a}, s{sBO}\nbuffer_load_dword v0, v{vBAL}, {sr(sB_ if isv else sA,4)}, s{sT2} offen nt')
        if h == 0: k(f's_xor_b32 s{sOFF+a}, s{sOFF+a}, {D0}')
    def fill(j):
        ld(j, 0, 0, False, False); ld(j, 1, 0, False, False)
    if not TBL: nextoff(0)
    k(f's_movk_i32 s74, 6912\ns_cmp_eq_u32 s68, 3\ns_cselect_b32 s74, 8192, s74')
    k('v_lshrrev_b32 v10, 3, v1\nv_and_b32 v11, 2, v10\nv_mul_lo_u32 v10, v10, s74\nv_xor_b32 v11, v11, v1\nv_and_b32 v11, 7, v11\nv_lshl_add_u32 v10, v11, 4, v10\nv_xor_b32 v12, 64, v10')
    k(f'v_add_u32 v11, {PFROW}, v0\nv_mul_lo_u32 v11, v11, s74')
    k(f's_mul_i32 s75, s74, s{sW}\ns_lshl_b32 s75, s75, 5\ns_lshl_b32 s69, s{sPI}, 7\ns_add_u32 s75, s75, s69')
    k(f's_mul_i32 s{sC_+2}, s74, 576\ns_mov_b32 s{sC_+3}, 0x20000\ns_mul_i32 s78, s74, 104\ns_lshl_b32 s74, s74, 3')
    k('s_waitcnt lgkmcnt(0)')
    k(f's_cmp_eq_u32 s68, 3\ns_cselect_b32 s{sC_}, s{pWQ}, s{pWM}\ns_cselect_b32 s{sC_+1}, s{pWQ+1}, s{pWM+1}')
    srd(sA, pK, 0x10000000); srd(sB_, pV, 0x10000000)
    if TBL:
        k(f's_lshl_b32 s88, s2, 2\ns_add_u32 s88, s88, 64\ns_load_dwordx8 s[80:87], s[26:27], 0\ns_load_dword s{sBASE}, s[26:27], s88\ns_waitcnt lgkmcnt(0)')
        nextoff(0)
    k(f's_cmp_eq_u32 s{sPRO}, 0\ns_cbranch_scc1 L_notile')
    for i in range(5):
        for j in range(4):
            k(f's_add_u32 m0, s{sST}, {4096*i+1024*j}')
            k(f'buffer_load_dwordx4 v{10 + 2 * (j & 1)}, {sr(sC_,4)}, s75 offen nt lds')
            if (i, j) != (4, 3): k(f's_add_u32 s75, s75, s{74 if j < 3 else 78}')
    if FREE:
        k(f's_cmp_eq_u32 s{sPRO}, 3\ns_cbranch_scc1 L_hold\ns_cmp_lt_u32 s{sPI}, 18\ns_cbranch_scc1 L_hold\ns_mov_b32 s{sPRO}, 1\ns_branch L_nohold')
        k.lab('L_hold')
    k('s_waitcnt vmcnt(0)\ns_barrier\ns_barrier\ns_barrier')
    k.lab('L_nohold')
    fill(0); nextoff(0); fill(1)
    k('s_branch L_second')
    k.lab('L_notile')
    k('s_cmp_eq_u32 s68, 0\ns_cbranch_scc1 L_nopf')
    if FREE: k(f's_cmp_eq_u32 s68, 3\ns_cbranch_scc1 L_dopf\ns_cmp_ge_u32 s{sPI}, 18\ns_cbranch_scc1 L_nopf\nL_dopf:')
    k(f'buffer_load_dword v9, v11, {sr(sC_,4)}, s69 offen')
    if PFROW < 320: k(f's_mul_i32 s75, s74, 32\ns_add_u32 s69, s69, s75\nbuffer_load_dword v10, v11, {sr(sC_,4)}, s69 offen')
    k.lab('L_nopf')
    fill(0); nextoff(0); fill(1)
    k('s_barrier')
    k.lab('L_second')
    k(f's_load_dword s{sEP}, {sr(pWSP,2)}, 0')
    srd(sWS, pWSP, WS_SIZE)
    k(f'v_lshlrev_b32 v{vSC}, 3, v{vVO}\nv_lshl_add_u32 v{vSC}, v2, 4, v{vSC}\nv_add_u32 v{vSC}, {L_SC}, v{vSC}')
    k(f'v_lshlrev_b32 v31, 8, v{vVO}\nv_lshl_add_u32 v31, v2, 5, v31\nv_and_b32 v29, 2, v3\nv_lshl_add_u32 v31, v29, 3, v31\nv_add_u32 v31, {L_Q}, v31')
    k(f'v_lshlrev_b32 v{vVO}, 4, v3\nv_lshl_add_u32 v{vVO}, v2, 9, v{vVO}\nv_min_u32 v{vBAL}, {BAL-1}, v1\nv_lshlrev_b32 v{vBAL}, {7 if BAL > 16 else 8}, v{vBAL}')
    if PROP: k(f'v_lshlrev_b32 v{vBAL}, 8, v3\nv_and_b32 v29, 1, v2\nv_lshl_add_u32 v{vBAL}, v29, 7, v{vBAL}')
    if BSP: k(f'v_mul_u32_u24 v{vBAL}, {BAL}, v1\nv_lshrrev_b32 v{vBAL}, 6, v{vBAL}\nv_lshlrev_b32 v{vBAL}, {BSP}, v{vBAL}')
    k(f'v_mov_b32 v{vM}, 0xff800000\nv_mov_b32 v28, {L_FLG}\nv_mov_b32 v29, 1\ns_mov_b32 s{sSCL}, {SCALE:#x}')
    mask64(26 if not (PROF or TBL) else 90, 0x0003)
    sM2 = 26 if not (PROF or TBL) else 90
    for j in range(2, NS):
        nextoff(0); fill(j)
    stamp(1)
    if FREE:
        k(f's_cmp_lg_u32 s{sPRO}, 1\ns_cbranch_scc1 L_nolb\ns_waitcnt vmcnt({8*NS})\ns_barrier\ns_barrier\ns_barrier')
        k.lab('L_nolb')
    k(f's_mov_b64 exec, 1\nds_add_u32 v28, v29 offset:{F_PRE}\ns_mov_b64 exec, -1')
    k(f's_waitcnt vmcnt({8*NS}) lgkmcnt(0)')
    tag_from_epoch()
    k(f's_cmp_eq_u32 s{sPRO}, 3\ns_cselect_b32 s30, {FB[1]+P0+4}, 0\ns_cmp_eq_u32 s{sPRO}, 2\ns_cselect_b32 s30, {FB[0]+P0+4}, s30\ns_mov_b32 s{sBO}, 0x20000000')
    k.lab('L_qwait')
    k(f'ds_read_b32 v9, v28 offset:{F_QRDY}')
    for i in range(2): k(f'ds_read_b128 {vr(Q+4*i,4)}, v31 offset:{128*i}')
    k(f's_waitcnt lgkmcnt(0)\nv_readfirstlane_b32 s{sT0}, v9\ns_cmp_eq_u32 s{sT0}, 1\ns_cbranch_scc1 L_qok')
    retry('L_qwait', 2)
    k.lab('L_qok')
    stamp(2)
    def claim():
        k(f's_mov_b64 exec, 1\nds_add_rtn_u32 v{U}, v{vFL}, v{vONE} offset:{F_POS}\nds_read_b32 v{U+1}, v{vFL} offset:{F_BST}\ns_mov_b64 exec, -1')
    def claimed(a):
        k(f's_waitcnt lgkmcnt(0)\nv_readfirstlane_b32 s{sI}, v{U}\nv_readfirstlane_b32 s29, v{U+1}\ns_add_u32 s{sI}, s{sI}, {P0}\ns_max_u32 s28, s30, s29')
        nextoff(a)
        if PROP: k(f's_sub_u32 s28, s29, 1\ns_cselect_b32 s28, {PROP}, s28\ns_cmp_lt_u32 s{sI}, s30\ns_cselect_b32 s{sBO}, 0, s28')
        else: k(f's_cmp_lt_u32 s{sI}, s28\ns_cselect_b32 s{sBO}, 0x20000000, 0')
        if NAT: k(f's_cselect_b32 s{sMD+a}, 0, 1')
        if NBE: k(f's_cmp_ge_u32 s{sI}, {NBE + 4}\ns_cselect_b32 s{sBO}, {0 if PROP else 1}, s{sBO}')
    def qk(b, tg=None):
        if NAT and tg:
            z, y = NZ, 1 - NZ
            mfma(S2 + 4 * y, b + 8 * y, Q, True)
            k(f's_cmp_eq_u32 s{sMC}, 0\ns_cbranch_scc1 L_qa{tg}')
            mfma(S2 + 4 * z, b + 8 * z, QS, True); mfma(S2 + 4 * z, b + 8 * z + 4, QS + 4, False)
            k(f's_branch L_qb{tg}')
            k.lab(f'L_qa{tg}')
            mfma(S2 + 4 * z, b + 8 * z, Q, True); mfma(S2 + 4 * z, b + 8 * z + 4, Q + 4, False)
            k.lab(f'L_qb{tg}')
            mfma(S2 + 4 * y, b + 8 * y + 4, Q + 4, False)
            return
        mfma(S2, b, Q, True); mfma(S2 + 4, b + 8, Q, True); mfma(S2, b + 4, Q + 4, False); mfma(S2 + 4, b + 12, Q + 4, False)
    def scores(h):
        for i in range(4): k(f'v_mov_b32_dpp v{S+i}, v{S2+2*i} quad_perm:[0,1,0,1] {DPPALL}')
        for i in range(4): k(f'v_add_f32_dpp v{S+i}, v{S2+2*i+1}, v{S+i} quad_perm:[2,3,2,3] {DPPALL}')
        rnd4(S, T)
        for i in range(4): k(f'v_mul_f32 v{S+i}, s{sSCL}, v{S+i}')
        rnd4(S, T)
        k(f's_mov_b64 exec, {sr(sM2,2)}\nds_write_b64 v31, {vr(T,2)} offset:{64*h}\ns_mov_b64 exec, -1')
        k(f'v_max3_f32 v{vM}, v{S}, v{S+1}, v{vM}\nv_max3_f32 v{vM}, v{S+2}, v{S+3}, v{vM}')
    younger = 8 * NS
    k(f's_lshl_b32 s{sT0}, s{sW}, 7\nv_add_u32 v31, s{sT0}, v{vSC}')
    for j in range(NS):
        for h in range(2):
            younger -= 4
            k(f's_waitcnt vmcnt({younger})')
            qk(SLOT(j) + 16 * h)
            if j < 2:
                if h == 0: nextoff(j)
                ld(j, h, j, False, not BSK); younger += (4 if BSK else 5)
            scores(h)
        if j < NS - 1: k('v_add_u32 v31, 512, v31')
    stamp(3)
    k(f'v_mov_b32 v{vHALF}, 0xffff\nv_and_b32 v{U}, 2, v3\nv_lshlrev_b32 v{U}, 3, v{U}\nv_lshlrev_b32 v{vHALF}, v{U}, v{vHALF}\nv_mov_b32 v{vFL}, {L_FLG}\nv_mov_b32 v{vONE}, 1')
    for r in list(range(P, O + 4)) + list(range(SLOT(4), SLOT(4) + 16)): k(f'v_mov_b32 v{r}, 0')
    if NAT:
        k(f'v_and_b32 v{U}, 1, v2\nv_lshlrev_b32 v{U}, 5, v{U}\nv_lshrrev_b32 v{U+1}, 1, v2\nv_lshl_add_u32 v{U}, v{U+1}, 7, v{U}')
        k(f'v_lshrrev_b32 v{vKS}, 1, v3\nv_lshl_add_u32 v{vKS}, v{vKS}, 8, v{U}\nv_and_b32 v{U+1}, 1, v3\nv_lshl_add_u32 v{vKS}, v{U+1}, 4, v{vKS}')
        k(f'v_lshl_add_u32 v{U}, v{U+1}, 8, v{U}\nv_and_b32 v{U+1}, 2, v3\nv_lshl_add_u32 v{U}, v{U+1}, 3, v{U}\nv_add_u32 v{U}, {L_Q}, v{U}')
        k(f'ds_read_b128 {vr(QS,4)}, v{U}\nds_read_b128 {vr(QS+4,4)}, v{U} offset:64')
        k(f'v_and_b32 v{U+1}, 4, v3\nv_lshl_add_u32 v{vVA}, v{U+1}, 6, v{vVO}\nv_xor_b32 v{vVB}, 256, v{vVA}\ns_mov_b32 s{sMD}, 0\ns_mov_b32 s{sMD+1}, 0')
        for r in range(OE, OE + 8): k(f'v_mov_b32 v{r}, 0')
        k('s_waitcnt lgkmcnt(0)')
    k(f's_lshl_b32 s{sT1}, s{sW}, 10\ns_add_u32 s{sT1}, s{sT1}, {L_SP}')
    k(f'v_lshlrev_b32 v{E}, 5, v3\nv_lshl_add_u32 v{E}, v2, 3, v{E}\nv_add_u32 v{E}, s{sT1}, v{E}')
    k(f'v_lshlrev_b32 v{E+3}, 4, v1\nv_add_u32 v{E+3}, {L_SP}, v{E+3}')
    k(f'v_lshrrev_b32 v{E+2}, 3, v1\nv_lshlrev_b32 v{E+2}, 11, v{E+2}\nv_and_b32 v{U}, 1, v1\nv_lshl_add_u32 v{E+2}, v{U}, 10, v{E+2}\nv_bfe_u32 v{U}, v1, 1, 2\nv_lshl_add_u32 v{E+2}, v{U}, 8, v{E+2}')
    k(f'v_lshrrev_b32 v{E+4}, 5, v1\nv_lshlrev_b32 v{E+4}, 3, v{E+4}\nv_add_u32 v{E+4}, {L_FLG + F_SCL}, v{E+4}')
    k(f'v_and_b32 v{E+5}, 1, v3\nv_lshlrev_b32 v{E+5}, 4, v{E+5}\nv_add_u32 v{E+5}, {L_FLG + F_MX}, v{E+5}\nv_lshl_add_u32 v{E+1}, s{sW}, 2, v{E+5}')
    for r in (13, 15): k(f'v_mov_b32 v{E+r}, s{sTAG}')
    k(f's_lshl_b32 s74, s{sHKV}, 7\ns_add_u32 s74, s74, s{sSP}\ns_lshl_b32 s74, s74, 3\ns_add_u32 s74, s74, s{sBB}\ns_lshl_b32 s74, s74, 4\ns_add_u32 s74, s74, {WS_OP}')
    if PROF: k('s_mov_b32 s75, 0\ns_mov_b32 s78, 0')
    def profsteps(tg):
        if not PROF: return
        k(f's_lshr_b32 s{sT0}, s{sI}, 2')
        for n_, stp in enumerate((16, 28, 40, 52)):
            k(f's_cmp_lt_u32 s{sT0}, {stp}\ns_cbranch_scc1 L_ns{tg}{n_}\ns_cmp_gt_u32 s75, {n_}\ns_cbranch_scc1 L_ns{tg}{n_}\ns_mov_b32 s75, {n_+1}')
            stamp(6 + n_)
            k.lab(f'L_ns{tg}{n_}')
    def waits(tg, a, h):
        if h == 0: k(f's_cmp_lt_u32 s{sKND+1-a}, 2\ns_cbranch_scc1 L_w{tg}\ns_waitcnt vmcnt({4 if BSK else 6})')
        else: k(f's_cmp_lt_u32 s{sKND+a}, 2\ns_cbranch_scc1 L_w{tg}\ns_waitcnt vmcnt({8 if BSK else 11})\ns_cmp_lt_u32 s{sKND+1-a}, 2\ns_cbranch_scc1 L_w{tg}\ns_waitcnt vmcnt({0 if BSK else 1})')
        k.lab(f'L_w{tg}')
        k(f's_waitcnt vmcnt({12 if BSK else 16})')
    k.c('---- K items: scores into LDS, running maximum per lane')
    k.lab('L_ktop')
    profsteps('k')
    for a in range(2):
        k(f's_mov_b32 s31, {a}\ns_cmp_lg_u32 s{sKND+a}, 0\ns_cbranch_scc1 L_turn')
        k(f'v_add_u32 v31, s{sLD+a}, v{vSC}')
        if NAT: k(f's_mov_b32 s{sMC}, s{sMD+a}')
        for h in range(2):
            waits(f'k{a}{h}', a, h)
            if h == 0: claim()
            qk(SLOT(a) + 16 * h, f'{a}{h}')
            if h == 0: claimed(a)
            k(f's_cmp_eq_u32 s{sKND+a}, 0\ns_cbranch_scc1 L_ik{a}{h}\ns_cmp_eq_u32 s{sKND+a}, 1\ns_cbranch_scc0 L_id{a}{h}')
            ld(a, h, a, True, True)
            k(f's_branch L_id{a}{h}')
            k.lab(f'L_ik{a}{h}')
            ld(a, h, a, False, True)
            k.lab(f'L_id{a}{h}')
            scores(h)
    k('s_branch L_ktop')
    k.c("---- all K items of this wave are done: maximum over the workgroup's keys")
    k.lab('L_turn')
    xrow('v_max_f32', vM, U)
    k(f'ds_write_b32 v{E+1}, v{vM}\ns_mov_b64 exec, 1\nds_add_u32 v{vFL}, v{vONE} offset:{F_KD}\ns_mov_b64 exec, -1')
    k.lab('L_kdw')
    k(f'ds_read_b32 v{U}, v{vFL} offset:{F_KD}\nds_read_b128 {vr(S,4)}, v{E+5}\ns_waitcnt lgkmcnt(0)\nv_readfirstlane_b32 s{sT0}, v{U}\ns_cmp_eq_u32 s{sT0}, 4\ns_cbranch_scc1 L_kdok')
    retry('L_kdw', 1)
    k.lab('L_kdok')
    k(f'v_max3_f32 v{vM}, v{S}, v{S+1}, v{S+2}\nv_max_f32 v{vM}, v{vM}, v{S+3}\nv_mul_f32 v{vM}, s{sL2E}, v{vM}')
    k('s_cmp_eq_u32 s31, 1\ns_cbranch_scc1 L_v1')
    k.c('---- V items')
    PB = SLOT(4) if P2X else P
    def probs(src, P=P):
        unp(S, src); unp(S + 2, src + 1)
        for i in range(4): k(f'v_fma_f32 v{S+i}, v{S+i}, s{sL2E}, -v{vM}')
        for i in range(4): k(f'v_exp_f32 v{S+i}, v{S+i}')
        for i in range(4): k(f'v_cvt_pk_bf16_f32 v{S+i}, v{S+i}, v{S+i}')
        for i in range(4):
            for r in range(4):
                k(f'v_and_b32_dpp v{P+4*i+r}, v{S+i}, v{vHALF} quad_perm:[0,1,2,3] row_mask:0xf bank_mask:{1<<r:#x}')
    def pv(p, b, tg):
        if NAT:
            z, y = NZ, 1 - NZ
            for i in range(2): mfma(O, p + 8 * y + 4 * i, b + 8 * y + 4 * i, False)
            k(f's_cmp_eq_u32 s{sMC}, 0\ns_cbranch_scc1 L_pa{tg}')
            p0, p1, b0, b1 = p + 8 * z, p + 8 * z + 4, b + 8 * z, b + 8 * z + 4
            mfma(OE, p0, b0, False); mfma(OE + 4, p1, b0, False); mfma(OE, p1, b1, False); mfma(OE + 4, p0, b1, False)
            k(f's_branch L_pb{tg}')
            k.lab(f'L_pa{tg}')
            for i in range(2): mfma(O, p + 8 * z + 4 * i, b + 8 * z + 4 * i, False)
            k.lab(f'L_pb{tg}')
            return
        for i in range(4): mfma(O, p + 4 * i, b + 4 * i, False)
    k.lab('L_v0')
    profsteps('v')
    for a in range(2):
        if a: k.lab('L_v1')
        k(f's_cmp_lg_u32 s{sKND+a}, 1\ns_cbranch_scc1 L_send')
        k(f'v_add_u32 v31, s{sLD+a}, v{vSC}\nds_read2_b64 {vr(S2,4)}, v31 offset0:0 offset1:8\ns_waitcnt lgkmcnt(0)')
        if NAT: k(f's_mov_b32 s{sMC}, s{sMD+a}')
        if P2X: probs(S2); probs(S2 + 2, PB)
        for h in range(2):
            if not P2X: probs(S2 + 2 * h)
            waits(f'v{a}{h}', a, h)
            if h == 0 and P2X:
                k(f's_cmp_lt_u32 s{sKND+1-a}, 2\ns_cbranch_scc1 L_vm{a}')
                pv(P, SLOT(a), f'e{a}0')
                k('s_waitcnt vmcnt(0)')
                pv(PB, SLOT(a) + 16, f'e{a}1')
                k('s_branch L_send')
                k.lab(f'L_vm{a}')
            if h == 0: claim()
            pv(PB if h else P, SLOT(a) + 16 * h, f'{a}{h}')
            if h == 0: claimed(a)
            k(f's_cmp_eq_u32 s{sKND+a}, 1\ns_cbranch_scc0 L_vd{a}{h}')
            ld(a, h, a, True, True)
            k.lab(f'L_vd{a}{h}')
    k('s_branch L_v0')
    k.lab('L_send')
    k.c("---- hand the wave's partial to LDS; the last of the four waves adds them up, scales and publishes")
    stamp(4)
    if NAT:
        for r in range(4):
            k(f'v_add_f32_dpp v{O+r}, v{OE+r}, v{O+r} quad_perm:[0,1,2,3] row_mask:0xf bank_mask:0x5')
        for r in range(4):
            k(f'v_add_f32_dpp v{O+r}, v{OE+4+r}, v{O+r} quad_perm:[0,1,2,3] row_mask:0xf bank_mask:0xa')
    k(f'ds_write2_b32 v{E}, v{O}, v{O+2} offset0:0 offset1:1')
    k(f'ds_write2_b32 v{E}, v{O+1}, v{O+3} offset0:128 offset1:129')
    k(f's_mov_b64 exec, 1\nds_add_rtn_u32 v{U}, v{vFL}, v{vONE} offset:{F_CNT}\ns_mov_b64 exec, -1')
    k(f'ds_read_b32 v{U+1}, v{vFL} offset:{F_LOC}\nds_read_b64 {vr(U+2,2)}, v{E+4}')
    for i in range(4): k(f'ds_read_b128 {vr(R_+4*i,4)}, v{E+3} offset:{1024*i}')
    k('s_waitcnt lgkmcnt(4)')
    k(f'v_readfirstlane_b32 s{sT1}, v{U}\nv_readfirstlane_b32 s{sT0}, v{U+1}\ns_cmp_lg_u32 s{sT1}, 3\ns_cbranch_scc1 L_exit')
    k.lab('L_scw')
    k(f'v_cmp_ne_u32 vcc, 1, v{U+3}\ns_cbranch_vccz L_scok\nds_read_b64 {vr(U+2,2)}, v{E+4}\ns_waitcnt lgkmcnt(0)')
    retry('L_scw', 1)
    k.lab('L_scok')
    k('s_waitcnt lgkmcnt(0)')
    sum4(R_)
    for e in range(4): k(f'v_mul_f32 v{R_+e}, v{U+2}, v{R_+e}')
    k(f'v_cvt_pk_bf16_f32 v{E+12}, v{R_}, v{R_+1}\nv_cvt_pk_bf16_f32 v{E+14}, v{R_+2}, v{R_+3}')
    st2(f'buffer_store_dwordx4 {vr(E+12,4)}, v{E+2}, {sr(sWS,4)}, s74 offen', sT0, LO)
    k(f'ds_write_b32 v{vFL}, v{vONE} offset:{F_PUB}')
    k('s_branch L_exit')

    k.c('=' * 100); k.c('helper waves'); k.c('=' * 100)
    k.lab('L_helper')
    k('s_setprio 2')
    CB, WT, AC, RR, TA = 16, 176, 40, 100, 168
    k(f'v_lshlrev_b32 v8, 2, v1\nv_add_u32 v8, {L_FLG}, v8\nv_mov_b32 v10, 0\nds_write_b32 v8, v10')
    if not STUB:
        k('v_and_b32 v7, 7, v3\nv_lshrrev_b32 v9, 3, v3\nv_mul_u32_u24 v11, 1152, v7')
        k('v_lshl_add_u32 v4, v2, 4, v11\nv_lshl_add_u32 v4, v9, 3, v4')
        k(f's_lshl_b32 s{sT0}, s{sW}, 6')
        k('s_waitcnt lgkmcnt(0)')
        srd(sA, pC, 9216)
    srd(sD_, pX, 9216)
    def epoch():
        srd(sWS, pWSP, WS_SIZE)
        k(f's_load_dword s{sEP}, {sr(pWSP,2)}, 0')
        gm = sum(1 << u for u, (r, _) in enumerate(TAIL) if r == 0); wm = sum(1 << u for u, (r, _) in enumerate(TAIL) if r == 1)
        k(f's_mov_b32 s62, {gm:#x}\ns_mov_b32 s63, {wm:#x}\ns_mov_b32 s{sROLE}, 3')
        k(f's_bitcmp1_b32 s62, s{sIP}\ns_cselect_b32 s{sROLE}, 0, s{sROLE}\ns_bitcmp1_b32 s63, s{sIP}\ns_cselect_b32 s{sROLE}, 1, s{sROLE}')
        k(f's_bfm_b32 s64, s{sIP}, 0\ns_and_b32 s63, s63, s64\ns_bcnt1_i32_b32 s{sCN}, s63\ns_and_b32 s62, s62, s64\ns_bcnt1_i32_b32 s62, s62')
        k(f's_mul_i32 s{sR}, s{sX}, 18\ns_add_u32 s{sR}, s{sR}, s62\ns_waitcnt lgkmcnt(0)')
        tag_from_epoch()
        l = k.new('L_xc')
        k(f's_mov_b32 s76, 0\ns_cmp_lg_u32 s{sW}, 3\ns_cbranch_scc1 {l}')
        k(f's_getreg_b32 s62, hwreg(HW_REG_XCC_ID)\ns_lshl_b32 s63, s{sX}, 5\ns_add_u32 s63, s63, s{sIP}\ns_lshl_b32 s63, s63, 3\ns_add_u32 s63, s63, {WS_XC}')
        k(f'v_mov_b32 v12, s62\nv_mov_b32 v13, s{sTAG}\ns_mov_b64 exec, 1\nbuffer_store_dwordx2 v[12:13], off, {sr(sWS,4)}, s63\ns_mov_b64 exec, -1')
        k.lab(l)
    def unshuffle(extra=()):
        if not BPM: return
        k('v_and_b32 v6, 7, v1\nv_lshlrev_b32 v6, 5, v6\nv_lshrrev_b32 v8, 3, v1\nv_lshl_add_u32 v6, v8, 2, v6')
        for r in [CB + 4 * i + j for i in range(5) for j in range(2)] + list(extra): k(f'ds_bpermute_b32 v{r}, v6, v{r}')
        k('s_waitcnt lgkmcnt(0)')
    def traddr():
        k('v_lshrrev_b32 v5, 2, v3\nv_lshl_add_u32 v6, v2, 3, v5\nv_lshlrev_b32 v6, 7, v6\nv_and_b32 v5, 3, v3\nv_lshl_add_u32 v6, v5, 3, v6')
        k('v_bfe_u32 v5, v1, 3, 2\nv_lshl_add_u32 v6, v5, 5, v6')
        for tile in range(4): k(f'v_xor_b32 v{TA+tile}, {32*tile}, v6\nv_add_u32 v{TA+tile}, s{sST}, v{TA+tile}')
    def trread(i):
        for tile in range(4):
            r = WT + (i * 4 + tile) * 4; o = 4096 * i
            k(f'ds_read_b64_tr_b16 {vr(r,2)}, v{TA+tile} offset:{o}\nds_read_b64_tr_b16 {vr(r+2,2)}, v{TA+tile} offset:{o+512}')
    def redaddr(rowstride, so, t0, t1):
        k(f'v_and_b32 v14, 7, v3\nv_mul_u32_u24 v14, 272, v14\nv_lshl_add_u32 v14, v2, 4, v14\ns_mul_i32 s{sT0}, s{sW}, 2176\ns_add_u32 s{sT0}, s{sT0}, {L_PT}\nv_add_u32 v14, s{sT0}, v14')
        k(f'v_and_b32 v{so}, 1, v2\nv_lshl_add_u32 v{so}, s{sW}, 1, v{so}\nv_mul_u32_u24 v15, 272, v{so}\nv_lshl_add_u32 v15, v3, 4, v15\nv_add_u32 v15, {L_PT}, v15')
        k(f'v_mul_u32_u24 v{so}, {rowstride}, v{so}\nv_lshl_add_u32 v{so}, v3, 4, v{so}\nv_mov_b32 v{t0}, s{sTAG}\nv_mov_b32 v{t1}, s{sTAG}')
        mask64(sM0, 0x00ff)
    def reduce_publish(rd, z, so, soff, flag=None):
        k(f's_mov_b64 exec, {sr(sM0,2)}')
        for tile in range(4): k(f'ds_write_b128 v14, {vr(AC+4*tile,4)} offset:{64*tile}')
        k('s_mov_b64 exec, -1\ns_waitcnt lgkmcnt(0)\ns_barrier')
        for i in range(4): k(f'ds_read_b128 {vr(rd+4*i,4)}, v15 offset:{2176*i}')
        k('s_waitcnt lgkmcnt(0)')
        sum4(rd)
        k(f'v_cvt_pk_bf16_f32 v{z}, v{rd}, v{rd+1}\nv_cvt_pk_bf16_f32 v{z+2}, v{rd+2}, v{rd+3}')
        k('s_mov_b32 exec_hi, 0')
        st2(f'buffer_store_dwordx4 {vr(z,4)}, v{so}, {sr(sWS,4)}, s{soff} offen', flag, flag is not None)
        k('s_mov_b64 exec, -1')
    def dma(voff, srd_, soff, lds_imm, idx, th, pol='nt'):
        if idx >= th: k(f's_waitcnt vmcnt({th-1})')
        k(f's_add_u32 m0, s{sST}, {lds_imm}')
        k(f'buffer_load_dwordx4 v{voff}, {sr(srd_,4)}, s{soff} offen {pol} lds')
    def wstage(th, lo=0, hi=16):
        srd(sB_, pWO, 4096 * 1152)
        k('v_lshrrev_b32 v8, 3, v1\nv_mul_u32_u24 v8, 1152, v8\nv_and_b32 v9, 7, v1\nv_lshl_add_u32 v8, v9, 4, v8')
        k(f's_lshl_b32 s72, s{sX}, 2\ns_add_u32 s72, s72, s{sW}\ns_mul_i32 s72, s72, {128*1152}\ns_lshl_b32 s73, s{sCN}, 7\ns_add_u32 s72, s72, s73')
        if lo: k(f's_add_u32 s72, s72, {8*1152*lo}')
        for i in range(lo, hi):
            dma(8, sB_, 72, 1024 * i, i - lo, th)
            if i < 15: k(f's_add_u32 s72, s72, {8*1152}')
    k(f's_cmp_eq_u32 s{sPRO}, 2\ns_cbranch_scc1 L_p1\ns_cmp_eq_u32 s{sPRO}, 3\ns_cbranch_scc1 L_p2')
    if not EPB: k('s_barrier')
    epoch()
    if EPB: k('s_barrier')
    k('s_branch L_pdone')

    k.c('---- 64 columns of mod = silu(c) @ w_mod')
    k.lab('L_p1')
    for i in range(0 if STUB else 5):
        k(f'buffer_load_dwordx2 {vr(CB+4*i,2)}, v4, {sr(sA,4)}, s{sT0} offen offset:{256*i}')
    epoch()
    traddr(); redaddr(0, 5, 37, 39)
    k(f'v_and_b32 v15, 7, v1\nv_mul_u32_u24 v15, 272, v15\nv_bfe_u32 v5, v1, 3, 2\nv_lshl_add_u32 v5, s{sW}, 2, v5\nv_lshl_add_u32 v15, v5, 4, v15\nv_add_u32 v15, {L_PT}, v15')
    k(f'v_lshlrev_b32 v5, 4, v1\nv_lshl_add_u32 v5, s{sW}, 9, v5')
    k(f's_lshl_b32 s78, s{sPI}, 11\ns_add_u32 s78, s78, {WS_MOD}\ns_mov_b32 s{sT0}, 0xbfb8aa3b')
    k('s_waitcnt vmcnt(0)')
    stamp(1)
    unshuffle()
    for i in range(5):
        b = CB + 4 * i
        unp(RR, b); unp(RR + 2, b + 1)
        for e in range(4): k(f'v_mul_f32 v{RR+4+e}, s{sT0}, v{RR+e}')
        for e in range(4): k(f'v_exp_f32 v{RR+4+e}, v{RR+4+e}')
        for e in range(4): k(f'v_add_f32 v{RR+4+e}, 1.0, v{RR+4+e}')
        for e in range(4): k(f'v_min_f32 v{RR+4+e}, 0x7e800000, v{RR+4+e}')
        for e in range(4): k(f'v_rcp_f32 v{RR+8+e}, v{RR+4+e}')
        for e in range(4): k(f'v_mul_f32 v{RR+12+e}, v{RR+e}, v{RR+8+e}')
        for e in range(4): k(f'v_fma_f32 v{RR+e}, -v{RR+12+e}, v{RR+4+e}, v{RR+e}')
        for e in range(4): k(f'v_fmac_f32 v{RR+12+e}, v{RR+e}, v{RR+8+e}')
        k(f'v_cvt_pk_bf16_f32 v{b}, v{RR+12}, v{RR+13}\nv_cvt_pk_bf16_f32 v{b+1}, v{RR+14}, v{RR+15}')
    for i in range(5): ror8pair(CB + 4 * i)
    k('s_barrier')
    stamp(2)
    trread(0)
    for i in range(5):
        if i < 4:
            k('s_waitcnt lgkmcnt(4)'); trread(i + 1); k('s_waitcnt lgkmcnt(8)')
        else: k('s_waitcnt lgkmcnt(0)')
        for tile in range(4): mfma(AC + 4 * tile, WT + (i * 4 + tile) * 4, CB + 4 * i, i == 0)
    k('s_branch L_wide')

    k.c('---- 64 columns of q = h @ wq')
    k.lab('L_p2')
    LN, SG, CG = 132, 56, 76
    if not STUB: k(f'buffer_load_ushort v36, v11, {sr(sD_,4)}, 0 offen')
    for i in range(0 if STUB else 5):
        k(f'buffer_load_dwordx2 {vr(CB+4*i,2)}, v4, {sr(sD_,4)}, s{sT0} offen offset:{256*i}')
    k(f'v_lshlrev_b32 v152, 4, v1\nv_lshl_add_u32 v152, s{sW}, 10, v152\nv_add_u32 v153, 4096, v152\nv_add_u32 v154, 8192, v152\nv_add_u32 v155, 12288, v152')
    k(f's_cmp_lt_u32 s{sW}, 2\ns_cselect_b32 s72, -1, 0\nv_add_u32 v156, 16384, v152\nv_and_b32 v156, s72, v156')
    k(f'v_lshlrev_b32 v7, 5, v7\nv_add_u32 v7, {L_RED}, v7\nv_lshl_add_u32 v9, s{sW}, 3, v7')
    epoch()
    k(f's_lshl_b32 s78, s{sPI}, 11\ns_add_u32 s78, s78, {WS_Q}')
    traddr(); redaddr(256, 5, 37, 39)
    k(f's_cmp_lt_u32 s{sW}, 2\ns_cselect_b32 s72, 1.0, 0')
    k('s_waitcnt vmcnt(0)')
    unshuffle((36,))
    k('v_lshlrev_b32 v8, 16, v36')
    for i in range(5):
        unp(LN + 4 * i, CB + 4 * i); unp(LN + 4 * i + 2, CB + 4 * i + 1)
    for e in range(4): k(f'v_sub_f32 v{RR+e}, v{LN+16+e}, v8')
    k(f'v_add_f32 v10, v{RR}, v{RR+1}\nv_mul_f32 v11, v{RR}, v{RR}\nv_add_f32 v10, v10, v{RR+2}\nv_fmac_f32 v11, v{RR+1}, v{RR+1}')
    k(f'v_add_f32 v10, v10, v{RR+3}\nv_fmac_f32 v11, v{RR+2}, v{RR+2}\nv_mul_f32 v10, s72, v10\nv_fmac_f32 v11, v{RR+3}, v{RR+3}\nv_mul_f32 v11, s72, v11')
    for r in range(16): k(f'v_sub_f32 v{RR+r}, v{LN+r}, v8')
    for r in range(16): k(f'v_add_f32 v10, v10, v{RR+r}\nv_fmac_f32 v11, v{RR+r}, v{RR+r}')
    k(f'v_add_f32_dpp v10, v10, v10 row_ror:8 {DPPALL}\nv_add_f32_dpp v11, v11, v11 row_ror:8 {DPPALL}')
    xrow('v_add_f32', 10, 12); xrow('v_add_f32', 11, 12)
    k('ds_write_b64 v9, v[10:11]')
    k(f's_mov_b32 s{sT0}, {WS_MOD}\ns_mov_b32 s{sT1}, {WS_MOD + 18432}')
    k('s_waitcnt lgkmcnt(0)\ns_barrier')
    stamp(1)
    k(f'ds_read_b128 {vr(RR,4)}, v7\nds_read_b128 {vr(RR+4,4)}, v7 offset:16')
    for i in range(5):
        trread(i); k(f's_waitcnt lgkmcnt({4 if i < 4 else 0})')
    k(f'v_add_f32 v10, v{RR}, v{RR+2}\nv_add_f32 v11, v{RR+1}, v{RR+3}\nv_add_f32 v12, v{RR+4}, v{RR+6}\nv_add_f32 v13, v{RR+5}, v{RR+7}')
    k('v_add_f32 v10, v10, v12\nv_add_f32 v11, v11, v13\nv_mul_f32 v10, 0x3ae38e39, v10\nv_mul_f32 v11, 0x3ae38e39, v11')
    k('v_fma_f32 v11, -v10, v10, v11\nv_add_f32 v10, v10, v8\nv_max_f32 v11, 0, v11')
    if WHOLD:
        k(f's_cmp_lg_u32 s{sROLE}, 1\ns_cbranch_scc1 L_nowh')
        wstage(16, 0, WHN)
        k.lab('L_nowh')
    rnd2(10, 11, 12)
    k('v_add_f32 v11, 0x3727c5ac, v11')
    rnd1(11, 12)
    k('v_sqrt_f32 v11, v11')
    rnd1(11, 12)
    k('v_rcp_f32 v11, v11')
    for i in range(5):
        d = LN + 4 * i
        for e in range(4): k(f'v_sub_f32 v{d+e}, v{d+e}, v10')
        rnd4(d, 12)
        for e in range(4): k(f'v_mul_f32 v{d+e}, v{d+e}, v11')
        rnd4(d, 12)
    if LQ: xcld(96, 98)
    poll('hpoll', [wsld(CG + 4 * i, 152 + i, sT1) for i in range(5)] + [wsld(SG + 4 * i, 152 + i, sT0) for i in range(5)],
         [SG + 4 * i for i in range(10)], 12, 10, PSL, True)
    stamp(2)
    if LQ: xcchk(96, 76)
    for i in range(5):
        d, c_, s_ = LN + 4 * i, CG + 4 * i, SG + 4 * i
        unp(RR, c_); unp(RR + 2, c_ + 2); unp(RR + 4, s_); unp(RR + 6, s_ + 2)
        for e in range(4): k(f'v_add_f32 v{RR+e}, 1.0, v{RR+e}')
        rnd4(RR, 12)
        for e in range(4): k(f'v_mul_f32 v{d+e}, v{d+e}, v{RR+e}')
        rnd4(d, 12)
        for e in range(4): k(f'v_add_f32 v{d+e}, v{d+e}, v{RR+4+e}')
        k(f'v_cvt_pk_bf16_f32 v{CB+4*i}, v{d}, v{d+1}\nv_cvt_pk_bf16_f32 v{CB+4*i+1}, v{d+2}, v{d+3}')
        if i > 0:
            ror8pair(CB + 4 * (i - 1))
        if i > 1:
            for tile in range(4): mfma(AC + 4 * tile, WT + ((i - 2) * 4 + tile) * 4, CB + 4 * (i - 2), i == 2)
    ror8pair(CB + 16)
    for i in (3, 4):
        for tile in range(4): mfma(AC + 4 * tile, WT + (i * 4 + tile) * 4, CB + 4 * i, False)
    k.lab('L_wide')
    reduce_publish(RR, 36, 5, 78, 76 if LQ else None)
    if FWD:
        k(f's_cmp_lg_u32 s{sPRO}, 2\ns_cbranch_scc1 L_nofw\ns_cmp_ge_u32 s{sPI}, 8\ns_cbranch_scc1 L_nofw')
        k(f'v_and_b32 v6, 1, v1\nv_lshl_add_u32 v6, s{sW}, 1, v6\nv_mul_u32_u24 v6, 13824, v6\nv_lshrrev_b32 v7, 1, v1\nv_lshl_add_u32 v6, v7, 7, v6\ns_mov_b32 s{sT0}, {WS_MOD}')
        k('s_waitcnt vmcnt(0)')
        poll('fwd', [wsld(24, 6, sT0), wsld(28, 6, sT0, 512)], [24, 28], 12, 10, FWD, True)
        k.lab('L_nofw')
    k('s_barrier')
    sLB = 35
    def lbsetup():
        k(f's_mul_i32 s{sLB}, s{sW}, 5\ns_cmp_eq_u32 s{sW}, 3\ns_cselect_b32 s{sLB}, 14, s{sLB}')
    def stage(parts, th, rng=None):
        n = 0
        for part in parts:
            lo, hi = (rng or {}).get(part, (0, 10))
            if part == 2 and HX:
                k(f's_mul_i32 s{sT2}, s{sW}, {32*1152}\ns_add_u32 s{sT2}, s{sT2}, s36')
                for i in range(8):
                    dma(29, sC_, sT2, 20480 + 1024 * i, n, th); n += 1
                    k(f's_add_u32 s{sT2}, s{sT2}, {8*1152 if i != 3 else 104*1152}')
                k(f's_mul_i32 s{sT2}, s{sW}, {8*1152}\ns_add_u32 s{sT2}, s{sT2}, s36\ns_add_u32 s{sT2}, s{sT2}, {256*1152}')
                k(f's_lshl_b32 s{sT3}, s{sW}, 10\ns_add_u32 m0, s{sT3}, {L_SC}\nbuffer_load_dwordx4 v29, {sr(sC_,4)}, s{sT2} offen nt lds')
                continue
            if part < 2: k(f's_mul_i32 s{sT2}, s{sLB}, {32*9216}\ns_lshl_b32 s{sT3}, s{sR}, 6\ns_add_u32 s{sT2}, s{sT2}, s{sT3}')
            else: k(f's_mul_i32 s{sT2}, s{sR}, 36864\ns_mul_i32 s{sT3}, s{sW}, 9216\ns_add_u32 s{sT2}, s{sT2}, s{sT3}')
            l = k.new('L_sg')
            if part < 2 and REV and (lo, hi) == (0, 10):
                k(f's_cmp_lt_u32 s{sW}, 2\ns_cselect_b32 s18, 9, 7\ns_bitcmp1_b32 s{sR}, 0\ns_cselect_b32 s18, s18, 0\ns_cselect_b32 s19, -1, 1')
                k(f's_mul_i32 s20, s18, {16*9216}\ns_add_u32 s{sT2}, s{sT2}, s20\ns_mul_i32 s20, s19, {16*9216}\ns_lshl_b32 s18, s18, 10\ns_add_u32 s18, s18, s{sST}\ns_lshl_b32 s19, s19, 10')
                for i in range(10):
                    if i == 8: k(f's_cmp_ge_u32 s{sW}, 2\ns_cbranch_scc1 {l}')
                    if n >= th: k(f's_waitcnt vmcnt({th-1})')
                    k(f's_add_u32 m0, s18, {10240 * part}\ns_add_u32 s18, s18, s19')
                    k(f'buffer_load_dwordx4 v30, {sr((sA, sB_)[part],4)}, s{sT2} offen {GP} lds\ns_add_u32 s{sT2}, s{sT2}, s20'); n += 1
                k.lab(l)
                continue
            if lo: k(f's_add_u32 s{sT2}, s{sT2}, {16*9216*lo}')
            for i in range(lo, min(hi, 10 if part < 2 else 9)):
                if part < 2 and i == 8: k(f's_cmp_ge_u32 s{sW}, 2\ns_cbranch_scc1 {l}')
                dma(30 if part < 2 else 6, (sA, sB_, sC_)[part], sT2, 10240 * part + 1024 * i, n, th, GP if part < 2 else 'nt'); n += 1
                k(f's_add_u32 s{sT2}, s{sT2}, {16*9216 if part < 2 else 1024}')
            k.lab(l)
    early = [0, 1, 2][:3 - SPLIT]; late = [0, 1, 2][3 - SPLIT:]
    def gfill(fill=True):
        lbsetup()
        srd(sA, pGA, 576 * 9216); srd(sB_, pUP, 576 * 9216); srd(sC_, pDN, 4608 * 1152); srd(sD_, pOUT, 9216)
        k('v_lshrrev_b32 v30, 2, v1\nv_mul_u32_u24 v30, 9216, v30\nv_and_b32 v5, 3, v1\nv_lshl_add_u32 v30, v5, 4, v30\nv_lshlrev_b32 v6, 4, v1')
        if early and fill:
            ldswait('gpre', F_PRE, 4, 4)
            stage(early + ([1] if UPE else []), FTH, {1: (0, UPE) if UPE else (0, 10), 0: (10 - GTE, 10)})
    k.lab('L_pdone')
    stamp(3)
    if F0:
        k(f's_cmp_lg_u32 s{sROLE}, 0\ns_cbranch_scc1 L_nof0')
        gfill()
        k.lab('L_nof0')
    k.c('---- q of this (batch, kv head) into LDS')
    k(f's_cmp_lg_u32 s{sW}, 0\ns_cbranch_scc1 L_qdone')
    if QW: ldswait('qpre', F_PRE, QW, 4)
    k(f's_lshl_b32 s{sT0}, s{sHKV}, 13\ns_lshl_b32 s{sT1}, s{sBB}, 8\ns_add_u32 s{sT0}, s{sT0}, s{sT1}\ns_add_u32 s{sT0}, s{sT0}, {WS_Q}')
    k(f'v_lshlrev_b32 v4, 11, v2\nv_lshl_add_u32 v4, v3, 4, v4\nv_lshlrev_b32 v5, 3, v1\nv_add_u32 v5, {L_Q}, v5\nv_mov_b32 v12, {L_FLG}\nv_mov_b32 v13, 1')
    poll('qpoll', [wsld(24, 4, sT0)], [24], 10, 11, QSL)
    k(f'ds_write2_b32 v5, v24, v26 offset0:0 offset1:1\nds_write_b32 v12, v13 offset:{F_QRDY}')
    k.lab('L_qdone')
    stamp(4)
    k(f's_cmp_eq_u32 s{sROLE}, 1\ns_cbranch_scc1 L_wrole\ns_cmp_eq_u32 s{sROLE}, 3\ns_cbranch_scc1 L_nrole')

    def balance(name):
        k.c('helper wave 1: softmax denominator of this workgroup keys, exchanged with the other half of the slab -> scale of the partial output')
        k(f's_cmp_lg_u32 s{sW}, 1\ns_cbranch_scc1 L_{name}bd')
        ldswait(f'{name}kd', F_KD, 4, 32)
        k(f'v_and_b32 v33, 1, v1\nv_lshlrev_b32 v33, 4, v33\nv_add_u32 v32, {L_FLG + F_MX}, v33\nds_read_b128 v[36:39], v32')
        k(f'v_lshlrev_b32 v32, 3, v1\nv_add_u32 v32, {L_SC}, v32\ns_mov_b32 s18, 16\ns_waitcnt lgkmcnt(0)')
        k(f'v_max3_f32 v34, v36, v37, v38\nv_max_f32 v34, v34, v39\nv_mul_f32 v34, s{sL2E}, v34\nv_mov_b32 v36, 0')
        k.lab(f'L_{name}bl')
        k('ds_read2st64_b64 v[56:59], v32 offset0:0 offset1:1\nv_add_u32 v32, 1024, v32\ns_waitcnt lgkmcnt(0)')
        for r in range(56, 60):
            unp(38, r)
            k(f'v_fma_f32 v38, v38, s{sL2E}, -v34\nv_fma_f32 v39, v39, s{sL2E}, -v34\nv_exp_f32 v38, v38\nv_exp_f32 v39, v39\nv_add_f32 v36, v36, v38\nv_add_f32 v36, v36, v39')
        k(f's_sub_u32 s18, s18, 1\ns_cmp_lg_u32 s18, 0\ns_cbranch_scc1 L_{name}bl')
        for m in ('quad_perm:[2,3,0,1]', 'row_ror:4', 'row_ror:8'):
            k(f'v_add_f32_dpp v36, v36, v36 {m} {DPPALL}')
        xrow('v_add_f32', 36, 38)
        k(f'v_mov_b32 v35, s{sTAG}\nv_mov_b32 v37, s{sTAG}\ns_lshl_b32 s20, s2, 7\ns_add_u32 s20, s20, {WS_ML}\ns_xor_b32 s21, s20, 1024\ns_mov_b64 exec, 3')
        st2(f'buffer_store_dwordx4 v[34:37], v33, {sr(sWS,4)}, s20 offen', 34, LO)
        ldswait(f'{name}xp', F_POS, XP - P0, 32)
        poll(f'{name}balp', [wsld(56, 33, 21)], [56], 38, 39, 16)
        k('v_max_f32 v38, v34, v56\nv_sub_f32 v34, v34, v38\nv_sub_f32 v56, v56, v38\nv_exp_f32 v34, v34\nv_exp_f32 v56, v56')
        k('v_mul_f32 v36, v36, v34\nv_fmac_f32 v36, v58, v56\nv_rcp_f32 v36, v36\nv_mov_b32 v35, 1\nv_mul_f32 v34, v34, v36')
        k(f'v_lshrrev_b32 v33, 1, v33\nv_add_u32 v33, {L_FLG + F_SCL}, v33\nds_write_b64 v33, v[34:35]\ns_waitcnt lgkmcnt(0)\ns_mov_b64 exec, -1')
        k.lab(f'L_{name}bd')
    def pace(name):
        if not CP: return
        k.c('helper wave 2: load balancing. At a few positions the arrival time is compared with that of 8 reference workgroups;')
        k.c('a workgroup that is behind fetches whole lines for a while (fewer requests per byte = larger share of the HBM bandwidth)')
        off = dict(g=POFF[0], w=POFF[1]).get(name, POFF[2])
        sh = {64: 2, 32: 3, 16: 4, 8: 5}[PN]
        if PCLK:
            k(f's_cmp_lg_u32 s{sW}, 2\ns_cbranch_scc1 L_{name}pd')
            k(f'v_mov_b32 v32, {L_FLG}\nv_and_b32 v33, {PN-1}, v1\nv_mul_u32_u24 v33, {PSTR}, v33\nv_mov_b32 v35, s{sTAG}')
            k(f's_lshr_b32 s18, s2, {sh}\ns_mul_i32 s18, s18, 5\ns_add_u32 s18, s18, s2\ns_and_b32 s19, s18, {(1 << sh) - 1}')
            k(f's_lshr_b32 s18, s2, {sh}\ns_mul_i32 s18, s18, {PSTR}\ns_cmp_eq_u32 s19, 0\ns_cselect_b32 s18, s18, {OOB:#x}')
            for ci, C in enumerate(CP):
                n_ = f'{name}c{ci}'
                ldswait(f'{n_}u', F_POS, C - P0 - PCLK - 6, 32)
                ldswait(f'{n_}v', F_POS, C - P0 - PCLK, 2)
                k(f's_memrealtime s[20:21]\ns_add_u32 s19, s18, {WS_PACE + 128 * ci}\ns_waitcnt lgkmcnt(0)\nv_mov_b32 v34, s20')
                k(f's_mov_b64 exec, 1\nbuffer_store_dwordx2 v[34:35], off, {sr(sWS,4)}, s19 sc1\ns_mov_b64 exec, -1')
                ldswait(f'{n_}w', F_POS, C - P0, 16)
                k(f's_mov_b32 s19, {WS_PACE + 128 * ci}\nbuffer_load_dwordx2 v[36:37], v33, {sr(sWS,4)}, s19 offen sc1\ns_waitcnt vmcnt(0)\nds_read_b32 v38, v32 offset:{F_POS}')
                k(f'v_sub_u32 v36, v34, v36\nv_mov_b32 v39, {-PCLK * 28}\nv_cmp_eq_u32 vcc, v35, v37\nv_cndmask_b32 v36, v39, v36, vcc\nv_cvt_f32_i32 v36, v36')
                for m in ('quad_perm:[1,0,3,2]', 'quad_perm:[2,3,0,1]', 'row_half_mirror', 'row_mirror'):
                    k(f'v_add_f32_dpp v36, v36, v36 {m} {DPPALL}')
                xrow('v_add_f32', 36, 39)
                if PROP:
                    Rm = ((CP[ci + 1] - PCLK if PR and ci + 1 < len(CP) else 256) - C - 4)
                    g_ = PG[min(ci, len(PG) - 1)]
                    k(f'v_mov_b32 v39, {f2u(1 + g_ * (PD + off) / Rm):#x}\nv_fmac_f32 v39, {f2u(g_ / 64 / 27.2 / Rm):#x}, v36\nv_max_f32 v39, 0.5, v39\nv_rcp_f32 v39, v39')
                    k(f's_waitcnt lgkmcnt(0)\nv_mov_b32 v38, {f2u(-64.0 + 1.5):#x}\nv_fmac_f32 v38, {"v59" if PA and ci else hex(f2u(64.0 + PROP))}, v39\nv_max_f32 v38, 1.0, v38\nv_min_f32 v38, {f2u(TMAX + 1.0):#x}, v38\nv_cvt_u32_f32 v39, v38')
                    if PA: k(f'v_mov_b32 v59, {f2u((1 - PA) * (64.0 + PROP) + PA * 62.5):#x}\nv_fmac_f32 v59, {f2u(PA):#x}, v38')
                    k(f's_waitcnt lgkmcnt(0)\nds_write_b32 v32, v39 offset:{F_BST}\ns_waitcnt lgkmcnt(0)')
                elif LP is None or ci < len(CP) - 1:
                    k(f'v_mov_b32 v39, {f2u(PK * (PD + off)):#x}\nv_fmac_f32 v39, {f2u(PK / 64 / 27.6):#x}, v36\nv_max_f32 v39, 0, v39\nv_min_f32 v39, 0x42800000, v39\nv_cvt_u32_f32 v39, v39')
                    k(f's_waitcnt lgkmcnt(0)\nv_add3_u32 v38, v38, v39, {P0+4}\nds_write_b32 v32, v38 offset:{F_BST}\ns_waitcnt lgkmcnt(0)')
                    k('v_mov_b32 v56, v34\nv_mov_b32 v57, v36')
                else:
                    k(f'v_sub_u32 v56, v34, v56\nv_cvt_f32_i32 v56, v56\nv_sub_f32 v57, v57, v36\nv_fmac_f32 v56, {f2u(1 / 64):#x}, v57')
                    k(f'v_rcp_f32 v56, v56\nv_mul_f32 v36, {f2u(1 / 64):#x}, v36\nv_mul_f32 v56, {f2u(float(C - CP[ci - 1]) * TSC):#x}, v56')
                    for li, P_ in enumerate((0,) + tuple(LP)):
                        if P_: ldswait(f'{n_}l{li}', F_POS, P_ - P0, 4)
                        k(f's_memrealtime s[20:21]\nds_read_b32 v38, v32 offset:{F_POS}\ns_waitcnt lgkmcnt(0)')
                        k(f'v_subrev_u32 v39, v34, s20'.replace('v_subrev_u32 v39, v34, s20', 'v_sub_u32 v39, s20, v34'))
                        k(f'v_cvt_f32_i32 v39, v39\nv_add_f32 v39, v39, v36\nv_cvt_f32_u32 v58, v38\nv_subrev_f32 v58, {f2u(float(C - P0 - PCLK + PD + off)):#x}, v58')
                        k(f'v_fma_f32 v39, v39, v56, -v58\nv_mul_f32 v39, {f2u(PK):#x}, v39\nv_max_f32 v39, 0, v39\nv_min_f32 v39, 0x42800000, v39\nv_cvt_u32_f32 v39, v39')
                        k(f'v_add3_u32 v38, v38, v39, {P0+4}\nds_write_b32 v32, v38 offset:{F_BST}\ns_waitcnt lgkmcnt(0)')
            k.lab(f'L_{name}pd')
            return
        k(f's_cmp_lt_u32 s{sW}, 2\ns_cbranch_scc1 L_{name}pd')
        k(f'v_mov_b32 v32, {L_FLG}\nv_and_b32 v33, {PN-1}, v1\nv_mul_u32_u24 v33, {PSTR}, v33\nv_mov_b32 v34, s{sTAG}')
        k(f's_cmp_eq_u32 s{sW}, 2\ns_cbranch_scc1 L_{name}pw')
        k(f's_lshr_b32 s18, s2, {sh}\ns_mul_i32 s18, s18, 5\ns_add_u32 s18, s18, s2\ns_and_b32 s18, s18, {(1 << sh) - 1}\ns_cmp_lg_u32 s18, 0\ns_cbranch_scc1 L_{name}pd')
        k(f's_lshr_b32 s18, s2, {sh}\ns_mul_i32 s19, s18, 37\ns_and_b32 s19, s19, {PN-1}\ns_mul_i32 s19, s19, {PSPAN}\ns_lshr_b32 s19, s19, {8-sh}\ns_mul_i32 s18, s18, {PSTR}')
        for ci, C in enumerate(CP):
            k(f's_add_u32 s20, s19, {C - P0 - PW0}\ns_add_u32 s21, s18, {WS_PACE + 128 * ci}')
            ldswait(f'{name}mk{ci}', F_POS, 's20', PSLP)
            if 'now' not in PDBG: k(f's_mov_b64 exec, 1\nbuffer_store_dword v34, off, {sr(sWS,4)}, s21 sc1\ns_mov_b64 exec, -1')
        k(f's_branch L_{name}pd')
        k.lab(f'L_{name}pw')
        for ci, C in enumerate(CP):
            n_ = f'{name}p{ci}'
            k(f's_mov_b32 s21, {OOB if "nor" in PDBG else WS_PACE + 128 * ci}')
            ldswait(f'{n_}w', F_POS, C - P0, PSLP)
            k(f'buffer_load_dword v35, v33, {sr(sWS,4)}, s21 offen sc1\ns_waitcnt vmcnt(0)\nds_read_b32 v38, v32 offset:{F_POS}\nv_cmp_eq_u32 vcc, v34, v35\ns_bcnt1_i32_b64 s23, vcc')
            k(f's_mul_i32 s23, s23, {PSPAN * 4}\ns_sub_i32 s23, s23, {round(256 * (PW0 - PD - off))}\ns_cmp_le_i32 s23, 0\ns_cbranch_scc1 L_{n_}e')
            k(f's_mul_i32 s23, s23, {round(PK * 16)}\ns_lshr_b32 s23, s23, 12\ns_waitcnt lgkmcnt(0)\nv_readfirstlane_b32 s22, v38')
            k(f's_add_u32 s23, s23, s22\ns_add_u32 s23, s23, {P0+4}\nv_mov_b32 v38, s23\nds_write_b32 v32, v38 offset:{F_BST}')
            k.lab(f'L_{n_}e')
            k('s_waitcnt lgkmcnt(0)')
        k.lab(f'L_{name}pd')
    def locality(name):
        k.c('do all 32 workgroups of this group run on this XCD? (then hand-offs inside the group may stay in its L2)')
        ldswait(f'{name}loc', F_POS, MID, 64)
        xcld(56, 58)
        k('s_waitcnt vmcnt(0)')
        xcchk(56, 34)
        k(f'v_mov_b32 v13, s34\nds_write_b32 v12, v13 offset:{F_LOC}')
    def selmasks(a, b):
        k('v_and_b32 v8, 1, v3\nv_lshlrev_b32 v8, 4, v8\nv_mov_b32 v9, 0x3f80\nv_lshlrev_b32 v9, v8, v9')
        k(f'v_and_b32 v8, 2, v3\nv_cmp_eq_u32 vcc, 0, v8\nv_cndmask_b32 v{a}, 0, v9, vcc\nv_sub_u32 v{b}, v9, v{a}')
    def stream_done(name):
        m = WST if name == 'wpub' else GST
        if name == 'wpub' and EW is not None: ldswait(name, F_POS, QM - P0 + EW, 2)
        elif m == 'pub':
            if PUBS == 0: ldswait(name + 'a', F_POS, QM - P0, 8)
            ldswait(name, F_PUB, 1, PUBS)
        elif m.startswith('cnt'): ldswait(name, F_CNT, int(m[3:]), 1)
        else: k('s_barrier')
    rm = [int(c) for c in RMODE]; rs = [int(c, 16) for c in RSL]

    k.c('=' * 100); k.c('G role: gate/up, GEGLU, down, final reduction'); k.c('=' * 100)
    GW, DW, YA, BO, FS, FS5, XG, GB = 176, 140, 104, 84, 76, 80, 72, 68
    if HX: DW, YA, BO, FS, FS5, XG, GB = 128, 96, 76, 72, 96, 68, 64
    def conv(part):
        if part < 2:
            l = k.new('L_cv')
            for t_ in range(5):
                if t_ == 4: k(f's_cmp_ge_u32 s{sW}, 2\ns_cbranch_scc1 {l}')
                for tile in (2 * part, 2 * part + 1):
                    o = part * 10240 + (tile & 1) * 32 + t_ * 2048
                    r = GW + (t_ * 4 + tile) * 4
                    k(f'ds_read_b64_tr_b16 {vr(r,2)}, v16 offset:{o}\nds_read_b64_tr_b16 {vr(r+2,2)}, v16 offset:{o+256}')
                if t_ == 2: k('s_waitcnt lgkmcnt(4)')
            k.lab(l)
            k('s_waitcnt lgkmcnt(0)')
        elif HX:
            for t_ in range(3):
                if t_ == 2: k(f's_cmp_lg_u32 s{sW}, 0\ns_cbranch_scc1 L_cvd')
                for tile in range(4):
                    r = DW + (t_ * 4 + tile) * 4
                    va, o = (31, 4096 * t_ + 32 * tile) if t_ < 2 else (22, 32 * tile)
                    k(f'ds_read_b64_tr_b16 {vr(r,2)}, v{va} offset:{o}\nds_read_b64_tr_b16 {vr(r+2,2)}, v{va} offset:{o+512}')
                k('s_waitcnt lgkmcnt(4)')
            k.lab('L_cvd')
            k('s_waitcnt lgkmcnt(0)')
        else:
            for u in range(9):
                k(f'ds_read_b64_tr_b16 {vr(DW+4*u,2)}, v31 offset:{32*u}\nds_read_b64_tr_b16 {vr(DW+4*u+2,2)}, v31 offset:{4608+32*u}')
                if u in (5, 8): k(f's_waitcnt lgkmcnt({6 if u == 5 else 0})')
    gfill(not F0)
    k(f'v_and_b32 v8, 7, v3\nv_lshlrev_b32 v20, 4, v8\nv_lshl_add_u32 v20, s{sR}, 7, v20')
    k(f'v_mul_u32_u24 v21, 1152, v8\nv_lshl_add_u32 v21, s{sR}, 3, v21')
    for r in list(range(GW + 64, GW + 80)) + list(range(60, 68)): k(f'v_mov_b32 v{r}, 0')
    selmasks(FS, FS + 2)
    k(f'v_mov_b32 v{FS+1}, 0\nv_mov_b32 v{FS+3}, 0\nv_mov_b32 v{FS5+1}, 0\nv_mov_b32 v{FS5+3}, 0')
    k(f's_cmp_lt_u32 s{sW}, 2\ns_cselect_b32 s{sT0}, -1, 0\nv_and_b32 v{FS5}, s{sT0}, v{FS}\nv_and_b32 v{FS5+2}, s{sT0}, v{FS+2}')
    mask64(sM0, 0x00ff)
    k(f'v_lshrrev_b32 v8, 2, v3\nv_and_b32 v9, 3, v3\nv_lshlrev_b32 v16, 6, v8\nv_lshl_add_u32 v16, v9, 3, v16\nv_add_u32 v16, s{sST}, v16\nv_lshl_add_u32 v16, v2, 9, v16')
    k(f'v_mul_u32_u24 v31, 1152, v8\nv_lshl_add_u32 v31, v9, 3, v31\nv_mul_u32_u24 v10, {REG}, v2\ns_mul_i32 s{sT0}, s{sW}, 288\ns_add_u32 s{sT0}, s{sT0}, 20480\nv_add3_u32 v31, v31, v10, s{sT0}')
    k('v_and_b32 v8, 7, v3\nv_lshrrev_b32 v9, 3, v3')
    k(f's_cmp_lt_u32 s{sW}, 2\ns_cselect_b32 s{sT0}, -1, 0\nv_add_u32 v23, 4096, v6\nv_and_b32 v23, s{sT0}, v23\nv_add_u32 v17, 16384, v6\nv_and_b32 v17, s{sT0}, v17')
    k('v_mul_u32_u24 v5, 18432, v2\nv_lshl_add_u32 v5, v8, 4, v5\nv_lshl_add_u32 v7, v9, 30, v5')
    k(f'v_mul_u32_u24 v10, {4*18432}, v9\nv_add_u32 v5, v5, v10')
    k(f'v_mul_u32_u24 v14, 272, v8\nv_lshl_add_u32 v15, v2, 5, v14\nv_lshl_add_u32 v15, v9, 4, v15\nv_add_u32 v15, {L_PT}, v15')
    k(f's_mul_i32 s{sT0}, s{sW}, 2176\ns_add_u32 s{sT0}, s{sT0}, {L_PT}\nv_lshl_add_u32 v14, v2, 4, v14\nv_add_u32 v14, s{sT0}, v14')
    k(f'v_lshlrev_b32 v19, 4, v8\nv_add_u32 v19, {L_RED}, v19\ns_lshl_b32 s{sT0}, s{sW}, 7\nv_add_u32 v18, s{sT0}, v19')
    k('s_waitcnt vmcnt(0)')
    for part in early:
        if part < 2 and GTE == 10: conv(part)
    locality('g')
    k(f's_mov_b32 s{sT0}, {WS_MOD + 92160}')
    poll('gbp', [wsld(24, 20, sT0)], [24], 28, 29, 32)
    unp(GB, 24); unp(GB + 2, 26)
    k(f's_mul_i32 s{sT1}, s{sX}, 18432\ns_lshl_b32 s{sT0}, s{sLB}, 10\ns_add_u32 s{sT0}, s{sT0}, s{sT1}\ns_add_u32 s{sT0}, s{sT0}, {WS_H2}\ns_add_u32 s{sT1}, s{sT1}, {WS_X2}')
    k(f's_mul_i32 s72, s{sW}, {36*18432}\ns_lshl_b32 s73, s{sR}, 7\ns_add_u32 s72, s72, s73\ns_add_u32 s72, s72, {WS_YP}')
    if HX:
        k(f's_mul_i32 s37, s{sX}, 18\ns_sub_u32 s37, s{sR}, s37\ns_cmp_ge_u32 s37, 9\ns_cselect_b32 s74, 1, 0\ns_mul_i32 s75, s74, 9\ns_sub_u32 s76, s37, s75')
        k(f's_lshl_b32 s36, s{sX}, 1\ns_add_u32 s74, s74, s36\ns_mul_i32 s36, s74, {288*1152}\ns_lshl_b32 s73, s76, 7\ns_add_u32 s36, s36, s73')
        k(f's_lshl_b32 s72, s76, 15\ns_lshl_b32 s73, s74, 7\ns_add_u32 s72, s72, s73\ns_lshl_b32 s73, s{sW}, 13\ns_add_u32 s72, s72, s73\ns_add_u32 s72, s72, {WS_YP}')
        k(f's_lshl_b32 s73, s{sR}, 11\ns_add_u32 s73, s73, {WS_YP}')
        k(f's_mul_i32 s74, s74, 9216\ns_lshl_b32 s75, s{sW}, 10\ns_add_u32 s74, s74, s75\ns_add_u32 s74, s74, {WS_HH}\ns_add_u32 s75, s74, 4096')
        k(f's_lshl_b32 s76, s{sR}, 10\ns_add_u32 s76, s76, {WS_HH}')
        k('v_lshrrev_b32 v8, 3, v1\nv_and_b32 v9, 7, v1\nv_mul_u32_u24 v29, 1152, v8\nv_lshl_add_u32 v29, v9, 4, v29')
        k('v_lshlrev_b32 v5, 11, v8\nv_lshl_add_u32 v5, v9, 4, v5')
        k(f'v_mul_u32_u24 v19, 272, v9\nv_and_b32 v8, 3, v8\nv_lshl_add_u32 v8, s{sW}, 2, v8\nv_lshl_add_u32 v19, v8, 4, v19\nv_add_u32 v19, {L_SC + 4096}, v19')
        k(f'v_add_u32 v18, {L_SC + 4096 - L_PT}, v14')
        k(f'v_lshrrev_b32 v8, 2, v3\nv_lshl_add_u32 v8, v2, 3, v8\nv_lshlrev_b32 v8, 7, v8\nv_and_b32 v9, 3, v3\nv_lshl_add_u32 v8, v9, 3, v8')
        k(f'v_add_u32 v22, {L_SC}, v8\nv_add_u32 v31, s{sST}, v8\nv_add_u32 v31, 20480, v31')
        k(f's_cmp_eq_u32 s{sW}, 0\ns_cselect_b32 s{sT2}, -1, 0\nv_add_u32 v17, 8192, v6\nv_and_b32 v17, s{sT2}, v17')
        k(f'v_mov_b32 v61, s{sTAG}\nv_mov_b32 v63, s{sTAG}')
    balance('g'); pace('g')
    for r in range(AC, AC + 16): k(f'v_mov_b32 v{r}, 0')
    if EK is not None:
        ldswait('gek', F_POS, QM - P0 + EK, 2)
        if GTE < 10: stage([0], 30, {0: (0, 10 - GTE)})
        stage([1], 30, {1: (UPE, EN)})
    stream_done('gpub')
    stamp(5)
    if HX:
        k(wsld(YA, 6, 74)); k(wsld(YA + 4, 6, 75)); k(wsld(YA + 8, 17, 74))
    if EK is not None:
        stage(late, 30, {1: (EN, 10)})
        if GTE < 10: late = [0] + late
    else:
        if GTE < 10: late = [0] + late
        stage(late, 30, {1: (UPE, 10), 0: (0, 10 - GTE)})
    def gact(i):
        def f():
            strip(BO + 4 * i)
            for tile in range(4): mfma(AC + 4 * tile, GW + (i * 4 + tile) * 4, BO + 4 * i, False)
        return f
    h2items = [(wsld(BO + 4 * i, 6, sT0, 1024 * i) if i < 4 else wsld(BO + 16, 23, sT0), BO + 4 * i, gact(i)) for i in (4, 0, 1, 2, 3)]
    if not H2L:
        for l, _, _ in h2items: k(l)
    if SW == 'stg': stamp(1)
    for n_, part in enumerate(late):
        k(f's_waitcnt vmcnt({(0 if H2L else 5) + (0 if part == 2 else 9 if part == 1 else 17 - UPE)})')
        if SW == 'stg': stamp(1 + part)
        if part < 2: conv(part)
    if H2L == 1:
        for l, _, _ in h2items: k(l)
    k('s_barrier')
    if H2L == 2:
        for l, _, _ in h2items: k(l)
    conv(2)
    stamp(6)
    if rm[2] in (0, 3):
        gather('h2p', [(l, b_, lambda: None) for l, b_, _ in h2items], rm[2], rs[2], True)
        strip(BO)
        for i in range(5):
            for tile in range(4):
                mfma(AC + 4 * tile, GW + (i * 4 + tile) * 4, BO + 4 * i, i == 0)
                if tile == 0 and i < 4: strip(BO + 4 * (i + 1))
    else: gather('h2p', h2items, rm[2], rs[2], True)
    stamp(7)
    k(f's_mov_b64 exec, {sr(sM0,2)}')
    for tile in range(4): k(f'ds_write_b128 v14, {vr(AC+4*tile,4)} offset:{64*tile}')
    k('s_mov_b64 exec, -1')
    for u in range(0 if HX else 5): k(f'v_mov_b32 v{GW+4*u+1}, s{sTAG}\nv_mov_b32 v{GW+4*u+3}, s{sTAG}')
    c1 = -2 * 0.7978845608028654 * 1.4426950408889634
    k(f's_mov_b32 s{sT2}, {f2u(c1*0.044715):#x}\nv_mov_b32 v13, {f2u(c1):#x}')
    k('s_waitcnt lgkmcnt(0)\ns_barrier')
    if HX: k(f's_cmp_lg_u32 s{sW}, 3\ns_cbranch_scc1 L_nogelu')
    for i in range(4): k(f'ds_read_b128 {vr(YA+4*i,4)}, v15 offset:{2176*i}')
    for i in range(4): k(f'ds_read_b128 {vr(YA+16+4*i,4)}, v15 offset:{2176*i+128}')
    G_, U_, BL, BH = YA, YA + 16, 60, 64
    if not HX:
        for r in range(AC, AC + 4): k(f'v_mov_b32 v{r}, 0')
        k(f's_mul_i32 s73, s{sR}, 18432\ns_lshl_b32 s74, s{sW}, 10\ns_add_u32 s73, s73, s74\ns_add_u32 s73, s73, {WS_YP}')
        k('s_add_u32 s74, s73, 4096\ns_add_u32 s75, s73, 8192\ns_add_u32 s76, s73, 12288')
    k('s_waitcnt lgkmcnt(4)')
    sum4(G_)
    if RND: rnd4(G_, 8)
    for e in range(4): k(f'v_mul_f32 v{G_+4+e}, v{G_+e}, v{G_+e}')
    for e in range(4): k(f'v_fma_f32 v{G_+4+e}, v{G_+4+e}, s{sT2}, v13')
    for e in range(4): k(f'v_mul_f32 v{G_+4+e}, v{G_+4+e}, v{G_+e}')
    for e in range(4): k(f'v_exp_f32 v{G_+4+e}, v{G_+4+e}')
    k('s_waitcnt lgkmcnt(0)')
    sum4(U_)
    for e in range(4): k(f'v_add_f32 v{G_+4+e}, 1.0, v{G_+4+e}')
    for e in range(4): k(f'v_rcp_f32 v{G_+4+e}, v{G_+4+e}')
    if RND: rnd4(U_, 8)
    for e in range(4): k(f'v_mul_f32 v{G_+e}, v{G_+e}, v{G_+4+e}')
    if RND: rnd4(G_, 10)
    for e in range(4): k(f'v_mul_f32 v{G_+e}, v{G_+e}, v{U_+e}')
    if HX:
        k(f'v_cvt_pk_bf16_f32 v60, v{G_}, v{G_+1}\nv_cvt_pk_bf16_f32 v62, v{G_+2}, v{G_+3}')
        st2(f'buffer_store_dwordx4 v[60:63], v6, {sr(sWS,4)}, s76 offen', 34, LH)
        k.lab('L_nogelu')
        nop = lambda: None
        gather('hhp', [(wsld(BO, 6, 74), BO, nop), (wsld(BO + 4, 6, 75), BO + 4, nop), (wsld(BO + 8, 17, 74), BO + 8, nop)], 0, 0)
        strip(BO)
        for t_ in range(3):
            if t_ == 2: k(f's_cmp_lg_u32 s{sW}, 0\ns_cbranch_scc1 L_dm')
            for tile in range(4):
                mfma(AC + 4 * tile, DW + (t_ * 4 + tile) * 4, BO + 4 * t_, t_ == 0)
                if tile == 0 and t_ < 2: strip(BO + 4 * (t_ + 1))
        k.lab('L_dm')
        k(f's_mov_b64 exec, {sr(sM0,2)}')
        for tile in range(4): k(f'ds_write_b128 v18, {vr(AC+4*tile,4)} offset:{64*tile}')
        k('s_mov_b64 exec, -1\ns_waitcnt lgkmcnt(0)\ns_barrier')
        for i in range(4): k(f'ds_read_b128 {vr(YA+4*i,4)}, v19 offset:{2176*i}')
        k('s_waitcnt lgkmcnt(0)')
        sum4(YA)
        k(f'v_cvt_pk_bf16_f32 v60, v{YA}, v{YA+1}\nv_cvt_pk_bf16_f32 v62, v{YA+2}, v{YA+3}')
        k(f's_mov_b32 exec_hi, 0\nbuffer_store_dwordx4 v[60:63], v5, {sr(sWS,4)}, s72 offen sc1\ns_mov_b64 exec, -1')
        stamp(8)
        if PROF: stamp(9)
        k(f's_cmp_lg_u32 s{sW}, 0\ns_cbranch_scc1 L_exit')
        if HACK == 0: k('s_waitcnt vmcnt(0)')
        elif HACK > 0: k(f's_sleep {HACK}')
        gather('yp', [(wsld(BO, 6, 73), BO, lambda: mfma(YA, FS, BO, True)), (wsld(BO + 4, 6, 73, 1024), BO + 4, lambda: mfma(YA, FS, BO + 4, False)),
                      (wsld(XG, 20, sT1), XG, lambda: (unp(24, XG), unp(26, XG + 2)))], 0, rs[3])
        stamp(9)
        for e in range(4): k(f'v_add_f32_dpp v{YA+e}, v{YA+e}, v{YA+e} row_ror:8 {DPPALL}')
        k('s_mov_b64 exec, 0xff')
    else:
        k(f'v_cvt_pk_bf16_f32 v8, v{G_}, v{G_+1}\nv_cvt_pk_bf16_f32 v9, v{G_+2}, v{G_+3}')
        for d, s_, m, bm in ((BL, 8, 'quad_perm:[0,1,2,3]', 3), (BL + 1, 9, 'quad_perm:[0,1,2,3]', 3), (BL + 2, 8, 'row_ror:8', 3), (BL + 3, 9, 'row_ror:8', 3),
                             (BH, 8, 'row_ror:8', 12), (BH + 1, 9, 'row_ror:8', 12), (BH + 2, 8, 'quad_perm:[0,1,2,3]', 12), (BH + 3, 9, 'quad_perm:[0,1,2,3]', 12)):
            k(f'v_mov_b32_dpp v{d}, v{s_} {m} row_mask:0xf bank_mask:{bm:#x}')
        def ystore(u):
            r, z = YA + 4 * u, GW + 4 * u
            k(f'v_cvt_pk_bf16_f32 v{z}, v{r}, v{r+1}\nv_cvt_pk_bf16_f32 v{z+2}, v{r+2}, v{r+3}')
            k(f'buffer_store_dwordx4 {vr(z,4)}, v{5 if u < 4 else 7}, {sr(sWS,4)}, s72 offen {YST}')
            if u < 4: k(f's_add_u32 s72, s72, {8*18432}')
        for u in range(5):
            mfma(YA + 4 * u, DW + 8 * u, BL, True)
            if u < 4: mfma(YA + 4 * u, DW + 8 * u + 4, BH, False)
            if u >= 2: ystore(u - 2)
        ystore(3); ystore(4)
        stamp(8)
        k(f's_waitcnt vmcnt({FACK})')
        if FSL: k(f's_sleep {FSL}')
        if FBAR: k('s_barrier')
        gather('yp', [(wsld(BO + 4 * i, 6, 73 + i, 0, YPOL) if i < 4 else wsld(BO + 16, 17, 73, 0, YPOL), BO + 4 * i, (lambda i=i: mfma(AC, FS if i < 4 else FS5, BO + 4 * i, False))) for i in range(5)] +
               [(wsld(XG, 20, sT1), XG, lambda: (unp(24, XG), unp(26, XG + 2)))], rm[3], rs[3])
        stamp(9)
        for e in range(4): k(f'v_add_f32_dpp v{AC+e}, v{AC+e}, v{AC+e} row_ror:8 {DPPALL}')
        k(f's_mov_b64 exec, 0xff\nds_write_b128 v18, {vr(AC,4)}\ns_waitcnt lgkmcnt(0)\ns_barrier')
        k(f's_cmp_lg_u32 s{sW}, 0\ns_cbranch_scc1 L_exit')
        for i in range(4): k(f'ds_read_b128 {vr(YA+4*i,4)}, v19 offset:{128*i}')
        k('s_waitcnt lgkmcnt(0)')
        sum4(YA)
    if RND:
        rnd4(YA, 8)
        for e in range(4): k(f'v_mul_f32 v{YA+e}, v{GB+e}, v{YA+e}')
        rnd4(YA, 8)
        for e in range(4): k(f'v_add_f32 v{YA+e}, v{24+e}, v{YA+e}')
    else:
        for e in range(4): k(f'v_fma_f32 v{YA+e}, v{GB+e}, v{YA+e}, v{24+e}')
    k(f'v_cvt_pk_bf16_f32 v8, v{YA}, v{YA+1}\nv_cvt_pk_bf16_f32 v9, v{YA+2}, v{YA+3}')
    k(f'buffer_store_dwordx2 v[8:9], v21, {sr(sD_,4)}, 0 offen' + (' sc1' if OSC else ''))
    k(f's_cmp_lg_u32 s{sR}, 0\ns_cbranch_scc1 L_exit')
    k(f'v_mov_b32 v10, s{sEP}\nv_mov_b32 v11, 0\ns_mov_b64 exec, 1\nbuffer_store_dword v10, v11, {sr(sWS,4)}, 0 offen')
    k('s_branch L_exit')

    k.c('=' * 100); k.c('W role: o @ wo slice (4 heads x 64 columns, 8 batches x 2 splits), then row cn'); k.c('=' * 100)
    k.lab('L_wrole')
    WW, OG, MLG, BW, AB = 192, 160, 156, 140, 112
    GA, SEL, RAW, MG, MS, MC, MX, X2 = 160, 92, 76, 60, 64, 68, 72, 128
    sM9, sM10 = 28, 30
    if WHOLD: k(f's_cmp_eq_u32 s{sPRO}, 3\ns_cbranch_scc1 L_wst')
    wstage(WTH, 0, WHN if WHOLD else 16)
    k.lab('L_wst')
    if WHOLD and WHN < 16: wstage(WTH, WHN, 16)
    k(f'v_lshrrev_b32 v8, 2, v3\nv_and_b32 v9, 3, v3\nv_lshl_add_u32 v10, v2, 3, v8\nv_lshlrev_b32 v10, 7, v10\nv_lshl_add_u32 v10, v9, 3, v10\nv_add_u32 v10, s{sST}, v10')
    k('s_waitcnt vmcnt(0)')
    for t_ in range(4):
        for tile in range(4):
            r = WW + (t_ * 4 + tile) * 4
            o = t_ * 4096 + tile * 32
            k(f'ds_read_b64_tr_b16 {vr(r,2)}, v10 offset:{o}\nds_read_b64_tr_b16 {vr(r+2,2)}, v10 offset:{o+512}')
        k('s_waitcnt lgkmcnt(0)')
    locality('w')
    k(f's_cmp_lt_u32 s{sCN}, 8\ns_cselect_b32 s76, 1, 0')
    k('v_mov_b32 v108, 0\nv_mov_b32 v109, 0\nv_mov_b32 v110, 0\nv_mov_b32 v111, 0\ns_cbranch_scc0 L_wnor')
    selmasks(10, 11)
    for r in range(SEL, SEL + 12): k(f'v_mov_b32 v{r}, 0')
    for v in range(3):
        k(f'v_mov_b32_dpp v{SEL+4*v}, v10 quad_perm:[0,1,2,3] row_mask:0xf bank_mask:{1<<v:#x}')
        k(f'v_mov_b32_dpp v{SEL+4*v+2}, v11 quad_perm:[0,1,2,3] row_mask:0xf bank_mask:{1<<v:#x}')
    lbsetup()
    k(f's_mov_b32 s{sM9}, -1\ns_cmp_lt_u32 s{sW}, 2\ns_cselect_b32 s{sM9+1}, 0xff, 0\ns_cselect_b32 s{sT1}, 512, 0\ns_lshl_b32 s{sT0}, s{sLB}, 7')
    k(f'v_lshlrev_b32 v109, 4, v1\nv_cndmask_b32 v109, 0, v109, {sr(sM9,2)}\nv_add_u32 v109, s{sT0}, v109\nv_lshlrev_b32 v111, 3, v109')
    k(f'v_mul_u32_u24 v8, 2304, v2\nv_add_u32 v8, s{sT0}, v8\nv_lshl_add_u32 v108, v3, 4, v8')
    k(f'v_and_b32 v9, 7, v3\nv_lshl_add_u32 v110, v9, 4, v8\nv_add_u32 v110, s{sT1}, v110')
    k(f's_lshl_b32 s{sT0}, s{sCN}, 4\ns_add_u32 s{sT0}, s{sT0}, {WS_MOD + 36864}\ns_add_u32 s{sT1}, s{sT0}, 18432\ns_add_u32 s{sT3}, s{sT0}, 36864')
    k(f's_mul_i32 s{sT2}, s{sCN}, 1152\nv_lshrrev_b32 v8, 1, v109')
    k(f'buffer_load_dwordx2 {vr(RAW+12,2)}, v8, {sr(sD_,4)}, s{sT2} offen')
    poll('rmod', [wsld(RAW, 111, sT0), wsld(RAW + 4, 111, sT1), wsld(RAW + 8, 111, sT3)], [RAW, RAW + 4, RAW + 8], 10, 11, 32)
    for j, d in enumerate((MG, MS, MC)):
        unp(d, RAW + 4 * j); unp(d + 2, RAW + 4 * j + 2)
    unp(MX, RAW + 12); unp(MX + 2, RAW + 13)
    for e in range(4): k(f'v_add_f32 v{MC+e}, 1.0, v{MC+e}')
    rnd4(MC, 8)
    k(f's_mul_i32 s74, s{sCN}, 18432\ns_add_u32 s74, s74, {WS_AP}\ns_add_u32 s75, s74, 9216')
    k(f's_mul_i32 s{sT0}, s{sX}, 18432\ns_lshl_b32 s72, s{sCN}, 4\ns_add_u32 s72, s72, s{sT0}\ns_add_u32 s72, s72, {WS_H2}')
    k(f's_add_u32 s73, s72, {WS_X2 - WS_H2}')
    k(f's_lshl_b32 s{sT2}, s{sW}, 3\ns_add_u32 s{sT2}, s{sT2}, {L_STA}\nv_mov_b32 v22, s{sT2}\nv_mov_b32 v23, {L_STA}')
    for r in (25, 27, 29, 31): k(f'v_mov_b32 v{r}, s{sTAG}')
    for r in [28, 30] + list(range(X2, X2 + 4)): k(f'v_mov_b32 v{r}, 0')
    k(f's_mov_b32 s33, {f2u(1/128):#x}\ns_cmp_lt_u32 s{sW}, 2\ns_cselect_b32 s33, {f2u(1/160):#x}, s33')
    k.lab('L_wnor')
    redaddr(18432, 7, 17, 19)
    k(f'v_lshlrev_b32 v4, 4, v1\ns_lshl_b32 s{sT0}, s{sX}, 2\ns_add_u32 s{sT0}, s{sT0}, s{sW}\ns_lshl_b32 s{sT0}, s{sT0}, 13\ns_add_u32 s{sT0}, s{sT0}, {WS_OP}\ns_add_u32 s32, s{sT0}, 4096')
    k(f's_mul_i32 s{sT1}, s{sX}, 2304\ns_lshl_b32 s{sT2}, s{sCN}, 8\ns_add_u32 s{sT1}, s{sT1}, s{sT2}\ns_add_u32 s{sT1}, s{sT1}, {WS_AP}')
    balance('w'); pace('w')
    for r in list(range(AC, AC + 16)) + list(range(AB, AB + 16)): k(f'v_mov_b32 v{r}, 0')
    stream_done('wpub')
    stamp(5)
    def wact(t_, sp):
        def f():
            b = OG + (2 * t_ + sp) * 4
            strip(b)
            for tile in range(4): mfma((AB if sp else AC) + 4 * tile, WW + (t_ * 4 + tile) * 4, b, False)
        return f
    def mlact():
        k(f'v_max_f32_dpp v20, v{MLG}, v{MLG} row_ror:8 {DPPALL}\nv_sub_f32 v20, v{MLG}, v20\nv_exp_f32 v20, v20')
        k(f'v_mul_f32 v21, v20, v{MLG+2}\nv_add_f32_dpp v21, v21, v21 row_ror:8 {DPPALL}\nv_rcp_f32 v21, v21\nv_mul_f32 v20, v20, v21')
        k(f'v_mov_b32_dpp v21, v20 row_ror:8 {DPPALL}')
    gather('op', [(wsld(OG + 4 * i, 4, sT0 if i < 4 else 32, 1024 * (i & 3)), OG + 4 * i, lambda: None) for i in range(8)], rm[0], rs[0])
    if True:
        def wb(t_):
            A_, B_ = OG + 8 * t_, OG + 8 * t_ + 4
            k(f'v_mov_b32 v{A_+1}, v{A_+2}\nv_mov_b32 v{A_+2}, v{B_}\nv_mov_b32 v{A_+3}, v{B_+2}')
        wb(0)
        for t_ in range(4):
            for tile in range(4):
                mfma(AC + 4 * tile, WW + (t_ * 4 + tile) * 4, OG + 8 * t_, t_ == 0)
                if tile == 0 and t_ < 3: wb(t_ + 1)
        stamp(6)
        for r in range(16): k(f'v_add_f32_dpp v{AC+r}, v{AC+r}, v{AC+r} row_ror:8 {DPPALL}')
    reduce_publish(BW, 16, 7, sT1)
    stamp(7)
    k('s_cmp_eq_u32 s76, 0\ns_cbranch_scc1 L_exit')
    k.c('---- row cn: x2 = x + ga * attn, h2 = LayerNorm(x2) * (1 + cb) + sb')
    if RACK == 0: k('s_waitcnt vmcnt(0)')
    elif RACK > 0: k(f's_sleep {RACK}')
    gather('ap', [(wsld(GA + (u * 3 + v) * 4, 108, 74 + u, 256 * v, APOL) if v < 2 else wsld(GA + (u * 3 + v) * 4, 110, 74 + u, 0, APOL), GA + (u * 3 + v) * 4,
                   (lambda u=u, v=v: mfma(X2, SEL + 4 * v, GA + (u * 3 + v) * 4, False))) for u in range(2) for v in range(3)], rm[1], rs[1])
    stamp(8)
    if RND:
        rnd4(X2, 8)
        for e in range(4): k(f'v_mul_f32 v{X2+e}, v{MG+e}, v{X2+e}')
        rnd4(X2, 8)
        for e in range(4): k(f'v_add_f32 v{X2+e}, v{MX+e}, v{X2+e}')
        k(f'v_cvt_pk_bf16_f32 v24, v{X2}, v{X2+1}\nv_cvt_pk_bf16_f32 v26, v{X2+2}, v{X2+3}')
        unp(X2, 24); unp(X2 + 2, 26)
    else:
        for e in range(4): k(f'v_fma_f32 v{X2+e}, v{MG+e}, v{X2+e}, v{MX+e}')
    k(f'v_readfirstlane_b32 s{sT2}, v{X2}')
    for e in range(4): k(f'v_subrev_f32 v{12+e}, s{sT2}, v{X2+e}')
    k('v_add_f32 v8, v12, v13\nv_mul_f32 v9, v12, v12\nv_add_f32 v10, v14, v15\nv_fmac_f32 v9, v13, v13\nv_add_f32 v8, v8, v10\nv_fmac_f32 v9, v14, v14\nv_fmac_f32 v9, v15, v15')
    k(f'v_cndmask_b32 v8, 0, v8, {sr(sM9,2)}\nv_cndmask_b32 v9, 0, v9, {sr(sM9,2)}')
    for m in ('row_shr:1 row_mask:0xf', 'row_shr:2 row_mask:0xf', 'row_shr:4 row_mask:0xf', 'row_shr:8 row_mask:0xf', 'row_bcast:15 row_mask:0xa', 'row_bcast:31 row_mask:0xc'):
        bc = ' bound_ctrl:0' if 'shr' in m else ''
        k(f'v_add_f32_dpp v8, v8, v8 {m} bank_mask:0xf{bc}\nv_add_f32_dpp v9, v9, v9 {m} bank_mask:0xf{bc}')
    k(f'v_mul_f32 v10, s33, v8\nv_fma_f32 v9, -v10, v8, v9\nv_add_f32 v8, s{sT2}, v10')
    k('s_mov_b32 exec_lo, 0\ns_mov_b32 exec_hi, 0x8000\nds_write_b64 v22, v[8:9]\ns_mov_b64 exec, -1')
    if not RND: k(f'v_cvt_pk_bf16_f32 v24, v{X2}, v{X2+1}\nv_cvt_pk_bf16_f32 v26, v{X2+2}, v{X2+3}')
    k('s_waitcnt lgkmcnt(0)\ns_barrier')
    k(f'ds_read_b128 {vr(AC,4)}, v23\nds_read_b128 {vr(AC+4,4)}, v23 offset:16\ns_waitcnt lgkmcnt(0)')
    wa, wb_ = f2u(160 / 576), f2u(128 / 576)
    k(f'v_add_f32 v8, v{AC}, v{AC+2}\nv_add_f32 v9, v{AC+4}, v{AC+6}\nv_add_f32 v10, v{AC+1}, v{AC+3}\nv_add_f32 v11, v{AC+5}, v{AC+7}')
    k(f'v_mul_f32 v8, {wa:#x}, v8\nv_add_f32 v10, v10, v11\nv_fmac_f32 v8, {wb_:#x}, v9\nv_mul_f32 v10, 0x3ae38e39, v10')
    for i in range(4): k(f'v_sub_f32 v{AC+2*i}, v{AC+2*i}, v8')
    k(f'v_mul_f32 v9, v{AC}, v{AC}\nv_mul_f32 v11, v{AC+4}, v{AC+4}\nv_fmac_f32 v9, v{AC+2}, v{AC+2}\nv_fmac_f32 v11, v{AC+6}, v{AC+6}')
    k(f'v_fmac_f32 v10, {wa:#x}, v9\nv_fmac_f32 v10, {wb_:#x}, v11\nv_max_f32 v10, 0, v10')
    if RND:
        rnd2(8, 10, 9)
        k('v_add_f32 v10, 0x3727c5ac, v10')
        for e in range(4): k(f'v_sub_f32 v{X2+e}, v{X2+e}, v8')
        rnd1(10, 9)
        k('v_sqrt_f32 v10, v10')
        rnd4(X2, 12)
        rnd1(10, 9)
        k('v_rcp_f32 v10, v10')
        for e in range(4): k(f'v_mul_f32 v{X2+e}, v{X2+e}, v10')
        rnd4(X2, 12)
        for e in range(4): k(f'v_mul_f32 v{X2+e}, v{X2+e}, v{MC+e}')
        rnd4(X2, 12)
        for e in range(4): k(f'v_add_f32 v{X2+e}, v{X2+e}, v{MS+e}')
    else:
        k('v_add_f32 v10, 0x3727c5ac, v10\nv_rsq_f32 v10, v10')
        for e in range(4): k(f'v_sub_f32 v{X2+e}, v{X2+e}, v8')
        for e in range(4): k(f'v_mul_f32 v{X2+e}, v{X2+e}, v{MC+e}')
        for e in range(4): k(f'v_fma_f32 v{X2+e}, v{X2+e}, v10, v{MS+e}')
    k(f'v_cvt_pk_bf16_f32 v28, v{X2}, v{X2+1}\nv_cvt_pk_bf16_f32 v30, v{X2+2}, v{X2+3}')
    k(f's_mov_b64 exec, {sr(sM9,2)}')
    st2(f'buffer_store_dwordx4 v[28:31], v111, {sr(sWS,4)}, s72 offen', 34, LH)
    st2(f'buffer_store_dwordx4 v[24:27], v111, {sr(sWS,4)}, s73 offen', 34, LH)
    stamp(9)
    k('s_branch L_exit')

    k.lab('L_nrole')
    locality('n')
    if WARM:
        k(f's_cmp_lg_u32 s{sW}, 0\ns_cbranch_scc1 L_nwarm\ns_cmp_lg_u32 s{sIP}, {[u for u, (r, _) in enumerate(TAIL) if r == 3][0]}\ns_cbranch_scc1 L_nwarm')
        ldswait('nw', F_POS, WARM - P0, 32)
        k(f'v_lshlrev_b32 v8, 7, v1\ns_lshl_b32 s{sT0}, s{sX}, 15\ns_add_u32 s{sT0}, s{sT0}, {WS_OP}')
        for i in range(4):
            k(f'buffer_load_dword v{16+i}, v8, {sr(sWS,4)}, s{sT0} offen sc1\ns_add_u32 s{sT0}, s{sT0}, 8192')
        k('s_waitcnt vmcnt(0)')
        k.lab('L_nwarm')
    if CPF:
        k(f's_cmp_lg_u32 s{sW}, 3\ns_cbranch_scc1 L_ncpf\ns_cmp_lg_u32 s{sIP}, {[u for u, (r, _) in enumerate(TAIL) if r == 3][1]}\ns_cbranch_scc1 L_ncpf')
        ldswait('cpf', F_POS, CPF - P0, 32)
        k('s_getpc_b64 s[18:19]')
        k.lab('L_cpc')
        k('s_sub_u32 s18, s18, L_cpc-L_send\ns_subb_u32 s19, s19, 0\nv_lshlrev_b32 v8, 7, v1')
        for i in range(3):
            k(f'v_min_u32 v9, L_cpc-L_send, v8\nglobal_load_dword v{16+i}, v9, s[18:19]\nv_add_u32 v8, 8192, v8')
        k('s_waitcnt vmcnt(0)')
        k.lab('L_ncpf')
    balance('n'); pace('n')
    if NPF:
        nn = [u for u, (r, _) in enumerate(TAIL) if r == 3]
        nm = sum(1 << u for u in nn)
        srd(sC_, pDN, 4608 * 1152)
        k(f's_bfm_b32 s18, s{sIP}, 0\ns_and_b32 s18, s18, {nm:#x}\ns_bcnt1_i32_b32 s18, s18\ns_lshl_b32 s18, s18, 2\ns_add_u32 s18, s18, s{sW}')
        k(f'v_min_u32 v8, {NPF*8-1}, v1\nv_lshlrev_b32 v8, 7, v8\ns_mul_i32 s19, s{sX}, {18*36864}\ns_add_u32 s19, s19, {9216 - NPF*1024}')
        k(f's_mul_i32 s20, s18, 9216\ns_add_u32 s19, s19, s20')
        if NPU:
            srd(sB_, pUP, 576 * 9216)
            k(f'v_min_u32 v9, 62, v1\nv_mul_u32_u24 v10, 7282, v9\nv_lshrrev_b32 v10, 16, v10\nv_mul_u32_u24 v10, {9216 - 9*128}, v10\nv_lshl_add_u32 v9, v9, 7, v10')
            k(f's_mul_i32 s21, s{sW}, 160\ns_add_u32 s21, s21, 160\ns_cmp_eq_u32 s{sW}, 2\ns_cselect_b32 s21, 448, s21\ns_cmp_eq_u32 s{sW}, 3\ns_cselect_b32 s21, 576, s21')
            k(f's_lshr_b32 s20, s18, 2\ns_mul_i32 s20, s20, 7\ns_add_u32 s21, s21, s20\ns_sub_u32 s21, s21, {35 * NPU}\ns_mul_i32 s21, s21, 9216\ns_mul_i32 s20, s{sX}, 1152\ns_add_u32 s21, s21, s20')
        ldswait('npf', F_PUB, 1, 2)
        for i in range(NPU):
            k(f'buffer_load_dword v{24+i}, v9, {sr(sB_,4)}, s21 offen\ns_add_u32 s21, s21, {35*9216}')
        for i in range(4):
            if i == 3: k('s_cmp_ge_u32 s18, 12\ns_cbranch_scc1 L_exit')
            k(f'buffer_load_dword v{16+i}, v8, {sr(sC_,4)}, s19 offen\ns_add_u32 s19, s19, {20*9216}')

    k.lab('L_exit')
    if DIAG is not None:
        if DIAG == 10: stamp(10)
        if DG is not None: k(f's_cmp_lt_u32 s2, {DG[0]}\ns_cbranch_scc1 L_end\ns_cmp_gt_u32 s2, {DG[1]}\ns_cbranch_scc1 L_end')
        k(f's_cmp_lt_u32 s3, 4\ns_cbranch_scc1 L_end\ns_waitcnt lgkmcnt(0)\ns_add_u32 s62, s{STR[DIAG]}, 15000')
        k.lab('L_spin')
        k('s_sleep 2\ns_memrealtime s[64:65]\ns_waitcnt lgkmcnt(0)\ns_sub_u32 s64, s64, s62\ns_cmp_lt_i32 s64, 0\ns_cbranch_scc1 L_spin')
    if PROF:
        stamp(10)
        k(f's_waitcnt lgkmcnt(0)\ns_lshl_b32 s{sT0}, s2, 3\ns_add_u32 s{sT0}, s{sT0}, s3\ns_lshl_b32 s{sT0}, s{sT0}, 7\ns_add_u32 s{sT0}, s{sT0}, {WS_PROF}')
        k('s_mov_b64 exec, 1\nv_mov_b32 v8, 0')
        for i in range(0, 12, 2):
            for j in range(2):
                if i + j < 11: k(f'v_mov_b32 v{12+2*j}, s{STR[i+j]}\nv_mov_b32 v{13+2*j}, s{STR[i+j]+1}')
                else: k(f'v_mov_b32 v14, s{sTO}\nv_mov_b32 v15, 0\nv_lshl_add_u32 v15, s{78 if SW else 28}, 16, v15')
            k(f'buffer_store_dwordx4 v[12:15], v8, {sr(sWS,4)}, s{sT0} offen offset:{8*i}')
    k.lab('L_end')
    k('s_endpgm')
    k.lab('L_codeend')

    body = fix_hazards(k.L)
    hdr = open('cdna_kernels/' + NAME + '.s.ref').read().split('; Override launch')[0]
    out = [hdr.rstrip('\n'),
           f'; @launch grid=(256,1,1) block=(512,1,1) lds={LDS_BYTES}',
           DOC.rstrip(), '.amdgcn_target "amdgcn-amd-amdhsa--gfx950"', '.text', f'.globl {NAME}_kernel', '.p2align 8',
           f'.type {NAME}_kernel,@function', f'{NAME}_kernel:', 'L_start:']
    out += body
    out += ['.section .rodata,"a"', '.p2align 6', f'.amdhsa_kernel {NAME}_kernel',
            '  .amdhsa_next_free_vgpr 256', '  .amdhsa_next_free_sgpr 102', '  .amdhsa_accum_offset 256',
            '  .amdhsa_group_segment_fixed_size 0', '  .amdhsa_kernarg_size 112', '  .amdhsa_user_sgpr_count 2',
            '  .amdhsa_user_sgpr_kernarg_segment_ptr 1', '  .amdhsa_system_sgpr_workgroup_id_x 1', '.end_amdhsa_kernel']
    return '\n'.join(out) + '\n'

if __name__ == '__main__':
    kw = eval('dict(' + (sys.argv[2] if len(sys.argv) > 2 else '') + ')')
    open(sys.argv[1], 'w').write(gen(**kw))
```
